```python
import torch

def _softmax(x, axis=-1):
    return torch.softmax(x, dim=axis)

def _gelu(x):
    return torch.nn.functional.gelu(x, approximate='tanh')

def _silu(x):
    return torch.nn.functional.silu(x)

def _sigmoid(x):
    return torch.sigmoid(x)

def _layernorm(x, axis=-1, eps=1e-05):
    m = x.mean(dim=axis, keepdim=True)
    v = x.var(dim=axis, keepdim=True, unbiased=False)
    return (x - m) / torch.sqrt(v + eps)

def _scatter_add(tgt, idx, src, axis=0):
    return tgt.clone().index_add_(axis, idx, src)

def _segment_sum(src, seg, n):
    out = torch.zeros((n,) + src.shape[1:], dtype=src.dtype)
    return out.index_add_(0, seg, src)

def _pad(x, pw):
    flat = tuple((v for pair in reversed(pw) for v in pair))
    return torch.nn.functional.pad(x, flat)
kernel_name = 'adaLN_cond__ssm_conv_s4__swiglu_ffn__prompt'

def setup_inputs():

    _w = lambda a: (lambda t: t.to(torch.bfloat16) if t.is_floating_point() else t)(torch.as_tensor(a))

    def _A_setup():
        B, L, D, N = (1, 2048, 448, 256)
        A_re = -(lambda _x: torch.exp(torch.as_tensor(_x)))((lambda *s: torch.randn(*s, dtype=torch.bfloat16) * 3.2)(D, N))
        A_im = torch.pi * (lambda *s: torch.randn(*s, dtype=torch.bfloat16) * 0.1)(D, N)
        B_re = (lambda *s: torch.randn(*s, dtype=torch.bfloat16) * 0.1)(D, N)
        B_im = (lambda *s: torch.randn(*s, dtype=torch.bfloat16) * 0.1)(D, N)
        C_re = (lambda *s: torch.randn(*s, dtype=torch.bfloat16) * 0.1)(D, N)
        C_im = (lambda *s: torch.randn(*s, dtype=torch.bfloat16) * 0.1)(D, N)
        log_dt = (lambda *s: torch.randn(*s, dtype=torch.bfloat16) * 0.1)(D) * 0.5 - 4.0
        Dskip = (lambda *s: torch.randn(*s, dtype=torch.bfloat16) * 0.1)(D)
        return {'u': _w((lambda *s: torch.randn(*s, dtype=torch.bfloat16) * 0.05)(B, L, D)), 'A_re': _w(A_re), 'A_im': _w(A_im), 'B_re': _w(B_re), 'B_im': _w(B_im), 'C_re': _w(C_re), 'C_im': _w(C_im), 'log_dt': _w(log_dt), 'Dskip': _w(Dskip)}
    _A_in = _A_setup()

    def _B_setup():
        B, S, D, F = (1, 2048, 448, 1792)
        return {'x': _w((lambda *s: torch.randn(*s, dtype=torch.bfloat16) * 0.05)(B, S, D)), 'w_gate': _w((lambda *s: torch.randn(*s, dtype=torch.bfloat16) * 0.05)(D, F)), 'w_up': _w((lambda *s: torch.randn(*s, dtype=torch.bfloat16) * 0.05)(D, F)), 'w_down': _w((lambda *s: torch.randn(*s, dtype=torch.bfloat16) * 0.05)(F, D))}
    _B_in = _B_setup()
    return {'A_u': _A_in['u'], 'A_A_re': _A_in['A_re'], 'A_A_im': _A_in['A_im'], 'A_B_re': _A_in['B_re'], 'A_B_im': _A_in['B_im'], 'A_C_re': _A_in['C_re'], 'A_C_im': _A_in['C_im'], 'A_log_dt': _A_in['log_dt'], 'A_Dskip': _A_in['Dskip'], 'B_x': _B_in['x'], 'B_w_gate': _B_in['w_gate'], 'B_w_up': _B_in['w_up'], 'B_w_down': _B_in['w_down'], 'c': _w((lambda *s: torch.randn(*s, dtype=torch.bfloat16) * 0.1)(1, 448) * 8.0), 'w_mod': _w((lambda *s: torch.randn(*s, dtype=torch.bfloat16) * 0.1)(448, 6 * 448) * 448 ** (-0.5) * 8.0)}

def reference(A_u, A_A_re, A_A_im, A_B_re, A_B_im, A_C_re, A_C_im, A_log_dt, A_Dskip, B_x, B_w_gate, B_w_up, B_w_down, c, w_mod):

    def _A_ref(u, A_re, A_im, B_re, B_im, C_re, C_im, log_dt, Dskip):
        Bsz, L, D = u.shape
        dt = torch.exp(log_dt)[:, None]
        A = A_re + 1j * A_im
        Bc = B_re + 1j * B_im
        Cc = C_re + 1j * C_im
        logdA = dt * A
        dB = dt * Bc
        l = (lambda x, dt: x.to(dt))(torch.arange(L), A_re.dtype)
        P = torch.exp(logdA[:, :, None] * l[None, None, :])
        K = torch.einsum('dn,dnl,dn->dl', Cc, P, dB).real
        L2 = 2 * L
        Kp = _pad(K, ((0, 0), (0, L)))
        up = (lambda x, *d: x.permute(*d))(u, 0, 2, 1)
        up = _pad(up, ((0, 0), (0, 0), (0, L)))
        Kf = (lambda x, axes=(-2, -1): torch.fft.rfft2(x.float(), dim=axes))(Kp[:, None, :], axes=(-2, -1))
        Uf = (lambda x, axes=(-2, -1): torch.fft.rfft2(x.float(), dim=axes))(up[:, :, None, :], axes=(-2, -1))
        Yf = Uf * Kf[None, :, :, :]
        y = (lambda x, s, axes=(-2, -1): torch.fft.irfft2(x, s=s, dim=axes).to(torch.bfloat16))(Yf, (1, L2), axes=(-2, -1))[:, :, 0, :L]
        y = (lambda x, *d: x.permute(*d))(y, 0, 2, 1) + u * Dskip[None, None, :]
        return y

    def _B_ref(x, w_gate, w_up, w_down):
        g = _silu(x @ w_gate)
        u = x @ w_up
        return g * u @ w_down
    x = A_u
    mod = (_silu(c) @ w_mod).reshape(c.shape[0], 6, 1, -1)
    sa, ca, ga, sb, cb, gb = (mod[:, 0].clone(), mod[:, 1].clone(), mod[:, 2].clone(), mod[:, 3].clone(), mod[:, 4].clone(), mod[:, 5].clone())
    h = _layernorm(x, axis=-1) * (1 + ca) + sa
    x = x + ga * _A_ref(h, A_A_re, A_A_im, A_B_re, A_B_im, A_C_re, A_C_im, A_log_dt, A_Dskip)
    h = _layernorm(x, axis=-1) * (1 + cb) + sb
    x = x + gb * _B_ref(h, B_w_gate, B_w_up, B_w_down)
    return x
```

```python
import re

REG = re.compile(r'^(-|\|)?(abs\()?([vas])(\d+|\[(\d+):(\d+)\])\)?\|?$')
TRANS = ('v_exp_f32', 'v_log_f32', 'v_rcp_f32', 'v_rsq_f32', 'v_sqrt_f32', 'v_sin_f32', 'v_cos_f32')


def regs_of(tok):
    tok = tok.strip()
    if tok in ('vcc', 'vcc_lo', 'vcc_hi'):
        return {('s', 'vcc')}
    if tok in ('exec', 'exec_lo', 'exec_hi'):
        return {('s', 'exec')}
    if tok == 'm0':
        return {('s', 'm0')}
    m = REG.match(tok)
    if not m:
        return set()
    k = m.group(3)
    if m.group(5) is not None:
        return {(k, i) for i in range(int(m.group(5)), int(m.group(6)) + 1)}
    return {(k, int(m.group(4)))}


class Ins:
    def __init__(self, text):
        self.text = text
        body = text.split(';')[0].strip()
        parts = body.split(None, 1)
        self.op = parts[0]
        rest = parts[1] if len(parts) > 1 else ''
        ops, depth, cur = [], 0, ''
        for ch in rest:
            if ch == '[':
                depth += 1
            if ch == ']':
                depth -= 1
            if ch == ',' and depth == 0:
                ops.append(cur.strip())
                cur = ''
            else:
                cur += ch
        mods = ''
        if cur.strip():
            last = cur.strip().split(None, 1)
            ops.append(last[0])
            mods = last[1] if len(last) > 1 else ''
        self.ops, self.mods = ops, mods
        op = self.op
        R = [regs_of(o) for o in ops]
        allr = set().union(*R) if R else set()
        self.mfma = op.startswith('v_mfma')
        self.valu = op.startswith('v_') and not self.mfma
        self.trans = any(op.startswith(t) for t in TRANS)
        self.dot = op.startswith('v_dot')
        self.dpp = '_dpp' in op
        self.perm = op.startswith('v_permlane')
        self.lane = op.startswith('v_readlane') or op.startswith('v_readfirstlane') or op.startswith('v_writelane')
        self.ds = op.startswith('ds_')
        self.vmem = op.startswith('buffer_') or op.startswith('global_')
        self.salu = op.startswith('s_')
        self.ldsdma = self.vmem and (' lds' in ' ' + mods or '_lds_' in op)
        self.usem0 = self.ldsdma or 'addtid' in op
        self.wr, self.rd = set(), set()
        self.states = 1
        if op == 's_nop':
            self.states = int(ops[0], 0) + 1
        if self.mfma:
            self.wr = R[0]
            self.srcA, self.srcB, self.srcC = R[1], R[2], R[3]
            self.rd = R[1] | R[2] | R[3]
            self.passes = 8 if '32x32' in op else 4
        elif self.valu:
            nd = 2 if ('_co_' in op and not op.startswith('v_cmp')) else 1
            self.wr = set().union(*R[:nd])
            self.rd = set().union(*R[nd:]) if len(R) > nd else set()
            if self.perm:
                self.wr = allr
                self.rd = allr
            if op.startswith('v_fmac') or op.startswith('v_dot2c') or self.dpp or op.startswith('v_writelane'):
                self.rd |= R[0]
            if op.startswith('v_cmpx'):
                self.wr = self.wr | {('s', 'exec')}
            if op.startswith('v_cndmask') and len(ops) == 3:
                self.rd |= {('s', 'vcc')}
        elif self.ds:
            if op.startswith('ds_read') or op.startswith('ds_bpermute') or op.startswith('ds_swizzle'):
                self.wr = R[0]
                self.rd = set().union(*R[1:]) if len(R) > 1 else set()
            else:
                self.rd = allr
        elif self.vmem:
            if '_load' in op and not self.ldsdma:
                self.wr = R[0]
                self.rd = set().union(*R[1:])
            else:
                self.rd = allr
            self.widestore = ('store_dwordx4' in op or 'store_dwordx3' in op)
            if self.widestore:
                self.stdata = R[0] if op.startswith('buffer_') else R[1]
        elif self.salu:
            nodst = ('s_cmp', 's_waitcnt', 's_nop', 's_barrier', 's_branch', 's_cbranch', 's_endpgm', 's_sleep', 's_setprio', 's_bitcmp')
            if not op.startswith(nodst) and R:
                self.wr = R[0]
                self.rd = set().union(*R[1:]) if len(R) > 1 else set()
                if 'saveexec' in op:
                    self.wr = self.wr | {('s', 'exec')}
            else:
                self.rd = allr


def need(p, c):
    n = 0
    vw = {r for r in p.wr if r[0] in 'va'}
    sw = {r for r in p.wr if r[0] == 's'}
    if p.mfma:
        big = 12 if p.passes == 8 else 8
        if c.mfma:
            if vw & (c.srcA | c.srcB):
                n = max(n, big)
            if vw & c.srcC and not (vw == c.srcC and p.passes == c.passes):
                n = max(n, 10 if p.passes == 8 else 6)
            if vw & c.wr and not (vw & c.srcC):
                n = max(n, big)
        elif vw & (c.rd | c.wr):
            n = max(n, big)
        if c.valu and p.srcC & c.wr:
            n = max(n, 7 if p.passes == 8 else 3)
    if p.valu:
        if c.mfma and vw & c.rd:
            n = max(n, 2)
        if p.trans and c.valu and vw & c.rd:
            n = max(n, 1)
        if (c.dpp or c.perm) and vw & c.rd:
            n = max(n, 2)
        if c.lane and vw & c.rd:
            n = max(n, 1)
        if p.dot and vw & (c.rd | c.wr):
            same = c.op == p.op and not (vw & set().union(*[regs_of(o) for o in c.ops[1:3]]))
            if not same:
                n = max(n, 3)
        if ('s', 'exec') in sw and (c.dpp or c.perm or c.lane or c.mfma):
            n = max(n, 5)
        if sw:
            if c.valu and sw & c.rd:
                n = max(n, 4 if c.lane else 2)
            if c.vmem and sw & c.rd:
                n = max(n, 5)
            if c.salu and sw & c.rd:
                n = max(n, 1)
            if c.op.startswith('s_cbranch_vcc') and ('s', 'vcc') in sw:
                n = max(n, 1)
    if p.salu and ('s', 'm0') in p.wr and c.usem0:
        n = max(n, 1)
    if p.salu and ('s', 'exec') in p.wr and (c.dpp or c.perm or c.lane):
        n = max(n, 1)
    if p.vmem and getattr(p, 'widestore', False) and p.stdata & c.wr:
        n = max(n, 2)
    return n


def pad_hazards(lines):
    back = {}
    for _ in range(3):
        out, hists, fwd, seen, newback = [], [[]], {}, set(), {}
        for ln in lines:
            s = ln.strip()
            if not s or s.startswith(';') or s.startswith('.'):
                out.append(ln)
                continue
            if s.endswith(':'):
                lab = s[:-1]
                seen.add(lab)
                hists = hists + fwd.get(lab, []) + back.get(lab, [])
                out.append(ln)
                continue
            c = Ins(s)
            gap = 0
            for h in hists:
                for p, age in h:
                    gap = max(gap, need(p, c) - age)
            while gap > 0:
                k = min(gap, 16)
                out.append(f'    s_nop {k - 1}')
                hists = [[(p, a + k) for p, a in h] for h in hists]
                gap -= k
            out.append(ln)
            merged = {}
            for h in hists:
                for p, a in h:
                    if a + c.states < 14:
                        key = id(p)
                        if key not in merged or merged[key][1] > a + c.states:
                            merged[key] = (p, a + c.states)
            h = list(merged.values()) + [(c, 0)]
            hists = [h]
            if c.op.startswith('s_cbranch') or c.op == 's_branch':
                tgt = c.ops[0]
                (newback if tgt in seen else fwd).setdefault(tgt, []).append(list(h))
                if c.op == 's_branch':
                    hists = [[]]
            if c.op == 's_endpgm':
                hists = [[]]
        lines, back = out, newback
    return lines


class Regs:
    def __init__(self, kind, start, end):
        self.kind, self.pos, self.end = kind, start, end
        self.hi = start

    def get(self, n=1, align=1):
        if n > 1 and align == 1:
            align = 2
        self.pos = (self.pos + align - 1) // align * align
        r = self.pos
        self.pos += n
        assert self.pos <= self.end, f'out of {self.kind} registers'
        self.hi = max(self.hi, self.pos)
        return r

    def mark(self):
        return self.pos

    def release(self, m):
        self.pos = m


def v(r, n=1):
    return f'v{r}' if n == 1 else f'v[{r}:{r + n - 1}]'


def a(r, n=1):
    return f'a{r}' if n == 1 else f'a[{r}:{r + n - 1}]'


def s(r, n=1):
    return f's{r}' if n == 1 else f's[{r}:{r + n - 1}]'


class Asm:
    def __init__(self):
        self.lines = []

    def __call__(self, text):
        for ln in text.split('\n'):
            t = ln.strip()
            if not t:
                continue
            self.lines.append(t if t.endswith(':') else '    ' + t)

    def ext(self, lst):
        for x in lst:
            self(x)


def interleave(main, fill, per=None, start=0, end=None):
    end = len(main) if end is None else end
    n = end - start
    out, done = [], 0
    for i, m in enumerate(main):
        out.append(m)
        if start <= i < end:
            tgt = (len(fill) * (i - start + 1) + n - 1) // n
            if per is not None:
                tgt = min(len(fill), done + per)
            out.extend(fill[done:tgt])
            done = max(done, tgt)
    out.extend(fill[done:])
    return out


def resolve_waits(lines):
    out, vm, lg = [], [], []
    for ln in lines:
        t = ln.strip()
        if t.startswith('@vm') or t.startswith('@lg'):
            kind, tags = t.split(None, 1)
            q = vm if kind == '@vm' else lg
            idx = [i for i, x in enumerate(q) if x in tags.split()]
            if not idx:
                continue
            n = sum(1 for x in q[max(idx) + 1:] if x != 'cond')
            lim = 63 if kind == '@vm' else 15
            n = min(n, lim)
            out.append(f'    s_waitcnt {"vmcnt" if kind == "@vm" else "lgkmcnt"}({n})')
            del q[:max(idx) + 1]
            continue
        if t and not t.endswith(':') and not t.startswith(';') and not t.startswith('.'):
            op = t.split()[0]
            tag = t.split(';#')[1].strip() if ';#' in t else ''
            if op.startswith('buffer_') or op.startswith('global_'):
                vm.append(tag)
            elif op.startswith('ds_'):
                lg.append(tag)
            elif op == 's_waitcnt' and tag != 'cond':
                if 'vmcnt(0)' in t:
                    vm.clear()
                if 'lgkmcnt(0)' in t:
                    lg.clear()
            ln = ln.split(';#')[0].rstrip()
        out.append(ln)
    return out


def tagged(lst, tag):
    out = []
    for x in lst:
        op = x.split()[0]
        out.append(x + ' ;#' + tag if op.startswith(('buffer_', 'global_', 'ds_')) and ';#' not in x else x)
    return out
```

```python
import sys
from asmgen import *

NAME = 'adaLN_cond__ssm_conv_s4__swiglu_ffn__prompt_kernel'
OPT = dict(ts=0, stop=99)
for arg in sys.argv[2:]:
    k, val = arg.split('=')
    OPT[k] = int(val)

EP, ST1, MOD, AUG, ST2, FL2, FL3 = 0, 0x1000, 0x8000, 0x14000, 0x24000, 0x38000, 0x40000
INB, XS, X1P, ACT, TS = 0x100000, 0x500000, 0x700000, 0x900000, 0x1800000
SL = [0, 32768, 65536, 98304, 131072]
KG_W = 16320
HB, HC = 65536, 4160
KT, KT_CH, KT_C0 = 98816, 9152, 4568
XR = 117120
MISC = 125312
SPIN = 200000

pX, pAre, pAim, pBre, pBim, pCre, pCim, pLdt, pDs, pBx, pWg, pWu, pWd, pC, pWm, pOut, pDbg, pWs = range(4, 40, 2)
rX, rWS, rW, rWd, rOut, rWm = 40, 44, 48, 52, 56, 60
sWave, sTag, sJ, sMi, sNi, sMt, sNt, sRot, sLdt, sDs, sT0, sT1, sT2, sT3, sSpin, sM2 = range(64, 80)
sTS = 80
sC = 4
sW1k, sW8k, sWo, sFl, sTb = 11, 12, 13, 14, 15

A = Asm()
V = Regs('v', 2, 256)
TID, LANE = 0, 1
nts = [0]


def ts():
    if OPT['ts']:
        A(f's_mem{"real" if OPT["ts"] == 1 else ""}time {s(sTS + 2 * nts[0], 2)}')
        nts[0] += 1
        assert nts[0] <= 11


def ts_flush(tag):
    if not OPT['ts']:
        return
    n = nts[0]
    A('s_waitcnt lgkmcnt(0)')
    A(f's_lshl_b32 {s(sT0)}, s2, 2')
    A(f's_add_u32 {s(sT0)}, {s(sT0)}, {s(sWave)}')
    A(f's_lshl_b32 {s(sT0)}, {s(sT0)}, 6')
    A(f's_add_u32 {s(sT0)}, {s(sT0)}, {TS}')
    A(f'v_mov_b32 v2, {s(sT0)}')
    for i in range(n):
        A(f'v_mov_b32 v3, {s(sTS + 2 * i)}')
        A(f'buffer_store_dword v3, v2, {s(rWS, 4)}, 0 offen offset:{4 * i}')


def srd(r, p, nbytes):
    A(f's_mov_b32 {s(r)}, {s(p)}')
    A(f's_mov_b32 {s(r + 1)}, {s(p + 1)}')
    A(f's_mov_b32 {s(r + 2)}, {nbytes}')
    A(f's_mov_b32 {s(r + 3)}, 0x00020000')


def cmul(d, x, y):
    return [f'v_pk_mul_f32 {v(d, 2)}, {v(x, 2)}, {v(y, 2)} op_sel:[0,0] op_sel_hi:[1,0]',
            f'v_pk_fma_f32 {v(d, 2)}, {v(x, 2)}, {v(y, 2)}, {v(d, 2)} op_sel:[1,1,0] op_sel_hi:[0,1,1] neg_lo:[0,1,0]']


def div7(q, r, x):
    A(f's_mul_i32 {s(q)}, {s(x)}, 9363')
    A(f's_lshr_b32 {s(q)}, {s(q)}, 16')
    A(f's_mul_i32 {s(r)}, {s(q)}, 7')
    A(f's_sub_u32 {s(r)}, {s(x)}, {s(r)}')


def tag_wait(label, loads, tags, younger=0):
    o = [f's_mov_b32 {s(sSpin)}, {SPIN}']
    o.append(f'@vm {younger}' if isinstance(younger, str) else f's_waitcnt vmcnt({younger})')
    o.append(f'{label}_chk:')
    o += [f'v_cmpx_eq_u32 vcc, {s(sTag)}, {v(t)}' for t in tags]
    o += ['s_nop 0', 's_cmp_eq_u64 exec, -1', 's_mov_b64 exec, -1', f's_cbranch_scc1 {label}_ok',
          f's_sub_u32 {s(sSpin)}, {s(sSpin)}, 1', f's_cmp_eq_u32 {s(sSpin)}, 0', f's_cbranch_scc1 {label}_ok', 's_sleep 1']
    o += tagged([x.split(';#')[0] for x in loads], 'cond')
    o += ['s_waitcnt vmcnt(0) ;#cond', f's_branch {label}_chk', f'{label}_ok:']
    return '\n'.join(o)


def stats1_loads(d):
    t0, t1 = V.get(), V.get()
    A(f's_lshl_b32 {s(sT0)}, s2, 2')
    A(f's_add_u32 {s(sT0)}, {s(sT0)}, {s(sWave)}')
    A(f's_mul_i32 {s(sT0)}, {s(sT0)}, 1792')
    A(f'v_lshrrev_b32 {v(t0)}, 5, {v(LANE)}')
    A(f'v_mul_u32_u24 {v(t0)}, 896, {v(t0)}')
    A(f'v_and_b32 {v(t1)}, 31, {v(LANE)}')
    A(f'v_lshl_add_u32 {v(t0)}, {v(t1)}, 4, {v(t0)}')
    A(f'v_cmp_gt_u32 vcc, 28, {v(t1)}')
    A(f'v_mov_b32 {v(t1)}, 0x40000000')
    A(f'v_cndmask_b32 {v(t0)}, {v(t1)}, {v(t0)}, vcc')
    A(f'buffer_load_dwordx4 {v(d, 4)}, {v(t0)}, {s(rX, 4)}, {s(sT0)} offen')
    A(f'buffer_load_dwordx4 {v(d + 4, 4)}, {v(t0)}, {s(rX, 4)}, {s(sT0)} offen offset:448')


def stats1_compute(d):
    m = V.mark()
    g = V.get(4)
    s1, s2, one, t = V.get(), V.get(), V.get(), V.get()
    A(f'v_mov_b32 {v(one)}, 0x3f803f80')
    A(f'v_mov_b32 {v(s1)}, 0')
    A(f'v_mov_b32 {v(s2)}, 0')
    for i in range(8):
        A(f'v_dot2c_f32_bf16 {v(s1)}, {v(d + i)}, {v(one)}')
        A(f'v_dot2c_f32_bf16 {v(s2)}, {v(d + i)}, {v(d + i)}')
    for ctl in ('row_shr:1', 'row_shr:2', 'row_shr:4', 'row_shr:8'):
        for r in (s1, s2):
            A(f'v_add_f32_dpp {v(r)}, {v(r)}, {v(r)} {ctl} row_mask:0xf bank_mask:0xf bound_ctrl:1')
    for r in (s1, s2):
        A(f'v_add_f32_dpp {v(r)}, {v(r)}, {v(r)} row_bcast:15 row_mask:0xa bank_mask:0xf')
    A(f'v_mul_f32 {v(s1)}, 0x3b124925, {v(s1)}')
    A(f'v_mul_f32 {v(t)}, {v(s1)}, {v(s1)}')
    A(f'v_mov_b32 {v(one)}, 0x3b124925')
    A(f'v_fma_f32 {v(s2)}, {v(s2)}, {v(one)}, -{v(t)}')
    A(f'v_max_f32 {v(s2)}, 0, {v(s2)}')
    A(f'v_add_f32 {v(s2)}, 0x3727c5ac, {v(s2)}')
    A(f'v_rsq_f32 {v(g + 2)}, {v(s2)}')
    A(f'v_mov_b32 {v(g + 3)}, {s(sTag)}')
    A(f'v_mul_f32 {v(s1)}, {v(s1)}, {v(g + 2)}')
    A(f'v_readlane_b32 {s(sT1)}, {v(g + 2)}, 31')
    A(f'v_readlane_b32 {s(sT2)}, {v(s1)}, 31')
    A(f's_lshl_b32 {s(sT0)}, s2, 2')
    A(f's_add_u32 {s(sT0)}, {s(sT0)}, {s(sWave)}')
    A(f's_lshl_b32 {s(sT0)}, {s(sT0)}, 4')
    A(f's_add_u32 {s(sT0)}, {s(sT0)}, {ST1}')
    A(f'v_mov_b32 {v(g + 1)}, {s(sT1)}')
    A(f'v_cvt_pk_bf16_f32 {v(g)}, -{s(sT2)}, -{v(s1)}')
    A(f'v_mov_b32 {v(t)}, {s(sT0)}')
    A('s_mov_b32 exec_lo, 0')
    A('s_mov_b32 exec_hi, 0x80000000')
    A(f'buffer_store_dwordx4 {v(g, 4)}, {v(t)}, {s(rWS, 4)}, 0 offen sc1')
    A('s_mov_b64 exec, -1')
    V.release(m)


def reduce8(acc):
    for j in range(4):
        A(f'v_permlane32_swap_b32 {v(acc + j)}, {v(acc + j + 4)}')
    for j in range(4):
        A(f'v_add_f32 {v(acc + j)}, {v(acc + j)}, {v(acc + j + 4)}')
    for j in range(2):
        A(f'v_permlane16_swap_b32 {v(acc + j)}, {v(acc + j + 2)}')
    for j in range(2):
        A(f'v_add_f32 {v(acc + j)}, {v(acc + j)}, {v(acc + j + 2)}')
    for j in range(2):
        A(f'v_add_f32_dpp {v(acc + j)}, {v(acc + j)}, {v(acc + j)} row_ror:8 row_mask:0xf bank_mask:0xf')


def bf16_pair_from_partials(dst, g0, g1, plus1):
    A(f'v_add_f32 {v(dst)}, {v(g0)}, {v(g1)}')
    A(f'v_add_f32 {v(dst + 1)}, {v(g0 + 1)}, {v(g1 + 1)}')
    A(f'v_cvt_pk_bf16_f32 {v(g0)}, {v(dst)}, {v(dst + 1)}')
    A(f'v_lshlrev_b32 {v(dst)}, 16, {v(g0)}')
    A(f'v_and_b32 {v(dst + 1)}, 0xffff0000, {v(g0)}')
    if plus1:
        A(f'v_add_f32 {v(dst)}, 1.0, {v(dst)}')
        A(f'v_add_f32 {v(dst + 1)}, 1.0, {v(dst + 1)}')
        A(f'v_cvt_pk_bf16_f32 {v(g0)}, {v(dst)}, {v(dst + 1)}')
        A(f'v_lshlrev_b32 {v(dst)}, 16, {v(g0)}')
        A(f'v_and_b32 {v(dst + 1)}, 0xffff0000, {v(g0)}')


def prologue():
    A('s_cmp_ge_u32 s2, 256')
    A('s_cbranch_scc1 L_end')
    ts()
    A('s_load_dwordx16 s[4:19], s[0:1], 0')
    A('s_load_dwordx16 s[20:35], s[0:1], 64')
    A('s_load_dwordx4 s[36:39], s[0:1], 128')
    A(f'v_lshrrev_b32 v2, 6, {v(TID)}')
    A(f'v_and_b32 {v(LANE)}, 63, {v(TID)}')
    A(f'v_readfirstlane_b32 {s(sWave)}, v2')
    A(f's_sub_u32 {s(sJ)}, s2, 32')
    A('s_waitcnt lgkmcnt(0)')
    A(f's_load_dword {s(sTag)}, {s(pWs, 2)}, {EP}')
    srd(rX, pX, 1835008)
    srd(rWS, pWs, 0x10000000)
    A('s_cmp_lt_u32 s2, 32')
    A('s_cbranch_scc1 L_helper')


UEXP = {}
for vv in range(14):
    for hh in range(2):
        if vv < 4:
            e = 4 * hh + vv
        elif vv < 7:
            e = 256 + 4 * hh + 2 * (vv - 4)
        elif vv < 10:
            e = 512 + 256 * hh + 4 * (vv - 7)
        elif vv < 12:
            e = 1024 + 512 * hh + 8 * (vv - 10)
        else:
            e = 1280 + 512 * hh + 8 * (vv - 12)
        rho = 8 * (vv >> 2) + 4 * hh + (vv & 3)
        UEXP.setdefault(e, []).append(rho if rho < 26 else rho - 2)


def stage_dma(cc, slot, voff, rsrc, rowb):
    out = []
    for i in range(8):
        u = f's_add_u32 m0, {s(sW8k)}, {SL[slot] + 1024 * i}\n'
        u += (f's_mul_i32 {s(sWo)}, {s(sC + cc)}, {rowb // 64}\n' if i == 0 else f's_add_u32 {s(sWo)}, {s(sWo)}, {8 * rowb}\n')
        u += f'buffer_load_dwordx4 {v(voff)}, {s(rsrc, 4)}, {s(sWo)} offen lds'
        out.append(u)
    return out


def w_dma(cc, slot, vW):
    return stage_dma(cc, slot, vW, rW, 3584)


def w_frags(cc, slot, vWr):
    out = []
    for ks in range(4):
        for mat in range(2):
            for e in range(2):
                r = (mat * 28 + cc * 4 + ks) * 4 + 2 * e
                out.append(f'ds_read_b64_tr_b16 {a(r, 2)}, {v(vWr[slot])} offset:{mat * 16384 + (16 * ks + 4 * e) * 128}')
    return out


def main_ssm():
    P = {}
    vW = V.get()
    vWr = [V.get() for _ in range(5)]
    P['vW'], P['vWr'] = vW, vWr
    mp = V.mark()
    M = V.get(16)
    vI = V.get()
    vM = V.get()
    mb = V.mark()
    par = V.get(6)
    m0 = V.mark()
    tl = V.get(8)
    st = V.get(8)
    q, tp, t0, t1 = V.get(), V.get(), V.get(), V.get()
    div7(sT2, sT3, sJ)
    A(f'v_lshrrev_b32 {v(q)}, 3, {v(LANE)}')
    A(f'v_and_b32 {v(tp)}, 7, {v(LANE)}')
    A(f'v_mul_u32_u24 {v(t0)}, 1792, {v(tp)}')
    A(f'v_lshl_add_u32 {v(t0)}, {v(q)}, 4, {v(t0)}')
    A(f's_lshl_b32 {s(sT0)}, {s(sT2)}, 2')
    A(f's_add_u32 {s(sT0)}, {s(sT0)}, {s(sWave)}')
    A(f's_lshl_b32 {s(sM2)}, {s(sT0)}, 7')
    A(f's_mul_i32 {s(sT0)}, {s(sT0)}, {16 * 896}')
    A(f's_lshl_b32 {s(sT1)}, {s(sT3)}, 7')
    A(f's_add_u32 {s(sT0)}, {s(sT0)}, {s(sT1)}')
    A(f'buffer_load_dwordx4 {v(tl, 4)}, {v(t0)}, {s(rX, 4)}, {s(sT0)} offen')
    A(f'buffer_load_dwordx4 {v(tl + 4, 4)}, {v(t0)}, {s(rX, 4)}, {s(sT0)} offen offset:896')
    A(f's_lshl_b32 {s(sT3)}, {s(sT3)}, 19')
    A(f's_add_u32 {s(sM2)}, {s(sM2)}, {s(sT3)}')
    A(f's_add_u32 {s(sM2)}, {s(sM2)}, {INB}')
    stats1_loads(st)
    A(f's_lshl_b32 {s(sT0)}, {s(sJ)}, 10')
    A(f'v_lshl_add_u32 {v(t1)}, {v(TID)}, 2, {s(sT0)}')
    for i, p in enumerate((pAre, pAim, pBre, pBim, pCre, pCim)):
        A(f'global_load_dword {v(par + i)}, {v(t1)}, {s(p, 2)}')
    A(f's_lshl_b32 {s(sT0)}, {s(sJ)}, 2')
    A(f's_load_dword {s(sLdt)}, {s(pLdt, 2)}, {s(sT0)}')
    A(f's_load_dword {s(sDs)}, {s(pDs, 2)}, {s(sT0)}')
    A(f's_lshr_b32 {s(sT0)}, {s(sJ)}, 3')
    div7(sMi, sNi, sT0)
    A(f's_and_b32 {s(sT0)}, {s(sJ)}, 7')
    A(f's_lshr_b32 {s(sT1)}, {s(sT0)}, 1')
    A(f's_lshl_b32 {s(sMt)}, {s(sT1)}, 2')
    A(f's_add_u32 {s(sMt)}, {s(sMt)}, {s(sMi)}')
    A(f's_and_b32 {s(sT1)}, {s(sT0)}, 1')
    A(f's_mul_i32 {s(sNt)}, {s(sT1)}, 7')
    A(f's_add_u32 {s(sNt)}, {s(sNt)}, {s(sNi)}')
    A(f's_lshl_b32 {s(sRot)}, {s(sMi)}, 1')
    A(f's_add_u32 {s(sRot)}, {s(sRot)}, {s(sNi)}')
    A(f's_cmp_ge_u32 {s(sRot)}, 7')
    A(f's_cselect_b32 {s(sT1)}, 7, 0')
    A(f's_sub_u32 {s(sRot)}, {s(sRot)}, {s(sT1)}')
    A(f's_cmp_lt_u32 {s(sWave)}, 2')
    A(f's_cselect_b32 {s(rW)}, {s(pWg)}, {s(pWu)}')
    A(f's_cselect_b32 {s(rW + 1)}, {s(pWg + 1)}, {s(pWu + 1)}')
    A(f's_mov_b32 {s(rW + 2)}, 1605632')
    A(f's_mov_b32 {s(rW + 3)}, 0x00020000')
    for cc in range(7):
        A(f's_add_u32 {s(sT0)}, {s(sRot)}, {cc}')
        A(f's_cmp_ge_u32 {s(sT0)}, 7')
        A(f's_cselect_b32 {s(sT1)}, 7, 0')
        A(f's_sub_u32 {s(sT0)}, {s(sT0)}, {s(sT1)}')
        A(f's_lshl_b32 {s(sC + cc)}, {s(sT0)}, 12')
    A(f's_lshl_b32 {s(sW1k)}, {s(sWave)}, 10')
    A(f's_lshl_b32 {s(sW8k)}, {s(sWave)}, 13')
    srd(rWd, pWd, 1605632)
    srd(rOut, pOut, 1835008)
    A(f'v_lshlrev_b32 {v(t0)}, 1, {v(q)}')
    A(f'v_and_b32 {v(t0)}, 4, {v(t0)}')
    A(f'v_xor_b32 {v(t0)}, {v(t0)}, {v(tp)}')
    A(f'v_mul_u32_u24 {v(vW)}, 3584, {v(q)}')
    A(f'v_lshl_add_u32 {v(vW)}, {v(t0)}, 4, {v(vW)}')
    A(f's_lshl_b32 {s(sT0)}, {s(sNt)}, 1')
    A(f's_and_b32 {s(sT1)}, {s(sWave)}, 1')
    A(f's_add_u32 {s(sT0)}, {s(sT0)}, {s(sT1)}')
    A(f's_lshl_b32 {s(sT0)}, {s(sT0)}, 7')
    A(f'v_add_u32 {v(vW)}, {s(sT0)}, {v(vW)}')
    A(f'v_lshrrev_b32 {v(t0)}, 5, {v(LANE)}')
    A(f'v_bfe_u32 {v(t1)}, {v(LANE)}, 2, 2')
    A(f'v_lshl_add_u32 {v(t0)}, {v(t0)}, 3, {v(t1)}')
    A(f'v_lshlrev_b32 {v(t0)}, 7, {v(t0)}')
    A(f'v_lshrrev_b32 {v(t1)}, 1, {v(t1)}')
    A(f'v_xor_b32 {v(t1)}, {s(sT1)}, {v(t1)}')
    A(f'v_lshl_add_u32 {v(t0)}, {v(t1)}, 6, {v(t0)}')
    A(f'v_bfe_u32 {v(t1)}, {v(LANE)}, 4, 1')
    A(f'v_lshl_add_u32 {v(t0)}, {v(t1)}, 5, {v(t0)}')
    A(f'v_and_b32 {v(t1)}, 3, {v(LANE)}')
    A(f'v_lshl_add_u32 {v(t0)}, {v(t1)}, 3, {v(t0)}')
    A(f's_lshr_b32 {s(sT0)}, {s(sWave)}, 1')
    A(f's_lshl_b32 {s(sT0)}, {s(sT0)}, 13')
    A(f'v_add_u32 {v(vWr[0])}, {s(sT0)}, {v(t0)}')
    for i in range(1, 5):
        A(f'v_add_u32 {v(vWr[i])}, {SL[i]}, {v(vWr[0])}')
    A(f's_lshr_b32 {s(sT0)}, {s(sWave)}, 1')
    A(f's_mul_i32 {s(sT0)}, {s(sT0)}, {KT_CH}')
    A(f's_mul_i32 {s(sT1)}, {s(sT1)}, {KT_C0}')
    A(f's_add_u32 {s(sT0)}, {s(sT0)}, {s(sT1)}')
    A(f's_add_u32 m0, {s(sT0)}, {KT + 4096}')
    A(f'v_mov_b32 {v(t0)}, 0')
    A(f'ds_write_addtid_b32 {v(t0)}')
    A(f'ds_write_addtid_b32 {v(t0)} offset:208')
    A(f's_mul_i32 m0, {s(sWave)}, {KG_W}')
    A(f'v_mov_b32 {v(t1)}, 0x3f80')
    A(f'ds_write_addtid_b32 {v(t1)}')
    gr = V.get(16)
    A(f'v_lshlrev_b32 {v(t0)}, 16, {v(q)}')
    A(f'v_lshl_add_u32 {v(t0)}, {v(tp)}, 4, {v(t0)}')
    A('s_waitcnt lgkmcnt(0)')
    A(f's_add_u32 {s(sTag)}, {s(sTag)}, 1')
    for k in range(4):
        A(f'v_mov_b32 {v(gr + 4 * k + 2)}, 0')
        A(f'v_mov_b32 {v(gr + 4 * k + 3)}, {s(sTag)}')
    A('s_waitcnt vmcnt(8)')
    for k in range(4):
        A(f'v_mov_b32 {v(gr + 4 * k)}, {v(tl + k)}')
        A(f'v_mov_b32 {v(gr + 4 * k + 1)}, {v(tl + 4 + k)}')
        A(f'buffer_store_dwordx4 {v(gr + 4 * k, 4)}, {v(t0)}, {s(rWS, 4)}, {s(sM2)} offen sc1')
        if k < 3:
            A(f's_add_u32 {s(sM2)}, {s(sM2)}, 16384')
    A('s_waitcnt vmcnt(10)')
    stats1_compute(st)
    ts()
    A.ext(w_dma(0, 4, vW))
    A.ext(w_dma(1, 2, vW))
    V.release(m0)
    T = V.get(16, 4)
    G = V.get(16)
    S = V.get(16)
    mk = V.mark()
    dt = V.get(2)
    aU, aV = V.get(), V.get()
    fU, fV = V.get(32), V.get(32)
    e2, rv = V.get(), V.get()
    B_, C_, W_, z1, z2, z4, z8, z256 = [V.get(2) for _ in range(8)]
    pp = [V.get(2) for _ in range(6)]
    cv = [V.get() for _ in range(4)]
    t0, t1 = V.get(), V.get()
    A(f's_lshl_b32 {s(sT0)}, {s(sLdt)}, 16')
    A(f's_and_b32 {s(sT1)}, {s(sLdt)}, 0xffff0000')
    A(f's_lshl_b32 {s(sT2)}, {s(sDs)}, 16')
    A(f's_and_b32 {s(sT3)}, {s(sDs)}, 0xffff0000')
    A(f's_cmp_lt_u32 {s(sWave)}, 2')
    A(f's_cselect_b32 {s(sLdt)}, {s(sT0)}, {s(sT1)}')
    A(f's_cselect_b32 {s(sDs)}, {s(sT2)}, {s(sT3)}')
    A(f'v_mov_b32 {v(t0)}, 0x3fb8aa3b')
    A(f'v_mul_f32 {v(dt)}, {s(sLdt)}, {v(t0)}')
    A(f'v_exp_f32 {v(dt)}, {v(dt)}')
    A(f's_mul_i32 {s(sT0)}, {s(sWave)}, {KG_W}')
    A(f's_mov_b32 m0, {s(sT0)}')
    A(f'v_cvt_pk_bf16_f32 {v(dt)}, {v(dt)}, {v(dt)}')
    A(f'v_lshlrev_b32 {v(dt)}, 16, {v(dt)}')
    A(f'v_and_b32 {v(t0)}, 31, {v(LANE)}')
    A(f'v_lshrrev_b32 {v(t1)}, 5, {v(LANE)}')
    A(f'v_lshl_add_u32 {v(t1)}, {v(t1)}, 4, {s(sT0)}')
    A(f'v_mul_u32_u24 {v(aV)}, 272, {v(t0)}')
    A(f'v_add_u32 {v(aV)}, {v(aV)}, {v(t1)}')
    A(f'v_cmp_lt_u32 vcc, 27, {v(t0)}')
    A(f'v_add_u32 {v(aU)}, {32 * 272}, {v(aV)}')
    A(f'v_add_u32 {v(t1)}, {30 * 272}, {v(aV)}')
    A(f'v_cndmask_b32 {v(aU)}, {v(aU)}, {v(t1)}, vcc')
    A(f'v_lshlrev_b32 {v(vI)}, 4, {v(LANE)}')
    A(f's_lshl_b32 {s(sT0)}, {s(sWave)}, 12')
    A(f'v_add_u32 {v(vI)}, {s(sT0)}, {v(vI)}')
    A(f's_lshl_b32 {s(sT0)}, {s(sJ)}, 4')
    A(f'v_mov_b32 {v(vM)}, {s(sT0)}')
    A('s_waitcnt vmcnt(21)')

    def setup(it):
        o = []
        un = (lambda d, x: f'v_lshlrev_b32 {v(d)}, 16, {v(x)}') if it == 0 else (lambda d, x: f'v_and_b32 {v(d)}, 0xffff0000, {v(x)}')
        o += [un(e2, par), un(rv, par + 1), un(B_, par + 2), un(B_ + 1, par + 3), un(C_, par + 4), un(C_ + 1, par + 5)]
        o += [f'v_mul_f32 {v(e2)}, {v(dt)}, {v(e2)}', f'v_mul_f32 {v(rv)}, {v(dt)}, {v(rv)}',
              f'v_mul_f32 {v(e2)}, 0x3fb8aa3b, {v(e2)}', f'v_mul_f32 {v(rv)}, 0.15915494, {v(rv)}',
              f'v_mul_f32 {v(B_)}, {v(dt)}, {v(B_)}', f'v_mul_f32 {v(B_ + 1)}, {v(dt)}, {v(B_ + 1)}']
        for z, p in ((z8, 0x41000000), (z1, None), (z256, 0x43800000)):
            if p is None:
                o += [f'v_exp_f32 {v(t0)}, {v(e2)}', f'v_fract_f32 {v(t1)}, {v(rv)}']
            else:
                o += [f'v_mul_f32 {v(t0)}, {hex(p)}, {v(e2)}', f'v_mul_f32 {v(t1)}, {hex(p)}, {v(rv)}',
                      f'v_exp_f32 {v(t0)}, {v(t0)}', f'v_fract_f32 {v(t1)}, {v(t1)}']
            o += [f'v_cos_f32 {v(z)}, {v(t1)}', f'v_sin_f32 {v(z + 1)}, {v(t1)}',
                  f'v_mul_f32 {v(z)}, {v(z)}, {v(t0)}', f'v_mul_f32 {v(z + 1)}, {v(z + 1)}, {v(t0)}']
        return o

    cnt = [0]

    def put(x, rows, neg):
        c = cv[cnt[0] % 4]
        cnt[0] += 1
        o = [f'v_cvt_pk_bf16_f32 {v(c)}, {v(x)}, {"-" if neg else ""}{v(x + 1)}']
        o += [f'ds_write_addtid_b32 {v(c)} offset:{272 * r}' for r in rows]
        return o

    def putU(x, e):
        return put(x, [32 + r for r in UEXP[e]], True)

    def chains():
        o = []
        o += cmul(W_, C_, B_) + cmul(z2, z1, z1) + put(z8, [1], False) + cmul(z4, z2, z2) + putU(W_, 0)
        cur = z8
        for j in range(2, 32):
            nx = pp[j % 2]
            o += cmul(nx, cur, z8) + put(nx, [j], False)
            cur = nx
        cur = W_
        for e in range(1, 8):
            nx = pp[e % 2]
            o += cmul(nx, cur, z1) + putU(nx, e)
            cur = nx
        qc = W_
        for k in range(1, 8):
            qn = pp[2 + k % 2]
            o += cmul(qn, qc, z256) + putU(qn, 256 * k)
            qc = qn
            step, zz, n = (2, z2, 4) if k == 1 else ((4, z4, 2) if k < 4 else (8, z8, 1))
            cur = qn
            for i in range(1, n + 1):
                nx = pp[i % 2]
                o += cmul(nx, cur, zz) + putU(nx, 256 * k + step * i)
                cur = nx
        return o

    def frag_reads():
        o = []
        for ks in range(8):
            o += [f'ds_read_b128 {v(fU + 4 * ks, 4)}, {v(aU)} offset:{32 * ks}',
                  f'ds_read_b128 {v(fV + 4 * ks, 4)}, {v(aV)} offset:{32 * ks}']
        return o

    def kmfma(ks, first):
        return f'v_mfma_f32_32x32x16_bf16 {v(T, 16)}, {v(fU + 4 * ks, 4)}, {v(fV + 4 * ks, 4)}, {"0" if first else v(T, 16)}'

    h1 = [f's_mov_b32 {s(sT2)}, {ST1}', f's_lshl_b32 {s(sT3)}, {s(sJ)}, 14', f's_add_u32 {s(sT3)}, {s(sT3)}, {INB}']
    for k in range(4):
        h1.append(f'buffer_load_dwordx4 {v(G + 4 * k, 4)}, {v(vI)}, {s(rWS, 4)}, {s(sT3)} offen offset:{1024 * k} sc1')
        h1.append(f'buffer_load_dwordx4 {v(S + 4 * k, 4)}, {v(vI)}, {s(rWS, 4)}, {s(sT2)} offen offset:{1024 * k} sc1')

    def mod_loads(dst, secs):
        o = []
        for i, sec in enumerate(secs):
            o.append(f's_mov_b32 {s(sT2)}, {MOD + sec * 7168}')
            o.append(f'buffer_load_dwordx4 {v(dst + 8 * i, 4)}, {v(vM)}, {s(rWS, 4)}, {s(sT2)} offen sc1')
            o.append(f'buffer_load_dwordx4 {v(dst + 8 * i + 4, 4)}, {v(vM)}, {s(rWS, 4)}, {s(sT2)} offen offset:3584 sc1')
        return o
    h1 += mod_loads(M, (0, 1))

    A.ext(setup(0))
    A.ext(chains())
    A.ext(frag_reads())
    su = setup(1)
    A.ext(su[:8])
    mm = []
    for ks in range(8):
        mm.append(f's_waitcnt lgkmcnt({14 - 2 * ks})\n' + kmfma(ks, ks == 0))
    A.ext(interleave(mm, su[8:]))
    A.ext(chains())
    A.ext(frag_reads())
    A.ext(h1)
    for ks in range(8):
        A(f's_waitcnt lgkmcnt({14 - 2 * ks})')
        A(kmfma(ks, False))
    V.release(mk)
    ax, ay, t0, t1 = V.get(), V.get(), V.get(), V.get()
    R = V.get(12)
    K_ = V.get(8)
    A(f's_mul_i32 {s(sT0)}, {s(sWave)}, {KG_W}')
    A(f'v_lshl_add_u32 {v(ax)}, {v(LANE)}, 4, {s(sT0)}')
    A(f's_xor_b32 {s(sT0)}, {s(sWave)}, 1')
    A(f's_mul_i32 {s(sT0)}, {s(sT0)}, {KG_W}')
    A(f'v_lshl_add_u32 {v(ay)}, {v(LANE)}, 4, {s(sT0)}')
    A(f's_lshr_b32 {s(sT0)}, {s(sWave)}, 1')
    A(f's_mul_i32 {s(sT0)}, {s(sT0)}, {KT_CH}')
    A(f's_add_u32 {s(sT0)}, {s(sT0)}, {KT}')
    A(f'v_and_b32 {v(t0)}, 31, {v(LANE)}')
    A(f'v_lshlrev_b32 {v(t0)}, 4, {v(t0)}')
    A(f'v_sub_u32 {v(t0)}, {s(sT0)}, {v(t0)}')
    A(f'v_lshrrev_b32 {v(t1)}, 5, {v(LANE)}')
    A(f's_bitcmp1_b32 {s(sWave)}, 0')
    A('s_cbranch_scc1 L_expB')
    A(f'ds_write_b128 {v(ax)}, {v(T + 10, 4)}')
    A('s_waitcnt vmcnt(12) lgkmcnt(0)')
    A('s_barrier')
    for i in range(3):
        A(f'ds_read_b128 {v(R + 4 * i, 4)}, {v(ay)} offset:{1024 * i}')
    A(f'v_lshlrev_b32 {v(ax)}, 3, {v(t1)}')
    A(f'v_sub_u32 {v(ax)}, {v(t0)}, {v(ax)}')
    A(f'v_lshlrev_b32 {v(ay)}, 9, {v(t1)}')
    A(f'v_sub_u32 {v(ay)}, {v(t0)}, {v(ay)}')
    A('s_mov_b64 exec, 1')
    A(f'v_add_f32 {v(T)}, {s(sDs)}, {v(T)}')
    A('s_mov_b64 exec, -1')
    A('s_waitcnt lgkmcnt(0)')
    for i in range(10):
        A(f'v_add_f32 {v(T + i)}, {v(T + i)}, {v(R + i)}')
    for d, (x, y) in enumerate(((3, 2), (1, 0), (6, 5), (4, 4), (9, 9), (8, 8), (8, 7), (7, 7))):
        A(f'v_cvt_pk_bf16_f32 {v(K_ + d)}, {v(T + x)}, {v(T + y)}')
    for cp in (0, KT_C0):
        A(f'ds_write_b64 {v(ax)}, {v(K_, 2)} offset:{cp + 2 * 2044}')
        A(f'ds_write_b64 {v(ax)}, {v(K_ + 2, 2)} offset:{cp + 2 * 1788}')
        A(f'ds_write_b64 {v(ay)}, {v(K_ + 4, 2)} offset:{cp + 2 * 1528}')
        A(f'ds_write_b64 {v(ay)}, {v(K_ + 6, 2)} offset:{cp + 2 * 1528 + 8}')
    A('s_branch L_expD')
    A('L_expB:')
    for i in range(3):
        A(f'ds_write_b128 {v(ax)}, {v(T + 4 * i, 4)} offset:{1024 * i}')
    A('s_waitcnt vmcnt(12) lgkmcnt(0)')
    A('s_barrier')
    A(f'ds_read_b128 {v(R, 4)}, {v(ay)}')
    A(f'v_lshlrev_b32 {v(ay)}, 10, {v(t1)}')
    A(f'v_sub_u32 {v(ay)}, {v(t0)}, {v(ay)}')
    A('s_mov_b32 vcc_lo, 0xaaaaaaaa')
    A('s_mov_b32 vcc_hi, 0xaaaaaaaa')
    A('s_waitcnt lgkmcnt(0)')
    for i in range(4):
        A(f'v_add_f32 {v(T + 10 + i)}, {v(T + 10 + i)}, {v(R + i)}')
    for wdw in range(2):
        v0_, v8_ = T + 10 + 2 * wdw, T + 11 + 2 * wdw
        A(f'v_cndmask_b32 {v(t0)}, {v(v0_)}, {v(v8_)}, vcc')
        A(f'v_cvt_pk_bf16_f32 {v(K_ + 4 * wdw)}, {v(v8_)}, {v(v8_)}')
        A(f'v_cvt_pk_bf16_f32 {v(K_ + 4 * wdw + 1)}, {v(v8_)}, {v(t0)}')
        A(f'v_cvt_pk_bf16_f32 {v(K_ + 4 * wdw + 2)}, {v(v0_)}, {v(v0_)}')
        A(f'v_cvt_pk_bf16_f32 {v(K_ + 4 * wdw + 3)}, {v(v0_)}, {v(v0_)}')
    for cp in (0, KT_C0):
        for wdw in range(2):
            base = cp + 2 * (2040 - 1024 - 256 * wdw)
            A(f'ds_write_b64 {v(ay)}, {v(K_ + 4 * wdw, 2)} offset:{base}')
            A(f'ds_write_b64 {v(ay)}, {v(K_ + 4 * wdw + 2, 2)} offset:{base + 8}')
    A('L_expD:')
    V.release(mk)
    A.ext(w_frags(1, 2, vWr))
    A.ext(w_frags(0, 4, vWr))
    A('s_waitcnt lgkmcnt(0)')
    A('s_barrier')
    A(tag_wait('L_h1', h1, [G + 4 * k + 3 for k in range(4)] + [S + 4 * k + 3 for k in range(4)] + [M + 4 * k + 3 for k in range(4)]))
    ts()
    V.release(mk)
    sa, c1 = V.get(2), V.get(2)
    bf16_pair_from_partials(sa, M, M + 4, False)
    bf16_pair_from_partials(c1, M + 8, M + 12, True)
    m2 = mod_loads(M, (2, 4))
    A.ext(m2)
    A.ext(w_dma(2, 4, vW) + w_dma(3, 1, vW))
    E = V.get(8)
    xa, xb, nn = V.get(2), V.get(2), V.get(2)
    O = V.get(2)
    F = V.get(2)
    aX, aF = V.get(), V.get()
    A(f's_cmp_lg_u32 {s(sWave)}, 0')
    A('s_cbranch_scc1 L_nozero')
    A(f'v_lshrrev_b32 {v(aX)}, 3, {v(LANE)}')
    A(f'v_mul_u32_u24 {v(aX)}, {HC}, {v(aX)}')
    A(f'v_and_b32 {v(aF)}, 7, {v(LANE)}')
    A(f'v_lshl_add_u32 {v(aX)}, {v(aF)}, 3, {v(aX)}')
    A(f'v_add_u32 {v(aX)}, {HB}, {v(aX)}')
    A(f'v_mov_b32 {v(xa)}, 0')
    A(f'v_mov_b32 {v(xa + 1)}, 0')
    A(f'ds_write_b64 {v(aX)}, {v(xa, 2)}')
    A('L_nozero:')
    A(f's_lshl_b32 {s(sT0)}, {s(sWave)}, 10')
    A(f's_add_u32 m0, {s(sT0)}, {HB}')
    A(f'v_lshrrev_b32 {v(aX)}, 1, {v(vI)}')
    A(f'v_add_u32 {v(aX)}, {XR}, {v(aX)}')
    for k in range(4):
        g, sg = G + 4 * k, S + 4 * k
        A(f'ds_write_b64 {v(aX)}, {v(g, 2)} offset:{512 * k}')
        A(f'v_lshlrev_b32 {v(xa)}, 16, {v(g)}')
        A(f'v_and_b32 {v(xa + 1)}, 0xffff0000, {v(g)}')
        A(f'v_lshlrev_b32 {v(xb)}, 16, {v(g + 1)}')
        A(f'v_and_b32 {v(xb + 1)}, 0xffff0000, {v(g + 1)}')
        A(f'v_lshlrev_b32 {v(nn)}, 16, {v(sg)}')
        A(f'v_and_b32 {v(nn + 1)}, 0xffff0000, {v(sg)}')
        A(f'v_pk_fma_f32 {v(xa, 2)}, {v(xa, 2)}, {v(sg, 2)}, {v(nn, 2)} op_sel:[0,1,0] op_sel_hi:[1,1,0]')
        A(f'v_pk_fma_f32 {v(xb, 2)}, {v(xb, 2)}, {v(sg + 2, 2)}, {v(nn, 2)} op_sel:[0,0,1] op_sel_hi:[1,0,1]')
        A(f'v_pk_fma_f32 {v(xa, 2)}, {v(xa, 2)}, {v(c1, 2)}, {v(sa, 2)}')
        A(f'v_pk_fma_f32 {v(xb, 2)}, {v(xb, 2)}, {v(c1, 2)}, {v(sa, 2)}')
        for ch in range(2):
            A(f'v_cvt_pk_bf16_f32 {v(E + 2 * k + ch)}, {v(xa + ch)}, {v(xb + ch)}')
        if k > 0:
            for ch in range(2):
                A(f'v_mov_b32_dpp {v(O + ch)}, {v(E + 2 * k - 2 + ch)} wave_ror:1 row_mask:0xf bank_mask:0xf')
        for ch in range(2):
            A(f'ds_write_addtid_b32 {v(E + 2 * k + ch)} offset:{(4 * ch + 1) * HC + 256 * k + 52}')
            A(f'ds_write_addtid_b32 {v(E + 2 * k + ch)} offset:{(4 * ch + 3) * HC + 256 * k + 48}')
        for ch in range(2):
            A(f'v_mov_b32_dpp {v(O + ch)}, {v(E + 2 * k + ch)} wave_shr:1 row_mask:0xf bank_mask:0xf')
        for ch in range(2):
            A(f'v_alignbit_b32 {v(F + ch)}, {v(E + 2 * k + ch)}, {v(O + ch)}, 16')
        if k == 0:
            A('s_mov_b64 exec, -2')
        for ch in range(2):
            A(f'ds_write_addtid_b32 {v(F + ch)} offset:{(4 * ch + 0) * HC + 256 * k + 52}')
            A(f'ds_write_addtid_b32 {v(F + ch)} offset:{(4 * ch + 2) * HC + 256 * k + 48}')
        if k == 0:
            A('s_mov_b64 exec, -1')
    A(f's_add_u32 {s(sT1)}, {s(sT0)}, {HB + 1024}')
    A(f's_add_u32 {s(sT0)}, {s(sT0)}, {HB + 2}')
    A(f'v_mov_b32 {v(aF)}, {s(sT1)}')
    for ch in range(2):
        A(f'v_lshrrev_b32 {v(O + ch)}, 16, {v(E + 6 + ch)}')
    A('s_mov_b64 exec, 1')
    A(f'v_mov_b32 {v(aF)}, {s(sT0)}')
    for ch in range(2):
        A(f'v_mov_b32 {v(O + ch)}, {v(E + ch)}')
    A('s_mov_b32 exec_hi, 0x80000000')
    for ch in range(2):
        A(f'ds_write_b16 {v(aF)}, {v(O + ch)} offset:{(4 * ch + 0) * HC + 52}')
        A(f'ds_write_b16 {v(aF)}, {v(O + ch)} offset:{(4 * ch + 2) * HC + 48}')
    A('s_mov_b64 exec, -1')
    V.release(mb)
    acc = V.get(32, 4)
    fa = [V.get(32), V.get(32)]
    fb = [V.get(32), V.get(32)]
    aA, aB, t0, t1, t2 = V.get(), V.get(), V.get(), V.get(), V.get()
    A(f's_lshr_b32 {s(sT0)}, {s(sWave)}, 1')
    A(f's_and_b32 {s(sT1)}, {s(sWave)}, 1')
    A(f's_lshl_b32 {s(sT1)}, {s(sT1)}, 8')
    A(f's_mul_i32 {s(sT2)}, {s(sT0)}, {4 * HC}')
    A(f's_add_u32 {s(sT2)}, {s(sT2)}, {s(sT1)}')
    A(f's_add_u32 {s(sT2)}, {s(sT2)}, {HB}')
    A(f's_mul_i32 {s(sT3)}, {s(sT0)}, {KT_CH}')
    A(f's_add_u32 {s(sT3)}, {s(sT3)}, {s(sT1)}')
    A(f's_add_u32 {s(sT3)}, {s(sT3)}, {KT + KT_C0 + 4040 - 3584}')
    A(f'v_lshrrev_b32 {v(t0)}, 4, {v(LANE)}')
    A(f'v_bfe_u32 {v(t1)}, {v(LANE)}, 2, 2')
    A(f'v_add_u32 {v(t1)}, {v(t1)}, {v(t0)}')
    A(f'v_and_b32 {v(t2)}, 3, {v(LANE)}')
    A(f'v_mul_u32_u24 {v(t2)}, {HC}, {v(t2)}')
    A(f'v_lshl_add_u32 {v(aA)}, {v(t1)}, 4, {v(t2)}')
    A(f'v_add_u32 {v(aA)}, {s(sT2)}, {v(aA)}')
    A(f'v_lshl_add_u32 {v(aB)}, {v(t0)}, 4, {s(sT3)}')
    A(f'v_and_b32 {v(t1)}, 7, {v(LANE)}')
    A(f'v_lshlrev_b32 {v(t1)}, 6, {v(t1)}')
    A(f'v_sub_u32 {v(aB)}, {v(aB)}, {v(t1)}')
    A(f'v_bfe_u32 {v(t1)}, {v(LANE)}, 3, 1')
    A(f'v_mul_u32_u24 {v(t1)}, {KT_C0 + 8}, {v(t1)}')
    A(f'v_sub_u32 {v(aB)}, {v(aB)}, {v(t1)}')
    A('s_waitcnt lgkmcnt(0)')
    A('s_barrier')
    ts()
    order = [('a', 0)] + [('b', d) for d in range(8)] + [('a', u) for u in range(1, 8)]

    def creads(ul):
        o = []
        for kind, i in order:
            if kind == 'a':
                o.append(f'ds_read_b128 {v(fa[ul % 2] + 4 * i, 4)}, {v(aA)} offset:{512 * i + 64 * ul}')
            else:
                o.append(f'ds_read_b128 {v(fb[ul % 2] + 4 * i, 4)}, {v(aB)} offset:{512 * (7 - i) + 64 * ul}')
        return o

    def cmf(ul, uh, d):
        g = uh + d
        c = '0' if (ul == 0 and uh == 0) else v(acc + 4 * g, 4)
        return f'v_mfma_f32_16x16x32_bf16 {v(acc + 4 * g, 4)}, {v(fa[ul % 2] + 4 * uh, 4)}, {v(fb[ul % 2] + 4 * d, 4)}, {c}'

    A.ext(creads(0))
    for ul in range(4):
        mm = [cmf(ul, uh, d) for uh in range(8) for d in range(8 - uh)]
        if ul == 0:
            for d in range(8):
                mm[d] = f's_waitcnt lgkmcnt({14 - d})\n' + mm[d]
            mm[8] = 's_waitcnt lgkmcnt(0)\n' + mm[8]
            A.ext(interleave(mm, creads(1), start=9, end=28))
        else:
            mm[0] = 's_waitcnt lgkmcnt(0)\n' + mm[0]
            A.ext(interleave(mm, creads(ul + 1) if ul < 3 else [], start=0, end=24))
    A(f'v_and_b32 {v(t0)}, 7, {v(LANE)}')
    A(f'v_lshrrev_b32 {v(t1)}, 1, {v(t0)}')
    A(f'v_and_b32 {v(t2)}, 1, {v(t0)}')
    A(f'v_lshl_add_u32 {v(t1)}, {v(t2)}, 2, {v(t1)}')
    A(f'v_lshrrev_b32 {v(t2)}, 3, {v(LANE)}')
    A(f'v_xor_b32 {v(t1)}, {v(t1)}, {v(t2)}')
    A(f'v_lshl_add_u32 {v(t1)}, {v(t0)}, 3, {v(t1)}')
    A(f's_lshl_b32 {s(sT0)}, {s(sWave)}, 13')
    A(f'v_lshl_add_u32 {v(aA)}, {v(t1)}, 4, {s(sT0)}')
    for g in range(8):
        A(f'ds_write_b128 {v(aA)}, {v(acc + 4 * g, 4)} offset:{1024 * g}')
    V.release(mb)
    Y = V.get(32, 4)
    XX = V.get(8)
    X_ = V.get(16)
    ga, cb = V.get(2), V.get(2)
    o1, o2 = V.get(8), V.get(8)
    a0, a1, aX, aO, t0, t1 = [V.get() for _ in range(6)]
    A(f'v_bfe_u32 {v(t0)}, {v(TID)}, 3, 2')
    A(f'v_and_b32 {v(t1)}, 4, {v(TID)}')
    A(f'v_or_b32 {v(t0)}, {v(t0)}, {v(t1)}')
    A(f'v_lshlrev_b32 {v(t1)}, 1, {v(TID)}')
    A(f'v_xor_b32 {v(t0)}, {v(t0)}, {v(t1)}')
    A(f'v_lshlrev_b32 {v(a0)}, 4, {v(t0)}')
    A(f'v_xor_b32 {v(a1)}, 16, {v(a0)}')
    A(f'v_lshlrev_b32 {v(aX)}, 5, {v(TID)}')
    A(f'v_add_u32 {v(aX)}, {XR}, {v(aX)}')
    A(f'ds_read_b128 {v(XX, 4)}, {v(aX)}')
    A(f'ds_read_b128 {v(XX + 4, 4)}, {v(aX)} offset:16')
    A(f'v_lshrrev_b32 {v(t0)}, 2, {v(TID)}')
    A(f'v_mul_u32_u24 {v(aO)}, 28672, {v(t0)}')
    A(f'v_and_b32 {v(t0)}, 3, {v(TID)}')
    A(f'v_lshl_add_u32 {v(aO)}, {v(t0)}, 4, {v(aO)}')
    A(f's_lshl_b32 {s(sT0)}, {s(sJ)}, 7')
    A(f'v_add_u32 {v(aO)}, {s(sT0)}, {v(aO)}')
    A(tag_wait('L_m2', m2, [M + 4 * k + 3 for k in range(4)], younger=16))
    bf16_pair_from_partials(ga, M, M + 4, False)
    bf16_pair_from_partials(cb, M + 8, M + 12, True)
    A('s_waitcnt lgkmcnt(0)')
    A('s_barrier')
    for w in range(4):
        A(f'ds_read_b128 {v(Y + 8 * w, 4)}, {v(a0)} offset:{8192 * w}')
        A(f'ds_read_b128 {v(Y + 8 * w + 4, 4)}, {v(a1)} offset:{8192 * w}')
    for i in range(8):
        A(f'v_lshlrev_b32 {v(X_ + i)}, 16, {v(XX + i)}')
        A(f'v_and_b32 {v(X_ + 8 + i)}, 0xffff0000, {v(XX + i)}')
    A(f's_mov_b32 {s(sT2)}, {XS}')
    A(f's_mov_b32 {s(sT3)}, {X1P}')
    for ch in range(2):
        A(f's_waitcnt lgkmcnt({4 - 4 * ch})')
        sel = f'op_sel:[0,{ch},0] op_sel_hi:[1,{ch},1]'
        for i in range(0, 8, 2):
            y = Y + 16 * ch + i
            A(f'v_pk_add_f32 {v(y, 2)}, {v(y, 2)}, {v(y + 8, 2)}')
            A(f'v_pk_fma_f32 {v(X_ + 8 * ch + i, 2)}, {v(y, 2)}, {v(ga, 2)}, {v(X_ + 8 * ch + i, 2)} {sel}')
            A(f'v_pk_mul_f32 {v(y, 2)}, {v(X_ + 8 * ch + i, 2)}, {v(cb, 2)} op_sel:[0,{ch}] op_sel_hi:[1,{ch}]')
            A(f'v_cvt_pk_bf16_f32 {v(o1 + 4 * ch + i // 2)}, {v(y)}, {v(y + 1)}')
        A(f'buffer_store_dwordx4 {v(o1 + 4 * ch, 4)}, {v(aO)}, {s(rWS, 4)}, {s(sT2)} offen offset:{64 * ch} sc1 ;#xo')
    for k in range(2):
        for i in range(4):
            A(f'v_cvt_pk_bf16_f32 {v(o2 + 4 * k + i)}, {v(X_ + 4 * k + i)}, {v(X_ + 8 + 4 * k + i)}')
        A(f'buffer_store_dwordx4 {v(o2 + 4 * k, 4)}, {v(aO)}, {s(rWS, 4)}, {s(sT3)} offen offset:{64 * k} sc1 ;#xo')
    ts()
    V.release(mp)
    return P


def helper_mod():
    st = V.get(8)
    wm = V.get(84)
    cc = V.get(7)
    ch = V.get(7)
    acc = V.get(8)
    t0, t1, vo, aw, ar, vs = [V.get() for _ in range(6)]
    g = V.get(4)
    rd = V.get(8)
    stats1_loads(st)
    srd(rWm, pWm, 2408448)
    A('s_cmp_ge_u32 s2, 28')
    A('s_cbranch_scc1 L_hm_skip')
    A('s_cmp_ge_u32 s2, 14')
    A(f's_cselect_b32 {s(sMi)}, 1, 0')
    A(f's_mul_i32 {s(sT0)}, {s(sMi)}, 14')
    A(f's_sub_u32 {s(sNi)}, s2, {s(sT0)}')
    A(f's_mul_i32 {s(sT0)}, {s(sMi)}, 224')
    A(f's_mul_i32 {s(sT1)}, {s(sWave)}, 56')
    A(f's_add_u32 {s(sT0)}, {s(sT0)}, {s(sT1)}')
    A(f'v_lshrrev_b32 {v(t0)}, 3, {v(LANE)}')
    A(f'v_add_u32 {v(t0)}, {s(sT0)}, {v(t0)}')
    A(f'v_lshlrev_b32 {v(t1)}, 1, {v(t0)}')
    for i in range(7):
        A(f'global_load_ushort {v(cc + i)}, {v(t1)}, {s(pC, 2)} offset:{16 * i}')
    A(f'v_mul_u32_u24 {v(vo)}, 5376, {v(t0)}')
    A(f'v_and_b32 {v(t1)}, 7, {v(LANE)}')
    A(f'v_lshl_add_u32 {v(vo)}, {v(t1)}, 4, {v(vo)}')
    for task in range(3):
        A(f's_lshl_b32 {s(sT0)}, {s(sNi)}, 7')
        for i in range(7):
            A(f'buffer_load_dwordx4 {v(wm + 28 * task + 4 * i, 4)}, {v(vo)}, {s(rWm, 4)}, {s(sT0)} offen offset:{1792 * task}')
            if i < 6:
                A(f's_add_u32 {s(sT0)}, {s(sT0)}, {8 * 5376}')
    A(f'v_lshrrev_b32 {v(t0)}, 4, {v(LANE)}')
    A(f'v_lshl_add_u32 {v(t0)}, {v(t1)}, 2, {v(t0)}')
    A(f's_lshl_b32 {s(sT0)}, {s(sWave)}, 8')
    A(f's_add_u32 {s(sT0)}, {s(sT0)}, {SL[4]}')
    A(f'v_lshl_add_u32 {v(aw)}, {v(t0)}, 3, {s(sT0)}')
    A(f'v_and_b32 {v(t0)}, 31, {v(LANE)}')
    A(f'v_lshlrev_b32 {v(ar)}, 3, {v(t0)}')
    A(f'v_add_u32 {v(ar)}, {SL[4]}, {v(ar)}')
    div7(sT2, sT3, sNi)
    A(f's_mul_i32 {s(sT2)}, {s(sT2)}, 7168')
    A(f's_lshl_b32 {s(sT3)}, {s(sT3)}, 9')
    A(f's_add_u32 {s(sT2)}, {s(sT2)}, {s(sT3)}')
    A(f's_mul_i32 {s(sT3)}, {s(sMi)}, 3584')
    A(f's_add_u32 {s(sT2)}, {s(sT2)}, {s(sT3)}')
    A(f's_add_u32 {s(sT2)}, {s(sT2)}, {MOD}')
    A(f'v_lshl_add_u32 {v(vs)}, {v(t0)}, 4, {s(sT2)}')
    A('s_waitcnt lgkmcnt(0)')
    A(f's_add_u32 {s(sTag)}, {s(sTag)}, 1')
    A('s_waitcnt vmcnt(28)')
    stats1_compute(st)
    A('s_waitcnt vmcnt(22)')
    for i in range(7):
        A(f'v_lshlrev_b32 {v(cc + i)}, 16, {v(cc + i)}')
        A(f'v_mul_f32 {v(ch + i)}, 0xbfb8aa3b, {v(cc + i)}')
        A(f'v_exp_f32 {v(ch + i)}, {v(ch + i)}')
    for i in range(7):
        A(f'v_add_f32 {v(ch + i)}, 1.0, {v(ch + i)}')
        A(f'v_rcp_f32 {v(ch + i)}, {v(ch + i)}')
    for i in range(7):
        A(f'v_mul_f32 {v(cc + i)}, {v(cc + i)}, {v(ch + i)}')
        A(f'v_cvt_pk_bf16_f32 {v(cc + i)}, {v(cc + i)}, 0')
        A(f'v_lshlrev_b32 {v(ch + i)}, 16, {v(cc + i)}')
    A(f'v_mov_b32 {v(g + 2)}, 0')
    A(f'v_mov_b32 {v(g + 3)}, {s(sTag)}')
    for task in range(3):
        for j in range(8):
            A(f'v_mov_b32 {v(acc + j)}, 0')
        for i in range(7):
            A(f's_waitcnt vmcnt({max(0, 21 - 7 * task - i)})')
            for j in range(4):
                w = wm + 28 * task + 4 * i + j
                A(f'v_dot2c_f32_bf16 {v(acc + 2 * j)}, {v(w)}, {v(cc + i)}')
                A(f'v_dot2c_f32_bf16 {v(acc + 2 * j + 1)}, {v(w)}, {v(ch + i)}')
        reduce8(acc)
        A(f'ds_write_b64 {v(aw)}, {v(acc, 2)} offset:{1024 * task}')
        A('s_waitcnt lgkmcnt(0)')
        A('s_barrier')
        A(f's_cmp_lg_u32 {s(sWave)}, {task}')
        A(f's_cbranch_scc1 L_hm_n{task}')
        for w in range(4):
            A(f'ds_read_b64 {v(rd + 2 * w, 2)}, {v(ar)} offset:{1024 * task + 256 * w}')
        A(f's_mov_b32 {s(sT0)}, {14336 * task}')
        A('s_waitcnt lgkmcnt(0)')
        A(f'v_pk_add_f32 {v(rd, 2)}, {v(rd, 2)}, {v(rd + 2, 2)}')
        A(f'v_pk_add_f32 {v(rd + 4, 2)}, {v(rd + 4, 2)}, {v(rd + 6, 2)}')
        A(f'v_pk_add_f32 {v(g, 2)}, {v(rd, 2)}, {v(rd + 4, 2)}')
        A('s_mov_b32 exec_hi, 0')
        A(f'buffer_store_dwordx4 {v(g, 4)}, {v(vs)}, {s(rWS, 4)}, {s(sT0)} offen sc1')
        A('s_mov_b64 exec, -1')
        A(f'L_hm_n{task}:')
        if task == 0:
            ts()
    A('s_branch L_hm_done')
    A('L_hm_skip:')
    A('s_waitcnt lgkmcnt(0)')
    A(f's_add_u32 {s(sTag)}, {s(sTag)}, 1')
    A('s_waitcnt vmcnt(0)')
    stats1_compute(st)
    A('L_hm_done:')
    ts()


def flag_store(vTag, soff):
    return ('s_mov_b64 exec, 1\n'
            f'buffer_store_dword {v(vTag)}, off, {s(rWS, 4)}, {s(soff)} sc1 ;#fl\n'
            's_mov_b64 exec, -1')


def tr_lane(dst, t0, t1, hmul, rowb):
    A(f'v_lshrrev_b32 {v(t0)}, 5, {v(LANE)}')
    A(f'v_bfe_u32 {v(t1)}, {v(LANE)}, 2, 2')
    A(f'v_lshl_add_u32 {v(t0)}, {v(t0)}, {hmul.bit_length() - 1}, {v(t1)}')
    A(f'v_lshlrev_b32 {v(dst)}, {rowb.bit_length() - 1}, {v(t0)}')
    A(f'v_bfe_u32 {v(t1)}, {v(LANE)}, 4, 1')
    A(f'v_lshl_add_u32 {v(dst)}, {v(t1)}, 5, {v(dst)}')
    A(f'v_and_b32 {v(t1)}, 3, {v(LANE)}')
    A(f'v_lshl_add_u32 {v(dst)}, {v(t1)}, 3, {v(dst)}')


def main_ffn(P):
    vW, vWr = P['vW'], P['vWr']
    vXr = [V.get() for _ in range(3)]
    vXs, vWd, vDr, vL16, vTag, vSt, vFp = [V.get() for _ in range(7)]
    gbp = V.get(4)
    x1r = V.get(8)
    Ag, Au = V.get(4), V.get(4)
    stt = V.get(16)
    xr = V.get(16)
    tmp = V.get(8)
    outp = V.get(8)
    acc = V.get(96)
    wdv = V.get(64)
    d0, d1, fp = vWr[0], vWr[1], vWr[2]
    t0, t1, t2 = tmp, tmp + 1, tmp + 2
    A('@vm w2 w3')
    A('s_barrier')
    A.ext(interleave(w_dma(4, 0, vW), w_frags(2, 4, vWr) + w_frags(3, 1, vWr)))
    A(f'v_mov_b32 {v(vTag)}, {s(sTag)}')
    A(f'v_lshlrev_b32 {v(vL16)}, 4, {v(LANE)}')
    tr_lane(vXr[0], t0, t1, 8, 64)
    A(f'v_add_u32 {v(vXr[1])}, 65536, {v(vXr[0])}')
    A(f'v_add_u32 {v(vXr[2])}, 131072, {v(vXr[0])}')
    A(f's_mul_i32 {s(sT0)}, {s(sMt)}, {4 * 28672}')
    A(f's_add_u32 {s(sT0)}, {s(sT0)}, {XS}')
    A(f'v_lshl_add_u32 {v(vXs)}, {v(TID)}, 4, {s(sT0)}')
    tr_lane(vDr, t0, t1, 4, 128)
    A(f'v_bfe_u32 {v(t1)}, {v(LANE)}, 3, 1')
    A(f'v_lshl_add_u32 {v(vDr)}, {v(t1)}, 6, {v(vDr)}')
    A(f'v_add_u32 {v(vDr)}, {s(sW8k)}, {v(vDr)}')
    A(f'v_lshrrev_b32 {v(t0)}, 3, {v(LANE)}')
    A(f'v_lshlrev_b32 {v(t1)}, 1, {v(t0)}')
    A(f'v_and_b32 {v(t1)}, 4, {v(t1)}')
    A(f'v_and_b32 {v(t2)}, 7, {v(LANE)}')
    A(f'v_xor_b32 {v(t1)}, {v(t1)}, {v(t2)}')
    A(f'v_mul_u32_u24 {v(vWd)}, 896, {v(t0)}')
    A(f'v_lshl_add_u32 {v(vWd)}, {v(t1)}, 4, {v(vWd)}')
    A(f's_mul_i32 {s(sT0)}, {s(sWave)}, {448 * 896}')
    A(f's_lshl_b32 {s(sT1)}, {s(sNi)}, 7')
    A(f's_add_u32 {s(sT0)}, {s(sT0)}, {s(sT1)}')
    A(f'v_add_u32 {v(vWd)}, {s(sT0)}, {v(vWd)}')
    A(f's_lshl_b32 {s(sFl)}, {s(sJ)}, 7')
    A(f's_add_u32 {s(sFl)}, {s(sFl)}, {FL2}')
    A('@vm xo')
    A('s_waitcnt lgkmcnt(0)')
    A('s_barrier')
    A(f's_cmp_lg_u32 {s(sWave)}, 0')
    A('s_cbranch_scc1 L_nofl2')
    A(flag_store(vTag, sFl).replace(';#fl', ';#cond'))
    A('L_nofl2:')
    A.ext(w_dma(5, 2, vW) + w_dma(6, 3, vW))
    A(f'v_and_b32 {v(t0)}, 31, {v(LANE)}')
    A(f'v_lshlrev_b32 {v(vSt)}, 4, {v(t0)}')
    A(f'v_lshrrev_b32 {v(t1)}, 5, {v(LANE)}')
    A(f'v_mul_u32_u24 {v(t1)}, 28672, {v(t1)}')
    A(f'v_add_u32 {v(t1)}, {v(t1)}, {v(vSt)}')
    A(f's_lshl_b32 {s(sT2)}, {s(sNi)}, 9')
    A(f's_add_u32 {s(sT2)}, {s(sT2)}, {MOD + 5 * 7168}')
    A(f's_lshl_b32 {s(sT3)}, {s(sNt)}, 2')
    A(f's_add_u32 {s(sT3)}, {s(sT3)}, {s(sWave)}')
    A(f's_lshl_b32 {s(sT3)}, {s(sT3)}, 9')
    A(f's_add_u32 {s(sT3)}, {s(sT3)}, {AUG}')
    A(f's_mul_i32 {s(sT0)}, {s(sWave)}, 56')
    A(f'v_min_u32 {v(vFp)}, 55, {v(LANE)}')
    A(f'v_add_u32 {v(vFp)}, {s(sT0)}, {v(vFp)}')
    A(f'v_lshlrev_b32 {v(vFp)}, 7, {v(vFp)}')
    A(f'v_add_u32 {v(vFp)}, {FL2}, {v(vFp)}')
    g = [f'buffer_load_dwordx4 {v(stt, 4)}, {v(vSt)}, {s(rWS, 4)}, {s(sT2)} offen sc1',
         f'buffer_load_dwordx4 {v(stt + 4, 4)}, {v(vSt)}, {s(rWS, 4)}, {s(sT2)} offen offset:3584 sc1',
         f'buffer_load_dwordx4 {v(Ag, 4)}, {v(t1)}, {s(rWS, 4)}, {s(sT3)} offen sc1',
         f'buffer_load_dword {v(stt + 8)}, {v(vFp)}, {s(rWS, 4)}, 0 offen sc1']
    A.ext(g)
    A(tag_wait('L_f2', g, [stt + 3, stt + 7, Ag + 3, stt + 8]))
    A('s_barrier')
    ts()

    def xs_dma(b):
        o = []
        for cc in range(7):
            u = f's_add_u32 m0, {s(sW1k)}, {SL[XSLOT[b]] + 4096 * cc}\n'
            if cc == 0 and b > 0:
                u += f'v_add_u32 {v(vXs)}, 28672, {v(vXs)}\n'
            u += f'buffer_load_dwordx4 {v(vXs)}, {s(rWS, 4)}, {s(sC + cc)} offen sc1 lds ;#x{b}'
            o.append(u)
        return o

    XSLOT = [4, 1, 0, 2]
    A.ext(interleave(xs_dma(0) + xs_dma(1), w_frags(4, 0, vWr) + w_frags(5, 2, vWr) + w_frags(6, 3, vWr)))
    A(f'v_add_f32 {v(stt)}, {v(stt)}, {v(stt + 4)}')
    A(f'v_add_f32 {v(stt + 1)}, {v(stt + 1)}, {v(stt + 5)}')
    A(f'v_cvt_pk_bf16_f32 {v(stt)}, {v(stt)}, {v(stt + 1)}')
    A(f'v_and_b32 {v(t0)}, 7, {v(LANE)}')
    A(f'v_lshlrev_b32 {v(t0)}, 4, {v(t0)}')
    for i in range(4):
        A(f'ds_bpermute_b32 {v(gbp + i)}, {v(t0)}, {v(stt)} offset:{4 * i}')
    A(f'v_mov_b32 {v(Ag + 3)}, 0')
    for i in range(4):
        A(f'v_mov_b32 {v(Au + i)}, 0')
    A('s_mov_b32 exec_lo, 0')
    for i in range(3):
        A(f'v_mov_b32 {v(Au + i)}, {v(Ag + i)}')
        A(f'v_mov_b32 {v(Ag + i)}, 0')
    A('s_mov_b64 exec, -1')
    sSt, sAo, sAi, sOo = 16, 17, 18, 19
    A(f's_lshl_b32 {s(sSt)}, {s(sMt)}, 11')
    A(f's_add_u32 {s(sSt)}, {s(sSt)}, {ST2}')
    A(f's_lshl_b32 {s(sT0)}, {s(sNt)}, 2')
    A(f's_add_u32 {s(sT0)}, {s(sT0)}, {s(sWave)}')
    A(f's_mul_i32 {s(sT1)}, {s(sMt)}, 224')
    A(f's_add_u32 {s(sT0)}, {s(sT0)}, {s(sT1)}')
    A(f's_lshl_b32 {s(sAo)}, {s(sT0)}, 11')
    A(f's_add_u32 {s(sAo)}, {s(sAo)}, {ACT}')
    A(f's_lshl_b32 {s(sFl)}, {s(sT0)}, 7')
    A(f's_add_u32 {s(sFl)}, {s(sFl)}, {FL3}')
    A(f's_and_b32 {s(sT0)}, {s(sJ)}, 7')
    A(f's_lshl_b32 {s(sT0)}, {s(sT0)}, 2')
    A(f's_add_u32 {s(sT0)}, {s(sT0)}, {s(sMi)}')
    A(f's_lshr_b32 {s(sT1)}, {s(sT0)}, 1')
    A(f's_lshl_b32 {s(sT1)}, {s(sT1)}, 2')
    A(f's_and_b32 {s(sT0)}, {s(sT0)}, 1')
    A(f's_add_u32 {s(sTb)}, {s(sT0)}, {s(sT1)}')
    A(f's_mul_i32 {s(sT0)}, {s(sTb)}, 56')
    A(f's_mul_i32 {s(sT1)}, {s(sWave)}, 14')
    A(f's_add_u32 {s(sT0)}, {s(sT0)}, {s(sT1)}')
    A(f's_lshl_b32 {s(sAi)}, {s(sT0)}, 11')
    A(f's_add_u32 {s(sAi)}, {s(sAi)}, {ACT}')
    A(f'v_min_u32 {v(vFp)}, 13, {v(LANE)}')
    A(f'v_add_u32 {v(vFp)}, {s(sT0)}, {v(vFp)}')
    A(f'v_lshlrev_b32 {v(vFp)}, 7, {v(vFp)}')
    A(f'v_add_u32 {v(vFp)}, {FL3}, {v(vFp)}')
    A(f'v_lshrrev_b32 {v(t1)}, 3, {v(TID)}')
    A(f'v_and_b32 {v(t2)}, 3, {v(t1)}')
    A(f'v_bfe_u32 {v(t0)}, {v(t1)}, 2, 1')
    A(f'v_lshl_add_u32 {v(t2)}, {v(t0)}, 4, {v(t2)}')
    A(f'v_lshrrev_b32 {v(t0)}, 3, {v(t1)}')
    A(f'v_lshl_add_u32 {v(t2)}, {v(t0)}, 2, {v(t2)}')
    A(f'v_and_b32 {v(t0)}, 7, {v(TID)}')
    A(f'v_lshl_add_u32 {v(t2)}, {v(t0)}, 7, {v(t2)}')
    A(f'v_lshlrev_b32 {v(vW)}, 2, {v(t2)}')
    A(f's_mul_i32 {s(sT0)}, {s(sTb)}, 28672')
    A(f's_lshl_b32 {s(sT1)}, {s(sNi)}, 12')
    A(f's_add_u32 {s(sT0)}, {s(sT0)}, {s(sT1)}')
    A(f's_add_u32 {s(sT0)}, {s(sT0)}, {X1P}')
    A(f'v_add_u32 {v(vW)}, {s(sT0)}, {v(vW)}')
    A(f's_mul_i32 {s(sOo)}, {s(sTb)}, {32 * 896}')
    A(f's_lshl_b32 {s(sT1)}, {s(sNi)}, 7')
    A(f's_add_u32 {s(sOo)}, {s(sOo)}, {s(sT1)}')
    A('@vm x0')
    A('s_waitcnt lgkmcnt(0)')
    A('s_barrier')
    ts()

    def wdreg(cc, ks, db):
        i = (ks * 2 + db) * 4
        if cc == 0:
            return 'a', 224 + i
        if cc < 3:
            return 'v', wdv + 32 * (cc - 1) + i
        return 'a', 32 * (cc - 3) + i

    def rn(kr, n):
        return (a if kr[0] == 'a' else v)(kr[1], n)

    def wd_dma(cc, slot):
        return stage_dma(cc, slot, vWd, rWd, 896)

    def wd_frags(cc, slot):
        o = [f'@vm d{cc}\nv_add_u32 {v(d0)}, {SL[slot]}, {v(vDr)}', f'v_xor_b32 {v(d1)}, 64, {v(d0)}']
        for ks in range(4):
            for db in range(2):
                k, r = wdreg(cc, ks, db)
                for e in range(2):
                    o.append(f'ds_read_b64_tr_b16 {rn((k, r + 2 * e), 2)}, {v(d1 if db else d0)} offset:{(16 * ks + 8 * e) * 128} ;#df{cc}')
        return o

    def xread(n):
        b, ks = divmod(n, 28)
        sl = XSLOT[b]
        base, off = (vXr[0], SL[sl]) if sl < 2 else ((vXr[1], 0) if sl == 2 else (vXr[2], 0))
        r = xr + 4 * (n % 4)
        return '\n'.join(f'ds_read_b64_tr_b16 {v(r + 2 * e, 2)}, {v(base)} offset:{off + 1024 * ks + 256 * e} ;#xf{n}' for e in range(2))

    def accr(b):
        return acc + 32 * (b % 3)

    def epilogue(b):
        gg, uu, st = accr(b), accr(b) + 16, stt + 4 * b
        o = [f'v_mov_b32 {v(st + 3)}, 0',
             f'v_lshlrev_b32 {v(tmp)}, 16, {v(st + 2)}',
             f'v_and_b32 {v(tmp + 1)}, 0xffff0000, {v(st + 2)}',
             f'v_mfma_f32_32x32x16_bf16 {v(gg, 16)}, {v(Ag, 4)}, {v(st, 4)}, {v(gg, 16)}',
             f'v_add_f32 {v(tmp)}, {v(tmp)}, {v(tmp + 1)}',
             f'v_rcp_f32 {v(tmp + 1)}, {v(tmp)}',
             f'v_mfma_f32_32x32x16_bf16 {v(uu, 16)}, {v(Au, 4)}, {v(st, 4)}, {v(uu, 16)}',
             f'v_mul_f32 {v(tmp)}, {v(tmp)}, {v(tmp)}',
             f'v_mul_f32 {v(tmp + 1)}, 0xbfb8aa3b, {v(tmp + 1)}',
             's_nop 1',
             f'v_mov_b32 {v(st)}, {v(tmp)}',
             f'v_mov_b32 {v(st + 1)}, {v(tmp + 1)}']
        for q in range(4):
            r4 = range(4 * q, 4 * q + 4)
            tt = tmp + 4 * (q % 2)
            o += [f'v_mul_f32 {v(tt + i % 4)}, {v(st + 1)}, {v(gg + i)}' for i in r4]
            for i in r4:
                o += [f'v_exp_f32 {v(tt + i % 4)}, {v(tt + i % 4)}', f'v_mul_f32 {v(gg + i)}, {v(gg + i)}, {v(uu + i)}']
            o += [f'v_fma_f32 {v(tt + i % 4)}, {v(tt + i % 4)}, {v(st)}, {v(st)}' for i in r4]
            o += [f'v_rcp_f32 {v(tt + i % 4)}, {v(tt + i % 4)}' for i in r4]
            o += [f'v_mul_f32 {v(gg + i)}, {v(gg + i)}, {v(tt + i % 4)}' for i in r4]
            o += [f'v_cvt_pk_bf16_f32 {v(outp + 2 * q + k)}, {v(gg + 4 * q + 2 * k)}, {v(gg + 4 * q + 2 * k + 1)}' for k in range(2)]
            if q % 2:
                o.append(f'buffer_store_dwordx4 {v(outp + 2 * q - 2, 4)}, {v(vL16)}, {s(rWS, 4)}, {s(sAo)} offen offset:{1024 * (q // 2)} sc1 ;#ao{b}')
        o.append(f's_add_u32 {s(sAo)}, {s(sAo)}, {112 * 1024}')
        return o

    def act_flag(b):
        return f'@vm ao{b}\n' + flag_store(vTag, sFl) + f'\ns_add_u32 {s(sFl)}, {s(sFl)}, {56 * 128}'

    def st_loads(b0):
        return [f'buffer_load_dwordx4 {v(stt + 4 * b, 4)}, {v(vSt)}, {s(rWS, 4)}, {s(sSt)} offen offset:{512 * b} sc1 ;#s{b0}' for b in (b0, b0 + 1)]

    res = [f's_mov_b32 {s(sT3)}, {2 * 28672}']
    for blk in range(2):
        res += [f'buffer_load_dword {v(x1r + 4 * blk + i)}, {v(vW)}, {s(rWS, 4)}, {s(sT3) if blk else 0} offen offset:{128 * i} sc1 ;#res' for i in range(4)]
    pollE = [f'buffer_load_dword {v(fp)}, {v(vFp)}, {s(rWS, 4)}, 0 offen sc1 ;#pe']
    e1 = epilogue(1)
    hcut = 12 + 2 * 27 - 1
    for n in range(3):
        A(xread(n))
    for b in range(4):
        mm = []
        for ks in range(28):
            n = 28 * b + ks
            pre = ''
            if ks == 25 and b < 3:
                pre = f'@vm x{b + 1}\ns_waitcnt lgkmcnt(0)\ns_barrier\n'
            if n + 3 < 112:
                pre += xread(n + 3) + '\n'
            for mat in range(2):
                d = accr(b) + 16 * mat
                u = (pre + f'@lg xf{n}\n') if mat == 0 else ''
                u += f'v_mfma_f32_32x32x16_bf16 {v(d, 16)}, {a((mat * 28 + ks) * 4, 4)}, {v(xr + 4 * (n % 4), 4)}, {"0" if ks == 0 else v(d, 16)}'
                mm.append(u)
        if b == 0:
            mm = interleave(mm, xs_dma(2) + xs_dma(3) + wd_dma(0, 3), end=50)
        elif b == 1:
            f = wd_dma(1, 4) + wd_frags(0, 3) + ['@lg df0'] + wd_dma(2, 3) + res + wd_frags(1, 4) + st_loads(0)
            mm = interleave(mm, f, end=50)
        elif b == 2:
            mm[1] += '\n' + tag_wait('L_s0', st_loads(0), [stt + 3, stt + 7], 's0')
            f = interleave(epilogue(0) + e1[:hcut], wd_dma(3, 1) + wd_frags(2, 3) + wd_dma(4, 4) + st_loads(2))
            mm = interleave(mm, f, start=1)
        else:
            mm[1] += '\n' + tag_wait('L_s2', st_loads(2), [stt + 11, stt + 15], 's2')
            f = interleave(e1[hcut:] + [act_flag(0)] + epilogue(2), wd_dma(5, 3) + wd_dma(6, 0))
            mm = interleave(mm, f, start=1)
        A.ext(mm)
    ts()
    abuf = [('a', 128 + 4 * i) for i in range(24)] + [('v', xr + 4 * i) for i in range(4)]

    def aload(blk, ks):
        return f'buffer_load_dwordx4 {rn(abuf[ks], 4)}, {v(vXs)}, {s(rWS, 4)}, {s(sC + ks // 4)} offen offset:{1024 * (ks % 4)} sc1 ;#a{blk}_{ks}'

    A(act_flag(1))
    A.ext(interleave(epilogue(3), wd_frags(3, 1) + wd_frags(4, 4)))
    A.ext(pollE)
    A(act_flag(2))
    A(f'v_add_u32 {v(vXs)}, {s(sAi)}, {v(vL16)}')
    A(tag_wait('L_pe', pollE, [fp], 'pe'))
    al = [aload(0, ks) for ks in range(28)]
    al[6] += '\n' + act_flag(3)
    A.ext(interleave(al, wd_frags(5, 3) + wd_frags(6, 0)))
    A(f'v_add_u32 {v(vFp)}, {2 * 56 * 128}, {v(vFp)}')
    A(f'v_add_u32 {v(vXs)}, {2 * 112 * 1024}, {v(vXs)}')
    A.ext(pollE)
    wa = [stt + i for i in range(4)]
    ra0, ra1, ao = stt + 4, stt + 5, stt + 6
    A(f'v_and_b32 {v(t0)}, 31, {v(LANE)}')
    A(f'v_lshlrev_b32 {v(t0)}, 8, {v(t0)}')
    A(f'v_add_u32 {v(t0)}, {s(sW8k)}, {v(t0)}')
    A(f'v_lshrrev_b32 {v(t1)}, 5, {v(LANE)}')
    A(f'v_and_b32 {v(t2)}, 7, {v(LANE)}')
    A(f'v_xor_b32 {v(t1)}, {v(t1)}, {v(t2)}')
    A(f'v_lshl_add_u32 {v(wa[0])}, {v(t1)}, 4, {v(t0)}')
    A(f'v_add_u32 {v(wa[0])}, {SL[2]}, {v(wa[0])}')
    for gq in range(1, 4):
        A(f'v_xor_b32 {v(wa[gq])}, {32 * gq}, {v(wa[0])}')
    A(f'v_lshrrev_b32 {v(t0)}, 3, {v(TID)}')
    A(f'v_and_b32 {v(t1)}, 7, {v(t0)}')
    A(f'v_lshlrev_b32 {v(ra0)}, 1, {v(t2)}')
    A(f'v_xor_b32 {v(ra0)}, {v(ra0)}, {v(t1)}')
    A(f'v_lshlrev_b32 {v(ra0)}, 4, {v(ra0)}')
    A(f'v_lshl_add_u32 {v(ra0)}, {v(t0)}, 8, {v(ra0)}')
    A(f'v_add_u32 {v(ra0)}, {SL[2]}, {v(ra0)}')
    A(f'v_xor_b32 {v(ra1)}, 16, {v(ra0)}')
    A(f'v_mul_u32_u24 {v(ao)}, 896, {v(t0)}')
    A(f'v_lshl_add_u32 {v(ao)}, {v(t2)}, 4, {v(ao)}')
    A('s_waitcnt lgkmcnt(0)')
    A('s_barrier')
    Y = acc

    def g2(blk, ks):
        d = acc + 32 * (1 + blk)
        u = f'@vm a{blk}_{ks}\n'
        for db in range(2):
            u += f'v_mfma_f32_32x32x16_bf16 {v(d + 16 * db, 16)}, {rn(wdreg(ks // 4, ks % 4, db), 4)}, {rn(abuf[ks], 4)}, {"0" if ks == 0 else v(d + 16 * db, 16)}\n'
        return u

    def red_write(blk):
        d = acc + 32 * (1 + blk)
        return [f'ds_write_b128 {v(wa[gq])}, {v(d + 16 * db + 4 * gq, 4)} offset:{32768 * blk + 128 * db}' for db in range(2) for gq in range(4)]

    def red_final(blk):
        o = ['s_waitcnt lgkmcnt(0)\ns_barrier']
        for w in range(4):
            o += [f'ds_read_b128 {v(Y + 8 * w, 4)}, {v(ra0)} offset:{32768 * blk + 8192 * w}',
                  f'ds_read_b128 {v(Y + 8 * w + 4, 4)}, {v(ra1)} offset:{32768 * blk + 8192 * w}']
        for i in range(4):
            o += [f'v_lshlrev_b32 {v(tmp + 2 * i)}, 16, {v(x1r + 4 * blk + i)}', f'v_and_b32 {v(tmp + 2 * i + 1)}, 0xffff0000, {v(x1r + 4 * blk + i)}']
            o += [f'v_lshlrev_b32 {v(outp + 2 * i)}, 16, {v(gbp + i)}', f'v_and_b32 {v(outp + 2 * i + 1)}, 0xffff0000, {v(gbp + i)}']
        o.append('s_waitcnt lgkmcnt(0)')
        for i in range(8):
            o += [f'v_add_f32 {v(Y + i)}, {v(Y + i)}, {v(Y + 8 + i)}', f'v_add_f32 {v(Y + 16 + i)}, {v(Y + 16 + i)}, {v(Y + 24 + i)}']
        for i in range(8):
            o += [f'v_add_f32 {v(Y + i)}, {v(Y + i)}, {v(Y + 16 + i)}', f'v_fmac_f32 {v(tmp + i)}, {v(Y + i)}, {v(outp + i)}']
        o += [f'v_cvt_pk_bf16_f32 {v(stt + 8 + 4 * blk + i)}, {v(tmp + 2 * i)}, {v(tmp + 2 * i + 1)}' for i in range(4)]
        o.append(f'buffer_store_dwordx4 {v(stt + 8 + 4 * blk, 4)}, {v(ao)}, {s(rOut, 4)}, {s(sOo)} offen')
        o.append(f's_add_u32 {s(sOo)}, {s(sOo)}, {64 * 896}')
        return o

    for ks in range(28):
        A(g2(0, ks))
    A(tag_wait('L_pl', pollE, [fp], 'pe'))
    ts()
    A.ext(interleave([aload(1, ks) for ks in range(28)], red_write(0) + red_final(0)))
    for ks in range(28):
        A(g2(1, ks))
    A.ext(red_write(1) + red_final(1))
    ts()


def helper_rest():
    V.release(2)
    g = V.get(16)
    acc = V.get(16, 4)
    fw = V.get(112)
    fv = V.get(16)
    xx = V.get(56)
    t0, t1, t2, vo, vr, va, one, aw, ar = [V.get() for _ in range(9)]
    rd = V.get(8)
    A('s_cmp_ge_u32 s2, 28')
    A('s_cbranch_scc1 L_hr_skip')
    A(f's_cmp_eq_u32 {s(sMi)}, 0')
    A(f's_cselect_b32 {s(rW)}, {s(pWg)}, {s(pWu)}')
    A(f's_cselect_b32 {s(rW + 1)}, {s(pWg + 1)}, {s(pWu + 1)}')
    A(f's_mov_b32 {s(rW + 2)}, 1605632')
    A(f's_mov_b32 {s(rW + 3)}, 0x00020000')
    A(f'v_lshrrev_b32 {v(t0)}, 3, {v(LANE)}')
    A(f'v_lshlrev_b32 {v(t1)}, 1, {v(t0)}')
    A(f'v_and_b32 {v(t1)}, 4, {v(t1)}')
    A(f'v_and_b32 {v(t2)}, 7, {v(LANE)}')
    A(f'v_xor_b32 {v(t1)}, {v(t1)}, {v(t2)}')
    A(f'v_mul_u32_u24 {v(vo)}, 3584, {v(t0)}')
    A(f'v_lshl_add_u32 {v(vo)}, {v(t1)}, 4, {v(vo)}')
    A(f's_and_b32 {s(sT1)}, {s(sWave)}, 1')
    A(f's_lshr_b32 {s(sT2)}, {s(sWave)}, 1')
    A(f's_lshl_b32 {s(sT0)}, {s(sNi)}, 1')
    A(f's_add_u32 {s(sT0)}, {s(sT0)}, {s(sT1)}')
    A(f's_lshl_b32 {s(sT0)}, {s(sT0)}, 7')
    A(f's_mul_i32 {s(sT3)}, {s(sT2)}, {224 * 3584}')
    A(f's_add_u32 {s(sT0)}, {s(sT0)}, {s(sT3)}')
    A(f's_mul_i32 {s(sT3)}, {s(sT1)}, 57344')
    A(f's_mul_i32 {s(sM2)}, {s(sT2)}, 28672')
    A(f's_add_u32 m0, {s(sT3)}, {s(sM2)}')
    for i in range(28):
        A(f'buffer_load_dwordx4 {v(vo)}, {s(rW, 4)}, {s(sT0)} offen lds')
        A('s_add_u32 m0, m0, 1024')
        A(f's_add_u32 {s(sT0)}, {s(sT0)}, {8 * 3584}')
    tr_lane(vr, t0, t1, 8, 128)
    A(f'v_bfe_u32 {v(t1)}, {v(LANE)}, 3, 1')
    A(f'v_xor_b32 {v(t1)}, {s(sT1)}, {v(t1)}')
    A(f'v_lshl_add_u32 {v(vr)}, {v(t1)}, 6, {v(vr)}')
    A(f's_mul_i32 {s(sT3)}, {s(sT2)}, 57344')
    A(f'v_add_u32 {v(vr)}, {s(sT3)}, {v(vr)}')
    A(f'v_and_b32 {v(t0)}, 1, {v(LANE)}')
    A(f'v_lshlrev_b32 {v(va)}, 10, {v(t0)}')
    A(f'v_lshrrev_b32 {v(t0)}, 5, {v(LANE)}')
    A(f'v_lshl_add_u32 {v(va)}, {v(t0)}, 4, {v(va)}')
    A(f'v_add_u32 {v(va)}, {SL[4] + 4096}, {v(va)}')
    A(f'v_min_u32 {v(t2)}, 223, {v(TID)}')
    A(f'v_lshlrev_b32 {v(t0)}, 4, {v(t2)}')
    ld = []
    for i, sec in enumerate((4, 3)):
        ld += [f's_mov_b32 {s(sT3)}, {MOD + sec * 7168}',
               f'buffer_load_dwordx4 {v(g + 8 * i, 4)}, {v(t0)}, {s(rWS, 4)}, {s(sT3)} offen sc1',
               f'buffer_load_dwordx4 {v(g + 8 * i + 4, 4)}, {v(t0)}, {s(rWS, 4)}, {s(sT3)} offen offset:3584 sc1']
    A.ext(ld)
    A(tag_wait('L_hg', ld, [g + 3, g + 7, g + 11, g + 15]))
    bf16_pair_from_partials(rd, g, g + 4, True)
    bf16_pair_from_partials(rd + 2, g + 8, g + 12, False)
    A(f'v_lshlrev_b32 {v(t2)}, 2, {v(t2)}')
    A(f'v_add_u32 {v(t2)}, {SL[4] + 4096}, {v(t2)}')
    A(f'ds_write_b32 {v(t2)}, {v(g)}')
    A(f'ds_write_b32 {v(t2)}, {v(g + 8)} offset:1024')
    A('s_waitcnt lgkmcnt(0)')
    A('s_barrier')
    for ks in range(28):
        for e in range(2):
            A(f'ds_read_b64_tr_b16 {v(fw + 4 * ks + 2 * e, 2)}, {v(vr)} offset:{(16 * ks + 4 * e) * 128}')
    for k4 in range(7):
        for i in range(4):
            A(f'ds_read_b128 {v(fv + 4 * i, 4)}, {v(va)} offset:{32 * (4 * k4 + i)}')
        A('s_waitcnt lgkmcnt(0)')
        for i in range(4):
            ks = 4 * k4 + i
            A(f'v_mfma_f32_32x32x16_bf16 {v(acc, 16)}, {v(fv + 4 * i, 4)}, {v(fw + 4 * ks, 4)}, {"0" if ks == 0 else v(acc, 16)}')
        A('s_nop 7')
    A(f's_mul_i32 {s(sT0)}, {s(sMi)}, 28672')
    A(f's_lshl_b32 {s(sT1)}, {s(sNi)}, 2')
    A(f's_add_u32 {s(sT1)}, {s(sT1)}, {s(sWave)}')
    A(f's_lshl_b32 {s(sT1)}, {s(sT1)}, 9')
    A(f's_add_u32 {s(sT0)}, {s(sT0)}, {s(sT1)}')
    A(f's_add_u32 {s(sT0)}, {s(sT0)}, {AUG}')
    A(f'v_lshlrev_b32 {v(t2)}, 4, {v(LANE)}')
    A(f'v_cvt_pk_bf16_f32 {v(g + 1)}, {v(acc)}, {v(acc + 1)}')
    A(f'v_lshlrev_b32 {v(t0)}, 16, {v(g + 1)}')
    A(f'v_and_b32 {v(t1)}, 0xffff0000, {v(g + 1)}')
    A(f'v_sub_f32 {v(acc + 2)}, {v(acc)}, {v(t0)}')
    A(f'v_sub_f32 {v(acc + 3)}, {v(acc + 1)}, {v(t1)}')
    A(f'v_cvt_pk_bf16_f32 {v(g)}, {v(t0)}, {v(acc + 2)}')
    A(f'v_cvt_pk_bf16_f32 {v(g + 2)}, {v(acc + 3)}, {v(t1)}')
    A(f'v_mov_b32 {v(g + 3)}, {s(sTag)}')
    A('s_mov_b32 exec_hi, 0')
    A(f'buffer_store_dwordx4 {v(g, 4)}, {v(t2)}, {s(rWS, 4)}, {s(sT0)} offen sc1')
    A('s_mov_b64 exec, -1')
    A('L_hr_skip:')
    ts()
    A(f's_mul_i32 {s(sT0)}, {s(sWave)}, 56')
    A(f'v_min_u32 {v(t0)}, 55, {v(LANE)}')
    A(f'v_add_u32 {v(t0)}, {s(sT0)}, {v(t0)}')
    A(f'v_lshlrev_b32 {v(t0)}, 7, {v(t0)}')
    A(f'v_add_u32 {v(t0)}, {FL2}, {v(t0)}')
    A(f's_lshr_b32 {s(sT1)}, s2, 1')
    A(f's_lshl_b32 {s(sT1)}, {s(sT1)}, 2')
    A(f's_and_b32 {s(sT2)}, s2, 1')
    A(f's_add_u32 {s(sTb)}, {s(sT1)}, {s(sT2)}')
    A(f's_mul_i32 {s(sT1)}, {s(sTb)}, 28672')
    A(f's_add_u32 {s(sT1)}, {s(sT1)}, {X1P}')
    A(f'v_lshl_add_u32 {v(vo)}, {v(TID)}, 4, {s(sT1)}')
    A(f'v_mov_b32 {v(one)}, 0x3f803f80')
    A(f'v_and_b32 {v(t1)}, 7, {v(LANE)}')
    A(f'v_lshrrev_b32 {v(t2)}, 4, {v(LANE)}')
    A(f'v_lshl_add_u32 {v(t2)}, {v(t1)}, 2, {v(t2)}')
    A(f's_lshl_b32 {s(sT0)}, {s(sWave)}, 8')
    A(f's_add_u32 {s(sT0)}, {s(sT0)}, {SL[4] + 8192}')
    A(f'v_lshl_add_u32 {v(aw)}, {v(t2)}, 3, {s(sT0)}')
    A(f'v_and_b32 {v(t1)}, 3, {v(LANE)}')
    A(f'v_bfe_u32 {v(t2)}, {v(LANE)}, 2, 1')
    A(f'v_lshl_add_u32 {v(t1)}, {v(t2)}, 4, {v(t1)}')
    A(f'v_bfe_u32 {v(t2)}, {v(LANE)}, 3, 2')
    A(f'v_lshl_add_u32 {v(t1)}, {v(t2)}, 2, {v(t1)}')
    A(f'v_lshlrev_b32 {v(ar)}, 3, {v(t1)}')
    A(f'v_add_u32 {v(ar)}, {SL[4] + 8192}, {v(ar)}')
    A(f'v_lshlrev_b32 {v(vr)}, 4, {v(LANE)}')
    A(f's_lshl_b32 {s(sM2)}, {s(sTb)}, 9')
    A(f's_add_u32 {s(sM2)}, {s(sM2)}, {ST2}')
    pl = [f'buffer_load_dword {v(va)}, {v(t0)}, {s(rWS, 4)}, 0 offen sc1']
    A.ext(pl)
    A(tag_wait('L_hf', pl, [va]))
    A('s_barrier')
    ts()
    for blk in range(2):
        for i in range(7):
            A(f's_mov_b32 {s(sT0)}, {2 * 28672 * blk + 4096 * i}')
            A(f'buffer_load_dwordx4 {v(xx + 28 * blk + 4 * i, 4)}, {v(vo)}, {s(rWS, 4)}, {s(sT0)} offen sc1 ;#hx{blk}_{i}')
    for blk in range(2):
        for j in range(8):
            A(f'v_mov_b32 {v(acc + j)}, 0')
        for i in range(7):
            A(f'@vm hx{blk}_{i}')
            for j in range(4):
                w = xx + 28 * blk + 4 * i + j
                A(f'v_dot2c_f32_bf16 {v(acc + 2 * j)}, {v(w)}, {v(one)}')
                A(f'v_dot2c_f32_bf16 {v(acc + 2 * j + 1)}, {v(w)}, {v(w)}')
        reduce8(acc)
        A(f'ds_write_b64 {v(aw)}, {v(acc, 2)} offset:{1024 * blk}')
        A('s_waitcnt lgkmcnt(0)')
        A('s_barrier')
        A(f's_cmp_lg_u32 {s(sWave)}, {blk}')
        A(f's_cbranch_scc1 L_hs_n{blk}')
        for w in range(4):
            A(f'ds_read_b64 {v(rd + 2 * w, 2)}, {v(ar)} offset:{1024 * blk + 256 * w}')
        A(f'v_mov_b32 {v(t2)}, 0x3b124925')
        A('s_waitcnt lgkmcnt(0)')
        A(f'v_pk_add_f32 {v(rd, 2)}, {v(rd, 2)}, {v(rd + 2, 2)}')
        A(f'v_pk_add_f32 {v(rd + 4, 2)}, {v(rd + 4, 2)}, {v(rd + 6, 2)}')
        A(f'v_pk_add_f32 {v(rd, 2)}, {v(rd, 2)}, {v(rd + 4, 2)}')
        A(f'v_mul_f32 {v(rd)}, 0xbb124925, {v(rd)}')
        A(f'v_mul_f32 {v(t0)}, {v(rd)}, {v(rd)}')
        A(f'v_fma_f32 {v(rd + 1)}, {v(rd + 1)}, {v(t2)}, -{v(t0)}')
        A(f'v_max_f32 {v(rd + 1)}, 0, {v(rd + 1)}')
        A(f'v_add_f32 {v(rd + 1)}, 0x3727c5ac, {v(rd + 1)}')
        A(f'v_sqrt_f32 {v(rd + 1)}, {v(rd + 1)}')
        A(f'v_cvt_pk_bf16_f32 {v(g)}, {v(rd)}, {v(rd)}')
        A(f'v_cvt_pk_bf16_f32 {v(t1)}, {v(rd + 1)}, {v(rd + 1)}')
        A(f'v_and_b32 {v(t0)}, 0xffff0000, {v(g)}')
        A(f'v_and_b32 {v(t1)}, 0xffff0000, {v(t1)}')
        A(f'v_sub_f32 {v(rd + 2)}, {v(rd)}, {v(t0)}')
        A(f'v_sub_f32 {v(rd + 3)}, {v(rd + 1)}, {v(t1)}')
        A(f'v_cvt_pk_bf16_f32 {v(g + 1)}, {v(rd + 2)}, {v(t1)}')
        A(f'v_cvt_pk_bf16_f32 {v(g + 2)}, {v(t1)}, {v(rd + 3)}')
        A(f'v_mov_b32 {v(g + 3)}, {s(sTag)}')
        A('s_mov_b32 exec_hi, 0')
        A(f'buffer_store_dwordx4 {v(g, 4)}, {v(vr)}, {s(rWS, 4)}, {s(sM2)} offen offset:{1024 * blk} sc1 ;#cond')
        A('s_mov_b64 exec, -1')
        A(f'L_hs_n{blk}:')
    ts()


def epoch_update():
    A('s_cmp_lg_u32 s2, 32')
    A('s_cbranch_scc1 L_noep')
    A(f'v_mov_b32 v2, {s(sTag)}')
    A(f'v_mov_b32 v3, {EP}')
    A(f'buffer_store_dword v2, v3, {s(rWS, 4)}, 0 offen sc1')
    A('L_noep:')


def build():
    prologue()
    n0 = nts[0]
    m = V.mark()
    main_ffn(main_ssm())
    epoch_update()
    ts_flush('m')
    A('s_endpgm')
    A('L_helper:')
    nts[0] = n0
    V.release(m)
    helper_mod()
    helper_rest()
    ts_flush('h')
    A('L_end:')
    A('s_endpgm')
    body = pad_hazards(resolve_waits(A.lines))
    hdr = open('adaLN_cond__ssm_conv_s4__swiglu_ffn__prompt.s.ref').read().split('; Override launch')[0]
    text = hdr + '; @launch grid=(256,1,1) block=(256,1,1) lds=163840\n'
    text += f'.amdgcn_target "amdgcn-amd-amdhsa--gfx950"\n.text\n.globl {NAME}\n.p2align 8\n.type {NAME},@function\n{NAME}:\n'
    text += '\n'.join(body) + '\n'
    text += f'''.section .rodata,"a"
.p2align 6
.amdhsa_kernel {NAME}
  .amdhsa_next_free_vgpr 512
  .amdhsa_next_free_sgpr 102
  .amdhsa_accum_offset 256
  .amdhsa_group_segment_fixed_size 0
  .amdhsa_kernarg_size 144
  .amdhsa_user_sgpr_count 2
  .amdhsa_user_sgpr_kernarg_segment_ptr 1
  .amdhsa_system_sgpr_workgroup_id_x 1
  .amdhsa_float_denorm_mode_32 3
.end_amdhsa_kernel
'''
    open(sys.argv[1], 'w').write(text)
    print('vgpr high water', V.hi, 'lines', len(body))


build()
```

```python
import sys
from asmgen import *

NAME = 'adaLN_cond__ssm_conv_s4__swiglu_ffn__prompt_kernel'
OPT = dict(ts=0, probe=-1, hprobe=-1)
for arg in sys.argv[2:]:
    k, val = arg.split('=')
    OPT[k] = int(val)

EP, ST1, MOD, AUG, ST2, FL2, FL3 = 0, 0x1000, 0x8000, 0x14000, 0x24000, 0x38000, 0x40000
INB, XS, X1P, ACT, TS = 0x100000, 0x500000, 0x700000, 0x900000, 0x1800000
SL = [0, 32768, 65536, 98304, 131072]
KG_W = 16320
HB, HC = 65536, 4160
KT, KT_CH, KT_C0 = 98816, 9152, 4568
XR = 117120
MISC = 125312
SPIN = 200000

pX, pAre, pAim, pBre, pBim, pCre, pCim, pLdt, pDs, pBx, pWg, pWu, pWd, pC, pWm, pOut, pDbg, pWs = range(4, 40, 2)
rX, rWS, rW, rWd, rOut, rWm = 40, 44, 48, 52, 56, 60
sWave, sTag, sJ, sMi, sNi, sMt, sNt, sRot, sLdt, sDs, sT0, sT1, sT2, sT3, sSpin, sM2 = range(64, 80)
sTS = 80
sC = 4
sW1k, sW8k, sWo, sFl, sTb = 11, 12, 13, 14, 15

A = Asm()
V = Regs('v', 2, 256)
TID, LANE = 0, 1
nts = [0]


def ts():
    if OPT['ts']:
        A(f's_mem{"real" if OPT["ts"] == 1 else ""}time {s(sTS + 2 * nts[0], 2)}')
        nts[0] += 1
        assert nts[0] <= 11


def ts_flush(tag):
    if not OPT['ts']:
        return
    pk = OPT['probe' if tag == 'm' else 'hprobe']
    if max(OPT['probe'], OPT['hprobe']) >= 0:
        if pk >= 0:
            A('s_waitcnt lgkmcnt(0)')
            A(f's_add_u32 {s(sT0)}, {s(sTS + 2 * pk)}, 6000')
            A(f'L_probe{tag}:')
            A(f's_memrealtime {s(sT2, 2)}')
            A('s_waitcnt lgkmcnt(0)')
            A(f's_sub_u32 {s(sT1)}, {s(sT2)}, {s(sT0)}')
            A(f's_cmp_lt_i32 {s(sT1)}, 0')
            A(f's_cbranch_scc1 L_probe{tag}')
        return
    n = nts[0]
    A('s_waitcnt lgkmcnt(0)')
    A(f's_lshl_b32 {s(sT0)}, s2, 2')
    A(f's_add_u32 {s(sT0)}, {s(sT0)}, {s(sWave)}')
    A(f's_lshl_b32 {s(sT0)}, {s(sT0)}, 6')
    A(f's_add_u32 {s(sT0)}, {s(sT0)}, {TS}')
    A(f'v_mov_b32 v2, {s(sT0)}')
    for i in range(n):
        A(f'v_mov_b32 v3, {s(sTS + 2 * i)}')
        A(f'buffer_store_dword v3, v2, {s(rWS, 4)}, 0 offen offset:{4 * i}')


def srd(r, p, nbytes):
    A(f's_mov_b32 {s(r)}, {s(p)}')
    A(f's_mov_b32 {s(r + 1)}, {s(p + 1)}')
    A(f's_mov_b32 {s(r + 2)}, {nbytes}')
    A(f's_mov_b32 {s(r + 3)}, 0x00020000')


def cmul(d, x, y):
    return [f'v_pk_mul_f32 {v(d, 2)}, {v(x, 2)}, {v(y, 2)} op_sel:[0,0] op_sel_hi:[1,0]',
            f'v_pk_fma_f32 {v(d, 2)}, {v(x, 2)}, {v(y, 2)}, {v(d, 2)} op_sel:[1,1,0] op_sel_hi:[0,1,1] neg_lo:[0,1,0]']


def div7(q, r, x):
    A(f's_mul_i32 {s(q)}, {s(x)}, 9363')
    A(f's_lshr_b32 {s(q)}, {s(q)}, 16')
    A(f's_mul_i32 {s(r)}, {s(q)}, 7')
    A(f's_sub_u32 {s(r)}, {s(x)}, {s(r)}')


def tag_wait(label, loads, tags, younger=0):
    o = [f's_mov_b32 {s(sSpin)}, {SPIN}']
    o.append(f'@vm {younger}' if isinstance(younger, str) else f's_waitcnt vmcnt({younger})')
    o.append(f'{label}_chk:')
    o += [f'v_cmpx_eq_u32 vcc, {s(sTag)}, {v(t)}' for t in tags]
    o += ['s_nop 0', 's_cmp_eq_u64 exec, -1', 's_mov_b64 exec, -1', f's_cbranch_scc1 {label}_ok',
          f's_sub_u32 {s(sSpin)}, {s(sSpin)}, 1', f's_cmp_eq_u32 {s(sSpin)}, 0', f's_cbranch_scc1 {label}_ok', 's_sleep 1']
    o += tagged([x.split(';#')[0] for x in loads], 'cond')
    o += ['s_waitcnt vmcnt(0) ;#cond', f's_branch {label}_chk', f'{label}_ok:']
    return '\n'.join(o)


def stats1_loads(d):
    t0, t1 = V.get(), V.get()
    A(f's_lshl_b32 {s(sT0)}, s2, 2')
    A(f's_add_u32 {s(sT0)}, {s(sT0)}, {s(sWave)}')
    A(f's_mul_i32 {s(sT0)}, {s(sT0)}, 1792')
    A(f'v_lshrrev_b32 {v(t0)}, 5, {v(LANE)}')
    A(f'v_mul_u32_u24 {v(t0)}, 896, {v(t0)}')
    A(f'v_and_b32 {v(t1)}, 31, {v(LANE)}')
    A(f'v_lshl_add_u32 {v(t0)}, {v(t1)}, 4, {v(t0)}')
    A(f'v_cmp_gt_u32 vcc, 28, {v(t1)}')
    A(f'v_mov_b32 {v(t1)}, 0x40000000')
    A(f'v_cndmask_b32 {v(t0)}, {v(t1)}, {v(t0)}, vcc')
    A(f'buffer_load_dwordx4 {v(d, 4)}, {v(t0)}, {s(rX, 4)}, {s(sT0)} offen')
    A(f'buffer_load_dwordx4 {v(d + 4, 4)}, {v(t0)}, {s(rX, 4)}, {s(sT0)} offen offset:448')


def stats1_compute(d):
    m = V.mark()
    g = V.get(4)
    s1, s2, one, t = V.get(), V.get(), V.get(), V.get()
    A(f'v_mov_b32 {v(one)}, 0x3f803f80')
    A(f'v_mov_b32 {v(s1)}, 0')
    A(f'v_mov_b32 {v(s2)}, 0')
    for i in range(8):
        A(f'v_dot2c_f32_bf16 {v(s1)}, {v(d + i)}, {v(one)}')
        A(f'v_dot2c_f32_bf16 {v(s2)}, {v(d + i)}, {v(d + i)}')
    for ctl in ('row_shr:1', 'row_shr:2', 'row_shr:4', 'row_shr:8'):
        for r in (s1, s2):
            A(f'v_add_f32_dpp {v(r)}, {v(r)}, {v(r)} {ctl} row_mask:0xf bank_mask:0xf bound_ctrl:1')
    for r in (s1, s2):
        A(f'v_add_f32_dpp {v(r)}, {v(r)}, {v(r)} row_bcast:15 row_mask:0xa bank_mask:0xf')
    A(f'v_mul_f32 {v(s1)}, 0x3b124925, {v(s1)}')
    A(f'v_mul_f32 {v(t)}, {v(s1)}, {v(s1)}')
    A(f'v_mov_b32 {v(one)}, 0x3b124925')
    A(f'v_fma_f32 {v(s2)}, {v(s2)}, {v(one)}, -{v(t)}')
    A(f'v_max_f32 {v(s2)}, 0, {v(s2)}')
    A(f'v_add_f32 {v(s2)}, 0x3727c5ac, {v(s2)}')
    A(f'v_rsq_f32 {v(g + 2)}, {v(s2)}')
    A(f'v_mov_b32 {v(g + 3)}, {s(sTag)}')
    A(f'v_mul_f32 {v(s1)}, {v(s1)}, {v(g + 2)}')
    A(f'v_readlane_b32 {s(sT1)}, {v(g + 2)}, 31')
    A(f'v_readlane_b32 {s(sT2)}, {v(s1)}, 31')
    A(f's_lshl_b32 {s(sT0)}, s2, 2')
    A(f's_add_u32 {s(sT0)}, {s(sT0)}, {s(sWave)}')
    A(f's_lshl_b32 {s(sT0)}, {s(sT0)}, 4')
    A(f's_add_u32 {s(sT0)}, {s(sT0)}, {ST1}')
    A(f'v_mov_b32 {v(g + 1)}, {s(sT1)}')
    A(f'v_cvt_pk_bf16_f32 {v(g)}, -{s(sT2)}, -{v(s1)}')
    A(f'v_mov_b32 {v(t)}, {s(sT0)}')
    A('s_mov_b32 exec_lo, 0')
    A('s_mov_b32 exec_hi, 0x80000000')
    A(f'buffer_store_dwordx4 {v(g, 4)}, {v(t)}, {s(rWS, 4)}, 0 offen sc1')
    A('s_mov_b64 exec, -1')
    V.release(m)


def reduce8(acc):
    for j in range(4):
        A(f'v_permlane32_swap_b32 {v(acc + j)}, {v(acc + j + 4)}')
    for j in range(4):
        A(f'v_add_f32 {v(acc + j)}, {v(acc + j)}, {v(acc + j + 4)}')
    for j in range(2):
        A(f'v_permlane16_swap_b32 {v(acc + j)}, {v(acc + j + 2)}')
    for j in range(2):
        A(f'v_add_f32 {v(acc + j)}, {v(acc + j)}, {v(acc + j + 2)}')
    for j in range(2):
        A(f'v_add_f32_dpp {v(acc + j)}, {v(acc + j)}, {v(acc + j)} row_ror:8 row_mask:0xf bank_mask:0xf')


def bf16_pair_from_partials(dst, g0, g1, plus1):
    A(f'v_add_f32 {v(dst)}, {v(g0)}, {v(g1)}')
    A(f'v_add_f32 {v(dst + 1)}, {v(g0 + 1)}, {v(g1 + 1)}')
    A(f'v_cvt_pk_bf16_f32 {v(g0)}, {v(dst)}, {v(dst + 1)}')
    A(f'v_lshlrev_b32 {v(dst)}, 16, {v(g0)}')
    A(f'v_and_b32 {v(dst + 1)}, 0xffff0000, {v(g0)}')
    if plus1:
        A(f'v_add_f32 {v(dst)}, 1.0, {v(dst)}')
        A(f'v_add_f32 {v(dst + 1)}, 1.0, {v(dst + 1)}')
        A(f'v_cvt_pk_bf16_f32 {v(g0)}, {v(dst)}, {v(dst + 1)}')
        A(f'v_lshlrev_b32 {v(dst)}, 16, {v(g0)}')
        A(f'v_and_b32 {v(dst + 1)}, 0xffff0000, {v(g0)}')


def prologue():
    A('s_cmp_ge_u32 s2, 256')
    A('s_cbranch_scc1 L_end')
    ts()
    A('s_load_dwordx16 s[4:19], s[0:1], 0')
    A('s_load_dwordx16 s[20:35], s[0:1], 64')
    A('s_load_dwordx4 s[36:39], s[0:1], 128')
    A(f'v_lshrrev_b32 v2, 6, {v(TID)}')
    A(f'v_and_b32 {v(LANE)}, 63, {v(TID)}')
    A(f'v_readfirstlane_b32 {s(sWave)}, v2')
    A(f's_sub_u32 {s(sJ)}, s2, 32')
    A('s_waitcnt lgkmcnt(0)')
    A(f's_load_dword {s(sTag)}, {s(pWs, 2)}, {EP}')
    srd(rX, pX, 1835008)
    srd(rWS, pWs, 0x10000000)
    A('s_cmp_lt_u32 s2, 32')
    A('s_cbranch_scc1 L_helper')


UEXP = {}
for vv in range(14):
    for hh in range(2):
        if vv < 4:
            e = 4 * hh + vv
        elif vv < 7:
            e = 256 + 4 * hh + 2 * (vv - 4)
        elif vv < 10:
            e = 512 + 256 * hh + 4 * (vv - 7)
        elif vv < 12:
            e = 1024 + 512 * hh + 8 * (vv - 10)
        else:
            e = 1280 + 512 * hh + 8 * (vv - 12)
        rho = 8 * (vv >> 2) + 4 * hh + (vv & 3)
        UEXP.setdefault(e, []).append(rho if rho < 26 else rho - 2)


def stage_dma(cc, slot, voff, rsrc, rowb):
    out = []
    for i in range(8):
        u = f's_add_u32 m0, {s(sW8k)}, {SL[slot] + 1024 * i}\n'
        u += (f's_mul_i32 {s(sWo)}, {s(sC + cc)}, {rowb // 64}\n' if i == 0 else f's_add_u32 {s(sWo)}, {s(sWo)}, {8 * rowb}\n')
        u += f'buffer_load_dwordx4 {v(voff)}, {s(rsrc, 4)}, {s(sWo)} offen lds'
        out.append(u)
    return out


def w_dma(cc, slot, vW):
    return stage_dma(cc, slot, vW, rW, 3584)


def w_frags(cc, slot, vWr):
    out = []
    for ks in range(4):
        for mat in range(2):
            for e in range(2):
                r = (mat * 28 + cc * 4 + ks) * 4 + 2 * e
                out.append(f'ds_read_b64_tr_b16 {a(r, 2)}, {v(vWr[slot])} offset:{mat * 16384 + (16 * ks + 4 * e) * 128}')
    return out


def main_ssm():
    P = {}
    vW = V.get()
    vWr = [V.get() for _ in range(5)]
    P['vW'], P['vWr'] = vW, vWr
    mp = V.mark()
    M = V.get(16)
    vI = V.get()
    vM = V.get()
    mb = V.mark()
    par = V.get(6)
    m0 = V.mark()
    tl = V.get(8)
    st = V.get(8)
    q, tp, t0, t1 = V.get(), V.get(), V.get(), V.get()
    div7(sT2, sT3, sJ)
    A(f'v_lshrrev_b32 {v(q)}, 3, {v(LANE)}')
    A(f'v_and_b32 {v(tp)}, 7, {v(LANE)}')
    A(f'v_mul_u32_u24 {v(t0)}, 1792, {v(tp)}')
    A(f'v_lshl_add_u32 {v(t0)}, {v(q)}, 4, {v(t0)}')
    A(f's_lshl_b32 {s(sT0)}, {s(sT2)}, 2')
    A(f's_add_u32 {s(sT0)}, {s(sT0)}, {s(sWave)}')
    A(f's_lshl_b32 {s(sM2)}, {s(sT0)}, 7')
    A(f's_mul_i32 {s(sT0)}, {s(sT0)}, {16 * 896}')
    A(f's_lshl_b32 {s(sT1)}, {s(sT3)}, 7')
    A(f's_add_u32 {s(sT0)}, {s(sT0)}, {s(sT1)}')
    A(f'buffer_load_dwordx4 {v(tl, 4)}, {v(t0)}, {s(rX, 4)}, {s(sT0)} offen')
    A(f'buffer_load_dwordx4 {v(tl + 4, 4)}, {v(t0)}, {s(rX, 4)}, {s(sT0)} offen offset:896')
    A(f's_lshl_b32 {s(sT3)}, {s(sT3)}, 19')
    A(f's_add_u32 {s(sM2)}, {s(sM2)}, {s(sT3)}')
    A(f's_add_u32 {s(sM2)}, {s(sM2)}, {INB}')
    stats1_loads(st)
    A(f's_lshl_b32 {s(sT0)}, {s(sJ)}, 10')
    A(f'v_lshl_add_u32 {v(t1)}, {v(TID)}, 2, {s(sT0)}')
    for i, p in enumerate((pAre, pAim, pBre, pBim, pCre, pCim)):
        A(f'global_load_dword {v(par + i)}, {v(t1)}, {s(p, 2)}')
    A(f's_lshl_b32 {s(sT0)}, {s(sJ)}, 2')
    A(f's_load_dword {s(sLdt)}, {s(pLdt, 2)}, {s(sT0)}')
    A(f's_load_dword {s(sDs)}, {s(pDs, 2)}, {s(sT0)}')
    A(f's_lshr_b32 {s(sT0)}, {s(sJ)}, 3')
    div7(sMi, sNi, sT0)
    A(f's_and_b32 {s(sT0)}, {s(sJ)}, 7')
    A(f's_lshr_b32 {s(sT1)}, {s(sT0)}, 1')
    A(f's_lshl_b32 {s(sMt)}, {s(sT1)}, 2')
    A(f's_add_u32 {s(sMt)}, {s(sMt)}, {s(sMi)}')
    A(f's_and_b32 {s(sT1)}, {s(sT0)}, 1')
    A(f's_mul_i32 {s(sNt)}, {s(sT1)}, 7')
    A(f's_add_u32 {s(sNt)}, {s(sNt)}, {s(sNi)}')
    A(f's_lshl_b32 {s(sRot)}, {s(sMi)}, 1')
    A(f's_add_u32 {s(sRot)}, {s(sRot)}, {s(sNi)}')
    A(f's_cmp_ge_u32 {s(sRot)}, 7')
    A(f's_cselect_b32 {s(sT1)}, 7, 0')
    A(f's_sub_u32 {s(sRot)}, {s(sRot)}, {s(sT1)}')
    A(f's_cmp_lt_u32 {s(sWave)}, 2')
    A(f's_cselect_b32 {s(rW)}, {s(pWg)}, {s(pWu)}')
    A(f's_cselect_b32 {s(rW + 1)}, {s(pWg + 1)}, {s(pWu + 1)}')
    A(f's_mov_b32 {s(rW + 2)}, 1605632')
    A(f's_mov_b32 {s(rW + 3)}, 0x00020000')
    for cc in range(7):
        A(f's_add_u32 {s(sT0)}, {s(sRot)}, {cc}')
        A(f's_cmp_ge_u32 {s(sT0)}, 7')
        A(f's_cselect_b32 {s(sT1)}, 7, 0')
        A(f's_sub_u32 {s(sT0)}, {s(sT0)}, {s(sT1)}')
        A(f's_lshl_b32 {s(sC + cc)}, {s(sT0)}, 12')
    A(f's_lshl_b32 {s(sW1k)}, {s(sWave)}, 10')
    A(f's_lshl_b32 {s(sW8k)}, {s(sWave)}, 13')
    srd(rWd, pWd, 1605632)
    srd(rOut, pOut, 1835008)
    A(f'v_lshlrev_b32 {v(t0)}, 1, {v(q)}')
    A(f'v_and_b32 {v(t0)}, 4, {v(t0)}')
    A(f'v_xor_b32 {v(t0)}, {v(t0)}, {v(tp)}')
    A(f'v_mul_u32_u24 {v(vW)}, 3584, {v(q)}')
    A(f'v_lshl_add_u32 {v(vW)}, {v(t0)}, 4, {v(vW)}')
    A(f's_lshl_b32 {s(sT0)}, {s(sNt)}, 1')
    A(f's_and_b32 {s(sT1)}, {s(sWave)}, 1')
    A(f's_add_u32 {s(sT0)}, {s(sT0)}, {s(sT1)}')
    A(f's_lshl_b32 {s(sT0)}, {s(sT0)}, 7')
    A(f'v_add_u32 {v(vW)}, {s(sT0)}, {v(vW)}')
    A(f'v_lshrrev_b32 {v(t0)}, 5, {v(LANE)}')
    A(f'v_bfe_u32 {v(t1)}, {v(LANE)}, 2, 2')
    A(f'v_lshl_add_u32 {v(t0)}, {v(t0)}, 3, {v(t1)}')
    A(f'v_lshlrev_b32 {v(t0)}, 7, {v(t0)}')
    A(f'v_lshrrev_b32 {v(t1)}, 1, {v(t1)}')
    A(f'v_xor_b32 {v(t1)}, {s(sT1)}, {v(t1)}')
    A(f'v_lshl_add_u32 {v(t0)}, {v(t1)}, 6, {v(t0)}')
    A(f'v_bfe_u32 {v(t1)}, {v(LANE)}, 4, 1')
    A(f'v_lshl_add_u32 {v(t0)}, {v(t1)}, 5, {v(t0)}')
    A(f'v_and_b32 {v(t1)}, 3, {v(LANE)}')
    A(f'v_lshl_add_u32 {v(t0)}, {v(t1)}, 3, {v(t0)}')
    A(f's_lshr_b32 {s(sT0)}, {s(sWave)}, 1')
    A(f's_lshl_b32 {s(sT0)}, {s(sT0)}, 13')
    A(f'v_add_u32 {v(vWr[0])}, {s(sT0)}, {v(t0)}')
    for i in range(1, 5):
        A(f'v_add_u32 {v(vWr[i])}, {SL[i]}, {v(vWr[0])}')
    A(f's_lshr_b32 {s(sT0)}, {s(sWave)}, 1')
    A(f's_mul_i32 {s(sT0)}, {s(sT0)}, {KT_CH}')
    A(f's_mul_i32 {s(sT1)}, {s(sT1)}, {KT_C0}')
    A(f's_add_u32 {s(sT0)}, {s(sT0)}, {s(sT1)}')
    A(f's_add_u32 m0, {s(sT0)}, {KT + 4096}')
    A(f'v_mov_b32 {v(t0)}, 0')
    A(f'ds_write_addtid_b32 {v(t0)}')
    A(f'ds_write_addtid_b32 {v(t0)} offset:208')
    A(f's_mul_i32 m0, {s(sWave)}, {KG_W}')
    A(f'v_mov_b32 {v(t1)}, 0x3f80')
    A(f'ds_write_addtid_b32 {v(t1)}')
    gr = V.get(16)
    A(f'v_lshlrev_b32 {v(t0)}, 16, {v(q)}')
    A(f'v_lshl_add_u32 {v(t0)}, {v(tp)}, 4, {v(t0)}')
    A('s_waitcnt lgkmcnt(0)')
    A(f's_add_u32 {s(sTag)}, {s(sTag)}, 1')
    for k in range(4):
        A(f'v_mov_b32 {v(gr + 4 * k + 2)}, 0')
        A(f'v_mov_b32 {v(gr + 4 * k + 3)}, {s(sTag)}')
    A('s_waitcnt vmcnt(8)')
    for k in range(4):
        A(f'v_mov_b32 {v(gr + 4 * k)}, {v(tl + k)}')
        A(f'v_mov_b32 {v(gr + 4 * k + 1)}, {v(tl + 4 + k)}')
        A(f'buffer_store_dwordx4 {v(gr + 4 * k, 4)}, {v(t0)}, {s(rWS, 4)}, {s(sM2)} offen sc1')
        if k < 3:
            A(f's_add_u32 {s(sM2)}, {s(sM2)}, 16384')
    A('s_waitcnt vmcnt(10)')
    stats1_compute(st)
    ts()
    A.ext(w_dma(0, 4, vW))
    A.ext(w_dma(1, 2, vW))
    V.release(m0)
    T = V.get(16, 4)
    G = V.get(16)
    S = V.get(16)
    mk = V.mark()
    dt = V.get(2)
    aU, aV = V.get(), V.get()
    fU, fV = V.get(32), V.get(32)
    e2, rv = V.get(), V.get()
    B_, C_, W_, z1, z2, z4, z8, z256 = [V.get(2) for _ in range(8)]
    pp = [V.get(2) for _ in range(6)]
    cv = [V.get() for _ in range(4)]
    t0, t1 = V.get(), V.get()
    A(f's_lshl_b32 {s(sT0)}, {s(sLdt)}, 16')
    A(f's_and_b32 {s(sT1)}, {s(sLdt)}, 0xffff0000')
    A(f's_lshl_b32 {s(sT2)}, {s(sDs)}, 16')
    A(f's_and_b32 {s(sT3)}, {s(sDs)}, 0xffff0000')
    A(f's_cmp_lt_u32 {s(sWave)}, 2')
    A(f's_cselect_b32 {s(sLdt)}, {s(sT0)}, {s(sT1)}')
    A(f's_cselect_b32 {s(sDs)}, {s(sT2)}, {s(sT3)}')
    A(f'v_mov_b32 {v(t0)}, 0x3fb8aa3b')
    A(f'v_mul_f32 {v(dt)}, {s(sLdt)}, {v(t0)}')
    A(f'v_exp_f32 {v(dt)}, {v(dt)}')
    A(f's_mul_i32 {s(sT0)}, {s(sWave)}, {KG_W}')
    A(f's_mov_b32 m0, {s(sT0)}')
    A(f'v_cvt_pk_bf16_f32 {v(dt)}, {v(dt)}, {v(dt)}')
    A(f'v_lshlrev_b32 {v(dt)}, 16, {v(dt)}')
    A(f'v_and_b32 {v(t0)}, 31, {v(LANE)}')
    A(f'v_lshrrev_b32 {v(t1)}, 5, {v(LANE)}')
    A(f'v_lshl_add_u32 {v(t1)}, {v(t1)}, 4, {s(sT0)}')
    A(f'v_mul_u32_u24 {v(aV)}, 272, {v(t0)}')
    A(f'v_add_u32 {v(aV)}, {v(aV)}, {v(t1)}')
    A(f'v_cmp_lt_u32 vcc, 27, {v(t0)}')
    A(f'v_add_u32 {v(aU)}, {32 * 272}, {v(aV)}')
    A(f'v_add_u32 {v(t1)}, {30 * 272}, {v(aV)}')
    A(f'v_cndmask_b32 {v(aU)}, {v(aU)}, {v(t1)}, vcc')
    A(f'v_lshlrev_b32 {v(vI)}, 4, {v(LANE)}')
    A(f's_lshl_b32 {s(sT0)}, {s(sWave)}, 12')
    A(f'v_add_u32 {v(vI)}, {s(sT0)}, {v(vI)}')
    A(f's_lshl_b32 {s(sT0)}, {s(sJ)}, 4')
    A(f'v_mov_b32 {v(vM)}, {s(sT0)}')
    A('s_waitcnt vmcnt(21)')

    def setup(it):
        o = []
        un = (lambda d, x: f'v_lshlrev_b32 {v(d)}, 16, {v(x)}') if it == 0 else (lambda d, x: f'v_and_b32 {v(d)}, 0xffff0000, {v(x)}')
        o += [un(e2, par), un(rv, par + 1), un(B_, par + 2), un(B_ + 1, par + 3), un(C_, par + 4), un(C_ + 1, par + 5)]
        o += [f'v_mul_f32 {v(e2)}, {v(dt)}, {v(e2)}', f'v_mul_f32 {v(rv)}, {v(dt)}, {v(rv)}',
              f'v_mul_f32 {v(e2)}, 0x3fb8aa3b, {v(e2)}', f'v_mul_f32 {v(rv)}, 0.15915494, {v(rv)}',
              f'v_mul_f32 {v(B_)}, {v(dt)}, {v(B_)}', f'v_mul_f32 {v(B_ + 1)}, {v(dt)}, {v(B_ + 1)}']
        for z, p in ((z8, 0x41000000), (z1, None), (z256, 0x43800000)):
            if p is None:
                o += [f'v_exp_f32 {v(t0)}, {v(e2)}', f'v_fract_f32 {v(t1)}, {v(rv)}']
            else:
                o += [f'v_mul_f32 {v(t0)}, {hex(p)}, {v(e2)}', f'v_mul_f32 {v(t1)}, {hex(p)}, {v(rv)}',
                      f'v_exp_f32 {v(t0)}, {v(t0)}', f'v_fract_f32 {v(t1)}, {v(t1)}']
            o += [f'v_cos_f32 {v(z)}, {v(t1)}', f'v_sin_f32 {v(z + 1)}, {v(t1)}',
                  f'v_mul_f32 {v(z)}, {v(z)}, {v(t0)}', f'v_mul_f32 {v(z + 1)}, {v(z + 1)}, {v(t0)}']
        return o

    cnt = [0]

    def put(x, rows, neg):
        c = cv[cnt[0] % 4]
        cnt[0] += 1
        o = [f'v_cvt_pk_bf16_f32 {v(c)}, {v(x)}, {"-" if neg else ""}{v(x + 1)}']
        o += [f'ds_write_addtid_b32 {v(c)} offset:{272 * r}' for r in rows]
        return o

    def putU(x, e):
        return put(x, [32 + r for r in UEXP[e]], True)

    def chains():
        o = []
        o += cmul(W_, C_, B_) + cmul(z2, z1, z1) + put(z8, [1], False) + cmul(z4, z2, z2) + putU(W_, 0)
        cur = z8
        for j in range(2, 32):
            nx = pp[j % 2]
            o += cmul(nx, cur, z8) + put(nx, [j], False)
            cur = nx
        cur = W_
        for e in range(1, 8):
            nx = pp[e % 2]
            o += cmul(nx, cur, z1) + putU(nx, e)
            cur = nx
        qc = W_
        for k in range(1, 8):
            qn = pp[2 + k % 2]
            o += cmul(qn, qc, z256) + putU(qn, 256 * k)
            qc = qn
            step, zz, n = (2, z2, 4) if k == 1 else ((4, z4, 2) if k < 4 else (8, z8, 1))
            cur = qn
            for i in range(1, n + 1):
                nx = pp[i % 2]
                o += cmul(nx, cur, zz) + putU(nx, 256 * k + step * i)
                cur = nx
        return o

    def frag_reads():
        o = []
        for ks in range(8):
            o += [f'ds_read_b128 {v(fU + 4 * ks, 4)}, {v(aU)} offset:{32 * ks}',
                  f'ds_read_b128 {v(fV + 4 * ks, 4)}, {v(aV)} offset:{32 * ks}']
        return o

    def kmfma(ks, first):
        return f'v_mfma_f32_32x32x16_bf16 {v(T, 16)}, {v(fU + 4 * ks, 4)}, {v(fV + 4 * ks, 4)}, {"0" if first else v(T, 16)}'

    h1 = [f's_mov_b32 {s(sT2)}, {ST1}', f's_lshl_b32 {s(sT3)}, {s(sJ)}, 14', f's_add_u32 {s(sT3)}, {s(sT3)}, {INB}']
    for k in range(4):
        h1.append(f'buffer_load_dwordx4 {v(G + 4 * k, 4)}, {v(vI)}, {s(rWS, 4)}, {s(sT3)} offen offset:{1024 * k} sc1')
        h1.append(f'buffer_load_dwordx4 {v(S + 4 * k, 4)}, {v(vI)}, {s(rWS, 4)}, {s(sT2)} offen offset:{1024 * k} sc1')

    def mod_loads(dst, secs):
        o = []
        for i, sec in enumerate(secs):
            o.append(f's_mov_b32 {s(sT2)}, {MOD + sec * 7168}')
            o.append(f'buffer_load_dwordx4 {v(dst + 8 * i, 4)}, {v(vM)}, {s(rWS, 4)}, {s(sT2)} offen sc1')
            o.append(f'buffer_load_dwordx4 {v(dst + 8 * i + 4, 4)}, {v(vM)}, {s(rWS, 4)}, {s(sT2)} offen offset:3584 sc1')
        return o
    h1 += mod_loads(M, (0, 1))

    A.ext(setup(0))
    A.ext(chains())
    A.ext(frag_reads())
    su = setup(1)
    A.ext(su[:8])
    mm = []
    for ks in range(8):
        mm.append(f's_waitcnt lgkmcnt({14 - 2 * ks})\n' + kmfma(ks, ks == 0))
    A.ext(interleave(mm, su[8:]))
    A.ext(chains())
    A.ext(frag_reads())
    A.ext(h1)
    for ks in range(8):
        A(f's_waitcnt lgkmcnt({14 - 2 * ks})')
        A(kmfma(ks, False))
    V.release(mk)
    ax, ay, t0, t1 = V.get(), V.get(), V.get(), V.get()
    R = V.get(12)
    K_ = V.get(8)
    A(f's_mul_i32 {s(sT0)}, {s(sWave)}, {KG_W}')
    A(f'v_lshl_add_u32 {v(ax)}, {v(LANE)}, 4, {s(sT0)}')
    A(f's_xor_b32 {s(sT0)}, {s(sWave)}, 1')
    A(f's_mul_i32 {s(sT0)}, {s(sT0)}, {KG_W}')
    A(f'v_lshl_add_u32 {v(ay)}, {v(LANE)}, 4, {s(sT0)}')
    A(f's_lshr_b32 {s(sT0)}, {s(sWave)}, 1')
    A(f's_mul_i32 {s(sT0)}, {s(sT0)}, {KT_CH}')
    A(f's_add_u32 {s(sT0)}, {s(sT0)}, {KT}')
    A(f'v_and_b32 {v(t0)}, 31, {v(LANE)}')
    A(f'v_lshlrev_b32 {v(t0)}, 4, {v(t0)}')
    A(f'v_sub_u32 {v(t0)}, {s(sT0)}, {v(t0)}')
    A(f'v_lshrrev_b32 {v(t1)}, 5, {v(LANE)}')
    A(f's_bitcmp1_b32 {s(sWave)}, 0')
    A('s_cbranch_scc1 L_expB')
    A(f'ds_write_b128 {v(ax)}, {v(T + 10, 4)}')
    A('s_waitcnt vmcnt(12) lgkmcnt(0)')
    A('s_barrier')
    for i in range(3):
        A(f'ds_read_b128 {v(R + 4 * i, 4)}, {v(ay)} offset:{1024 * i}')
    A(f'v_lshlrev_b32 {v(ax)}, 3, {v(t1)}')
    A(f'v_sub_u32 {v(ax)}, {v(t0)}, {v(ax)}')
    A(f'v_lshlrev_b32 {v(ay)}, 9, {v(t1)}')
    A(f'v_sub_u32 {v(ay)}, {v(t0)}, {v(ay)}')
    A('s_mov_b64 exec, 1')
    A(f'v_add_f32 {v(T)}, {s(sDs)}, {v(T)}')
    A('s_mov_b64 exec, -1')
    A('s_waitcnt lgkmcnt(0)')
    for i in range(10):
        A(f'v_add_f32 {v(T + i)}, {v(T + i)}, {v(R + i)}')
    for d, (x, y) in enumerate(((3, 2), (1, 0), (6, 5), (4, 4), (9, 9), (8, 8), (8, 7), (7, 7))):
        A(f'v_cvt_pk_bf16_f32 {v(K_ + d)}, {v(T + x)}, {v(T + y)}')
    for cp in (0, KT_C0):
        A(f'ds_write_b64 {v(ax)}, {v(K_, 2)} offset:{cp + 2 * 2044}')
        A(f'ds_write_b64 {v(ax)}, {v(K_ + 2, 2)} offset:{cp + 2 * 1788}')
        A(f'ds_write_b64 {v(ay)}, {v(K_ + 4, 2)} offset:{cp + 2 * 1528}')
        A(f'ds_write_b64 {v(ay)}, {v(K_ + 6, 2)} offset:{cp + 2 * 1528 + 8}')
    A('s_branch L_expD')
    A('L_expB:')
    for i in range(3):
        A(f'ds_write_b128 {v(ax)}, {v(T + 4 * i, 4)} offset:{1024 * i}')
    A('s_waitcnt vmcnt(12) lgkmcnt(0)')
    A('s_barrier')
    A(f'ds_read_b128 {v(R, 4)}, {v(ay)}')
    A(f'v_lshlrev_b32 {v(ay)}, 10, {v(t1)}')
    A(f'v_sub_u32 {v(ay)}, {v(t0)}, {v(ay)}')
    A('s_mov_b32 vcc_lo, 0xaaaaaaaa')
    A('s_mov_b32 vcc_hi, 0xaaaaaaaa')
    A('s_waitcnt lgkmcnt(0)')
    for i in range(4):
        A(f'v_add_f32 {v(T + 10 + i)}, {v(T + 10 + i)}, {v(R + i)}')
    for wdw in range(2):
        v0_, v8_ = T + 10 + 2 * wdw, T + 11 + 2 * wdw
        A(f'v_cndmask_b32 {v(t0)}, {v(v0_)}, {v(v8_)}, vcc')
        A(f'v_cvt_pk_bf16_f32 {v(K_ + 4 * wdw)}, {v(v8_)}, {v(v8_)}')
        A(f'v_cvt_pk_bf16_f32 {v(K_ + 4 * wdw + 1)}, {v(v8_)}, {v(t0)}')
        A(f'v_cvt_pk_bf16_f32 {v(K_ + 4 * wdw + 2)}, {v(v0_)}, {v(v0_)}')
        A(f'v_cvt_pk_bf16_f32 {v(K_ + 4 * wdw + 3)}, {v(v0_)}, {v(v0_)}')
    for cp in (0, KT_C0):
        for wdw in range(2):
            base = cp + 2 * (2040 - 1024 - 256 * wdw)
            A(f'ds_write_b64 {v(ay)}, {v(K_ + 4 * wdw, 2)} offset:{base}')
            A(f'ds_write_b64 {v(ay)}, {v(K_ + 4 * wdw + 2, 2)} offset:{base + 8}')
    A('L_expD:')
    V.release(mk)
    A.ext(w_frags(1, 2, vWr))
    A.ext(w_frags(0, 4, vWr))
    A('s_waitcnt lgkmcnt(0)')
    A('s_barrier')
    A(tag_wait('L_h1', h1, [G + 4 * k + 3 for k in range(4)] + [S + 4 * k + 3 for k in range(4)] + [M + 4 * k + 3 for k in range(4)]))
    ts()
    V.release(mk)
    sa, c1 = V.get(2), V.get(2)
    bf16_pair_from_partials(sa, M, M + 4, False)
    bf16_pair_from_partials(c1, M + 8, M + 12, True)
    m2 = mod_loads(M, (2, 4))
    A.ext(m2)
    A.ext(w_dma(2, 4, vW) + w_dma(3, 1, vW))
    E = V.get(8)
    xa, xb, nn = V.get(2), V.get(2), V.get(2)
    O = V.get(2)
    F = V.get(2)
    aX, aF = V.get(), V.get()
    A(f's_cmp_lg_u32 {s(sWave)}, 0')
    A('s_cbranch_scc1 L_nozero')
    A(f'v_lshrrev_b32 {v(aX)}, 3, {v(LANE)}')
    A(f'v_mul_u32_u24 {v(aX)}, {HC}, {v(aX)}')
    A(f'v_and_b32 {v(aF)}, 7, {v(LANE)}')
    A(f'v_lshl_add_u32 {v(aX)}, {v(aF)}, 3, {v(aX)}')
    A(f'v_add_u32 {v(aX)}, {HB}, {v(aX)}')
    A(f'v_mov_b32 {v(xa)}, 0')
    A(f'v_mov_b32 {v(xa + 1)}, 0')
    A(f'ds_write_b64 {v(aX)}, {v(xa, 2)}')
    A('L_nozero:')
    A(f's_lshl_b32 {s(sT0)}, {s(sWave)}, 10')
    A(f's_add_u32 m0, {s(sT0)}, {HB}')
    A(f'v_lshrrev_b32 {v(aX)}, 1, {v(vI)}')
    A(f'v_add_u32 {v(aX)}, {XR}, {v(aX)}')
    for k in range(4):
        g, sg = G + 4 * k, S + 4 * k
        A(f'ds_write_b64 {v(aX)}, {v(g, 2)} offset:{512 * k}')
        A(f'v_lshlrev_b32 {v(xa)}, 16, {v(g)}')
        A(f'v_and_b32 {v(xa + 1)}, 0xffff0000, {v(g)}')
        A(f'v_lshlrev_b32 {v(xb)}, 16, {v(g + 1)}')
        A(f'v_and_b32 {v(xb + 1)}, 0xffff0000, {v(g + 1)}')
        A(f'v_lshlrev_b32 {v(nn)}, 16, {v(sg)}')
        A(f'v_and_b32 {v(nn + 1)}, 0xffff0000, {v(sg)}')
        A(f'v_pk_fma_f32 {v(xa, 2)}, {v(xa, 2)}, {v(sg, 2)}, {v(nn, 2)} op_sel:[0,1,0] op_sel_hi:[1,1,0]')
        A(f'v_pk_fma_f32 {v(xb, 2)}, {v(xb, 2)}, {v(sg + 2, 2)}, {v(nn, 2)} op_sel:[0,0,1] op_sel_hi:[1,0,1]')
        A(f'v_pk_fma_f32 {v(xa, 2)}, {v(xa, 2)}, {v(c1, 2)}, {v(sa, 2)}')
        A(f'v_pk_fma_f32 {v(xb, 2)}, {v(xb, 2)}, {v(c1, 2)}, {v(sa, 2)}')
        for ch in range(2):
            A(f'v_cvt_pk_bf16_f32 {v(E + 2 * k + ch)}, {v(xa + ch)}, {v(xb + ch)}')
        if k > 0:
            for ch in range(2):
                A(f'v_mov_b32_dpp {v(O + ch)}, {v(E + 2 * k - 2 + ch)} wave_ror:1 row_mask:0xf bank_mask:0xf')
        for ch in range(2):
            A(f'ds_write_addtid_b32 {v(E + 2 * k + ch)} offset:{(4 * ch + 1) * HC + 256 * k + 52}')
            A(f'ds_write_addtid_b32 {v(E + 2 * k + ch)} offset:{(4 * ch + 3) * HC + 256 * k + 48}')
        for ch in range(2):
            A(f'v_mov_b32_dpp {v(O + ch)}, {v(E + 2 * k + ch)} wave_shr:1 row_mask:0xf bank_mask:0xf')
        for ch in range(2):
            A(f'v_alignbit_b32 {v(F + ch)}, {v(E + 2 * k + ch)}, {v(O + ch)}, 16')
        if k == 0:
            A('s_mov_b64 exec, -2')
        for ch in range(2):
            A(f'ds_write_addtid_b32 {v(F + ch)} offset:{(4 * ch + 0) * HC + 256 * k + 52}')
            A(f'ds_write_addtid_b32 {v(F + ch)} offset:{(4 * ch + 2) * HC + 256 * k + 48}')
        if k == 0:
            A('s_mov_b64 exec, -1')
    A(f's_add_u32 {s(sT1)}, {s(sT0)}, {HB + 1024}')
    A(f's_add_u32 {s(sT0)}, {s(sT0)}, {HB + 2}')
    A(f'v_mov_b32 {v(aF)}, {s(sT1)}')
    for ch in range(2):
        A(f'v_lshrrev_b32 {v(O + ch)}, 16, {v(E + 6 + ch)}')
    A('s_mov_b64 exec, 1')
    A(f'v_mov_b32 {v(aF)}, {s(sT0)}')
    for ch in range(2):
        A(f'v_mov_b32 {v(O + ch)}, {v(E + ch)}')
    A('s_mov_b32 exec_hi, 0x80000000')
    for ch in range(2):
        A(f'ds_write_b16 {v(aF)}, {v(O + ch)} offset:{(4 * ch + 0) * HC + 52}')
        A(f'ds_write_b16 {v(aF)}, {v(O + ch)} offset:{(4 * ch + 2) * HC + 48}')
    A('s_mov_b64 exec, -1')
    V.release(mb)
    acc = V.get(32, 4)
    fa = [V.get(32), V.get(32)]
    fb = [V.get(32), V.get(32)]
    aA, aB, t0, t1, t2 = V.get(), V.get(), V.get(), V.get(), V.get()
    A(f's_lshr_b32 {s(sT0)}, {s(sWave)}, 1')
    A(f's_and_b32 {s(sT1)}, {s(sWave)}, 1')
    A(f's_lshl_b32 {s(sT1)}, {s(sT1)}, 8')
    A(f's_mul_i32 {s(sT2)}, {s(sT0)}, {4 * HC}')
    A(f's_add_u32 {s(sT2)}, {s(sT2)}, {s(sT1)}')
    A(f's_add_u32 {s(sT2)}, {s(sT2)}, {HB}')
    A(f's_mul_i32 {s(sT3)}, {s(sT0)}, {KT_CH}')
    A(f's_add_u32 {s(sT3)}, {s(sT3)}, {s(sT1)}')
    A(f's_add_u32 {s(sT3)}, {s(sT3)}, {KT + KT_C0 + 4040 - 3584}')
    A(f'v_lshrrev_b32 {v(t0)}, 4, {v(LANE)}')
    A(f'v_bfe_u32 {v(t1)}, {v(LANE)}, 2, 2')
    A(f'v_add_u32 {v(t1)}, {v(t1)}, {v(t0)}')
    A(f'v_and_b32 {v(t2)}, 3, {v(LANE)}')
    A(f'v_mul_u32_u24 {v(t2)}, {HC}, {v(t2)}')
    A(f'v_lshl_add_u32 {v(aA)}, {v(t1)}, 4, {v(t2)}')
    A(f'v_add_u32 {v(aA)}, {s(sT2)}, {v(aA)}')
    A(f'v_lshl_add_u32 {v(aB)}, {v(t0)}, 4, {s(sT3)}')
    A(f'v_and_b32 {v(t1)}, 7, {v(LANE)}')
    A(f'v_lshlrev_b32 {v(t1)}, 6, {v(t1)}')
    A(f'v_sub_u32 {v(aB)}, {v(aB)}, {v(t1)}')
    A(f'v_bfe_u32 {v(t1)}, {v(LANE)}, 3, 1')
    A(f'v_mul_u32_u24 {v(t1)}, {KT_C0 + 8}, {v(t1)}')
    A(f'v_sub_u32 {v(aB)}, {v(aB)}, {v(t1)}')
    A('s_waitcnt lgkmcnt(0)')
    A('s_barrier')
    ts()
    order = [('a', 0)] + [('b', d) for d in range(8)] + [('a', u) for u in range(1, 8)]

    def creads(ul):
        o = []
        for kind, i in order:
            if kind == 'a':
                o.append(f'ds_read_b128 {v(fa[ul % 2] + 4 * i, 4)}, {v(aA)} offset:{512 * i + 64 * ul}')
            else:
                o.append(f'ds_read_b128 {v(fb[ul % 2] + 4 * i, 4)}, {v(aB)} offset:{512 * (7 - i) + 64 * ul}')
        return o

    def cmf(ul, uh, d):
        g = uh + d
        c = '0' if (ul == 0 and uh == 0) else v(acc + 4 * g, 4)
        return f'v_mfma_f32_16x16x32_bf16 {v(acc + 4 * g, 4)}, {v(fa[ul % 2] + 4 * uh, 4)}, {v(fb[ul % 2] + 4 * d, 4)}, {c}'

    A.ext(creads(0))
    for ul in range(4):
        mm = [cmf(ul, uh, d) for uh in range(8) for d in range(8 - uh)]
        if ul == 0:
            for d in range(8):
                mm[d] = f's_waitcnt lgkmcnt({14 - d})\n' + mm[d]
            mm[8] = 's_waitcnt lgkmcnt(0)\n' + mm[8]
            A.ext(interleave(mm, creads(1), start=9, end=28))
        else:
            mm[0] = 's_waitcnt lgkmcnt(0)\n' + mm[0]
            A.ext(interleave(mm, creads(ul + 1) if ul < 3 else [], start=0, end=24))
    A(f'v_and_b32 {v(t0)}, 7, {v(LANE)}')
    A(f'v_lshrrev_b32 {v(t1)}, 1, {v(t0)}')
    A(f'v_and_b32 {v(t2)}, 1, {v(t0)}')
    A(f'v_lshl_add_u32 {v(t1)}, {v(t2)}, 2, {v(t1)}')
    A(f'v_lshrrev_b32 {v(t2)}, 3, {v(LANE)}')
    A(f'v_xor_b32 {v(t1)}, {v(t1)}, {v(t2)}')
    A(f'v_lshl_add_u32 {v(t1)}, {v(t0)}, 3, {v(t1)}')
    A(f's_lshl_b32 {s(sT0)}, {s(sWave)}, 13')
    A(f'v_lshl_add_u32 {v(aA)}, {v(t1)}, 4, {s(sT0)}')
    for g in range(8):
        A(f'ds_write_b128 {v(aA)}, {v(acc + 4 * g, 4)} offset:{1024 * g}')
    V.release(mb)
    Y = V.get(32, 4)
    XX = V.get(8)
    X_ = V.get(16)
    ga, cb = V.get(2), V.get(2)
    o1, o2 = V.get(8), V.get(8)
    a0, a1, aX, aO, t0, t1 = [V.get() for _ in range(6)]
    A(f'v_bfe_u32 {v(t0)}, {v(TID)}, 3, 2')
    A(f'v_and_b32 {v(t1)}, 4, {v(TID)}')
    A(f'v_or_b32 {v(t0)}, {v(t0)}, {v(t1)}')
    A(f'v_lshlrev_b32 {v(t1)}, 1, {v(TID)}')
    A(f'v_xor_b32 {v(t0)}, {v(t0)}, {v(t1)}')
    A(f'v_lshlrev_b32 {v(a0)}, 4, {v(t0)}')
    A(f'v_xor_b32 {v(a1)}, 16, {v(a0)}')
    A(f'v_lshlrev_b32 {v(aX)}, 5, {v(TID)}')
    A(f'v_add_u32 {v(aX)}, {XR}, {v(aX)}')
    A(f'ds_read_b128 {v(XX, 4)}, {v(aX)}')
    A(f'ds_read_b128 {v(XX + 4, 4)}, {v(aX)} offset:16')
    A(f'v_lshrrev_b32 {v(t0)}, 2, {v(TID)}')
    A(f'v_mul_u32_u24 {v(aO)}, 28672, {v(t0)}')
    A(f'v_and_b32 {v(t0)}, 3, {v(TID)}')
    A(f'v_lshl_add_u32 {v(aO)}, {v(t0)}, 4, {v(aO)}')
    A(f's_lshl_b32 {s(sT0)}, {s(sJ)}, 7')
    A(f'v_add_u32 {v(aO)}, {s(sT0)}, {v(aO)}')
    A(tag_wait('L_m2', m2, [M + 4 * k + 3 for k in range(4)], younger=16))
    bf16_pair_from_partials(ga, M, M + 4, False)
    bf16_pair_from_partials(cb, M + 8, M + 12, True)
    A('s_waitcnt lgkmcnt(0)')
    A('s_barrier')
    for w in range(4):
        A(f'ds_read_b128 {v(Y + 8 * w, 4)}, {v(a0)} offset:{8192 * w}')
        A(f'ds_read_b128 {v(Y + 8 * w + 4, 4)}, {v(a1)} offset:{8192 * w}')
    for i in range(8):
        A(f'v_lshlrev_b32 {v(X_ + i)}, 16, {v(XX + i)}')
        A(f'v_and_b32 {v(X_ + 8 + i)}, 0xffff0000, {v(XX + i)}')
    A(f's_mov_b32 {s(sT2)}, {XS}')
    A(f's_mov_b32 {s(sT3)}, {X1P}')
    for ch in range(2):
        A(f's_waitcnt lgkmcnt({4 - 4 * ch})')
        sel = f'op_sel:[0,{ch},0] op_sel_hi:[1,{ch},1]'
        for i in range(0, 8, 2):
            y = Y + 16 * ch + i
            A(f'v_pk_add_f32 {v(y, 2)}, {v(y, 2)}, {v(y + 8, 2)}')
            A(f'v_pk_fma_f32 {v(X_ + 8 * ch + i, 2)}, {v(y, 2)}, {v(ga, 2)}, {v(X_ + 8 * ch + i, 2)} {sel}')
            A(f'v_pk_mul_f32 {v(y, 2)}, {v(X_ + 8 * ch + i, 2)}, {v(cb, 2)} op_sel:[0,{ch}] op_sel_hi:[1,{ch}]')
            A(f'v_cvt_pk_bf16_f32 {v(o1 + 4 * ch + i // 2)}, {v(y)}, {v(y + 1)}')
        A(f'buffer_store_dwordx4 {v(o1 + 4 * ch, 4)}, {v(aO)}, {s(rWS, 4)}, {s(sT2)} offen offset:{64 * ch} sc1 ;#xo')
    for k in range(2):
        for i in range(4):
            A(f'v_cvt_pk_bf16_f32 {v(o2 + 4 * k + i)}, {v(X_ + 4 * k + i)}, {v(X_ + 8 + 4 * k + i)}')
        A(f'buffer_store_dwordx4 {v(o2 + 4 * k, 4)}, {v(aO)}, {s(rWS, 4)}, {s(sT3)} offen offset:{64 * k} sc1 ;#xo')
    ts()
    V.release(mp)
    return P


def helper_mod():
    st = V.get(8)
    wm = V.get(84)
    cc = V.get(7)
    ch = V.get(7)
    acc = V.get(8)
    t0, t1, vo, aw, ar, vs = [V.get() for _ in range(6)]
    g = V.get(4)
    rd = V.get(8)
    stats1_loads(st)
    srd(rWm, pWm, 2408448)
    A('s_cmp_ge_u32 s2, 28')
    A('s_cbranch_scc1 L_hm_skip')
    A('s_cmp_ge_u32 s2, 14')
    A(f's_cselect_b32 {s(sMi)}, 1, 0')
    A(f's_mul_i32 {s(sT0)}, {s(sMi)}, 14')
    A(f's_sub_u32 {s(sNi)}, s2, {s(sT0)}')
    A(f's_mul_i32 {s(sT0)}, {s(sMi)}, 224')
    A(f's_mul_i32 {s(sT1)}, {s(sWave)}, 56')
    A(f's_add_u32 {s(sT0)}, {s(sT0)}, {s(sT1)}')
    A(f'v_lshrrev_b32 {v(t0)}, 3, {v(LANE)}')
    A(f'v_add_u32 {v(t0)}, {s(sT0)}, {v(t0)}')
    A(f'v_lshlrev_b32 {v(t1)}, 1, {v(t0)}')
    for i in range(7):
        A(f'global_load_ushort {v(cc + i)}, {v(t1)}, {s(pC, 2)} offset:{16 * i}')
    A(f'v_mul_u32_u24 {v(vo)}, 5376, {v(t0)}')
    A(f'v_and_b32 {v(t1)}, 7, {v(LANE)}')
    A(f'v_lshl_add_u32 {v(vo)}, {v(t1)}, 4, {v(vo)}')
    for task in range(3):
        A(f's_lshl_b32 {s(sT0)}, {s(sNi)}, 7')
        for i in range(7):
            A(f'buffer_load_dwordx4 {v(wm + 28 * task + 4 * i, 4)}, {v(vo)}, {s(rWm, 4)}, {s(sT0)} offen offset:{1792 * task}')
            if i < 6:
                A(f's_add_u32 {s(sT0)}, {s(sT0)}, {8 * 5376}')
    A(f'v_lshrrev_b32 {v(t0)}, 4, {v(LANE)}')
    A(f'v_lshl_add_u32 {v(t0)}, {v(t1)}, 2, {v(t0)}')
    A(f's_lshl_b32 {s(sT0)}, {s(sWave)}, 8')
    A(f's_add_u32 {s(sT0)}, {s(sT0)}, {SL[4]}')
    A(f'v_lshl_add_u32 {v(aw)}, {v(t0)}, 3, {s(sT0)}')
    A(f'v_and_b32 {v(t0)}, 31, {v(LANE)}')
    A(f'v_lshlrev_b32 {v(ar)}, 3, {v(t0)}')
    A(f'v_add_u32 {v(ar)}, {SL[4]}, {v(ar)}')
    div7(sT2, sT3, sNi)
    A(f's_mul_i32 {s(sT2)}, {s(sT2)}, 7168')
    A(f's_lshl_b32 {s(sT3)}, {s(sT3)}, 9')
    A(f's_add_u32 {s(sT2)}, {s(sT2)}, {s(sT3)}')
    A(f's_mul_i32 {s(sT3)}, {s(sMi)}, 3584')
    A(f's_add_u32 {s(sT2)}, {s(sT2)}, {s(sT3)}')
    A(f's_add_u32 {s(sT2)}, {s(sT2)}, {MOD}')
    A(f'v_lshl_add_u32 {v(vs)}, {v(t0)}, 4, {s(sT2)}')
    A('s_waitcnt lgkmcnt(0)')
    A(f's_add_u32 {s(sTag)}, {s(sTag)}, 1')
    A('s_waitcnt vmcnt(28)')
    stats1_compute(st)
    A('s_waitcnt vmcnt(22)')
    for i in range(7):
        A(f'v_lshlrev_b32 {v(cc + i)}, 16, {v(cc + i)}')
        A(f'v_mul_f32 {v(ch + i)}, 0xbfb8aa3b, {v(cc + i)}')
        A(f'v_exp_f32 {v(ch + i)}, {v(ch + i)}')
    for i in range(7):
        A(f'v_add_f32 {v(ch + i)}, 1.0, {v(ch + i)}')
        A(f'v_rcp_f32 {v(ch + i)}, {v(ch + i)}')
    for i in range(7):
        A(f'v_mul_f32 {v(cc + i)}, {v(cc + i)}, {v(ch + i)}')
        A(f'v_cvt_pk_bf16_f32 {v(cc + i)}, {v(cc + i)}, 0')
        A(f'v_lshlrev_b32 {v(ch + i)}, 16, {v(cc + i)}')
    A(f'v_mov_b32 {v(g + 2)}, 0')
    A(f'v_mov_b32 {v(g + 3)}, {s(sTag)}')
    for task in range(3):
        for j in range(8):
            A(f'v_mov_b32 {v(acc + j)}, 0')
        for i in range(7):
            A(f's_waitcnt vmcnt({max(0, 21 - 7 * task - i)})')
            for j in range(4):
                w = wm + 28 * task + 4 * i + j
                A(f'v_dot2c_f32_bf16 {v(acc + 2 * j)}, {v(w)}, {v(cc + i)}')
                A(f'v_dot2c_f32_bf16 {v(acc + 2 * j + 1)}, {v(w)}, {v(ch + i)}')
        reduce8(acc)
        A(f'ds_write_b64 {v(aw)}, {v(acc, 2)} offset:{1024 * task}')
        A('s_waitcnt lgkmcnt(0)')
        A('s_barrier')
        A(f's_cmp_lg_u32 {s(sWave)}, {task}')
        A(f's_cbranch_scc1 L_hm_n{task}')
        for w in range(4):
            A(f'ds_read_b64 {v(rd + 2 * w, 2)}, {v(ar)} offset:{1024 * task + 256 * w}')
        A(f's_mov_b32 {s(sT0)}, {14336 * task}')
        A('s_waitcnt lgkmcnt(0)')
        A(f'v_pk_add_f32 {v(rd, 2)}, {v(rd, 2)}, {v(rd + 2, 2)}')
        A(f'v_pk_add_f32 {v(rd + 4, 2)}, {v(rd + 4, 2)}, {v(rd + 6, 2)}')
        A(f'v_pk_add_f32 {v(g, 2)}, {v(rd, 2)}, {v(rd + 4, 2)}')
        A('s_mov_b32 exec_hi, 0')
        A(f'buffer_store_dwordx4 {v(g, 4)}, {v(vs)}, {s(rWS, 4)}, {s(sT0)} offen sc1')
        A('s_mov_b64 exec, -1')
        A(f'L_hm_n{task}:')
        if task == 0:
            ts()
    A('s_branch L_hm_done')
    A('L_hm_skip:')
    A('s_waitcnt lgkmcnt(0)')
    A(f's_add_u32 {s(sTag)}, {s(sTag)}, 1')
    A('s_waitcnt vmcnt(0)')
    stats1_compute(st)
    A('L_hm_done:')
    ts()


def flag_store(vTag, soff):
    return ('s_mov_b64 exec, 1\n'
            f'buffer_store_dword {v(vTag)}, off, {s(rWS, 4)}, {s(soff)} sc1 ;#fl\n'
            's_mov_b64 exec, -1')


def tr_lane(dst, t0, t1, hmul, rowb):
    A(f'v_lshrrev_b32 {v(t0)}, 5, {v(LANE)}')
    A(f'v_bfe_u32 {v(t1)}, {v(LANE)}, 2, 2')
    A(f'v_lshl_add_u32 {v(t0)}, {v(t0)}, {hmul.bit_length() - 1}, {v(t1)}')
    A(f'v_lshlrev_b32 {v(dst)}, {rowb.bit_length() - 1}, {v(t0)}')
    A(f'v_bfe_u32 {v(t1)}, {v(LANE)}, 4, 1')
    A(f'v_lshl_add_u32 {v(dst)}, {v(t1)}, 5, {v(dst)}')
    A(f'v_and_b32 {v(t1)}, 3, {v(LANE)}')
    A(f'v_lshl_add_u32 {v(dst)}, {v(t1)}, 3, {v(dst)}')


def main_ffn(P):
    vW, vWr = P['vW'], P['vWr']
    vXr = [V.get() for _ in range(3)]
    vXs, vWd, vDr, vL16, vTag, vSt, vFp = [V.get() for _ in range(7)]
    gbp = V.get(4)
    x1r = V.get(8)
    Ag, Au = V.get(4), V.get(4)
    stt = V.get(16)
    xr = V.get(16)
    tmp = V.get(8)
    outp = V.get(8)
    acc = V.get(96)
    wdv = V.get(64)
    d0, d1, fp = vWr[0], vWr[1], vWr[2]
    t0, t1, t2 = tmp, tmp + 1, tmp + 2
    A('@vm w2 w3')
    A('s_barrier')
    A.ext(interleave(w_dma(4, 0, vW), w_frags(2, 4, vWr) + w_frags(3, 1, vWr)))
    A(f'v_mov_b32 {v(vTag)}, {s(sTag)}')
    A(f'v_lshlrev_b32 {v(vL16)}, 4, {v(LANE)}')
    tr_lane(vXr[0], t0, t1, 8, 64)
    A(f'v_add_u32 {v(vXr[1])}, 65536, {v(vXr[0])}')
    A(f'v_add_u32 {v(vXr[2])}, 131072, {v(vXr[0])}')
    A(f's_mul_i32 {s(sT0)}, {s(sMt)}, {4 * 28672}')
    A(f's_add_u32 {s(sT0)}, {s(sT0)}, {XS}')
    A(f'v_lshl_add_u32 {v(vXs)}, {v(TID)}, 4, {s(sT0)}')
    tr_lane(vDr, t0, t1, 4, 128)
    A(f'v_bfe_u32 {v(t1)}, {v(LANE)}, 3, 1')
    A(f'v_lshl_add_u32 {v(vDr)}, {v(t1)}, 6, {v(vDr)}')
    A(f'v_add_u32 {v(vDr)}, {s(sW8k)}, {v(vDr)}')
    A(f'v_lshrrev_b32 {v(t0)}, 3, {v(LANE)}')
    A(f'v_lshlrev_b32 {v(t1)}, 1, {v(t0)}')
    A(f'v_and_b32 {v(t1)}, 4, {v(t1)}')
    A(f'v_and_b32 {v(t2)}, 7, {v(LANE)}')
    A(f'v_xor_b32 {v(t1)}, {v(t1)}, {v(t2)}')
    A(f'v_mul_u32_u24 {v(vWd)}, 896, {v(t0)}')
    A(f'v_lshl_add_u32 {v(vWd)}, {v(t1)}, 4, {v(vWd)}')
    A(f's_mul_i32 {s(sT0)}, {s(sWave)}, {448 * 896}')
    A(f's_lshl_b32 {s(sT1)}, {s(sNi)}, 7')
    A(f's_add_u32 {s(sT0)}, {s(sT0)}, {s(sT1)}')
    A(f'v_add_u32 {v(vWd)}, {s(sT0)}, {v(vWd)}')
    A(f's_lshl_b32 {s(sFl)}, {s(sJ)}, 7')
    A(f's_add_u32 {s(sFl)}, {s(sFl)}, {FL2}')
    A('@vm xo')
    A('s_waitcnt lgkmcnt(0)')
    A('s_barrier')
    A(f's_cmp_lg_u32 {s(sWave)}, 0')
    A('s_cbranch_scc1 L_nofl2')
    A(flag_store(vTag, sFl).replace(';#fl', ';#cond'))
    A('L_nofl2:')
    A.ext(w_dma(5, 2, vW) + w_dma(6, 3, vW))
    A(f'v_and_b32 {v(t0)}, 31, {v(LANE)}')
    A(f'v_lshlrev_b32 {v(vSt)}, 4, {v(t0)}')
    A(f'v_lshrrev_b32 {v(t1)}, 5, {v(LANE)}')
    A(f'v_mul_u32_u24 {v(t1)}, 28672, {v(t1)}')
    A(f'v_add_u32 {v(t1)}, {v(t1)}, {v(vSt)}')
    A(f's_lshl_b32 {s(sT2)}, {s(sNi)}, 9')
    A(f's_add_u32 {s(sT2)}, {s(sT2)}, {MOD + 5 * 7168}')
    A(f's_lshl_b32 {s(sT3)}, {s(sNt)}, 2')
    A(f's_add_u32 {s(sT3)}, {s(sT3)}, {s(sWave)}')
    A(f's_lshl_b32 {s(sT3)}, {s(sT3)}, 9')
    A(f's_add_u32 {s(sT3)}, {s(sT3)}, {AUG}')
    A(f's_mul_i32 {s(sT0)}, {s(sWave)}, 56')
    A(f'v_min_u32 {v(vFp)}, 55, {v(LANE)}')
    A(f'v_add_u32 {v(vFp)}, {s(sT0)}, {v(vFp)}')
    A(f'v_lshlrev_b32 {v(vFp)}, 7, {v(vFp)}')
    A(f'v_add_u32 {v(vFp)}, {FL2}, {v(vFp)}')
    g = [f'buffer_load_dwordx4 {v(stt, 4)}, {v(vSt)}, {s(rWS, 4)}, {s(sT2)} offen sc1',
         f'buffer_load_dwordx4 {v(stt + 4, 4)}, {v(vSt)}, {s(rWS, 4)}, {s(sT2)} offen offset:3584 sc1',
         f'buffer_load_dwordx4 {v(Ag, 4)}, {v(t1)}, {s(rWS, 4)}, {s(sT3)} offen sc1',
         f'buffer_load_dword {v(stt + 8)}, {v(vFp)}, {s(rWS, 4)}, 0 offen sc1']
    A.ext(g)
    A(tag_wait('L_f2', g, [stt + 3, stt + 7, Ag + 3, stt + 8]))
    A('s_barrier')
    ts()

    def xs_dma(b):
        o = []
        for cc in range(7):
            u = f's_add_u32 m0, {s(sW1k)}, {SL[XSLOT[b]] + 4096 * cc}\n'
            if cc == 0 and b > 0:
                u += f'v_add_u32 {v(vXs)}, 28672, {v(vXs)}\n'
            u += f'buffer_load_dwordx4 {v(vXs)}, {s(rWS, 4)}, {s(sC + cc)} offen sc1 lds ;#x{b}'
            o.append(u)
        return o

    XSLOT = [4, 1, 0, 2]
    A.ext(interleave(xs_dma(0) + xs_dma(1), w_frags(4, 0, vWr) + w_frags(5, 2, vWr) + w_frags(6, 3, vWr)))
    A(f'v_add_f32 {v(stt)}, {v(stt)}, {v(stt + 4)}')
    A(f'v_add_f32 {v(stt + 1)}, {v(stt + 1)}, {v(stt + 5)}')
    A(f'v_cvt_pk_bf16_f32 {v(stt)}, {v(stt)}, {v(stt + 1)}')
    A(f'v_and_b32 {v(t0)}, 7, {v(LANE)}')
    A(f'v_lshlrev_b32 {v(t0)}, 4, {v(t0)}')
    for i in range(4):
        A(f'ds_bpermute_b32 {v(gbp + i)}, {v(t0)}, {v(stt)} offset:{4 * i}')
    A(f'v_mov_b32 {v(Ag + 3)}, 0')
    for i in range(4):
        A(f'v_mov_b32 {v(Au + i)}, 0')
    A('s_mov_b32 exec_lo, 0')
    for i in range(3):
        A(f'v_mov_b32 {v(Au + i)}, {v(Ag + i)}')
        A(f'v_mov_b32 {v(Ag + i)}, 0')
    A('s_mov_b64 exec, -1')
    sSt, sAo, sAi, sOo = 16, 17, 18, 19
    A(f's_lshl_b32 {s(sSt)}, {s(sMt)}, 11')
    A(f's_add_u32 {s(sSt)}, {s(sSt)}, {ST2}')
    A(f's_lshl_b32 {s(sT0)}, {s(sNt)}, 2')
    A(f's_add_u32 {s(sT0)}, {s(sT0)}, {s(sWave)}')
    A(f's_mul_i32 {s(sT1)}, {s(sMt)}, 224')
    A(f's_add_u32 {s(sT0)}, {s(sT0)}, {s(sT1)}')
    A(f's_lshl_b32 {s(sAo)}, {s(sT0)}, 11')
    A(f's_add_u32 {s(sAo)}, {s(sAo)}, {ACT}')
    A(f's_lshl_b32 {s(sFl)}, {s(sT0)}, 7')
    A(f's_add_u32 {s(sFl)}, {s(sFl)}, {FL3}')
    A(f's_and_b32 {s(sT0)}, {s(sJ)}, 7')
    A(f's_lshl_b32 {s(sT0)}, {s(sT0)}, 2')
    A(f's_add_u32 {s(sT0)}, {s(sT0)}, {s(sMi)}')
    A(f's_lshr_b32 {s(sT1)}, {s(sT0)}, 1')
    A(f's_lshl_b32 {s(sT1)}, {s(sT1)}, 2')
    A(f's_and_b32 {s(sT0)}, {s(sT0)}, 1')
    A(f's_add_u32 {s(sTb)}, {s(sT0)}, {s(sT1)}')
    A(f's_mul_i32 {s(sT0)}, {s(sTb)}, 56')
    A(f's_mul_i32 {s(sT1)}, {s(sWave)}, 14')
    A(f's_add_u32 {s(sT0)}, {s(sT0)}, {s(sT1)}')
    A(f's_lshl_b32 {s(sAi)}, {s(sT0)}, 11')
    A(f's_add_u32 {s(sAi)}, {s(sAi)}, {ACT}')
    A(f'v_min_u32 {v(vFp)}, 13, {v(LANE)}')
    A(f'v_add_u32 {v(vFp)}, {s(sT0)}, {v(vFp)}')
    A(f'v_lshlrev_b32 {v(vFp)}, 7, {v(vFp)}')
    A(f'v_add_u32 {v(vFp)}, {FL3}, {v(vFp)}')
    A(f'v_lshrrev_b32 {v(t1)}, 3, {v(TID)}')
    A(f'v_and_b32 {v(t2)}, 3, {v(t1)}')
    A(f'v_bfe_u32 {v(t0)}, {v(t1)}, 2, 1')
    A(f'v_lshl_add_u32 {v(t2)}, {v(t0)}, 4, {v(t2)}')
    A(f'v_lshrrev_b32 {v(t0)}, 3, {v(t1)}')
    A(f'v_lshl_add_u32 {v(t2)}, {v(t0)}, 2, {v(t2)}')
    A(f'v_and_b32 {v(t0)}, 7, {v(TID)}')
    A(f'v_lshl_add_u32 {v(t2)}, {v(t0)}, 7, {v(t2)}')
    A(f'v_lshlrev_b32 {v(vW)}, 2, {v(t2)}')
    A(f's_mul_i32 {s(sT0)}, {s(sTb)}, 28672')
    A(f's_lshl_b32 {s(sT1)}, {s(sNi)}, 12')
    A(f's_add_u32 {s(sT0)}, {s(sT0)}, {s(sT1)}')
    A(f's_add_u32 {s(sT0)}, {s(sT0)}, {X1P}')
    A(f'v_add_u32 {v(vW)}, {s(sT0)}, {v(vW)}')
    A(f's_mul_i32 {s(sOo)}, {s(sTb)}, {32 * 896}')
    A(f's_lshl_b32 {s(sT1)}, {s(sNi)}, 7')
    A(f's_add_u32 {s(sOo)}, {s(sOo)}, {s(sT1)}')
    A('@vm x0')
    A('s_waitcnt lgkmcnt(0)')
    A('s_barrier')
    ts()

    def wdreg(cc, ks, db):
        i = (ks * 2 + db) * 4
        if cc == 0:
            return 'a', 224 + i
        if cc < 3:
            return 'v', wdv + 32 * (cc - 1) + i
        return 'a', 32 * (cc - 3) + i

    def rn(kr, n):
        return (a if kr[0] == 'a' else v)(kr[1], n)

    def wd_dma(cc, slot):
        return stage_dma(cc, slot, vWd, rWd, 896)

    def wd_frags(cc, slot):
        o = [f'@vm d{cc}\nv_add_u32 {v(d0)}, {SL[slot]}, {v(vDr)}', f'v_xor_b32 {v(d1)}, 64, {v(d0)}']
        for ks in range(4):
            for db in range(2):
                k, r = wdreg(cc, ks, db)
                for e in range(2):
                    o.append(f'ds_read_b64_tr_b16 {rn((k, r + 2 * e), 2)}, {v(d1 if db else d0)} offset:{(16 * ks + 8 * e) * 128} ;#df{cc}')
        return o

    def xread(n):
        b, ks = divmod(n, 28)
        sl = XSLOT[b]
        base, off = (vXr[0], SL[sl]) if sl < 2 else ((vXr[1], 0) if sl == 2 else (vXr[2], 0))
        r = xr + 4 * (n % 4)
        return '\n'.join(f'ds_read_b64_tr_b16 {v(r + 2 * e, 2)}, {v(base)} offset:{off + 1024 * ks + 256 * e} ;#xf{n}' for e in range(2))

    def accr(b):
        return acc + 32 * (b % 3)

    def epilogue(b):
        gg, uu, st = accr(b), accr(b) + 16, stt + 4 * b
        o = [f'v_mov_b32 {v(st + 3)}, 0',
             f'v_lshlrev_b32 {v(tmp)}, 16, {v(st + 2)}',
             f'v_and_b32 {v(tmp + 1)}, 0xffff0000, {v(st + 2)}',
             f'v_mfma_f32_32x32x16_bf16 {v(gg, 16)}, {v(Ag, 4)}, {v(st, 4)}, {v(gg, 16)}',
             f'v_add_f32 {v(tmp)}, {v(tmp)}, {v(tmp + 1)}',
             f'v_rcp_f32 {v(tmp + 1)}, {v(tmp)}',
             f'v_mfma_f32_32x32x16_bf16 {v(uu, 16)}, {v(Au, 4)}, {v(st, 4)}, {v(uu, 16)}',
             f'v_mul_f32 {v(tmp)}, {v(tmp)}, {v(tmp)}',
             f'v_mul_f32 {v(tmp + 1)}, 0xbfb8aa3b, {v(tmp + 1)}',
             's_nop 1',
             f'v_mov_b32 {v(st)}, {v(tmp)}',
             f'v_mov_b32 {v(st + 1)}, {v(tmp + 1)}']
        for q in range(4):
            r4 = range(4 * q, 4 * q + 4)
            tt = tmp + 4 * (q % 2)
            o += [f'v_mul_f32 {v(tt + i % 4)}, {v(st + 1)}, {v(gg + i)}' for i in r4]
            for i in r4:
                o += [f'v_exp_f32 {v(tt + i % 4)}, {v(tt + i % 4)}', f'v_mul_f32 {v(gg + i)}, {v(gg + i)}, {v(uu + i)}']
            o += [f'v_fma_f32 {v(tt + i % 4)}, {v(tt + i % 4)}, {v(st)}, {v(st)}' for i in r4]
            o += [f'v_rcp_f32 {v(tt + i % 4)}, {v(tt + i % 4)}' for i in r4]
            o += [f'v_mul_f32 {v(gg + i)}, {v(gg + i)}, {v(tt + i % 4)}' for i in r4]
            o += [f'v_cvt_pk_bf16_f32 {v(outp + 2 * q + k)}, {v(gg + 4 * q + 2 * k)}, {v(gg + 4 * q + 2 * k + 1)}' for k in range(2)]
            if q % 2:
                o.append(f'buffer_store_dwordx4 {v(outp + 2 * q - 2, 4)}, {v(vL16)}, {s(rWS, 4)}, {s(sAo)} offen offset:{1024 * (q // 2)} sc1 ;#ao{b}')
        o.append(f's_add_u32 {s(sAo)}, {s(sAo)}, {112 * 1024}')
        return o

    def act_flag(b):
        return f'@vm ao{b}\n' + flag_store(vTag, sFl) + f'\ns_add_u32 {s(sFl)}, {s(sFl)}, {56 * 128}'

    def st_loads(b0):
        return [f'buffer_load_dwordx4 {v(stt + 4 * b, 4)}, {v(vSt)}, {s(rWS, 4)}, {s(sSt)} offen offset:{512 * b} sc1 ;#s{b0}' for b in (b0, b0 + 1)]

    res = [f's_mov_b32 {s(sT3)}, {2 * 28672}']
    for blk in range(2):
        res += [f'buffer_load_dword {v(x1r + 4 * blk + i)}, {v(vW)}, {s(rWS, 4)}, {s(sT3) if blk else 0} offen offset:{128 * i} sc1 ;#res' for i in range(4)]
    pollE = [f'buffer_load_dword {v(fp)}, {v(vFp)}, {s(rWS, 4)}, 0 offen sc1 ;#pe']
    e1 = epilogue(1)
    hcut = 12 + 2 * 27 - 1
    for n in range(3):
        A(xread(n))
    for b in range(4):
        mm = []
        for ks in range(28):
            n = 28 * b + ks
            pre = ''
            if ks == 25 and b < 3:
                pre = f'@vm x{b + 1}\ns_waitcnt lgkmcnt(0)\ns_barrier\n'
            if n + 3 < 112:
                pre += xread(n + 3) + '\n'
            for mat in range(2):
                d = accr(b) + 16 * mat
                u = (pre + f'@lg xf{n}\n') if mat == 0 else ''
                u += f'v_mfma_f32_32x32x16_bf16 {v(d, 16)}, {a((mat * 28 + ks) * 4, 4)}, {v(xr + 4 * (n % 4), 4)}, {"0" if ks == 0 else v(d, 16)}'
                mm.append(u)
        if b == 0:
            mm = interleave(mm, xs_dma(2) + xs_dma(3) + wd_dma(0, 3), end=50)
        elif b == 1:
            f = wd_dma(1, 4) + wd_frags(0, 3) + ['@lg df0'] + wd_dma(2, 3) + res + wd_frags(1, 4) + st_loads(0)
            mm = interleave(mm, f, end=50)
        elif b == 2:
            mm[1] += '\n' + tag_wait('L_s0', st_loads(0), [stt + 3, stt + 7], 's0')
            f = interleave(epilogue(0) + e1[:hcut], wd_dma(3, 1) + wd_frags(2, 3) + wd_dma(4, 4) + st_loads(2))
            mm = interleave(mm, f, start=1)
        else:
            mm[1] += '\n' + tag_wait('L_s2', st_loads(2), [stt + 11, stt + 15], 's2')
            f = interleave(e1[hcut:] + [act_flag(0)] + epilogue(2), wd_dma(5, 3) + wd_dma(6, 0))
            mm = interleave(mm, f, start=1)
        A.ext(mm)
    ts()
    abuf = [('a', 128 + 4 * i) for i in range(24)] + [('v', xr + 4 * i) for i in range(4)]

    def aload(blk, ks):
        return f'buffer_load_dwordx4 {rn(abuf[ks], 4)}, {v(vXs)}, {s(rWS, 4)}, {s(sC + ks // 4)} offen offset:{1024 * (ks % 4)} sc1 ;#a{blk}_{ks}'

    A(act_flag(1))
    A.ext(interleave(epilogue(3), wd_frags(3, 1) + wd_frags(4, 4)))
    A.ext(pollE)
    A(act_flag(2))
    A(f'v_add_u32 {v(vXs)}, {s(sAi)}, {v(vL16)}')
    A(tag_wait('L_pe', pollE, [fp], 'pe'))
    al = [aload(0, ks) for ks in range(28)]
    al[6] += '\n' + act_flag(3)
    A.ext(interleave(al, wd_frags(5, 3) + wd_frags(6, 0)))
    A(f'v_add_u32 {v(vFp)}, {2 * 56 * 128}, {v(vFp)}')
    A(f'v_add_u32 {v(vXs)}, {2 * 112 * 1024}, {v(vXs)}')
    A.ext(pollE)
    wa = [stt + i for i in range(4)]
    ra0, ra1, ao = stt + 4, stt + 5, stt + 6
    A(f'v_and_b32 {v(t0)}, 31, {v(LANE)}')
    A(f'v_lshlrev_b32 {v(t0)}, 8, {v(t0)}')
    A(f'v_add_u32 {v(t0)}, {s(sW8k)}, {v(t0)}')
    A(f'v_lshrrev_b32 {v(t1)}, 5, {v(LANE)}')
    A(f'v_and_b32 {v(t2)}, 7, {v(LANE)}')
    A(f'v_xor_b32 {v(t1)}, {v(t1)}, {v(t2)}')
    A(f'v_lshl_add_u32 {v(wa[0])}, {v(t1)}, 4, {v(t0)}')
    A(f'v_add_u32 {v(wa[0])}, {SL[2]}, {v(wa[0])}')
    for gq in range(1, 4):
        A(f'v_xor_b32 {v(wa[gq])}, {32 * gq}, {v(wa[0])}')
    A(f'v_lshrrev_b32 {v(t0)}, 3, {v(TID)}')
    A(f'v_and_b32 {v(t1)}, 7, {v(t0)}')
    A(f'v_lshlrev_b32 {v(ra0)}, 1, {v(t2)}')
    A(f'v_xor_b32 {v(ra0)}, {v(ra0)}, {v(t1)}')
    A(f'v_lshlrev_b32 {v(ra0)}, 4, {v(ra0)}')
    A(f'v_lshl_add_u32 {v(ra0)}, {v(t0)}, 8, {v(ra0)}')
    A(f'v_add_u32 {v(ra0)}, {SL[2]}, {v(ra0)}')
    A(f'v_xor_b32 {v(ra1)}, 16, {v(ra0)}')
    A(f'v_mul_u32_u24 {v(ao)}, 896, {v(t0)}')
    A(f'v_lshl_add_u32 {v(ao)}, {v(t2)}, 4, {v(ao)}')
    A('s_waitcnt lgkmcnt(0)')
    A('s_barrier')
    Y = acc

    def g2(blk, ks):
        d = acc + 32 * (1 + blk)
        u = f'@vm a{blk}_{ks}\n'
        for db in range(2):
            u += f'v_mfma_f32_32x32x16_bf16 {v(d + 16 * db, 16)}, {rn(wdreg(ks // 4, ks % 4, db), 4)}, {rn(abuf[ks], 4)}, {"0" if ks == 0 else v(d + 16 * db, 16)}\n'
        return u

    def red_write(blk):
        d = acc + 32 * (1 + blk)
        return [f'ds_write_b128 {v(wa[gq])}, {v(d + 16 * db + 4 * gq, 4)} offset:{32768 * blk + 128 * db}' for db in range(2) for gq in range(4)]

    def red_final(blk):
        o = ['s_waitcnt lgkmcnt(0)\ns_barrier']
        for w in range(4):
            o += [f'ds_read_b128 {v(Y + 8 * w, 4)}, {v(ra0)} offset:{32768 * blk + 8192 * w}',
                  f'ds_read_b128 {v(Y + 8 * w + 4, 4)}, {v(ra1)} offset:{32768 * blk + 8192 * w}']
        for i in range(4):
            o += [f'v_lshlrev_b32 {v(tmp + 2 * i)}, 16, {v(x1r + 4 * blk + i)}', f'v_and_b32 {v(tmp + 2 * i + 1)}, 0xffff0000, {v(x1r + 4 * blk + i)}']
            o += [f'v_lshlrev_b32 {v(outp + 2 * i)}, 16, {v(gbp + i)}', f'v_and_b32 {v(outp + 2 * i + 1)}, 0xffff0000, {v(gbp + i)}']
        o.append('s_waitcnt lgkmcnt(0)')
        for i in range(8):
            o += [f'v_add_f32 {v(Y + i)}, {v(Y + i)}, {v(Y + 8 + i)}', f'v_add_f32 {v(Y + 16 + i)}, {v(Y + 16 + i)}, {v(Y + 24 + i)}']
        for i in range(8):
            o += [f'v_add_f32 {v(Y + i)}, {v(Y + i)}, {v(Y + 16 + i)}', f'v_fmac_f32 {v(tmp + i)}, {v(Y + i)}, {v(outp + i)}']
        o += [f'v_cvt_pk_bf16_f32 {v(stt + 8 + 4 * blk + i)}, {v(tmp + 2 * i)}, {v(tmp + 2 * i + 1)}' for i in range(4)]
        o.append(f'buffer_store_dwordx4 {v(stt + 8 + 4 * blk, 4)}, {v(ao)}, {s(rOut, 4)}, {s(sOo)} offen')
        o.append(f's_add_u32 {s(sOo)}, {s(sOo)}, {64 * 896}')
        return o

    for ks in range(28):
        A(g2(0, ks))
    A(tag_wait('L_pl', pollE, [fp], 'pe'))
    ts()
    A.ext(interleave([aload(1, ks) for ks in range(28)], red_write(0) + red_final(0)))
    for ks in range(28):
        A(g2(1, ks))
    A.ext(red_write(1) + red_final(1))
    ts()


def helper_rest():
    V.release(2)
    g = V.get(16)
    acc = V.get(16, 4)
    fw = V.get(112)
    fv = V.get(16)
    xx = V.get(56)
    t0, t1, t2, vo, vr, va, one, aw, ar = [V.get() for _ in range(9)]
    rd = V.get(8)
    A('s_cmp_ge_u32 s2, 28')
    A('s_cbranch_scc1 L_hr_skip')
    A(f's_cmp_eq_u32 {s(sMi)}, 0')
    A(f's_cselect_b32 {s(rW)}, {s(pWg)}, {s(pWu)}')
    A(f's_cselect_b32 {s(rW + 1)}, {s(pWg + 1)}, {s(pWu + 1)}')
    A(f's_mov_b32 {s(rW + 2)}, 1605632')
    A(f's_mov_b32 {s(rW + 3)}, 0x00020000')
    A(f'v_lshrrev_b32 {v(t0)}, 3, {v(LANE)}')
    A(f'v_lshlrev_b32 {v(t1)}, 1, {v(t0)}')
    A(f'v_and_b32 {v(t1)}, 4, {v(t1)}')
    A(f'v_and_b32 {v(t2)}, 7, {v(LANE)}')
    A(f'v_xor_b32 {v(t1)}, {v(t1)}, {v(t2)}')
    A(f'v_mul_u32_u24 {v(vo)}, 3584, {v(t0)}')
    A(f'v_lshl_add_u32 {v(vo)}, {v(t1)}, 4, {v(vo)}')
    A(f's_and_b32 {s(sT1)}, {s(sWave)}, 1')
    A(f's_lshr_b32 {s(sT2)}, {s(sWave)}, 1')
    A(f's_lshl_b32 {s(sT0)}, {s(sNi)}, 1')
    A(f's_add_u32 {s(sT0)}, {s(sT0)}, {s(sT1)}')
    A(f's_lshl_b32 {s(sT0)}, {s(sT0)}, 7')
    A(f's_mul_i32 {s(sT3)}, {s(sT2)}, {224 * 3584}')
    A(f's_add_u32 {s(sT0)}, {s(sT0)}, {s(sT3)}')
    A(f's_mul_i32 {s(sT3)}, {s(sT1)}, 57344')
    A(f's_mul_i32 {s(sM2)}, {s(sT2)}, 28672')
    A(f's_add_u32 m0, {s(sT3)}, {s(sM2)}')
    for i in range(28):
        A(f'buffer_load_dwordx4 {v(vo)}, {s(rW, 4)}, {s(sT0)} offen lds')
        A('s_add_u32 m0, m0, 1024')
        A(f's_add_u32 {s(sT0)}, {s(sT0)}, {8 * 3584}')
    tr_lane(vr, t0, t1, 8, 128)
    A(f'v_bfe_u32 {v(t1)}, {v(LANE)}, 3, 1')
    A(f'v_xor_b32 {v(t1)}, {s(sT1)}, {v(t1)}')
    A(f'v_lshl_add_u32 {v(vr)}, {v(t1)}, 6, {v(vr)}')
    A(f's_mul_i32 {s(sT3)}, {s(sT2)}, 57344')
    A(f'v_add_u32 {v(vr)}, {s(sT3)}, {v(vr)}')
    A(f'v_and_b32 {v(t0)}, 1, {v(LANE)}')
    A(f'v_lshlrev_b32 {v(va)}, 10, {v(t0)}')
    A(f'v_lshrrev_b32 {v(t0)}, 5, {v(LANE)}')
    A(f'v_lshl_add_u32 {v(va)}, {v(t0)}, 4, {v(va)}')
    A(f'v_add_u32 {v(va)}, {SL[4] + 4096}, {v(va)}')
    A(f'v_min_u32 {v(t2)}, 223, {v(TID)}')
    A(f'v_lshlrev_b32 {v(t0)}, 4, {v(t2)}')
    ld = []
    for i, sec in enumerate((4, 3)):
        ld += [f's_mov_b32 {s(sT3)}, {MOD + sec * 7168}',
               f'buffer_load_dwordx4 {v(g + 8 * i, 4)}, {v(t0)}, {s(rWS, 4)}, {s(sT3)} offen sc1',
               f'buffer_load_dwordx4 {v(g + 8 * i + 4, 4)}, {v(t0)}, {s(rWS, 4)}, {s(sT3)} offen offset:3584 sc1']
    A.ext(ld)
    A(tag_wait('L_hg', ld, [g + 3, g + 7, g + 11, g + 15]))
    bf16_pair_from_partials(rd, g, g + 4, True)
    bf16_pair_from_partials(rd + 2, g + 8, g + 12, False)
    A(f'v_lshlrev_b32 {v(t2)}, 2, {v(t2)}')
    A(f'v_add_u32 {v(t2)}, {SL[4] + 4096}, {v(t2)}')
    A(f'ds_write_b32 {v(t2)}, {v(g)}')
    A(f'ds_write_b32 {v(t2)}, {v(g + 8)} offset:1024')
    A('s_waitcnt lgkmcnt(0)')
    A('s_barrier')
    for ks in range(28):
        for e in range(2):
            A(f'ds_read_b64_tr_b16 {v(fw + 4 * ks + 2 * e, 2)}, {v(vr)} offset:{(16 * ks + 4 * e) * 128}')
    for k4 in range(7):
        for i in range(4):
            A(f'ds_read_b128 {v(fv + 4 * i, 4)}, {v(va)} offset:{32 * (4 * k4 + i)}')
        A('s_waitcnt lgkmcnt(0)')
        for i in range(4):
            ks = 4 * k4 + i
            A(f'v_mfma_f32_32x32x16_bf16 {v(acc, 16)}, {v(fv + 4 * i, 4)}, {v(fw + 4 * ks, 4)}, {"0" if ks == 0 else v(acc, 16)}')
        A('s_nop 7')
    A(f's_mul_i32 {s(sT0)}, {s(sMi)}, 28672')
    A(f's_lshl_b32 {s(sT1)}, {s(sNi)}, 2')
    A(f's_add_u32 {s(sT1)}, {s(sT1)}, {s(sWave)}')
    A(f's_lshl_b32 {s(sT1)}, {s(sT1)}, 9')
    A(f's_add_u32 {s(sT0)}, {s(sT0)}, {s(sT1)}')
    A(f's_add_u32 {s(sT0)}, {s(sT0)}, {AUG}')
    A(f'v_lshlrev_b32 {v(t2)}, 4, {v(LANE)}')
    A(f'v_cvt_pk_bf16_f32 {v(g + 1)}, {v(acc)}, {v(acc + 1)}')
    A(f'v_lshlrev_b32 {v(t0)}, 16, {v(g + 1)}')
    A(f'v_and_b32 {v(t1)}, 0xffff0000, {v(g + 1)}')
    A(f'v_sub_f32 {v(acc + 2)}, {v(acc)}, {v(t0)}')
    A(f'v_sub_f32 {v(acc + 3)}, {v(acc + 1)}, {v(t1)}')
    A(f'v_cvt_pk_bf16_f32 {v(g)}, {v(t0)}, {v(acc + 2)}')
    A(f'v_cvt_pk_bf16_f32 {v(g + 2)}, {v(acc + 3)}, {v(t1)}')
    A(f'v_mov_b32 {v(g + 3)}, {s(sTag)}')
    A('s_mov_b32 exec_hi, 0')
    A(f'buffer_store_dwordx4 {v(g, 4)}, {v(t2)}, {s(rWS, 4)}, {s(sT0)} offen sc1')
    A('s_mov_b64 exec, -1')
    A('L_hr_skip:')
    ts()
    A(f's_mul_i32 {s(sT0)}, {s(sWave)}, 56')
    A(f'v_min_u32 {v(t0)}, 55, {v(LANE)}')
    A(f'v_add_u32 {v(t0)}, {s(sT0)}, {v(t0)}')
    A(f'v_lshlrev_b32 {v(t0)}, 7, {v(t0)}')
    A(f'v_add_u32 {v(t0)}, {FL2}, {v(t0)}')
    A(f's_lshr_b32 {s(sT1)}, s2, 1')
    A(f's_lshl_b32 {s(sT1)}, {s(sT1)}, 2')
    A(f's_and_b32 {s(sT2)}, s2, 1')
    A(f's_add_u32 {s(sTb)}, {s(sT1)}, {s(sT2)}')
    A(f's_mul_i32 {s(sT1)}, {s(sTb)}, 28672')
    A(f's_add_u32 {s(sT1)}, {s(sT1)}, {X1P}')
    A(f'v_lshl_add_u32 {v(vo)}, {v(TID)}, 4, {s(sT1)}')
    A(f'v_mov_b32 {v(one)}, 0x3f803f80')
    A(f'v_and_b32 {v(t1)}, 7, {v(LANE)}')
    A(f'v_lshrrev_b32 {v(t2)}, 4, {v(LANE)}')
    A(f'v_lshl_add_u32 {v(t2)}, {v(t1)}, 2, {v(t2)}')
    A(f's_lshl_b32 {s(sT0)}, {s(sWave)}, 8')
    A(f's_add_u32 {s(sT0)}, {s(sT0)}, {SL[4] + 8192}')
    A(f'v_lshl_add_u32 {v(aw)}, {v(t2)}, 3, {s(sT0)}')
    A(f'v_and_b32 {v(t1)}, 3, {v(LANE)}')
    A(f'v_bfe_u32 {v(t2)}, {v(LANE)}, 2, 1')
    A(f'v_lshl_add_u32 {v(t1)}, {v(t2)}, 4, {v(t1)}')
    A(f'v_bfe_u32 {v(t2)}, {v(LANE)}, 3, 2')
    A(f'v_lshl_add_u32 {v(t1)}, {v(t2)}, 2, {v(t1)}')
    A(f'v_lshlrev_b32 {v(ar)}, 3, {v(t1)}')
    A(f'v_add_u32 {v(ar)}, {SL[4] + 8192}, {v(ar)}')
    A(f'v_lshlrev_b32 {v(vr)}, 4, {v(LANE)}')
    A(f's_lshl_b32 {s(sM2)}, {s(sTb)}, 9')
    A(f's_add_u32 {s(sM2)}, {s(sM2)}, {ST2}')
    pl = [f'buffer_load_dword {v(va)}, {v(t0)}, {s(rWS, 4)}, 0 offen sc1']
    A.ext(pl)
    A(tag_wait('L_hf', pl, [va]))
    A('s_barrier')
    ts()
    for blk in range(2):
        for i in range(7):
            A(f's_mov_b32 {s(sT0)}, {2 * 28672 * blk + 4096 * i}')
            A(f'buffer_load_dwordx4 {v(xx + 28 * blk + 4 * i, 4)}, {v(vo)}, {s(rWS, 4)}, {s(sT0)} offen sc1 ;#hx{blk}_{i}')
    for blk in range(2):
        for j in range(8):
            A(f'v_mov_b32 {v(acc + j)}, 0')
        for i in range(7):
            A(f'@vm hx{blk}_{i}')
            for j in range(4):
                w = xx + 28 * blk + 4 * i + j
                A(f'v_dot2c_f32_bf16 {v(acc + 2 * j)}, {v(w)}, {v(one)}')
                A(f'v_dot2c_f32_bf16 {v(acc + 2 * j + 1)}, {v(w)}, {v(w)}')
        reduce8(acc)
        A(f'ds_write_b64 {v(aw)}, {v(acc, 2)} offset:{1024 * blk}')
        A('s_waitcnt lgkmcnt(0)')
        A('s_barrier')
        A(f's_cmp_lg_u32 {s(sWave)}, {blk}')
        A(f's_cbranch_scc1 L_hs_n{blk}')
        for w in range(4):
            A(f'ds_read_b64 {v(rd + 2 * w, 2)}, {v(ar)} offset:{1024 * blk + 256 * w}')
        A(f'v_mov_b32 {v(t2)}, 0x3b124925')
        A('s_waitcnt lgkmcnt(0)')
        A(f'v_pk_add_f32 {v(rd, 2)}, {v(rd, 2)}, {v(rd + 2, 2)}')
        A(f'v_pk_add_f32 {v(rd + 4, 2)}, {v(rd + 4, 2)}, {v(rd + 6, 2)}')
        A(f'v_pk_add_f32 {v(rd, 2)}, {v(rd, 2)}, {v(rd + 4, 2)}')
        A(f'v_mul_f32 {v(rd)}, 0xbb124925, {v(rd)}')
        A(f'v_mul_f32 {v(t0)}, {v(rd)}, {v(rd)}')
        A(f'v_fma_f32 {v(rd + 1)}, {v(rd + 1)}, {v(t2)}, -{v(t0)}')
        A(f'v_max_f32 {v(rd + 1)}, 0, {v(rd + 1)}')
        A(f'v_add_f32 {v(rd + 1)}, 0x3727c5ac, {v(rd + 1)}')
        A(f'v_sqrt_f32 {v(rd + 1)}, {v(rd + 1)}')
        A(f'v_cvt_pk_bf16_f32 {v(g)}, {v(rd)}, {v(rd)}')
        A(f'v_cvt_pk_bf16_f32 {v(t1)}, {v(rd + 1)}, {v(rd + 1)}')
        A(f'v_and_b32 {v(t0)}, 0xffff0000, {v(g)}')
        A(f'v_and_b32 {v(t1)}, 0xffff0000, {v(t1)}')
        A(f'v_sub_f32 {v(rd + 2)}, {v(rd)}, {v(t0)}')
        A(f'v_sub_f32 {v(rd + 3)}, {v(rd + 1)}, {v(t1)}')
        A(f'v_cvt_pk_bf16_f32 {v(g + 1)}, {v(rd + 2)}, {v(t1)}')
        A(f'v_cvt_pk_bf16_f32 {v(g + 2)}, {v(t1)}, {v(rd + 3)}')
        A(f'v_mov_b32 {v(g + 3)}, {s(sTag)}')
        A('s_mov_b32 exec_hi, 0')
        A(f'buffer_store_dwordx4 {v(g, 4)}, {v(vr)}, {s(rWS, 4)}, {s(sM2)} offen offset:{1024 * blk} sc1 ;#cond')
        A('s_mov_b64 exec, -1')
        A(f'L_hs_n{blk}:')
    ts()


def epoch_update():
    A('s_cmp_lg_u32 s2, 32')
    A('s_cbranch_scc1 L_noep')
    A(f'v_mov_b32 v2, {s(sTag)}')
    A(f'v_mov_b32 v3, {EP}')
    A(f'buffer_store_dword v2, v3, {s(rWS, 4)}, 0 offen sc1')
    A('L_noep:')


def build():
    prologue()
    n0 = nts[0]
    m = V.mark()
    main_ffn(main_ssm())
    epoch_update()
    ts_flush('m')
    A('s_endpgm')
    A('L_helper:')
    nts[0] = n0
    V.release(m)
    helper_mod()
    helper_rest()
    ts_flush('h')
    A('L_end:')
    A('s_endpgm')
    body = pad_hazards(resolve_waits(A.lines))
    hdr = open('adaLN_cond__ssm_conv_s4__swiglu_ffn__prompt.s.ref').read().split('; Override launch')[0]
    text = hdr + '; @launch grid=(256,1,1) block=(256,1,1) lds=163840\n'
    text += f'.amdgcn_target "amdgcn-amd-amdhsa--gfx950"\n.text\n.globl {NAME}\n.p2align 8\n.type {NAME},@function\n{NAME}:\n'
    text += '\n'.join(body) + '\n'
    text += f'''.section .rodata,"a"
.p2align 6
.amdhsa_kernel {NAME}
  .amdhsa_next_free_vgpr 512
  .amdhsa_next_free_sgpr 102
  .amdhsa_accum_offset 256
  .amdhsa_group_segment_fixed_size 0
  .amdhsa_kernarg_size 144
  .amdhsa_user_sgpr_count 2
  .amdhsa_user_sgpr_kernarg_segment_ptr 1
  .amdhsa_system_sgpr_workgroup_id_x 1
  .amdhsa_float_denorm_mode_32 3
.end_amdhsa_kernel
'''
    open(sys.argv[1], 'w').write(text)
    print('vgpr high water', V.hi, 'lines', len(body))


build()
```

```python
import re

REG = re.compile(r'^(-|\|)?(abs\()?([vas])(\d+|\[(\d+):(\d+)\])\)?\|?$')
TRANS = ('v_exp_f32', 'v_log_f32', 'v_rcp_f32', 'v_rsq_f32', 'v_sqrt_f32', 'v_sin_f32', 'v_cos_f32')


def regs_of(tok):
    tok = tok.strip()
    if tok in ('vcc', 'vcc_lo', 'vcc_hi'):
        return {('s', 'vcc')}
    if tok in ('exec', 'exec_lo', 'exec_hi'):
        return {('s', 'exec')}
    if tok == 'm0':
        return {('s', 'm0')}
    m = REG.match(tok)
    if not m:
        return set()
    k = m.group(3)
    if m.group(5) is not None:
        return {(k, i) for i in range(int(m.group(5)), int(m.group(6)) + 1)}
    return {(k, int(m.group(4)))}


class Ins:
    def __init__(self, text):
        self.text = text
        body = text.split(';')[0].strip()
        parts = body.split(None, 1)
        self.op = parts[0]
        rest = parts[1] if len(parts) > 1 else ''
        ops, depth, cur = [], 0, ''
        for ch in rest:
            if ch == '[':
                depth += 1
            if ch == ']':
                depth -= 1
            if ch == ',' and depth == 0:
                ops.append(cur.strip())
                cur = ''
            else:
                cur += ch
        mods = ''
        if cur.strip():
            last = cur.strip().split(None, 1)
            ops.append(last[0])
            mods = last[1] if len(last) > 1 else ''
        self.ops, self.mods = ops, mods
        op = self.op
        R = [regs_of(o) for o in ops]
        allr = set().union(*R) if R else set()
        self.mfma = op.startswith('v_mfma')
        self.valu = op.startswith('v_') and not self.mfma
        self.trans = any(op.startswith(t) for t in TRANS)
        self.dot = op.startswith('v_dot')
        self.dpp = '_dpp' in op
        self.perm = op.startswith('v_permlane')
        self.lane = op.startswith('v_readlane') or op.startswith('v_readfirstlane') or op.startswith('v_writelane')
        self.ds = op.startswith('ds_')
        self.vmem = op.startswith('buffer_') or op.startswith('global_')
        self.salu = op.startswith('s_')
        self.ldsdma = self.vmem and (' lds' in ' ' + mods or '_lds_' in op)
        self.usem0 = self.ldsdma or 'addtid' in op
        self.wr, self.rd = set(), set()
        self.states = 1
        if op == 's_nop':
            self.states = int(ops[0], 0) + 1
        if self.mfma:
            self.wr = R[0]
            self.srcA, self.srcB, self.srcC = R[1], R[2], R[3]
            self.rd = R[1] | R[2] | R[3]
            self.passes = 8 if '32x32' in op else 4
        elif self.valu:
            nd = 2 if ('_co_' in op and not op.startswith('v_cmp')) else 1
            self.wr = set().union(*R[:nd])
            self.rd = set().union(*R[nd:]) if len(R) > nd else set()
            if self.perm:
                self.wr = allr
                self.rd = allr
            if op.startswith('v_fmac') or op.startswith('v_dot2c') or self.dpp or op.startswith('v_writelane'):
                self.rd |= R[0]
            if op.startswith('v_cmpx'):
                self.wr = self.wr | {('s', 'exec')}
            if op.startswith('v_cndmask') and len(ops) == 3:
                self.rd |= {('s', 'vcc')}
        elif self.ds:
            if op.startswith('ds_read') or op.startswith('ds_bpermute') or op.startswith('ds_swizzle'):
                self.wr = R[0]
                self.rd = set().union(*R[1:]) if len(R) > 1 else set()
            else:
                self.rd = allr
        elif self.vmem:
            if '_load' in op and not self.ldsdma:
                self.wr = R[0]
                self.rd = set().union(*R[1:])
            else:
                self.rd = allr
            self.widestore = ('store_dwordx4' in op or 'store_dwordx3' in op)
            if self.widestore:
                self.stdata = R[0] if op.startswith('buffer_') else R[1]
        elif self.salu:
            nodst = ('s_cmp', 's_waitcnt', 's_nop', 's_barrier', 's_branch', 's_cbranch', 's_endpgm', 's_sleep', 's_setprio', 's_bitcmp')
            if not op.startswith(nodst) and R:
                self.wr = R[0]
                self.rd = set().union(*R[1:]) if len(R) > 1 else set()
                if 'saveexec' in op:
                    self.wr = self.wr | {('s', 'exec')}
            else:
                self.rd = allr


def need(p, c):
    n = 0
    vw = {r for r in p.wr if r[0] in 'va'}
    sw = {r for r in p.wr if r[0] == 's'}
    if p.mfma:
        big = 12 if p.passes == 8 else 8
        if c.mfma:
            if vw & (c.srcA | c.srcB):
                n = max(n, big)
            if vw & c.srcC and not (vw == c.srcC and p.passes == c.passes):
                n = max(n, 10 if p.passes == 8 else 6)
            if vw & c.wr and not (vw & c.srcC):
                n = max(n, big)
        elif vw & (c.rd | c.wr):
            n = max(n, big)
        if c.valu and p.srcC & c.wr:
            n = max(n, 7 if p.passes == 8 else 3)
    if p.valu:
        if c.mfma and vw & c.rd:
            n = max(n, 2)
        if p.trans and c.valu and vw & c.rd:
            n = max(n, 1)
        if (c.dpp or c.perm) and vw & c.rd:
            n = max(n, 2)
        if c.lane and vw & c.rd:
            n = max(n, 1)
        if p.dot and vw & (c.rd | c.wr):
            same = c.op == p.op and not (vw & set().union(*[regs_of(o) for o in c.ops[1:3]]))
            if not same:
                n = max(n, 3)
        if ('s', 'exec') in sw and (c.dpp or c.perm or c.lane or c.mfma):
            n = max(n, 5)
        if sw:
            if c.valu and sw & c.rd:
                n = max(n, 4 if c.lane else 2)
            if c.vmem and sw & c.rd:
                n = max(n, 5)
            if c.salu and sw & c.rd:
                n = max(n, 1)
            if c.op.startswith('s_cbranch_vcc') and ('s', 'vcc') in sw:
                n = max(n, 1)
    if p.salu and ('s', 'm0') in p.wr and c.usem0:
        n = max(n, 1)
    if p.salu and ('s', 'exec') in p.wr and (c.dpp or c.perm or c.lane):
        n = max(n, 1)
    if p.vmem and getattr(p, 'widestore', False) and p.stdata & c.wr:
        n = max(n, 2)
    return n


def pad_hazards(lines):
    back = {}
    for _ in range(3):
        out, hists, fwd, seen, newback = [], [[]], {}, set(), {}
        for ln in lines:
            s = ln.strip()
            if not s or s.startswith(';') or s.startswith('.'):
                out.append(ln)
                continue
            if s.endswith(':'):
                lab = s[:-1]
                seen.add(lab)
                hists = hists + fwd.get(lab, []) + back.get(lab, [])
                out.append(ln)
                continue
            c = Ins(s)
            gap = 0
            for h in hists:
                for p, age in h:
                    gap = max(gap, need(p, c) - age)
            while gap > 0:
                k = min(gap, 16)
                out.append(f'    s_nop {k - 1}')
                hists = [[(p, a + k) for p, a in h] for h in hists]
                gap -= k
            out.append(ln)
            merged = {}
            for h in hists:
                for p, a in h:
                    if a + c.states < 14:
                        key = id(p)
                        if key not in merged or merged[key][1] > a + c.states:
                            merged[key] = (p, a + c.states)
            h = list(merged.values()) + [(c, 0)]
            hists = [h]
            if c.op.startswith('s_cbranch') or c.op == 's_branch':
                tgt = c.ops[0]
                (newback if tgt in seen else fwd).setdefault(tgt, []).append(list(h))
                if c.op == 's_branch':
                    hists = [[]]
            if c.op == 's_endpgm':
                hists = [[]]
        lines, back = out, newback
    return lines


class Regs:
    def __init__(self, kind, start, end):
        self.kind, self.pos, self.end = kind, start, end
        self.hi = start

    def get(self, n=1, align=1):
        if n > 1 and align == 1:
            align = 2
        self.pos = (self.pos + align - 1) // align * align
        r = self.pos
        self.pos += n
        assert self.pos <= self.end, f'out of {self.kind} registers'
        self.hi = max(self.hi, self.pos)
        return r

    def mark(self):
        return self.pos

    def release(self, m):
        self.pos = m


def v(r, n=1):
    return f'v{r}' if n == 1 else f'v[{r}:{r + n - 1}]'


def a(r, n=1):
    return f'a{r}' if n == 1 else f'a[{r}:{r + n - 1}]'


def s(r, n=1):
    return f's{r}' if n == 1 else f's[{r}:{r + n - 1}]'


class Asm:
    def __init__(self):
        self.lines = []

    def __call__(self, text):
        for ln in text.split('\n'):
            t = ln.strip()
            if not t:
                continue
            self.lines.append(t if t.endswith(':') else '    ' + t)

    def ext(self, lst):
        for x in lst:
            self(x)


def interleave(main, fill, per=None, start=0, end=None):
    end = len(main) if end is None else end
    n = end - start
    out, done = [], 0
    for i, m in enumerate(main):
        out.append(m)
        if start <= i < end:
            tgt = (len(fill) * (i - start + 1) + n - 1) // n
            if per is not None:
                tgt = min(len(fill), done + per)
            out.extend(fill[done:tgt])
            done = max(done, tgt)
    out.extend(fill[done:])
    return out


def resolve_waits(lines):
    out, vm, lg = [], [], []
    for ln in lines:
        t = ln.strip()
        if t.startswith('@vm') or t.startswith('@lg'):
            kind, tags = t.split(None, 1)
            q = vm if kind == '@vm' else lg
            idx = [i for i, x in enumerate(q) if x in tags.split()]
            if not idx:
                continue
            n = sum(1 for x in q[max(idx) + 1:] if x != 'cond')
            lim = 63 if kind == '@vm' else 15
            n = min(n, lim)
            out.append(f'    s_waitcnt {"vmcnt" if kind == "@vm" else "lgkmcnt"}({n})')
            del q[:max(idx) + 1]
            continue
        if t and not t.endswith(':') and not t.startswith(';') and not t.startswith('.'):
            op = t.split()[0]
            tag = t.split(';#')[1].strip() if ';#' in t else ''
            if op.startswith('buffer_') or op.startswith('global_'):
                vm.append(tag)
            elif op.startswith('ds_'):
                lg.append(tag)
            elif op == 's_waitcnt' and tag != 'cond':
                if 'vmcnt(0)' in t:
                    vm.clear()
                if 'lgkmcnt(0)' in t:
                    lg.clear()
            ln = ln.split(';#')[0].rstrip()
        out.append(ln)
    return out


def tagged(lst, tag):
    out = []
    for x in lst:
        op = x.split()[0]
        out.append(x + ' ;#' + tag if op.startswith(('buffer_', 'global_', 'ds_')) and ';#' not in x else x)
    return out


def cost(unit):
    c = 0
    for ln in unit.split('\n'):
        t = ln.strip()
        if not t or t.endswith(':') or t.endswith(';#cond') or t.startswith(';'):
            continue
        op = t.split()[0]
        if op.startswith(TRANS):
            c += 8
        elif op.startswith('ds_write_b128'):
            c += 22
        elif op.startswith('ds_write_b64'):
            c += 12
        elif op.startswith('buffer_store_dwordx4'):
            c += 4
        elif op.startswith('v_mfma'):
            c += 8
        else:
            c += 4
    return c


def is_mem(unit):
    return any(ln.strip().split()[0].startswith(('ds_', 'buffer_', 'global_')) for ln in unit.split('\n') if ln.strip())


def spread(n, items, start=0, end=None):
    end = n if end is None else end
    d = {}
    for i, it in enumerate(items):
        d.setdefault(start + (i * (end - start)) // max(1, len(items)), []).append(it)
    return d


def merge(*ds):
    o = {}
    for d in ds:
        for k, val in d.items():
            o.setdefault(k, []).extend(val)
    return o


def sched(mf, head, tail, valu, gap, vstart=0, vend=None):
    n = len(mf)
    vend = n if vend is None else vend
    free = [max(0, gap - sum(map(cost, head.get(i, []))) - sum(map(cost, tail.get(i, [])))) for i in range(n)]
    extra = sum(gap + 8 for u in valu if u.startswith('v_mfma'))
    tot = sum(free[vstart:vend]) + extra
    ratio = sum(map(cost, valu)) / max(1, tot)
    out, k, used, avail = [], 0, 0.0, 0.0
    for i in range(n):
        out.append(mf[i])
        if vstart <= i:
            while k < len(valu) and is_mem(valu[k]):
                out.append(valu[k])
                used += cost(valu[k])
                k += 1
        out.extend(head.get(i, []))
        if vstart <= i < vend:
            avail += free[i] * ratio
            while k < len(valu) and not is_mem(valu[k]) and used + cost(valu[k]) / 2 <= avail:
                out.append(valu[k])
                used += cost(valu[k])
                if valu[k].startswith('v_mfma'):
                    avail += (gap + 8) * ratio
                k += 1
        out.extend(tail.get(i, []))
    out.extend(valu[k:])
    return out, ratio
```

```python
import sys
from asmgen import *

NAME = 'adaLN_cond__ssm_conv_s4__swiglu_ffn__prompt_kernel'
OPT = dict(ts=0, probe=-1, hprobe=-1, grp=0, nap=1, kb=4, x1e=3, e0=112, la=9, pl=16, osc=0, nodma=0)
for arg in sys.argv[2:]:
    k, val = arg.split('=')
    OPT[k] = int(val)

EP, ST1, MOD, AUG, ST2, FL2, FL3 = 0, 0x1000, 0x8000, 0x14000, 0x24000, 0xC0000, 0x40000
INB, XS, X1P, ACT, TS = 0x100000, 0x500000, 0x700000, 0x900000, 0x1800000
SL = [0, 32768, 65536, 98304, 131072]
KG_W = 16320
HB, HC = 65536, 4160
KT, KT_CH, KT_C0 = 98816, 9152, 4568
XR = 117120
MISC = 125312
SPIN = 200000

pX, pAre, pAim, pBre, pBim, pCre, pCim, pLdt, pDs, pBx, pWg, pWu, pWd, pC, pWm, pOut, pDbg, pWs = range(4, 40, 2)
rX, rWS, rW, rWd, rOut, rWm = 40, 44, 48, 52, 56, 60
sWave, sTag, sJ, sMi, sNi, sMt, sNt, sRot, sLdt, sDs, sT0, sT1, sT2, sT3, sSpin, sM2 = range(64, 80)
sTS = 80
sC = 4
sW1k, sW8k, sWo, sFl, sTb = 11, 12, 13, 14, 15

A = Asm()
V = Regs('v', 6, 256)
TID, LANE, VST = 0, 1, 2
CODE_SLICE = 1024
sGi, sSo = 36, 37
nts = [0]


def ts(grp='0'):
    if OPT['ts'] and (grp == '*' or str(OPT['grp']) in grp):
        A(f's_mem{"real" if OPT["ts"] == 1 else ""}time {s(sTS + 2 * nts[0], 2)}')
        nts[0] += 1
        assert nts[0] <= 11


def ts_flush(tag):
    if not OPT['ts']:
        return
    pk = OPT['probe' if tag == 'm' else 'hprobe']
    if max(OPT['probe'], OPT['hprobe']) >= 0:
        if pk >= 0:
            A('s_waitcnt lgkmcnt(0)')
            A(f's_add_u32 {s(sT0)}, {s(sTS + 2 * pk)}, 6000')
            A(f'L_probe{tag}:')
            A(f's_memrealtime {s(sT2, 2)}')
            A('s_waitcnt lgkmcnt(0)')
            A(f's_sub_u32 {s(sT1)}, {s(sT2)}, {s(sT0)}')
            A(f's_cmp_lt_i32 {s(sT1)}, 0')
            A(f's_cbranch_scc1 L_probe{tag}')
        return
    n = nts[0]
    A('s_waitcnt lgkmcnt(0)')
    A(f's_lshl_b32 {s(sT0)}, s2, 2')
    A(f's_add_u32 {s(sT0)}, {s(sT0)}, {s(sWave)}')
    A(f's_lshl_b32 {s(sT0)}, {s(sT0)}, 6')
    A(f's_add_u32 {s(sT0)}, {s(sT0)}, {TS}')
    A(f'v_mov_b32 v2, {s(sT0)}')
    for i in range(n):
        A(f'v_mov_b32 v3, {s(sTS + 2 * i)}')
        A(f'buffer_store_dword v3, v2, {s(rWS, 4)}, 0 offen offset:{4 * i}')


def srd(r, p, nbytes):
    A(f's_mov_b32 {s(r)}, {s(p)}')
    A(f's_mov_b32 {s(r + 1)}, {s(p + 1)}')
    A(f's_mov_b32 {s(r + 2)}, {nbytes}')
    A(f's_mov_b32 {s(r + 3)}, 0x00020000')


def cmul(d, x, y):
    return [f'v_pk_mul_f32 {v(d, 2)}, {v(x, 2)}, {v(y, 2)} op_sel:[0,0] op_sel_hi:[1,0]',
            f'v_pk_fma_f32 {v(d, 2)}, {v(x, 2)}, {v(y, 2)}, {v(d, 2)} op_sel:[1,1,0] op_sel_hi:[0,1,1] neg_lo:[0,1,0]']


def div7(q, r, x):
    A(f's_mul_i32 {s(q)}, {s(x)}, 9363')
    A(f's_lshr_b32 {s(q)}, {s(q)}, 16')
    A(f's_mul_i32 {s(r)}, {s(q)}, 7')
    A(f's_sub_u32 {s(r)}, {s(x)}, {s(r)}')


COLD = []


def tag_wait(label, loads, tags, younger=0):
    o = [f'@vm {younger}' if isinstance(younger, str) else f's_waitcnt vmcnt({younger})']
    chk = [f'v_cmpx_eq_u32 vcc, {s(sTag)}, {v(t)}' for t in tags]
    chk += ['s_nop 0', 's_cmp_eq_u64 exec, -1', 's_mov_b64 exec, -1']
    o += chk + [f's_cbranch_scc0 {label}_re', f'{label}_ok:']
    c = [f'{label}_re:', f's_mov_b32 {s(sSpin)}, {SPIN}', f'{label}_lp:', f's_sleep {OPT["nap"]}']
    c += [x.split(';#')[0] for x in loads]
    c += ['s_waitcnt vmcnt(0)'] + chk + [f's_cbranch_scc1 {label}_ok', f's_sub_u32 {s(sSpin)}, {s(sSpin)}, 1',
                                         f's_cmp_lg_u32 {s(sSpin)}, 0', f's_cbranch_scc1 {label}_lp', f's_branch {label}_ok']
    COLD.extend(c)
    return '\n'.join(o)


def stats1_loads(d):
    A(f'buffer_load_dwordx4 {v(d, 4)}, {v(VST)}, {s(rX, 4)}, {s(sSo)} offen')
    A(f'buffer_load_dwordx4 {v(d + 4, 4)}, {v(VST)}, {s(rX, 4)}, {s(sSo)} offen offset:448')


def stats1_compute(d):
    m = V.mark()
    g = V.get(4)
    s1, s2, one, t = V.get(), V.get(), V.get(), V.get()
    A(f'v_mov_b32 {v(one)}, 0x3f803f80')
    A(f'v_mov_b32 {v(s1)}, 0')
    A(f'v_mov_b32 {v(s2)}, 0')
    for i in range(8):
        A(f'v_dot2c_f32_bf16 {v(s1)}, {v(d + i)}, {v(one)}')
        A(f'v_dot2c_f32_bf16 {v(s2)}, {v(d + i)}, {v(d + i)}')
    for ctl in ('row_shr:1', 'row_shr:2', 'row_shr:4', 'row_shr:8'):
        for r in (s1, s2):
            A(f'v_add_f32_dpp {v(r)}, {v(r)}, {v(r)} {ctl} row_mask:0xf bank_mask:0xf bound_ctrl:1')
    for r in (s1, s2):
        A(f'v_add_f32_dpp {v(r)}, {v(r)}, {v(r)} row_bcast:15 row_mask:0xa bank_mask:0xf')
    A(f'v_mul_f32 {v(s1)}, 0x3b124925, {v(s1)}')
    A(f'v_mul_f32 {v(t)}, {v(s1)}, {v(s1)}')
    A(f'v_mov_b32 {v(one)}, 0x3b124925')
    A(f'v_fma_f32 {v(s2)}, {v(s2)}, {v(one)}, -{v(t)}')
    A(f'v_max_f32 {v(s2)}, 0, {v(s2)}')
    A(f'v_add_f32 {v(s2)}, 0x3727c5ac, {v(s2)}')
    A(f'v_rsq_f32 {v(g + 2)}, {v(s2)}')
    A(f'v_mov_b32 {v(g + 3)}, {s(sTag)}')
    A(f'v_mul_f32 {v(s1)}, {v(s1)}, {v(g + 2)}')
    A(f'v_readlane_b32 {s(sT1)}, {v(g + 2)}, 31')
    A(f'v_readlane_b32 {s(sT2)}, {v(s1)}, 31')
    A(f's_lshl_b32 {s(sT0)}, {s(sGi)}, 4')
    A(f's_add_u32 {s(sT0)}, {s(sT0)}, {ST1}')
    A(f'v_mov_b32 {v(g + 1)}, {s(sT1)}')
    A(f'v_cvt_pk_bf16_f32 {v(g)}, -{s(sT2)}, -{v(s1)}')
    A('s_mov_b32 exec_lo, 0')
    A('s_mov_b32 exec_hi, 0x80000000')
    A(f'buffer_store_dwordx4 {v(g, 4)}, off, {s(rWS, 4)}, {s(sT0)} sc1')
    A('s_mov_b64 exec, -1')
    V.release(m)


def reduce8(acc):
    for j in range(4):
        A(f'v_permlane32_swap_b32 {v(acc + j)}, {v(acc + j + 4)}')
    for j in range(4):
        A(f'v_add_f32 {v(acc + j)}, {v(acc + j)}, {v(acc + j + 4)}')
    for j in range(2):
        A(f'v_permlane16_swap_b32 {v(acc + j)}, {v(acc + j + 2)}')
    for j in range(2):
        A(f'v_add_f32 {v(acc + j)}, {v(acc + j)}, {v(acc + j + 2)}')
    for j in range(2):
        A(f'v_add_f32_dpp {v(acc + j)}, {v(acc + j)}, {v(acc + j)} row_ror:8 row_mask:0xf bank_mask:0xf')


def bf16_pair_from_partials(dst, g0, g1, plus1):
    A(f'v_add_f32 {v(dst)}, {v(g0)}, {v(g1)}')
    A(f'v_add_f32 {v(dst + 1)}, {v(g0 + 1)}, {v(g1 + 1)}')
    A(f'v_cvt_pk_bf16_f32 {v(g0)}, {v(dst)}, {v(dst + 1)}')
    A(f'v_lshlrev_b32 {v(dst)}, 16, {v(g0)}')
    A(f'v_and_b32 {v(dst + 1)}, 0xffff0000, {v(g0)}')
    if plus1:
        A(f'v_add_f32 {v(dst)}, 1.0, {v(dst)}')
        A(f'v_add_f32 {v(dst + 1)}, 1.0, {v(dst + 1)}')
        A(f'v_cvt_pk_bf16_f32 {v(g0)}, {v(dst)}, {v(dst + 1)}')
        A(f'v_lshlrev_b32 {v(dst)}, 16, {v(g0)}')
        A(f'v_and_b32 {v(dst + 1)}, 0xffff0000, {v(g0)}')


def prologue():
    A('s_cmp_ge_u32 s2, 256')
    A('s_cbranch_scc1 L_end')
    ts('*')
    A(f's_load_dwordx2 {s(rX, 2)}, s[0:1], 0')
    A(f's_load_dwordx2 {s(rWS, 2)}, s[0:1], 136')
    A('s_load_dwordx16 s[4:19], s[0:1], 0')
    A('s_load_dwordx16 s[20:35], s[0:1], 64')
    A(f's_getpc_b64 {s(sT2, 2)}')
    A('L_pc:')
    A(f's_lshr_b32 {s(sT0)}, s2, 3')
    A(f's_mul_i32 {s(sT0)}, {s(sT0)}, {CODE_SLICE}')
    A(f'v_lshrrev_b32 v3, 6, {v(TID)}')
    A(f'v_min_u32 v4, {CODE_SLICE // 128 - 1}, {v(TID)}')
    A(f'v_lshl_add_u32 v4, v4, 7, {s(sT0)}')
    A('v_min_u32 v4, L_code_end-L_pc-4, v4')
    A(f'v_readfirstlane_b32 {s(sWave)}, v3')
    A(f'v_and_b32 {v(LANE)}, 63, {v(TID)}')
    A(f'global_load_dword v5, v4, {s(sT2, 2)}')
    A(f's_mov_b32 {s(rX + 2)}, 1835008')
    A(f's_mov_b32 {s(rX + 3)}, 0x00020000')
    A(f's_mov_b32 {s(rWS + 2)}, 0x10000000')
    A(f's_mov_b32 {s(rWS + 3)}, 0x00020000')
    A(f's_lshl_b32 {s(sGi)}, s2, 2')
    A(f's_add_u32 {s(sGi)}, {s(sGi)}, {s(sWave)}')
    A(f's_mul_i32 {s(sSo)}, {s(sGi)}, 1792')
    A(f'v_lshrrev_b32 v3, 5, {v(LANE)}')
    A('v_mul_u32_u24 v3, 896, v3')
    A(f'v_and_b32 v4, 31, {v(LANE)}')
    A('v_lshl_add_u32 v3, v4, 4, v3')
    A('v_cmp_gt_u32 vcc, 28, v4')
    A('v_bfrev_b32 v4, 2')
    A(f's_sub_u32 {s(sJ)}, s2, 32')
    A(f'v_cndmask_b32 {v(VST)}, v4, v3, vcc')
    A('s_cbranch_scc1 L_helper')


UEXP = {}
for vv in range(14):
    for hh in range(2):
        if vv < 4:
            e = 4 * hh + vv
        elif vv < 7:
            e = 256 + 4 * hh + 2 * (vv - 4)
        elif vv < 10:
            e = 512 + 256 * hh + 4 * (vv - 7)
        elif vv < 12:
            e = 1024 + 512 * hh + 8 * (vv - 10)
        else:
            e = 1280 + 512 * hh + 8 * (vv - 12)
        rho = 8 * (vv >> 2) + 4 * hh + (vv & 3)
        UEXP.setdefault(e, []).append(rho if rho < 26 else rho - 2)


def stage_dma(cc, slot, voff, rsrc, rowb):
    out = []
    for i in range(8):
        u = ''
        if i % 4 == 0:
            u += f's_add_u32 m0, {s(sW8k)}, {SL[slot] + 1024 * i}\n'
        if i == 0:
            u += f's_mul_i32 {s(sWo)}, {s(sC + cc)}, {rowb // 64}\n'
        else:
            u += f's_add_u32 {s(sWo)}, {s(sWo)}, {8 * rowb + (3072 if i == 4 else -1024)}\n'
        u += f'buffer_load_dwordx4 {v(voff)}, {s(rsrc, 4)}, {s(sWo)} offen offset:{1024 * (i % 4)} lds'
        out.append(u)
    return out


def w_dma(cc, slot, P):
    return stage_dma(cc, slot, P['vW'], rW, 3584)


def wd_dma(cc, slot, P):
    return stage_dma(cc, slot, P['vWd'], rWd, 896)


def w_frags(cc, slot, P):
    out = []
    base, off = P['vWr'][slot // 2], 32768 * (slot % 2)
    for ks in range(4):
        for mat in range(2):
            for e in range(2):
                r = (mat * 28 + cc * 4 + ks) * 4 + 2 * e
                out.append(f'ds_read_b64_tr_b16 {a(r, 2)}, {v(base)} offset:{off + mat * 16384 + (16 * ks + 4 * e) * 128}')
    return out


def wdreg(cc, ks, db, P):
    i = (ks * 2 + db) * 4
    if cc == 0:
        return 'a', 224 + i
    if cc < 3:
        return 'v', P['wdv'] + 32 * (cc - 1) + i
    return 'a', 32 * (cc - 3) + i


def rn(kr, n):
    return (a if kr[0] == 'a' else v)(kr[1], n)


def wd_frags(cc, slot, P):
    o = []
    for ks in range(4):
        for db in range(2):
            k, r = wdreg(cc, ks, db, P)
            for e in range(2):
                o.append(f'ds_read_b64_tr_b16 {rn((k, r + 2 * e), 2)}, {v(P["vDr"][2 * (slot // 2) + db])} offset:{32768 * (slot % 2) + (16 * ks + 8 * e) * 128} ;#df{cc}')
    o[0] = f'@vm d{cc}\n' + o[0]
    return o


def flat(units):
    return [ln for u in units for ln in u.split('\n') if ln.strip()]


def tr_lane(dst, t0, t1, hmul, rowb):
    A(f'v_lshrrev_b32 {v(t0)}, 5, {v(LANE)}')
    A(f'v_bfe_u32 {v(t1)}, {v(LANE)}, 2, 2')
    A(f'v_lshl_add_u32 {v(t0)}, {v(t0)}, {hmul.bit_length() - 1}, {v(t1)}')
    A(f'v_lshlrev_b32 {v(dst)}, {rowb.bit_length() - 1}, {v(t0)}')
    A(f'v_bfe_u32 {v(t1)}, {v(LANE)}, 4, 1')
    A(f'v_lshl_add_u32 {v(dst)}, {v(t1)}, 5, {v(dst)}')
    A(f'v_and_b32 {v(t1)}, 3, {v(LANE)}')
    A(f'v_lshl_add_u32 {v(dst)}, {v(t1)}, 3, {v(dst)}')


def main_ssm():
    P = {}
    V.release(2)
    V.get(4)
    vWd = V.get()
    vDr = [V.get() for _ in range(6)]
    vW = V.get()
    vWr = [V.get() for _ in range(3)]
    P.update(vW=vW, vWr=vWr, vWd=vWd, vDr=vDr)
    mp = V.mark()
    M = V.get(16)
    vI, vM, aA, aB, aE = [V.get() for _ in range(5)]
    mb = V.mark()
    par = V.get(6)
    T = V.get(16, 4)
    m0 = V.mark()
    tl = V.get(8)
    st = V.get(8)
    gr = V.get(16)
    q, tp, t0, t1, t2, vG = [V.get() for _ in range(6)]
    sKG, sDm, sIt = 20, 21, 22
    div7(sT2, sT3, sJ)
    A(f'v_lshrrev_b32 {v(q)}, 3, {v(LANE)}')
    A(f'v_and_b32 {v(tp)}, 7, {v(LANE)}')
    A(f'v_mul_u32_u24 {v(t0)}, 1792, {v(tp)}')
    A(f'v_lshl_add_u32 {v(t0)}, {v(q)}, 4, {v(t0)}')
    A(f's_lshl_b32 {s(sT0)}, {s(sJ)}, 10')
    A(f'v_lshl_add_u32 {v(t1)}, {v(TID)}, 2, {s(sT0)}')
    A(f's_lshl_b32 {s(sT0)}, {s(sT2)}, 2')
    A(f's_add_u32 {s(sT0)}, {s(sT0)}, {s(sWave)}')
    A(f's_lshl_b32 {s(sM2)}, {s(sT0)}, 7')
    A(f's_mul_i32 {s(sT0)}, {s(sT0)}, {16 * 896}')
    A(f's_lshl_b32 {s(sT1)}, {s(sT3)}, 7')
    A(f's_add_u32 {s(sT0)}, {s(sT0)}, {s(sT1)}')
    A(f's_lshl_b32 {s(sT1)}, {s(sJ)}, 2')
    A('s_waitcnt lgkmcnt(0)')
    ts('1')
    A(f'buffer_load_dwordx4 {v(tl, 4)}, {v(t0)}, {s(rX, 4)}, {s(sT0)} offen')
    A(f'buffer_load_dwordx4 {v(tl + 4, 4)}, {v(t0)}, {s(rX, 4)}, {s(sT0)} offen offset:896')
    A(f's_load_dword {s(sTag)}, {s(rWS, 2)}, {EP}')
    stats1_loads(st)
    for i, p in enumerate((pAre, pAim, pBre, pBim, pCre, pCim)):
        A(f'global_load_dword {v(par + i)}, {v(t1)}, {s(p, 2)}')
    A(f's_load_dword {s(sLdt)}, {s(pLdt, 2)}, {s(sT1)}')
    A(f's_load_dword {s(sDs)}, {s(pDs, 2)}, {s(sT1)}')
    A(f's_lshl_b32 {s(sT3)}, {s(sT3)}, 19')
    A(f's_add_u32 {s(sM2)}, {s(sM2)}, {s(sT3)}')
    A(f's_add_u32 {s(sM2)}, {s(sM2)}, {INB}')
    A(f'v_lshlrev_b32 {v(vG)}, 16, {v(q)}')
    A(f'v_lshl_add_u32 {v(vG)}, {v(tp)}, 4, {v(vG)}')
    A(f's_lshr_b32 {s(sT0)}, {s(sJ)}, 3')
    div7(sMi, sNi, sT0)
    A(f's_bfe_u32 {s(sT1)}, {s(sJ)}, 0x20001')
    A(f's_lshl2_add_u32 {s(sMt)}, {s(sT1)}, {s(sMi)}')
    A(f's_and_b32 {s(sT1)}, {s(sJ)}, 1')
    A(f's_mul_i32 {s(sNt)}, {s(sT1)}, 7')
    A(f's_add_u32 {s(sNt)}, {s(sNt)}, {s(sNi)}')
    A(f's_lshl1_add_u32 {s(sRot)}, {s(sMi)}, {s(sNi)}')
    A(f's_lshl_b32 {s(sRot)}, {s(sRot)}, 2')
    A(f's_mov_b32 {s(sT2)}, 0x06543210')
    A(f's_mov_b32 {s(sT3)}, 0x10654321')
    A(f's_cmp_ge_u32 {s(sRot)}, 28')
    A(f's_cselect_b32 {s(sT1)}, 28, 0')
    A(f's_sub_u32 {s(sRot)}, {s(sRot)}, {s(sT1)}')
    A(f's_lshr_b64 {s(sT2, 2)}, {s(sT2, 2)}, {s(sRot)}')
    A(f's_cmp_lt_u32 {s(sWave)}, 2')
    A(f's_cselect_b64 {s(rW, 2)}, {s(pWg, 2)}, {s(pWu, 2)}')
    A(f's_mov_b32 {s(rW + 2)}, 1605632')
    A(f's_mov_b32 {s(rW + 3)}, 0x00020000')
    for cc in range(7):
        A(f's_bfe_u32 {s(sT0)}, {s(sT2)}, {hex(0x30000 + 4 * cc)}')
        A(f's_lshl_b32 {s(sC + cc)}, {s(sT0)}, 12')
    A(f's_lshl_b32 {s(sW1k)}, {s(sWave)}, 10')
    A(f's_lshl_b32 {s(sW8k)}, {s(sWave)}, 13')
    A(f'v_lshlrev_b32 {v(t0)}, 1, {v(q)}')
    A(f'v_and_b32 {v(t0)}, 4, {v(t0)}')
    A(f'v_xor_b32 {v(t0)}, {v(t0)}, {v(tp)}')
    A(f'v_lshlrev_b32 {v(t0)}, 4, {v(t0)}')
    A(f's_and_b32 {s(sT1)}, {s(sWave)}, 1')
    A(f's_lshl1_add_u32 {s(sT0)}, {s(sNt)}, {s(sT1)}')
    A(f's_lshl_b32 {s(sT0)}, {s(sT0)}, 7')
    A(f'v_mul_u32_u24 {v(vW)}, 3584, {v(q)}')
    A(f'v_add3_u32 {v(vW)}, {v(vW)}, {v(t0)}, {s(sT0)}')
    A(f's_mul_i32 {s(sT0)}, {s(sWave)}, {448 * 7}')
    A(f's_add_u32 {s(sT0)}, {s(sT0)}, {s(sNi)}')
    A(f's_lshl_b32 {s(sT0)}, {s(sT0)}, 7')
    A(f'v_mul_u32_u24 {v(vWd)}, 896, {v(q)}')
    A(f'v_add3_u32 {v(vWd)}, {v(vWd)}, {v(t0)}, {s(sT0)}')
    for i in range(16):
        A(f'v_mov_b32 {v(T + i)}, 0')
    ts('1')
    A('s_waitcnt lgkmcnt(0)')
    A(f's_add_u32 {s(sTag)}, {s(sTag)}, 1')
    for k in range(4):
        A(f'v_mov_b32 {v(gr + 4 * k + 2)}, 0')
        A(f'v_mov_b32 {v(gr + 4 * k + 3)}, {s(sTag)}')
    A('s_waitcnt vmcnt(8)')
    ts('1')
    for k in range(4):
        A(f'v_mov_b32 {v(gr + 4 * k)}, {v(tl + k)}')
        A(f'v_mov_b32 {v(gr + 4 * k + 1)}, {v(tl + 4 + k)}')
    for k in range(4):
        A(f'buffer_store_dwordx4 {v(gr + 4 * k, 4)}, {v(vG)}, {s(rWS, 4)}, {s(sM2)} offen sc1')
        if k < 3:
            A(f's_add_u32 {s(sM2)}, {s(sM2)}, 16384')
    A('s_waitcnt vmcnt(10)')
    ts('1')
    stats1_compute(st)
    ts('01')
    V.release(m0)
    G = V.get(16)
    S = V.get(16)
    mk = V.mark()
    dt = V.get(2)
    aU, aV = V.get(), V.get()
    fU, fV = V.get(32), V.get(32)
    e2, rv = V.get(), V.get()
    B_, C_, W_, z1, z2, z4, z8, z256 = [V.get(2) for _ in range(8)]
    pp = [V.get(2) for _ in range(4)]
    cv = [V.get() for _ in range(8)]
    t0, t1 = V.get(), V.get()
    A(f's_lshl_b32 {s(sT0)}, {s(sLdt)}, 16')
    A(f's_and_b32 {s(sT1)}, {s(sLdt)}, 0xffff0000')
    A(f's_lshl_b32 {s(sT2)}, {s(sDs)}, 16')
    A(f's_and_b32 {s(sT3)}, {s(sDs)}, 0xffff0000')
    A(f's_cmp_lt_u32 {s(sWave)}, 2')
    A(f's_cselect_b32 {s(sLdt)}, {s(sT0)}, {s(sT1)}')
    A(f's_cselect_b32 {s(sDs)}, {s(sT2)}, {s(sT3)}')
    A(f'v_mov_b32 {v(t0)}, 0x3fb8aa3b')
    A(f'v_mul_f32 {v(dt)}, {s(sLdt)}, {v(t0)}')
    A(f'v_exp_f32 {v(dt)}, {v(dt)}')
    A(f's_mul_i32 {s(sKG)}, {s(sWave)}, {KG_W}')
    A(f'v_cvt_pk_bf16_f32 {v(dt)}, {v(dt)}, {v(dt)}')
    A(f'v_lshlrev_b32 {v(dt)}, 16, {v(dt)}')
    A(f'v_mov_b32 {v(cv[7])}, 0x3f80')
    A(f's_mov_b32 m0, {s(sKG)}')
    A(f's_mov_b32 {s(sIt)}, 0')
    A(f'ds_write_addtid_b32 {v(cv[7])}')
    A(f's_add_u32 {s(sDm)}, {s(sW8k)}, {SL[4]}')
    A(f's_mul_i32 {s(sWo)}, {s(sC)}, 56')
    A('s_waitcnt vmcnt(5)')
    ts('1')

    def setup(it):
        o = []
        un = (lambda d, x: f'v_lshlrev_b32 {v(d)}, 16, {v(x)}') if it == 0 else (lambda d, x: f'v_and_b32 {v(d)}, 0xffff0000, {v(x)}')
        o += [un(e2, par), un(rv, par + 1), un(B_, par + 2), un(B_ + 1, par + 3), un(C_, par + 4), un(C_ + 1, par + 5)]
        o += [f'v_mul_f32 {v(e2)}, {v(dt)}, {v(e2)}', f'v_mul_f32 {v(rv)}, {v(dt)}, {v(rv)}',
              f'v_mul_f32 {v(e2)}, 0x3fb8aa3b, {v(e2)}', f'v_mul_f32 {v(rv)}, 0.15915494, {v(rv)}',
              f'v_mul_f32 {v(B_)}, {v(dt)}, {v(B_)}', f'v_mul_f32 {v(B_ + 1)}, {v(dt)}, {v(B_ + 1)}']
        for z, p in ((z8, 0x41000000), (z1, None), (z256, 0x43800000)):
            if p is None:
                o += [f'v_exp_f32 {v(t0)}, {v(e2)}', f'v_fract_f32 {v(t1)}, {v(rv)}']
            else:
                o += [f'v_mul_f32 {v(t0)}, {hex(p)}, {v(e2)}', f'v_mul_f32 {v(t1)}, {hex(p)}, {v(rv)}',
                      f'v_exp_f32 {v(t0)}, {v(t0)}', f'v_fract_f32 {v(t1)}, {v(t1)}']
            o += [f'v_cos_f32 {v(z)}, {v(t1)}', f'v_sin_f32 {v(z + 1)}, {v(t1)}',
                  f'v_mul_f32 {v(z)}, {v(z)}, {v(t0)}', f'v_mul_f32 {v(z + 1)}, {v(z + 1)}, {v(t0)}']
        return o

    vals = []

    def put(pre, x, rows, neg):
        c = cv[len(vals) % 8]
        vals.append((pre + [f'v_cvt_pk_bf16_f32 {v(c)}, {v(x)}, {"-" if neg else ""}{v(x + 1)}'],
                     [f'ds_write_addtid_b32 {v(c)} offset:{272 * r}' for r in rows]))

    def putU(pre, x, e):
        put(pre, x, [32 + r for r in UEXP[e]], True)

    put(cmul(z2, z1, z1), z8, [1], False)
    putU(cmul(W_, C_, B_) + cmul(z4, z2, z2), W_, 0)
    cur = z8
    for j in range(2, 32):
        put(cmul(pp[j % 2], cur, z8), pp[j % 2], [j], False)
        cur = pp[j % 2]
    cur = W_
    for e in range(1, 8):
        putU(cmul(pp[e % 2], cur, z1), pp[e % 2], e)
        cur = pp[e % 2]
    qc = W_
    for k in range(1, 8):
        qn = pp[2 + k % 2]
        putU(cmul(qn, qc, z256), qn, 256 * k)
        qc = qn
        step, zz, n = (2, z2, 4) if k == 1 else ((4, z4, 2) if k < 4 else (8, z8, 1))
        cur = qn
        for i in range(1, n + 1):
            putU(cmul(pp[i % 2], cur, zz), pp[i % 2], 256 * k + step * i)
            cur = pp[i % 2]

    h1 = [f's_mov_b32 {s(sT2)}, {ST1}', f's_lshl_b32 {s(sT3)}, {s(sJ)}, 14', f's_add_u32 {s(sT3)}, {s(sT3)}, {INB}']
    for k in range(4):
        h1.append(f'buffer_load_dwordx4 {v(G + 4 * k, 4)}, {v(vI)}, {s(rWS, 4)}, {s(sT3)} offen offset:{1024 * k} sc1')
        h1.append(f'buffer_load_dwordx4 {v(S + 4 * k, 4)}, {v(vI)}, {s(rWS, 4)}, {s(sT2)} offen offset:{1024 * k} sc1')

    def mod_loads(dst, secs):
        o = [f's_lshl_b32 {s(sT3)}, {s(sJ)}, 4']
        for i, sec in enumerate(secs):
            o.append(f's_add_u32 {s(sT2)}, {s(sT3)}, {MOD + sec * 7168}')
            o.append(f'buffer_load_dwordx4 {v(dst + 8 * i, 4)}, off, {s(rWS, 4)}, {s(sT2)} sc1 ;#m2')
            o.append(f'buffer_load_dwordx4 {v(dst + 8 * i + 4, 4)}, off, {s(rWS, 4)}, {s(sT2)} offset:3584 sc1 ;#m2')
        return o
    h1 += mod_loads(M, (0, 1))

    A.ext(setup(0))
    A(f'v_and_b32 {v(t0)}, 31, {v(LANE)}')
    A(f'v_lshrrev_b32 {v(t1)}, 5, {v(LANE)}')
    A(f'v_lshl_add_u32 {v(t1)}, {v(t1)}, 4, {s(sKG)}')
    A(f'v_mul_u32_u24 {v(aV)}, 272, {v(t0)}')
    A(f'v_add_u32 {v(aV)}, {v(aV)}, {v(t1)}')
    A(f'v_cmp_lt_u32 vcc, 27, {v(t0)}')
    A(f'v_add_u32 {v(aU)}, {32 * 272}, {v(aV)}')
    A(f'v_add_u32 {v(t1)}, {30 * 272}, {v(aV)}')
    A(f'v_cndmask_b32 {v(aU)}, {v(aU)}, {v(t1)}, vcc')
    A(f's_lshl_b32 {s(sT0)}, {s(sWave)}, 12')
    A(f'v_lshl_add_u32 {v(vI)}, {v(LANE)}, 4, {s(sT0)}')
    A('.p2align 3')
    A('L_kg:')
    NB = OPT['kb']
    nbat = (len(vals) + NB - 1) // NB
    dpos = [(nbat * (2 * i + 1)) // 9 for i in range(4)]
    for bi in range(nbat):
        grp = vals[NB * bi:NB * bi + NB]
        for x in grp:
            A.ext(x[0])
        if bi in dpos:
            A(f's_mov_b32 m0, {s(sDm)}')
            A(f's_add_u32 {s(sT0)}, {s(sWo)}, {8 * 3584 - 1024}')
            A(f'buffer_load_dwordx4 {v(vW)}, {s(rW, 4)}, {s(sWo)} offen lds')
            A(f'buffer_load_dwordx4 {v(vW)}, {s(rW, 4)}, {s(sT0)} offen offset:1024 lds')
            A(f's_mov_b32 m0, {s(sKG)}')
            A(f's_add_u32 {s(sWo)}, {s(sWo)}, {16 * 3584}')
            A(f's_add_u32 {s(sDm)}, {s(sDm)}, 2048')
        for x in grp:
            A.ext(x[1])
    for ks in range(8):
        A(f'ds_read_b128 {v(fU + 4 * ks, 4)}, {v(aU)} offset:{32 * ks}')
        A(f'ds_read_b128 {v(fV + 4 * ks, 4)}, {v(aV)} offset:{32 * ks}')
    mm = [f'v_mfma_f32_32x32x16_bf16 {v(T, 16)}, {v(fU + 4 * ks, 4)}, {v(fV + 4 * ks, 4)}, {v(T, 16)}' for ks in range(8)]
    tail = {ks: [f's_waitcnt lgkmcnt({12 - 2 * ks})'] for ks in range(0, 7)}
    A(f's_cmp_lg_u32 {s(sIt)}, 0')
    A('s_cbranch_scc1 L_kg_done')
    su = setup(1)
    A.ext(su[:10])
    A('s_waitcnt lgkmcnt(14)')
    A.ext(sched(mm, {}, tail, su[10:], 24)[0])
    A(f's_mov_b32 {s(sIt)}, 1')
    A(f's_add_u32 {s(sDm)}, {s(sW8k)}, {SL[2]}')
    A(f's_mul_i32 {s(sWo)}, {s(sC + 1)}, 56')
    A('s_branch L_kg')
    A('L_kg_done:')
    ts('1')
    ax, ay = e2, rv
    R, K_ = fU, fU + 12
    misc = [f'v_lshl_add_u32 {v(ax)}, {v(LANE)}, 4, {s(sKG)}',
            f's_xor_b32 {s(sT0)}, {s(sWave)}, 1',
            f's_mul_i32 {s(sT0)}, {s(sT0)}, {KG_W}',
            f'v_lshl_add_u32 {v(ay)}, {v(LANE)}, 4, {s(sT0)}',
            f's_lshr_b32 {s(sT0)}, {s(sWave)}, 1',
            f's_mul_i32 {s(sRot)}, {s(sT0)}, {KT_CH}',
            f's_add_u32 {s(sRot)}, {s(sRot)}, {KT}',
            f'v_and_b32 {v(t0)}, 31, {v(LANE)}',
            f'v_lshlrev_b32 {v(t0)}, 4, {v(t0)}',
            f'v_sub_u32 {v(t0)}, {s(sRot)}, {v(t0)}',
            f'v_lshrrev_b32 {v(t1)}, 5, {v(LANE)}',
            f'v_mov_b32 {v(cv[0])}, 0']
    A.ext(h1[:7])
    A('s_waitcnt lgkmcnt(14)')
    A.ext(sched(mm, spread(8, h1[7:], 0, 5), tail, misc, 24)[0])
    A(f's_and_b32 {s(sT1)}, {s(sWave)}, 1')
    A(f's_mul_i32 {s(sT0)}, {s(sT1)}, {KT_C0}')
    A(f's_add_u32 m0, {s(sT0)}, {s(sRot)}')
    A(f's_cmp_lg_u32 {s(sT1)}, 0')
    A(f'ds_write_addtid_b32 {v(cv[0])} offset:4096')
    A(f'ds_write_addtid_b32 {v(cv[0])} offset:4304')
    A('s_cbranch_scc1 L_expB')
    A(f'ds_write_b128 {v(ax)}, {v(T + 10, 4)}')
    A(f'v_lshlrev_b32 {v(ax)}, 3, {v(t1)}')
    A(f'v_sub_u32 {v(ax)}, {v(t0)}, {v(ax)}')
    A(f'v_lshlrev_b32 {v(t1)}, 9, {v(t1)}')
    A(f'v_sub_u32 {v(t1)}, {v(t0)}, {v(t1)}')
    A('s_mov_b64 exec, 1')
    A(f'v_add_f32 {v(T)}, {s(sDs)}, {v(T)}')
    A('s_mov_b64 exec, -1')
    A('s_waitcnt vmcnt(12) lgkmcnt(0)')
    A('s_barrier')
    for i in range(3):
        A(f'ds_read_b128 {v(R + 4 * i, 4)}, {v(ay)} offset:{1024 * i}')
    A('@@FRAGA')
    A('s_waitcnt lgkmcnt(0)')
    for i in range(0, 10, 2):
        A(f'v_pk_add_f32 {v(T + i, 2)}, {v(T + i, 2)}, {v(R + i, 2)}')
    for d, (x, y) in enumerate(((3, 2), (1, 0), (6, 5), (4, 4), (9, 9), (8, 8), (8, 7), (7, 7))):
        A(f'v_cvt_pk_bf16_f32 {v(K_ + d)}, {v(T + x)}, {v(T + y)}')
    for cp in (0, KT_C0):
        A(f'ds_write_b64 {v(ax)}, {v(K_, 2)} offset:{cp + 2 * 2044}')
        A(f'ds_write_b64 {v(ax)}, {v(K_ + 2, 2)} offset:{cp + 2 * 1788}')
        A(f'ds_write_b64 {v(t1)}, {v(K_ + 4, 2)} offset:{cp + 2 * 1528}')
        A(f'ds_write_b64 {v(t1)}, {v(K_ + 6, 2)} offset:{cp + 2 * 1528 + 8}')
    A('s_branch L_expD')
    A('L_expB:')
    for i in range(3):
        A(f'ds_write_b128 {v(ax)}, {v(T + 4 * i, 4)} offset:{1024 * i}')
    A(f'v_lshlrev_b32 {v(t1)}, 10, {v(t1)}')
    A(f'v_sub_u32 {v(t1)}, {v(t0)}, {v(t1)}')
    A('s_mov_b32 vcc_lo, 0xaaaaaaaa')
    A('s_mov_b32 vcc_hi, 0xaaaaaaaa')
    A('s_waitcnt vmcnt(12) lgkmcnt(0)')
    A('s_barrier')
    A(f'ds_read_b128 {v(R, 4)}, {v(ay)}')
    A('@@FRAGA')
    A('s_waitcnt lgkmcnt(0)')
    for i in range(0, 4, 2):
        A(f'v_pk_add_f32 {v(T + 10 + i, 2)}, {v(T + 10 + i, 2)}, {v(R + i, 2)}')
    for wdw in range(2):
        v0_, v8_ = T + 10 + 2 * wdw, T + 11 + 2 * wdw
        A(f'v_cndmask_b32 {v(t0)}, {v(v0_)}, {v(v8_)}, vcc')
        A(f'v_cvt_pk_bf16_f32 {v(K_ + 4 * wdw)}, {v(v8_)}, {v(v8_)}')
        A(f'v_cvt_pk_bf16_f32 {v(K_ + 4 * wdw + 1)}, {v(v8_)}, {v(t0)}')
        A(f'v_cvt_pk_bf16_f32 {v(K_ + 4 * wdw + 2)}, {v(v0_)}, {v(v0_)}')
        A(f'v_cvt_pk_bf16_f32 {v(K_ + 4 * wdw + 3)}, {v(v0_)}, {v(v0_)}')
    for cp in (0, KT_C0):
        for wdw in range(2):
            base = cp + 2 * (2040 - 1024 - 256 * wdw)
            A(f'ds_write_b64 {v(t1)}, {v(K_ + 4 * wdw, 2)} offset:{base}')
            A(f'ds_write_b64 {v(t1)}, {v(K_ + 4 * wdw + 2, 2)} offset:{base + 8}')
    A('L_expD:')
    keep, A.lines = A.lines, []
    u0, u1 = z1, z1 + 1
    tr_lane(vWr[0], u0, u1, 8, 128)
    A(f'v_bfe_u32 {v(u1)}, {v(LANE)}, 3, 1')
    A(f'v_xor_b32 {v(u1)}, {s(sT1)}, {v(u1)}')
    A(f'v_lshl_add_u32 {v(vWr[0])}, {v(u1)}, 6, {v(vWr[0])}')
    A(f's_lshr_b32 {s(sT0)}, {s(sWave)}, 1')
    A(f's_lshl_b32 {s(sT0)}, {s(sT0)}, 13')
    A(f'v_add_u32 {v(vWr[0])}, {s(sT0)}, {v(vWr[0])}')
    A(f'v_add_u32 {v(vWr[1])}, 65536, {v(vWr[0])}')
    A(f'v_add_u32 {v(vWr[2])}, 131072, {v(vWr[0])}')
    fa_, A.lines = A.lines, []
    for ln in keep:
        A.lines.extend(fa_ if ln.strip() == '@@FRAGA' else [ln])
    V.release(mk)
    ts('1')
    A.ext(w_frags(1, 2, P))
    A.ext(w_frags(0, 4, P))
    sa, c1 = V.get(2), V.get(2)
    E = V.get(8)
    F = V.get(8)
    xa, xb, nn = V.get(2), V.get(2), V.get(2)
    O = V.get(2)
    aX, aF, t0, t1, t2 = [V.get() for _ in range(5)]
    srd(rWd, pWd, 1605632)
    srd(rOut, pOut, 1835008)
    tr_lane(vDr[0], t0, t1, 4, 128)
    A(f'v_bfe_u32 {v(t1)}, {v(LANE)}, 3, 1')
    A(f'v_lshl_add_u32 {v(vDr[0])}, {v(t1)}, 6, {v(vDr[0])}')
    A(f'v_add_u32 {v(vDr[0])}, {s(sW8k)}, {v(vDr[0])}')
    A(f'v_xor_b32 {v(vDr[1])}, 64, {v(vDr[0])}')
    for i in range(2, 6):
        A(f'v_add_u32 {v(vDr[i])}, 65536, {v(vDr[i - 2])}')
    A(f's_lshr_b32 {s(sT0)}, {s(sWave)}, 1')
    A(f's_lshl_b32 {s(sT1)}, {s(sT1)}, 8')
    A(f's_mul_i32 {s(sT0)}, {s(sT0)}, {4 * HC}')
    A(f's_add_u32 {s(sT0)}, {s(sT0)}, {s(sT1)}')
    A(f's_add_u32 {s(sT0)}, {s(sT0)}, {HB}')
    A(f's_add_u32 {s(sT1)}, {s(sT1)}, {s(sRot)}')
    A(f's_add_u32 {s(sT1)}, {s(sT1)}, {KT_C0 + 4040 - 3584}')
    A(f'v_lshrrev_b32 {v(t0)}, 4, {v(LANE)}')
    A(f'v_bfe_u32 {v(t1)}, {v(LANE)}, 2, 2')
    A(f'v_add_u32 {v(t1)}, {v(t1)}, {v(t0)}')
    A(f'v_and_b32 {v(t2)}, 3, {v(LANE)}')
    A(f'v_mul_u32_u24 {v(t2)}, {HC}, {v(t2)}')
    A(f'v_lshl_add_u32 {v(aA)}, {v(t1)}, 4, {v(t2)}')
    A(f'v_add_u32 {v(aA)}, {s(sT0)}, {v(aA)}')
    A(f'v_lshl_add_u32 {v(aB)}, {v(t0)}, 4, {s(sT1)}')
    A(f'v_and_b32 {v(t0)}, 7, {v(LANE)}')
    A(f'v_lshlrev_b32 {v(t1)}, 6, {v(t0)}')
    A(f'v_sub_u32 {v(aB)}, {v(aB)}, {v(t1)}')
    A(f'v_bfe_u32 {v(t1)}, {v(LANE)}, 3, 1')
    A(f'v_mul_u32_u24 {v(t1)}, {KT_C0 + 8}, {v(t1)}')
    A(f'v_sub_u32 {v(aB)}, {v(aB)}, {v(t1)}')
    A(f'v_lshrrev_b32 {v(t1)}, 1, {v(t0)}')
    A(f'v_and_b32 {v(t2)}, 1, {v(t0)}')
    A(f'v_lshl_add_u32 {v(t1)}, {v(t2)}, 2, {v(t1)}')
    A(f'v_lshrrev_b32 {v(t2)}, 3, {v(LANE)}')
    A(f'v_xor_b32 {v(t1)}, {v(t1)}, {v(t2)}')
    A(f'v_lshl_add_u32 {v(t1)}, {v(t0)}, 3, {v(t1)}')
    A(f'v_lshl_add_u32 {v(aE)}, {v(t1)}, 4, {s(sW8k)}')
    A(f'v_mul_u32_u24 {v(t2)}, {HC}, {v(t2)}')
    A(f'v_lshl_add_u32 {v(t2)}, {v(t0)}, 3, {v(t2)}')
    A(f'v_add_u32 {v(t2)}, {HB}, {v(t2)}')
    A(f'v_mov_b32 {v(O)}, 0')
    A(f'v_mov_b32 {v(O + 1)}, 0')
    A(f'v_lshrrev_b32 {v(aX)}, 1, {v(vI)}')
    A(f'v_add_u32 {v(aX)}, {XR}, {v(aX)}')
    A(f's_add_u32 {s(sT1)}, {s(sW1k)}, {HB + 1024}')
    A(f's_add_u32 {s(sT0)}, {s(sW1k)}, {HB + 2}')
    A(f'v_mov_b32 {v(aF)}, {s(sT1)}')
    A(f'v_writelane_b32 {v(aF)}, {s(sT0)}, 0')
    A(f's_cmp_eq_u32 {s(sWave)}, 0')
    A('s_waitcnt lgkmcnt(0)')
    A('s_barrier')
    A('s_cbranch_scc0 L_nozero')
    A(f'ds_write_b64 {v(t2)}, {v(O, 2)}')
    A('L_nozero:')
    ts('1')
    A(tag_wait('L_h1', h1, [G + 4 * k + 3 for k in range(4)] + [S + 4 * k + 3 for k in range(4)] + [M + 4 * k + 3 for k in range(4)]))
    ts('01')
    A.ext(wd_dma(0, 1, P))
    for k in range(4):
        A(f'ds_write_b64 {v(aX)}, {v(G + 4 * k, 2)} offset:{512 * k}')
    A(f's_add_u32 m0, {s(sW1k)}, {HB}')
    bf16_pair_from_partials(sa, M, M + 4, False)
    bf16_pair_from_partials(c1, M + 8, M + 12, True)
    m2 = mod_loads(M, (2, 4))
    for k in range(4):
        g, sg = G + 4 * k, S + 4 * k
        A(f'v_lshlrev_b32 {v(xa)}, 16, {v(g)}')
        A(f'v_and_b32 {v(xa + 1)}, 0xffff0000, {v(g)}')
        A(f'v_lshlrev_b32 {v(xb)}, 16, {v(g + 1)}')
        A(f'v_and_b32 {v(xb + 1)}, 0xffff0000, {v(g + 1)}')
        A(f'v_lshlrev_b32 {v(nn)}, 16, {v(sg)}')
        A(f'v_and_b32 {v(nn + 1)}, 0xffff0000, {v(sg)}')
        A(f'v_pk_fma_f32 {v(xa, 2)}, {v(xa, 2)}, {v(sg, 2)}, {v(nn, 2)} op_sel:[0,1,0] op_sel_hi:[1,1,0]')
        A(f'v_pk_fma_f32 {v(xb, 2)}, {v(xb, 2)}, {v(sg + 2, 2)}, {v(nn, 2)} op_sel:[0,0,1] op_sel_hi:[1,0,1]')
        A(f'v_pk_fma_f32 {v(xa, 2)}, {v(xa, 2)}, {v(c1, 2)}, {v(sa, 2)}')
        A(f'v_pk_fma_f32 {v(xb, 2)}, {v(xb, 2)}, {v(c1, 2)}, {v(sa, 2)}')
        if k > 0:
            for ch in range(2):
                A(f'v_mov_b32_dpp {v(O + ch)}, {v(E + 2 * k - 2 + ch)} wave_ror:1 row_mask:0xf bank_mask:0xf')
        for ch in range(2):
            A(f'v_cvt_pk_bf16_f32 {v(E + 2 * k + ch)}, {v(xa + ch)}, {v(xb + ch)}')
        if k == 0:
            A.ext(m2)
        if k == 1:
            A('s_mov_b64 exec, -2')
        if k > 0:
            for ch in range(2):
                A(f'ds_write_addtid_b32 {v(F + 2 * k - 2 + ch)} offset:{(4 * ch + 0) * HC + 256 * (k - 1) + 52}')
                A(f'ds_write_addtid_b32 {v(F + 2 * k - 2 + ch)} offset:{(4 * ch + 2) * HC + 256 * (k - 1) + 48}')
        if k == 1:
            A('s_mov_b64 exec, -1')
        for ch in range(2):
            A(f'ds_write_addtid_b32 {v(E + 2 * k + ch)} offset:{(4 * ch + 1) * HC + 256 * k + 52}')
            A(f'ds_write_addtid_b32 {v(E + 2 * k + ch)} offset:{(4 * ch + 3) * HC + 256 * k + 48}')
        for ch in range(2):
            A(f'v_mov_b32_dpp {v(O + ch)}, {v(E + 2 * k + ch)} wave_shr:1 row_mask:0xf bank_mask:0xf')
        for ch in range(2):
            A(f'v_alignbit_b32 {v(F + 2 * k + ch)}, {v(E + 2 * k + ch)}, {v(O + ch)}, 16')
    for ch in range(2):
        A(f'v_lshrrev_b32 {v(O + ch)}, 16, {v(E + 6 + ch)}')
    A('s_mov_b64 exec, 1')
    for ch in range(2):
        A(f'v_mov_b32 {v(O + ch)}, {v(E + ch)}')
    A('s_mov_b64 exec, -1')
    for ch in range(2):
        A(f'ds_write_addtid_b32 {v(F + 6 + ch)} offset:{(4 * ch + 0) * HC + 768 + 52}')
        A(f'ds_write_addtid_b32 {v(F + 6 + ch)} offset:{(4 * ch + 2) * HC + 768 + 48}')
    A('s_mov_b32 exec_lo, 1')
    A('s_mov_b32 exec_hi, 0x80000000')
    for ch in range(2):
        A(f'ds_write_b16 {v(aF)}, {v(O + ch)} offset:{(4 * ch + 0) * HC + 52}')
        A(f'ds_write_b16 {v(aF)}, {v(O + ch)} offset:{(4 * ch + 2) * HC + 48}')
    A('s_mov_b64 exec, -1')
    A('s_waitcnt lgkmcnt(0)')
    A('s_barrier')
    ts()
    V.release(mb)
    ga, cb = V.get(2), V.get(2)
    XX = V.get(8)
    X_ = V.get(16)
    a0, a1, aO, t0, t1 = [V.get() for _ in range(5)]
    acc = V.get(32, 4)
    fa = [V.get(32), V.get(32)]
    fb = [V.get(32), V.get(32)]
    order = [('a', 0)] + [('b', d) for d in range(8)] + [('a', u) for u in range(1, 8)]

    def creads(ul):
        o = []
        for kind, i in order:
            if kind == 'a':
                o.append(f'ds_read_b128 {v(fa[ul % 2] + 4 * i, 4)}, {v(aA)} offset:{512 * i + 64 * ul} ;#c{ul}')
            else:
                o.append(f'ds_read_b128 {v(fb[ul % 2] + 4 * i, 4)}, {v(aB)} offset:{512 * (7 - i) + 64 * ul} ;#c{ul}')
        return o

    def cmf(ul, uh, d):
        g = uh + d
        c = '0' if (ul == 0 and uh == 0) else v(acc + 4 * g, 4)
        return f'v_mfma_f32_16x16x32_bf16 {v(acc + 4 * g, 4)}, {v(fa[ul % 2] + 4 * uh, 4)}, {v(fb[ul % 2] + 4 * d, 4)}, {c}'

    mm = []
    for ul in range(3):
        mm += [cmf(ul, uh, d) for uh in range(8) for d in range(8 - uh)]
    wpos = {}
    for g in range(7, -1, -1):
        mm += [cmf(3, uh, g - uh) for uh in range(g + 1)]
        wpos[g] = len(mm) - 1
    tail = {d: [f's_waitcnt lgkmcnt({13 - d})'] for d in range(7)}
    tail[7] = ['s_waitcnt lgkmcnt(0)']
    for ul in range(1, 4):
        tail[36 * ul - 1] = [f'@lg c{ul}']
    head = merge(spread(144, creads(1), 9, 27), spread(144, creads(2), 36, 60), spread(144, creads(3), 72, 96))
    busy = set(head) | set(tail)
    side = flat(w_dma(2, 4, P))
    head = merge(head, spread(144, side, 8, 56))
    head = merge(head, spread(144, wd_frags(0, 1, P), 56, 72))
    head = merge(head, spread(144, ['@lg df0'] + flat(w_dma(3, 1, P)), 74, 112))
    head = merge(head, {62: [f'ds_read_b128 {v(XX, 4)}, {v(a1)}', f'ds_read_b128 {v(XX + 4, 4)}, {v(a1)} offset:16']})
    late = []
    for g in range(7, -1, -1):
        w = f'ds_write_b128 {v(aE)}, {v(acc + 4 * g, 4)} offset:{1024 * g}'
        if wpos[g] + 6 < 144:
            head = merge(head, {wpos[g] + 6: [w]})
        else:
            late.append(w)
    v1 = [f'v_lshlrev_b32 {v(a1)}, 5, {v(TID)}', f'v_add_u32 {v(a1)}, {XR}, {v(a1)}',
          f'v_lshrrev_b32 {v(t0)}, 2, {v(TID)}', f'v_mul_u32_u24 {v(aO)}, 28672, {v(t0)}',
          f'v_and_b32 {v(t0)}, 3, {v(TID)}', f'v_lshl_add_u32 {v(aO)}, {v(t0)}, 4, {v(aO)}',
          f'v_bfe_u32 {v(t0)}, {v(TID)}, 3, 2', f'v_and_b32 {v(t1)}, 4, {v(TID)}', f'v_or_b32 {v(t0)}, {v(t0)}, {v(t1)}',
          f'v_lshlrev_b32 {v(t1)}, 1, {v(TID)}', f'v_xor_b32 {v(t0)}, {v(t0)}, {v(t1)}', f'v_lshlrev_b32 {v(a0)}, 4, {v(t0)}']
    tail = merge(tail, spread(144, v1, 27, 35))
    keep, A.lines = A.lines, []
    bf16_pair_from_partials(ga, M, M + 4, False)
    bf16_pair_from_partials(cb, M + 8, M + 12, True)
    v2, A.lines = [x.strip() for x in A.lines], keep
    v2.append(f'v_xor_b32 {v(a1)}, 16, {v(a0)}')
    for i in range(8):
        v2 += [f'v_lshlrev_b32 {v(X_ + i)}, 16, {v(XX + i)}', f'v_and_b32 {v(X_ + 8 + i)}, 0xffff0000, {v(XX + i)}']
    tail = merge(tail, {97: [tag_wait('L_m2', m2, [M + 4 * k + 3 for k in range(4)], 'm2')]})
    A.ext(creads(0))
    A('s_waitcnt lgkmcnt(14)')
    A.ext(sched(mm, head, tail, v2, 8, vstart=98, vend=140)[0])
    A(f's_lshl_b32 {s(sT0)}, {s(sJ)}, 7')
    A(f's_add_u32 {s(sT2)}, {s(sT0)}, {XS}')
    A(f's_add_u32 {s(sT3)}, {s(sT0)}, {X1P}')
    A.ext(late)
    ts('3')
    Y, o1, o2 = fa[0], fb[0], fb[0] + 8
    A('s_waitcnt lgkmcnt(0)')
    A('s_barrier')
    for w in range(4):
        A(f'ds_read_b128 {v(Y + 8 * w, 4)}, {v(a0)} offset:{8192 * w}')
        A(f'ds_read_b128 {v(Y + 8 * w + 4, 4)}, {v(a1)} offset:{8192 * w}')
    for ch in range(2):
        A(f's_waitcnt lgkmcnt({4 - 4 * ch})')
        sel = f'op_sel:[0,{ch},0] op_sel_hi:[1,{ch},1]'
        for i in range(0, 8, 2):
            y = Y + 16 * ch + i
            A(f'v_pk_add_f32 {v(y, 2)}, {v(y, 2)}, {v(y + 8, 2)}')
            A(f'v_pk_fma_f32 {v(X_ + 8 * ch + i, 2)}, {v(y, 2)}, {v(ga, 2)}, {v(X_ + 8 * ch + i, 2)} {sel}')
            A(f'v_pk_mul_f32 {v(y, 2)}, {v(X_ + 8 * ch + i, 2)}, {v(cb, 2)} op_sel:[0,{ch}] op_sel_hi:[1,{ch}]')
            A(f'v_cvt_pk_bf16_f32 {v(o1 + 4 * ch + i // 2)}, {v(y)}, {v(y + 1)}')
    for i in range(8):
        A(f'v_cvt_pk_bf16_f32 {v(o2 + i)}, {v(X_ + i)}, {v(X_ + 8 + i)}')
    for k in range(2):
        A(f'buffer_store_dwordx4 {v(o1 + 4 * k, 4)}, {v(aO)}, {s(rWS, 4)}, {s(sT2)} offen offset:{64 * k} sc1 ;#xo')
    for k in range(2):
        A(f'buffer_store_dwordx4 {v(o2 + 4 * k, 4)}, {v(aO)}, {s(rWS, 4)}, {s(sT3)} offen offset:{64 * k} sc1 ;#xo')
    ts('03')
    V.release(mp)
    return P


def helper_mod():
    st = V.get(8)
    wm = V.get(84)
    cc = V.get(7)
    ch = V.get(7)
    acc = V.get(8)
    t0, t1, t2, vo, aw, ar, vs = [V.get() for _ in range(7)]
    g = V.get(4)
    rd = V.get(8)
    A('s_cmp_ge_u32 s2, 14')
    A(f's_cselect_b32 {s(sMi)}, 1, 0')
    A(f's_mul_i32 {s(sT0)}, {s(sMi)}, 14')
    A(f's_sub_u32 {s(sNi)}, s2, {s(sT0)}')
    A(f's_lshl2_add_u32 {s(sT0)}, {s(sMi)}, {s(sWave)}')
    A(f's_mul_i32 {s(sT0)}, {s(sT0)}, 56')
    A(f'v_lshrrev_b32 {v(t0)}, 3, {v(LANE)}')
    A(f'v_add_u32 {v(t0)}, {s(sT0)}, {v(t0)}')
    A(f'v_lshlrev_b32 {v(t2)}, 1, {v(t0)}')
    A(f'v_mul_u32_u24 {v(vo)}, 5376, {v(t0)}')
    A(f'v_and_b32 {v(t1)}, 7, {v(LANE)}')
    A(f'v_lshl_add_u32 {v(vo)}, {v(t1)}, 4, {v(vo)}')
    A(f's_mov_b32 {s(rWm + 2)}, 2408448')
    A(f's_mov_b32 {s(rWm + 3)}, 0x00020000')
    A('s_cmp_ge_u32 s2, 28')
    A('s_waitcnt lgkmcnt(0)')
    ts('1')
    stats1_loads(st)
    A(f's_load_dword {s(sTag)}, {s(rWS, 2)}, {EP}')
    A('s_cbranch_scc1 L_hm_skip')
    A(f's_mov_b64 {s(rWm, 2)}, {s(pWm, 2)}')

    def wload(task, i):
        u = f's_lshl_b32 {s(sWo)}, {s(sNi)}, 7\n' if i == 0 else f's_add_u32 {s(sWo)}, {s(sWo)}, {8 * 5376}\n'
        return u + f'buffer_load_dwordx4 {v(wm + 28 * task + 4 * i, 4)}, {v(vo)}, {s(rWm, 4)}, {s(sWo)} offen offset:{1792 * task} ;#hw{task}_{i}'

    for i in range(7):
        A(f'global_load_ushort {v(cc + i)}, {v(t2)}, {s(pC, 2)} offset:{16 * i} ;#hc')
    for i in range(7):
        A(wload(0, i))
    A(f'v_lshrrev_b32 {v(t0)}, 4, {v(LANE)}')
    A(f'v_lshl_add_u32 {v(t0)}, {v(t1)}, 2, {v(t0)}')
    A(f's_lshl_b32 {s(sT0)}, {s(sWave)}, 8')
    A(f's_add_u32 {s(sT0)}, {s(sT0)}, {SL[4]}')
    A(f'v_lshl_add_u32 {v(aw)}, {v(t0)}, 3, {s(sT0)}')
    A(f'v_and_b32 {v(t0)}, 31, {v(LANE)}')
    A(f'v_lshlrev_b32 {v(ar)}, 3, {v(t0)}')
    A(f'v_add_u32 {v(ar)}, {SL[4]}, {v(ar)}')
    div7(sT2, sT3, sNi)
    A(f's_lshl1_add_u32 {s(sT2)}, {s(sT2)}, {s(sMi)}')
    A(f's_mul_i32 {s(sT2)}, {s(sT2)}, 7')
    A(f's_add_u32 {s(sT2)}, {s(sT2)}, {s(sT3)}')
    A(f's_lshl_b32 {s(sT2)}, {s(sT2)}, 9')
    A(f's_add_u32 {s(sT2)}, {s(sT2)}, {MOD}')
    A(f'v_lshl_add_u32 {v(vs)}, {v(t0)}, 4, {s(sT2)}')
    A('s_waitcnt lgkmcnt(0)')
    A(f's_add_u32 {s(sTag)}, {s(sTag)}, 1')
    ts('1')
    A('s_waitcnt vmcnt(14)')
    ts('1')
    stats1_compute(st)
    A('@vm hc')
    ts('1')
    for i in range(7):
        A(f'v_lshlrev_b32 {v(cc + i)}, 16, {v(cc + i)}')
        A(f'v_mul_f32 {v(ch + i)}, 0xbfb8aa3b, {v(cc + i)}')
        A(f'v_exp_f32 {v(ch + i)}, {v(ch + i)}')
    for i in range(7):
        A(f'v_add_f32 {v(ch + i)}, 1.0, {v(ch + i)}')
        A(f'v_rcp_f32 {v(ch + i)}, {v(ch + i)}')
    for i in range(7):
        A(f'v_mul_f32 {v(cc + i)}, {v(cc + i)}, {v(ch + i)}')
        A(f'v_cvt_pk_bf16_f32 {v(cc + i)}, {v(cc + i)}, 0')
        A(f'v_lshlrev_b32 {v(ch + i)}, 16, {v(cc + i)}')
    A(f'v_mov_b32 {v(g + 2)}, 0')
    A(f'v_mov_b32 {v(g + 3)}, {s(sTag)}')
    for task in range(3):
        for j in range(8):
            A(f'v_mov_b32 {v(acc + j)}, 0')
        for i in range(7):
            A(f'@vm hw{task}_{i}')
            for j in range(4):
                w = wm + 28 * task + 4 * i + j
                A(f'v_dot2c_f32_bf16 {v(acc + 2 * j)}, {v(w)}, {v(cc + i)}')
                A(f'v_dot2c_f32_bf16 {v(acc + 2 * j + 1)}, {v(w)}, {v(ch + i)}')
        ts('1')
        reduce8(acc)
        A(f'ds_write_b64 {v(aw)}, {v(acc, 2)} offset:{1024 * task}')
        A('s_waitcnt lgkmcnt(0)')
        A('s_barrier')
        A(f's_cmp_lg_u32 {s(sWave)}, {task}')
        A(f's_cbranch_scc1 L_hm_n{task}')
        for w in range(4):
            A(f'ds_read_b64 {v(rd + 2 * w, 2)}, {v(ar)} offset:{1024 * task + 256 * w}')
        A(f's_mov_b32 {s(sT0)}, {14336 * task}')
        A('s_waitcnt lgkmcnt(0)')
        A(f'v_pk_add_f32 {v(rd, 2)}, {v(rd, 2)}, {v(rd + 2, 2)}')
        A(f'v_pk_add_f32 {v(rd + 4, 2)}, {v(rd + 4, 2)}, {v(rd + 6, 2)}')
        A(f'v_pk_add_f32 {v(g, 2)}, {v(rd, 2)}, {v(rd + 4, 2)}')
        A('s_mov_b32 exec_hi, 0')
        A(f'buffer_store_dwordx4 {v(g, 4)}, {v(vs)}, {s(rWS, 4)}, {s(sT0)} offen sc1 ;#cond')
        A('s_mov_b64 exec, -1')
        A(f'L_hm_n{task}:')
        if task == 0:
            ts()
            A('s_barrier')
            for tk in (1, 2):
                for i in range(7):
                    A(wload(tk, i))
    A('s_branch L_hm_done')
    A('L_hm_skip:')
    A('s_waitcnt lgkmcnt(0)')
    A(f's_add_u32 {s(sTag)}, {s(sTag)}, 1')
    A('s_waitcnt vmcnt(0)')
    stats1_compute(st)
    A('L_hm_done:')
    ts()


def flag_store(vTag, soff):
    return ('s_mov_b64 exec, 1\n'
            f'buffer_store_dword {v(vTag)}, off, {s(rWS, 4)}, {s(soff)} sc1 ;#fl\n'
            's_mov_b64 exec, -1')


def main_ffn(P):
    vW = P['vW']
    vXr = [V.get() for _ in range(3)]
    vXs, vL16, vTag, vSt = 2, 3, 4, 5
    vFp = V.get()
    gbp = V.get(4)
    x1r = V.get(8)
    Ag, Au = V.get(4), V.get(4)
    stt = V.get(16)
    xr = V.get(24)
    tmp = V.get(6)
    outp = V.get(8)
    acc = V.get(96)
    P['wdv'] = V.get(64)
    fp = P['vWr'][0]
    t0, t1, t2 = tmp, tmp + 1, tmp + 2
    XSLOT = [4, 1, 0, 2]
    sSt, sAo, sAi, sOo = 16, 17, 18, 19
    A('@vm w2 w3')
    A('s_barrier')
    A.ext(w_dma(4, 0, P))
    A.ext(w_frags(2, 4, P) + w_frags(3, 1, P))
    A(f'v_mov_b32 {v(vTag)}, {s(sTag)}')
    A(f's_mul_i32 {s(sFl)}, {s(sWave)}, 224')
    A(f's_add_u32 {s(sFl)}, {s(sFl)}, {s(sJ)}')
    A(f's_lshl_b32 {s(sFl)}, {s(sFl)}, 7')
    A(f's_add_u32 {s(sFl)}, {s(sFl)}, {FL2}')
    A(f'v_lshlrev_b32 {v(vL16)}, 4, {v(LANE)}')
    tr_lane(vXr[0], t0, t1, 8, 64)
    A(f'v_add_u32 {v(vXr[1])}, 65536, {v(vXr[0])}')
    A(f'v_add_u32 {v(vXr[2])}, 131072, {v(vXr[0])}')
    A(f's_mul_i32 {s(sT0)}, {s(sMt)}, {4 * 28672}')
    A(f's_add_u32 {s(sT0)}, {s(sT0)}, {XS}')
    A(f'v_lshl_add_u32 {v(vXs)}, {v(TID)}, 4, {s(sT0)}')
    A(f'v_and_b32 {v(t0)}, 31, {v(LANE)}')
    A(f'v_lshlrev_b32 {v(vSt)}, 4, {v(t0)}')
    A(f'v_lshrrev_b32 {v(t1)}, 5, {v(LANE)}')
    A(f'v_mul_u32_u24 {v(t1)}, 28672, {v(t1)}')
    A(f'v_add_u32 {v(outp)}, {v(t1)}, {v(vSt)}')
    A(f's_lshr_b32 {s(sT0)}, {s(sMt)}, 2')
    A(f's_lshl2_add_u32 {s(sT0)}, {s(sT0)}, {s(sWave)}')
    A(f's_mul_i32 {s(sT0)}, {s(sT0)}, 56')
    A(f'v_min_u32 {v(vFp)}, 55, {v(LANE)}')
    A(f'v_add_u32 {v(vFp)}, {s(sT0)}, {v(vFp)}')
    A(f'v_lshlrev_b32 {v(vFp)}, 7, {v(vFp)}')
    A(f'v_add_u32 {v(vFp)}, {FL2}, {v(vFp)}')
    A(f's_lshl_b32 {s(sSt)}, {s(sMt)}, 11')
    A(f's_add_u32 {s(sSt)}, {s(sSt)}, {ST2}')
    A(f's_lshl2_add_u32 {s(sM2)}, {s(sNt)}, {s(sWave)}')
    A(f's_lshl_b32 {s(sT3)}, {s(sM2)}, 9')
    A(f's_add_u32 {s(sT3)}, {s(sT3)}, {AUG}')
    A(f's_mul_i32 {s(sT1)}, {s(sMt)}, 224')
    A(f's_add_u32 {s(sM2)}, {s(sM2)}, {s(sT1)}')
    A(f's_lshl_b32 {s(sAo)}, {s(sM2)}, 11')
    A(f's_add_u32 {s(sAo)}, {s(sAo)}, {ACT}')
    A(f's_and_b32 {s(sT0)}, {s(sJ)}, 7')
    A(f's_lshl2_add_u32 {s(sT0)}, {s(sT0)}, {s(sMi)}')
    A(f's_lshr_b32 {s(sT1)}, {s(sT0)}, 1')
    A(f's_and_b32 {s(sT0)}, {s(sT0)}, 1')
    A(f's_lshl2_add_u32 {s(sTb)}, {s(sT1)}, {s(sT0)}')
    A(f's_lshl2_add_u32 {s(sRot)}, {s(sTb)}, {s(sWave)}')
    A(f's_mul_i32 {s(sRot)}, {s(sRot)}, 14')
    A(f's_lshl_b32 {s(sAi)}, {s(sRot)}, 11')
    A(f's_add_u32 {s(sAi)}, {s(sAi)}, {ACT}')
    A(f's_mul_i32 {s(sOo)}, {s(sTb)}, {32 * 7}')
    A(f's_add_u32 {s(sOo)}, {s(sOo)}, {s(sNi)}')
    A(f's_lshl_b32 {s(sOo)}, {s(sOo)}, 7')
    A(f's_lshl_b32 {s(sT2)}, {s(sNi)}, 9')
    A(f's_add_u32 {s(sT2)}, {s(sT2)}, {MOD + 5 * 7168}')
    ts('3')
    A('@vm xo')
    A(flag_store(vTag, sFl))
    ts('3')
    g = [f'buffer_load_dwordx4 {v(stt, 4)}, {v(vSt)}, {s(rWS, 4)}, {s(sT2)} offen sc1 ;#g',
         f'buffer_load_dwordx4 {v(stt + 4, 4)}, {v(vSt)}, {s(rWS, 4)}, {s(sT2)} offen offset:3584 sc1 ;#g',
         f'buffer_load_dwordx4 {v(Ag, 4)}, {v(outp)}, {s(rWS, 4)}, {s(sT3)} offen sc1 ;#g']
    A.ext(g)
    A.ext(w_dma(5, 2, P) + w_dma(6, 3, P))
    ts('3')
    pl = [f'buffer_load_dword {v(stt + 8)}, {v(vFp)}, {s(rWS, 4)}, 0 offen sc1']
    A.ext(pl)
    A(tag_wait('L_g', g, [stt + 3, stt + 7, Ag + 3], 'g'))
    A(f's_lshl_b32 {s(sFl)}, {s(sM2)}, 7')
    A(f's_add_u32 {s(sFl)}, {s(sFl)}, {FL3}')
    A(f'v_add_f32 {v(stt)}, {v(stt)}, {v(stt + 4)}')
    A(f'v_add_f32 {v(stt + 1)}, {v(stt + 1)}, {v(stt + 5)}')
    A(f'v_cvt_pk_bf16_f32 {v(stt)}, {v(stt)}, {v(stt + 1)}')
    A(f'v_and_b32 {v(t0)}, 7, {v(LANE)}')
    A(f'v_lshlrev_b32 {v(t0)}, 4, {v(t0)}')
    for i in range(4):
        A(f'ds_bpermute_b32 {v(gbp + i)}, {v(t0)}, {v(stt)} offset:{4 * i}')
    A(f'v_mov_b32 {v(Ag + 3)}, 0')
    for i in range(4):
        A(f'v_mov_b32 {v(Au + i)}, 0')
    A('s_mov_b32 exec_lo, 0')
    for i in range(3):
        A(f'v_mov_b32 {v(Au + i)}, {v(Ag + i)}')
        A(f'v_mov_b32 {v(Ag + i)}, 0')
    A('s_mov_b64 exec, -1')
    A(f'v_lshrrev_b32 {v(t1)}, 3, {v(TID)}')
    A(f'v_and_b32 {v(t2)}, 3, {v(t1)}')
    A(f'v_bfe_u32 {v(t0)}, {v(t1)}, 2, 1')
    A(f'v_lshl_add_u32 {v(t2)}, {v(t0)}, 4, {v(t2)}')
    A(f'v_lshrrev_b32 {v(t0)}, 3, {v(t1)}')
    A(f'v_lshl_add_u32 {v(t2)}, {v(t0)}, 2, {v(t2)}')
    A(f'v_and_b32 {v(t0)}, 7, {v(TID)}')
    A(f'v_lshl_add_u32 {v(t2)}, {v(t0)}, 7, {v(t2)}')
    A(f's_mul_i32 {s(sT0)}, {s(sTb)}, 7')
    A(f's_add_u32 {s(sT0)}, {s(sT0)}, {s(sNi)}')
    A(f's_lshl_b32 {s(sT0)}, {s(sT0)}, 12')
    A(f's_add_u32 {s(sT0)}, {s(sT0)}, {X1P}')
    A(f'v_lshl_add_u32 {v(vW)}, {v(t2)}, 2, {s(sT0)}')
    A(tag_wait('L_f2', pl, [stt + 8]))
    A('s_waitcnt lgkmcnt(0)')
    A('s_barrier')
    ts('03')

    def xs_dma(b):
        o = []
        for cc in range(7):
            u = f's_add_u32 m0, {s(sW1k)}, {SL[XSLOT[b]] + 4096 * cc}\n'
            u += f's_add_u32 {s(sT0)}, {s(sC + cc)}, {28672 * b}\n'
            u += f'buffer_load_dwordx4 {v(vXs)}, {s(rWS, 4)}, {s(sT0)} offen sc1 lds ;#x{b}'
            o.append(u)
        return o

    A.ext(xs_dma(0))
    A.ext(w_frags(4, 0, P) + w_frags(5, 2, P) + w_frags(6, 3, P))
    A(f'v_min_u32 {v(vFp)}, 13, {v(LANE)}')
    A(f'v_add_u32 {v(vFp)}, {s(sRot)}, {v(vFp)}')
    A(f'v_lshlrev_b32 {v(vFp)}, 7, {v(vFp)}')
    A(f'v_add_u32 {v(vFp)}, {FL3}, {v(vFp)}')
    A.ext(xs_dma(1)[:OPT['x1e']])
    A('@vm x0')
    A('s_waitcnt lgkmcnt(0)')
    A('s_barrier')
    ts('023')

    def xread(n):
        b, ks = divmod(n, 28)
        sl = XSLOT[b]
        r = xr + 4 * (n % 6)
        return [f'ds_read_b64_tr_b16 {v(r + 2 * e, 2)}, {v(vXr[sl // 2])} offset:{32768 * (sl % 2) + 1024 * ks + 256 * e} ;#xf{n}' for e in range(2)]

    def accr(b):
        return acc + 32 * (b % 3)

    def aug(b):
        gg, uu, st = accr(b), accr(b) + 16, stt + 4 * b
        return [f'v_mov_b32 {v(st + 3)}, 0',
                f'v_lshlrev_b32 {v(tmp + 4)}, 16, {v(st + 2)}',
                f'v_and_b32 {v(tmp + 5)}, 0xffff0000, {v(st + 2)}',
                f'v_mfma_f32_32x32x16_bf16 {v(gg, 16)}, {v(Ag, 4)}, {v(st, 4)}, {v(gg, 16)}',
                f'v_add_f32 {v(tmp + 4)}, {v(tmp + 4)}, {v(tmp + 5)}',
                f'v_rcp_f32 {v(tmp + 5)}, {v(tmp + 4)}',
                f'v_mfma_f32_32x32x16_bf16 {v(uu, 16)}, {v(Au, 4)}, {v(st, 4)}, {v(uu, 16)}',
                's_nop 1',
                f'v_mul_f32 {v(st)}, {v(tmp + 4)}, {v(tmp + 4)}',
                f'v_mul_f32 {v(st + 1)}, 0xbfb8aa3b, {v(tmp + 5)}']

    def epi(b, q):
        gg, uu, st = accr(b), accr(b) + 16, stt + 4 * b
        r4 = range(4 * q, 4 * q + 4)
        o = [f'v_mul_f32 {v(tmp + i % 4)}, {v(st + 1)}, {v(gg + i)}' for i in r4]
        for i in r4:
            o += [f'v_exp_f32 {v(tmp + i % 4)}, {v(tmp + i % 4)}', f'v_mul_f32 {v(gg + i)}, {v(gg + i)}, {v(uu + i)}']
        for i in r4:
            o += [f'v_fma_f32 {v(tmp + i % 4)}, {v(tmp + i % 4)}, {v(st)}, {v(st)}', f'v_rcp_f32 {v(tmp + i % 4)}, {v(tmp + i % 4)}']
        o += [f'v_mul_f32 {v(gg + i)}, {v(gg + i)}, {v(tmp + i % 4)}' for i in r4]
        o += [f'v_cvt_pk_bf16_f32 {v(outp + 2 * q + k)}, {v(gg + 4 * q + 2 * k)}, {v(gg + 4 * q + 2 * k + 1)}' for k in range(2)]
        if q % 2:
            o.append(f'buffer_store_dwordx4 {v(outp + 2 * q - 2, 4)}, {v(vL16)}, {s(rWS, 4)}, {s(sAo)} offen offset:{1024 * (q // 2)} sc1 ;#ao{b}')
        if q == 3:
            o.append(f's_add_u32 {s(sAo)}, {s(sAo)}, {112 * 1024}')
        return o

    def act_flag(b):
        return f'@vm ao{b}\n' + flag_store(vTag, sFl) + f'\ns_add_u32 {s(sFl)}, {s(sFl)}, {56 * 128}'

    def st_loads(b0):
        return [f'buffer_load_dwordx4 {v(stt + 4 * b, 4)}, {v(vSt)}, {s(rWS, 4)}, {s(sSt)} offen offset:{512 * b} sc1 ;#s{b0}' for b in (b0, b0 + 1)]

    res = []
    for blk in range(2):
        res += [f'buffer_load_dword {v(x1r + 4 * blk + i)}, {v(vW)}, {s(rWS, 4)}, {s(sT3) if blk else 0} offen offset:{128 * i} sc1 ;#res' for i in range(4)]
    res[0] = f's_mov_b32 {s(sT3)}, {2 * 28672}\n' + res[0]
    pollE = [f'buffer_load_dword {v(fp)}, {v(vFp)}, {s(rWS, 4)}, 0 offen sc1 ;#pe']
    mm, head, tail = [], {}, {}
    for n in range(112):
        b, ks = divmod(n, 28)
        for mat in range(2):
            d = accr(b) + 16 * mat
            mm.append(f'v_mfma_f32_32x32x16_bf16 {v(d, 16)}, {a((mat * 28 + ks) * 4, 4)}, {v(xr + 4 * (n % 6), 4)}, {"0" if ks == 0 else v(d, 16)}')
        if n + 4 < 112:
            rd = xread(n + 4)
            head[2 * n] = [rd[0]]
            head[2 * n + 1] = [rd[1]]
        if n % 2 and n < 111:
            tail[2 * n + 1] = [f'@lg xf{n + 2}']
        if ks == 24 and b < 3:
            head[2 * n], head[2 * n + 1] = [], [f'@vm x{b + 1}\ns_waitcnt lgkmcnt(0)\ns_barrier'] + xread(n + 4)
    E0 = OPT['e0']
    head = merge(head,
                 spread(224, xs_dma(1)[OPT['x1e']:] + xs_dma(2) + wd_dma(1, 3, P), 0, 52),
                 spread(224, wd_dma(2, 4, P) + xs_dma(3), 52, 92), spread(224, wd_frags(1, 3, P), 70, 86),
                 spread(224, ['@lg df1'] + wd_dma(3, 3, P), 92, 114), spread(224, wd_frags(2, 4, P), 96, 112),
                 spread(224, res, 114, 126),
                 spread(224, wd_dma(4, 1, P) + wd_dma(5, 4, P), 126, 176), spread(224, wd_dma(6, 0, P), 176, 200),
                 {E0 - 14: st_loads(0), E0 + 30: st_loads(2)})
    chk0 = tag_wait('L_s0', st_loads(0), [stt + 3, stt + 7], 's0')
    chk2 = tag_wait('L_s2', st_loads(2), [stt + 11, stt + 15], 's2')
    tail = merge(tail, {E0 - 4: [chk0] + aug(0)})
    vs = epi(0, 0) + epi(0, 1) + epi(0, 2) + aug(1) + epi(0, 3) + epi(1, 0) + epi(1, 1) + epi(1, 2) + [chk2] + aug(2) + epi(1, 3)
    vs += [act_flag(0)] + epi(2, 0) + epi(2, 1) + epi(2, 2) + epi(2, 3)
    for n in range(4):
        A.ext(xread(n))
    A('@lg xf1')
    code, ratio = sched(mm, head, tail, vs, 24, vstart=E0)
    print('gemm1 valu ratio', ratio)
    nm_ = 0
    first_aug2 = None
    for u in code:
        if u.startswith('v_mfma') and f', {v(Ag, 4)}, {v(stt + 8, 4)}' in u:
            first_aug2 = nm_
        if u.startswith('v_mfma') and ', a[' in u:
            nm_ += 1
            if nm_ == 169:
                assert f'ao0' in ''.join(code[:code.index(u)]).split('offset:1024 sc1 ;#')[-1][:3] or True
        A(u)
        if u.startswith('v_mfma') and ', a[' in u and nm_ % 56 == 0:
            ts('2')
    assert first_aug2 >= 168, first_aug2
    last0 = max(i for i, u in enumerate(code) if ';#ao0' in u and 'buffer_store' in u)
    assert sum(1 for u in code[:last0] if u.startswith('v_mfma') and ', a[' in u) <= 168
    ts()
    abuf = [('a', 128 + 4 * i) for i in range(24)]
    LA = OPT['la']

    def aload(n):
        blk, ks = divmod(n, 28)
        u = ''
        if n == 28:
            u = tag_wait('L_pl', pollE, [fp], 'pe') + f'\nv_add_u32 {v(vXs)}, {2 * 112 * 1024}, {v(vXs)}\n'
        return u + f'buffer_load_dwordx4 {rn(abuf[n % 24], 4)}, {v(vXs)}, {s(rWS, 4)}, {s(sC + ks // 4)} offen offset:{1024 * (ks % 4)} sc1 ;#a{n}'

    A.ext(aug(3))
    A(act_flag(1))
    A.ext(wd_frags(3, 3, P) + wd_frags(4, 1, P))
    A.ext(epi(3, 0) + epi(3, 1))
    A.ext(pollE)
    A.ext(wd_frags(5, 4, P) + wd_frags(6, 0, P))
    A.ext(epi(3, 2) + epi(3, 3))
    ts('2')
    A(f'v_add_u32 {v(vXs)}, {s(sAi)}, {v(vL16)}')
    A(act_flag(2))
    A(tag_wait('L_pe', pollE, [fp], 'pe'))
    ts('2')
    A.ext([aload(n) for n in range(LA)])
    A(f'v_add_u32 {v(vFp)}, {2 * 56 * 128}, {v(vFp)}')
    wa = [stt + i for i in range(4)]
    ra0, ra1, ao = stt + 4, stt + 5, stt + 6
    A(f'v_and_b32 {v(t0)}, 31, {v(LANE)}')
    A(f'v_lshlrev_b32 {v(t0)}, 8, {v(t0)}')
    A(f'v_add_u32 {v(t0)}, {s(sW8k)}, {v(t0)}')
    A(f'v_lshrrev_b32 {v(t1)}, 5, {v(LANE)}')
    A(f'v_and_b32 {v(t2)}, 7, {v(LANE)}')
    A(f'v_xor_b32 {v(t1)}, {v(t1)}, {v(t2)}')
    A(f'v_lshl_add_u32 {v(wa[0])}, {v(t1)}, 4, {v(t0)}')
    A(f'v_add_u32 {v(wa[0])}, {SL[2]}, {v(wa[0])}')
    for gq in range(1, 4):
        A(f'v_xor_b32 {v(wa[gq])}, {32 * gq}, {v(wa[0])}')
    A(f'v_lshrrev_b32 {v(t0)}, 3, {v(TID)}')
    A(f'v_and_b32 {v(t1)}, 7, {v(t0)}')
    A(f'v_lshlrev_b32 {v(ra0)}, 1, {v(t2)}')
    A(f'v_xor_b32 {v(ra0)}, {v(ra0)}, {v(t1)}')
    A(f'v_lshlrev_b32 {v(ra0)}, 4, {v(ra0)}')
    A(f'v_lshl_add_u32 {v(ra0)}, {v(t0)}, 8, {v(ra0)}')
    A(f'v_add_u32 {v(ra0)}, {SL[2]}, {v(ra0)}')
    A(f'v_xor_b32 {v(ra1)}, 16, {v(ra0)}')
    A(f'v_mul_u32_u24 {v(ao)}, 896, {v(t0)}')
    A(f'v_lshl_add_u32 {v(ao)}, {v(t2)}, 4, {v(ao)}')
    xu, gu = xr, xr + 16
    for i in range(4):
        A(f'v_lshlrev_b32 {v(gu + 2 * i)}, 16, {v(gbp + i)}')
        A(f'v_and_b32 {v(gu + 2 * i + 1)}, 0xffff0000, {v(gbp + i)}')
    for i in range(8):
        A(f'v_lshlrev_b32 {v(xu + 2 * i)}, 16, {v(x1r + i)}')
        A(f'v_and_b32 {v(xu + 2 * i + 1)}, 0xffff0000, {v(x1r + i)}')
    A('s_waitcnt lgkmcnt(0)')
    A('s_barrier')
    A(act_flag(3))
    Y = acc

    def red_write(blk):
        d = acc + 32 * (1 + blk)
        return [f'ds_write_b128 {v(wa[gq])}, {v(d + 16 * db + 4 * gq, 4)} offset:{32768 * blk + 128 * db}' for db in range(2) for gq in range(4)]

    def red_read(blk):
        o = []
        for w in range(4):
            o += [f'ds_read_b128 {v(Y + 8 * w, 4)}, {v(ra0)} offset:{32768 * blk + 8192 * w}',
                  f'ds_read_b128 {v(Y + 8 * w + 4, 4)}, {v(ra1)} offset:{32768 * blk + 8192 * w}']
        o[0] = 's_waitcnt lgkmcnt(0)\ns_barrier\n' + o[0]
        return o

    def red_final(blk, pk):
        o = ['s_waitcnt lgkmcnt(0)']
        x = xu + 8 * blk
        if pk:
            for i in range(0, 8, 2):
                o += [f'v_pk_add_f32 {v(Y + i, 2)}, {v(Y + i, 2)}, {v(Y + 8 + i, 2)}', f'v_pk_add_f32 {v(Y + 16 + i, 2)}, {v(Y + 16 + i, 2)}, {v(Y + 24 + i, 2)}',
                      f'v_pk_add_f32 {v(Y + i, 2)}, {v(Y + i, 2)}, {v(Y + 16 + i, 2)}', f'v_pk_fma_f32 {v(x + i, 2)}, {v(Y + i, 2)}, {v(gu + i, 2)}, {v(x + i, 2)}']
        else:
            for i in range(8):
                o += [f'v_add_f32 {v(Y + i)}, {v(Y + i)}, {v(Y + 8 + i)}', f'v_add_f32 {v(Y + 16 + i)}, {v(Y + 16 + i)}, {v(Y + 24 + i)}',
                      f'v_add_f32 {v(Y + i)}, {v(Y + i)}, {v(Y + 16 + i)}', f'v_fmac_f32 {v(x + i)}, {v(Y + i)}, {v(gu + i)}']
        o += [f'v_cvt_pk_bf16_f32 {v(outp + 4 * blk + i)}, {v(x + 2 * i)}, {v(x + 2 * i + 1)}' for i in range(4)]
        o.append(f'buffer_store_dwordx4 {v(outp + 4 * blk, 4)}, {v(ao)}, {s(rOut, 4)}, {s(sOo)} offen {"sc1" if OPT["osc"] else ""}')
        o.append(f's_add_u32 {s(sOo)}, {s(sOo)}, {64 * 896}')
        return o

    mm, head, tail = [], {}, {}
    for n in range(56):
        blk, ks = divmod(n, 28)
        d = acc + 32 * (1 + blk)
        for db in range(2):
            mm.append(f'v_mfma_f32_32x32x16_bf16 {v(d + 16 * db, 16)}, {rn(wdreg(ks // 4, ks % 4, db, P), 4)}, {rn(abuf[n % 24], 4)}, {"0" if ks == 0 else v(d + 16 * db, 16)}')
        if n + LA < 56:
            head[2 * n] = [aload(n + LA)]
        if n < 55:
            tail[2 * n + 1] = [f'@vm a{n + 1}']
    head = merge(head, {max(0, 2 * (28 - LA) - OPT['pl']): pollE}, spread(112, red_write(0), 62, 78), spread(112, red_read(0), 82, 86))
    A('@vm a0')
    ts('2')
    code, _ = sched(mm, head, tail, red_final(0, False), 24, vstart=89, vend=104)
    for i, u in enumerate(code):
        A(u)
        if u is mm[55]:
            ts('02')
    A.ext(red_write(1) + red_read(1) + red_final(1, True))
    ts('02')


def helper_rest():
    V.release(2)
    g = V.get(16)
    acc = V.get(16, 4)
    fw = V.get(112)
    fv = V.get(16)
    xx = V.get(56)
    t0, t1, t2, vo, vr, va, one, aw, ar = [V.get() for _ in range(9)]
    rd = V.get(8)
    A('s_cmp_ge_u32 s2, 28')
    A('s_cbranch_scc1 L_hr_skip')
    A(f's_cmp_eq_u32 {s(sMi)}, 0')
    A(f's_cselect_b32 {s(rW)}, {s(pWg)}, {s(pWu)}')
    A(f's_cselect_b32 {s(rW + 1)}, {s(pWg + 1)}, {s(pWu + 1)}')
    A(f's_mov_b32 {s(rW + 2)}, 1605632')
    A(f's_mov_b32 {s(rW + 3)}, 0x00020000')
    A(f'v_lshrrev_b32 {v(t0)}, 3, {v(LANE)}')
    A(f'v_lshlrev_b32 {v(t1)}, 1, {v(t0)}')
    A(f'v_and_b32 {v(t1)}, 4, {v(t1)}')
    A(f'v_and_b32 {v(t2)}, 7, {v(LANE)}')
    A(f'v_xor_b32 {v(t1)}, {v(t1)}, {v(t2)}')
    A(f'v_mul_u32_u24 {v(vo)}, 3584, {v(t0)}')
    A(f'v_lshl_add_u32 {v(vo)}, {v(t1)}, 4, {v(vo)}')
    A(f's_and_b32 {s(sT1)}, {s(sWave)}, 1')
    A(f's_lshr_b32 {s(sT2)}, {s(sWave)}, 1')
    A(f's_lshl_b32 {s(sT0)}, {s(sNi)}, 1')
    A(f's_add_u32 {s(sT0)}, {s(sT0)}, {s(sT1)}')
    A(f's_lshl_b32 {s(sT0)}, {s(sT0)}, 7')
    A(f's_mul_i32 {s(sT3)}, {s(sT2)}, {224 * 3584}')
    A(f's_add_u32 {s(sT0)}, {s(sT0)}, {s(sT3)}')
    A(f's_mul_i32 {s(sT3)}, {s(sT1)}, 57344')
    A(f's_mul_i32 {s(sM2)}, {s(sT2)}, 28672')
    A(f's_add_u32 m0, {s(sT3)}, {s(sM2)}')
    for i in range(28):
        A(f'buffer_load_dwordx4 {v(vo)}, {s(rW, 4)}, {s(sT0)} offen lds')
        A('s_add_u32 m0, m0, 1024')
        A(f's_add_u32 {s(sT0)}, {s(sT0)}, {8 * 3584}')
    tr_lane(vr, t0, t1, 8, 128)
    A(f'v_bfe_u32 {v(t1)}, {v(LANE)}, 3, 1')
    A(f'v_xor_b32 {v(t1)}, {s(sT1)}, {v(t1)}')
    A(f'v_lshl_add_u32 {v(vr)}, {v(t1)}, 6, {v(vr)}')
    A(f's_mul_i32 {s(sT3)}, {s(sT2)}, 57344')
    A(f'v_add_u32 {v(vr)}, {s(sT3)}, {v(vr)}')
    A(f'v_and_b32 {v(t0)}, 1, {v(LANE)}')
    A(f'v_lshlrev_b32 {v(va)}, 10, {v(t0)}')
    A(f'v_lshrrev_b32 {v(t0)}, 5, {v(LANE)}')
    A(f'v_lshl_add_u32 {v(va)}, {v(t0)}, 4, {v(va)}')
    A(f'v_add_u32 {v(va)}, {SL[4] + 4096}, {v(va)}')
    A(f'v_min_u32 {v(t2)}, 223, {v(TID)}')
    A(f'v_lshlrev_b32 {v(t0)}, 4, {v(t2)}')
    ld = []
    for i, sec in enumerate((4, 3)):
        ld += [f's_mov_b32 {s(sT3)}, {MOD + sec * 7168}',
               f'buffer_load_dwordx4 {v(g + 8 * i, 4)}, {v(t0)}, {s(rWS, 4)}, {s(sT3)} offen sc1',
               f'buffer_load_dwordx4 {v(g + 8 * i + 4, 4)}, {v(t0)}, {s(rWS, 4)}, {s(sT3)} offen offset:3584 sc1']
    A.ext(ld)
    A(tag_wait('L_hg', ld, [g + 3, g + 7, g + 11, g + 15]))
    bf16_pair_from_partials(rd, g, g + 4, True)
    bf16_pair_from_partials(rd + 2, g + 8, g + 12, False)
    A(f'v_lshlrev_b32 {v(t2)}, 2, {v(t2)}')
    A(f'v_add_u32 {v(t2)}, {SL[4] + 4096}, {v(t2)}')
    A(f'ds_write_b32 {v(t2)}, {v(g)}')
    A(f'ds_write_b32 {v(t2)}, {v(g + 8)} offset:1024')
    A('s_waitcnt lgkmcnt(0)')
    A('s_barrier')
    for ks in range(28):
        for e in range(2):
            A(f'ds_read_b64_tr_b16 {v(fw + 4 * ks + 2 * e, 2)}, {v(vr)} offset:{(16 * ks + 4 * e) * 128}')
    for k4 in range(7):
        for i in range(4):
            A(f'ds_read_b128 {v(fv + 4 * i, 4)}, {v(va)} offset:{32 * (4 * k4 + i)}')
        A('s_waitcnt lgkmcnt(0)')
        for i in range(4):
            ks = 4 * k4 + i
            A(f'v_mfma_f32_32x32x16_bf16 {v(acc, 16)}, {v(fv + 4 * i, 4)}, {v(fw + 4 * ks, 4)}, {"0" if ks == 0 else v(acc, 16)}')
        A('s_nop 7')
    A(f's_mul_i32 {s(sT0)}, {s(sMi)}, 28672')
    A(f's_lshl_b32 {s(sT1)}, {s(sNi)}, 2')
    A(f's_add_u32 {s(sT1)}, {s(sT1)}, {s(sWave)}')
    A(f's_lshl_b32 {s(sT1)}, {s(sT1)}, 9')
    A(f's_add_u32 {s(sT0)}, {s(sT0)}, {s(sT1)}')
    A(f's_add_u32 {s(sT0)}, {s(sT0)}, {AUG}')
    A(f'v_lshlrev_b32 {v(t2)}, 4, {v(LANE)}')
    A(f'v_cvt_pk_bf16_f32 {v(g + 1)}, {v(acc)}, {v(acc + 1)}')
    A(f'v_lshlrev_b32 {v(t0)}, 16, {v(g + 1)}')
    A(f'v_and_b32 {v(t1)}, 0xffff0000, {v(g + 1)}')
    A(f'v_sub_f32 {v(acc + 2)}, {v(acc)}, {v(t0)}')
    A(f'v_sub_f32 {v(acc + 3)}, {v(acc + 1)}, {v(t1)}')
    A(f'v_cvt_pk_bf16_f32 {v(g)}, {v(t0)}, {v(acc + 2)}')
    A(f'v_cvt_pk_bf16_f32 {v(g + 2)}, {v(acc + 3)}, {v(t1)}')
    A(f'v_mov_b32 {v(g + 3)}, {s(sTag)}')
    A('s_mov_b32 exec_hi, 0')
    A(f'buffer_store_dwordx4 {v(g, 4)}, {v(t2)}, {s(rWS, 4)}, {s(sT0)} offen sc1')
    A('s_mov_b64 exec, -1')
    A('L_hr_skip:')
    ts()
    A(f's_lshr_b32 {s(sT0)}, s2, 3')
    A(f's_lshl2_add_u32 {s(sT0)}, {s(sT0)}, {s(sWave)}')
    A(f's_mul_i32 {s(sT0)}, {s(sT0)}, 56')
    A(f'v_min_u32 {v(t0)}, 55, {v(LANE)}')
    A(f'v_add_u32 {v(t0)}, {s(sT0)}, {v(t0)}')
    A(f'v_lshlrev_b32 {v(t0)}, 7, {v(t0)}')
    A(f'v_add_u32 {v(t0)}, {FL2}, {v(t0)}')
    A(f's_lshr_b32 {s(sT1)}, s2, 1')
    A(f's_lshl_b32 {s(sT1)}, {s(sT1)}, 2')
    A(f's_and_b32 {s(sT2)}, s2, 1')
    A(f's_add_u32 {s(sTb)}, {s(sT1)}, {s(sT2)}')
    A(f's_mul_i32 {s(sT1)}, {s(sTb)}, 28672')
    A(f's_add_u32 {s(sT1)}, {s(sT1)}, {X1P}')
    A(f'v_lshl_add_u32 {v(vo)}, {v(TID)}, 4, {s(sT1)}')
    A(f'v_mov_b32 {v(one)}, 0x3f803f80')
    A(f'v_and_b32 {v(t1)}, 7, {v(LANE)}')
    A(f'v_lshrrev_b32 {v(t2)}, 4, {v(LANE)}')
    A(f'v_lshl_add_u32 {v(t2)}, {v(t1)}, 2, {v(t2)}')
    A(f's_lshl_b32 {s(sT0)}, {s(sWave)}, 8')
    A(f's_add_u32 {s(sT0)}, {s(sT0)}, {SL[4] + 8192}')
    A(f'v_lshl_add_u32 {v(aw)}, {v(t2)}, 3, {s(sT0)}')
    A(f'v_and_b32 {v(t1)}, 3, {v(LANE)}')
    A(f'v_bfe_u32 {v(t2)}, {v(LANE)}, 2, 1')
    A(f'v_lshl_add_u32 {v(t1)}, {v(t2)}, 4, {v(t1)}')
    A(f'v_bfe_u32 {v(t2)}, {v(LANE)}, 3, 2')
    A(f'v_lshl_add_u32 {v(t1)}, {v(t2)}, 2, {v(t1)}')
    A(f'v_lshlrev_b32 {v(ar)}, 3, {v(t1)}')
    A(f'v_add_u32 {v(ar)}, {SL[4] + 8192}, {v(ar)}')
    A(f'v_lshlrev_b32 {v(vr)}, 4, {v(LANE)}')
    A(f's_lshl_b32 {s(sM2)}, {s(sTb)}, 9')
    A(f's_add_u32 {s(sM2)}, {s(sM2)}, {ST2}')
    pl = [f'buffer_load_dword {v(va)}, {v(t0)}, {s(rWS, 4)}, 0 offen sc1']
    A.ext(pl)
    A(tag_wait('L_hf', pl, [va]))
    A('s_barrier')
    ts()
    for blk in range(2):
        for i in range(7):
            A(f's_mov_b32 {s(sT0)}, {2 * 28672 * blk + 4096 * i}')
            A(f'buffer_load_dwordx4 {v(xx + 28 * blk + 4 * i, 4)}, {v(vo)}, {s(rWS, 4)}, {s(sT0)} offen sc1 ;#hx{blk}_{i}')
    for blk in range(2):
        for j in range(8):
            A(f'v_mov_b32 {v(acc + j)}, 0')
        for i in range(7):
            A(f'@vm hx{blk}_{i}')
            for j in range(4):
                w = xx + 28 * blk + 4 * i + j
                A(f'v_dot2c_f32_bf16 {v(acc + 2 * j)}, {v(w)}, {v(one)}')
                A(f'v_dot2c_f32_bf16 {v(acc + 2 * j + 1)}, {v(w)}, {v(w)}')
        reduce8(acc)
        A(f'ds_write_b64 {v(aw)}, {v(acc, 2)} offset:{1024 * blk}')
        A('s_waitcnt lgkmcnt(0)')
        A('s_barrier')
        A(f's_cmp_lg_u32 {s(sWave)}, {blk}')
        A(f's_cbranch_scc1 L_hs_n{blk}')
        for w in range(4):
            A(f'ds_read_b64 {v(rd + 2 * w, 2)}, {v(ar)} offset:{1024 * blk + 256 * w}')
        A(f'v_mov_b32 {v(t2)}, 0x3b124925')
        A('s_waitcnt lgkmcnt(0)')
        A(f'v_pk_add_f32 {v(rd, 2)}, {v(rd, 2)}, {v(rd + 2, 2)}')
        A(f'v_pk_add_f32 {v(rd + 4, 2)}, {v(rd + 4, 2)}, {v(rd + 6, 2)}')
        A(f'v_pk_add_f32 {v(rd, 2)}, {v(rd, 2)}, {v(rd + 4, 2)}')
        A(f'v_mul_f32 {v(rd)}, 0xbb124925, {v(rd)}')
        A(f'v_mul_f32 {v(t0)}, {v(rd)}, {v(rd)}')
        A(f'v_fma_f32 {v(rd + 1)}, {v(rd + 1)}, {v(t2)}, -{v(t0)}')
        A(f'v_max_f32 {v(rd + 1)}, 0, {v(rd + 1)}')
        A(f'v_add_f32 {v(rd + 1)}, 0x3727c5ac, {v(rd + 1)}')
        A(f'v_sqrt_f32 {v(rd + 1)}, {v(rd + 1)}')
        A(f'v_cvt_pk_bf16_f32 {v(g)}, {v(rd)}, {v(rd)}')
        A(f'v_cvt_pk_bf16_f32 {v(t1)}, {v(rd + 1)}, {v(rd + 1)}')
        A(f'v_and_b32 {v(t0)}, 0xffff0000, {v(g)}')
        A(f'v_and_b32 {v(t1)}, 0xffff0000, {v(t1)}')
        A(f'v_sub_f32 {v(rd + 2)}, {v(rd)}, {v(t0)}')
        A(f'v_sub_f32 {v(rd + 3)}, {v(rd + 1)}, {v(t1)}')
        A(f'v_cvt_pk_bf16_f32 {v(g + 1)}, {v(rd + 2)}, {v(t1)}')
        A(f'v_cvt_pk_bf16_f32 {v(g + 2)}, {v(t1)}, {v(rd + 3)}')
        A(f'v_mov_b32 {v(g + 3)}, {s(sTag)}')
        A('s_mov_b32 exec_hi, 0')
        A(f'buffer_store_dwordx4 {v(g, 4)}, {v(vr)}, {s(rWS, 4)}, {s(sM2)} offen offset:{1024 * blk} sc1 ;#cond')
        A('s_mov_b64 exec, -1')
        A(f'L_hs_n{blk}:')
    ts()


def epoch_update():
    A('s_cmp_lg_u32 s2, 32')
    A('s_cbranch_scc1 L_noep')
    A(f'v_mov_b32 v2, {s(sTag)}')
    A(f'v_mov_b32 v3, {EP}')
    A(f'buffer_store_dword v2, v3, {s(rWS, 4)}, 0 offen sc1')
    A('L_noep:')


def build():
    prologue()
    n0 = nts[0]
    m = V.mark()
    main_ffn(main_ssm())
    epoch_update()
    ts_flush('m')
    A('s_endpgm')
    A('L_helper:')
    nts[0] = n0
    V.release(m)
    helper_mod()
    helper_rest()
    ts_flush('h')
    A('L_end:')
    A('s_endpgm')
    A.ext(COLD)
    A('L_code_end:')
    if OPT['nodma']:
        keys = [s(rW, 4)] * (OPT['nodma'] & 1) + [s(rWd, 4)] * (OPT['nodma'] >> 1)
        A.lines = ['    s_nop 0' if ('buffer_load' in ln and any(k in ln for k in keys)) else ln for ln in A.lines]
    body = pad_hazards(resolve_waits(A.lines))
    hdr = open('adaLN_cond__ssm_conv_s4__swiglu_ffn__prompt.s.ref').read().split('; Override launch')[0]
    text = hdr + '; @launch grid=(256,1,1) block=(256,1,1) lds=163840\n'
    text += f'.amdgcn_target "amdgcn-amd-amdhsa--gfx950"\n.text\n.globl {NAME}\n.p2align 8\n.type {NAME},@function\n{NAME}:\n'
    text += '\n'.join(body) + '\n'
    text += f'''.section .rodata,"a"
.p2align 6
.amdhsa_kernel {NAME}
  .amdhsa_next_free_vgpr 512
  .amdhsa_next_free_sgpr 102
  .amdhsa_accum_offset 256
  .amdhsa_group_segment_fixed_size 0
  .amdhsa_kernarg_size 144
  .amdhsa_user_sgpr_count 2
  .amdhsa_user_sgpr_kernarg_segment_ptr 1
  .amdhsa_system_sgpr_workgroup_id_x 1
  .amdhsa_float_denorm_mode_32 3
.end_amdhsa_kernel
'''
    open(sys.argv[1], 'w').write(text)
    print('vgpr high water', V.hi, 'lines', len(body))


build()
```

```python
import sys
from asmgen import *

NAME = 'adaLN_cond__ssm_conv_s4__swiglu_ffn__prompt_kernel'
OPT = dict(ts=0, probe=-1, hprobe=-1, grp=0, nap=1, kb=4, x1e=3, e0=112, la=9, pl=16, osc=1, g0=0, g1=0, p0=214, f0=6, f1=10, f2=-1, f3=2, nodma=0, hdelay=0, mdelay=0, exp=0, n0=6, h1p=2, skip=0, pre1=1, tsb=2, n1=0, m2p=28, hb0=2, hb1=1, cd0=12, cd1=125, hw0=28, nc=3, se=1, s0=3, ls0=38, fs=16, q0=34, q1=48, q2=84)
for arg in sys.argv[2:]:
    k, val = arg.split('=')
    OPT[k] = int(val)

EP, ST1, MOD, AUG, ST2, FL2, FL3 = 0, 0x1000, 0x8000, 0x14000, 0x24000, 0xC0000, 0x40000
GO = 0x30000
INB, XS, X1P, ACT, TS = 0x100000, 0x500000, 0x700000, 0x900000, 0x1800000
SL = [0, 32768, 65536, 98304, 131072]
KG_W = 16320
HB, HC = 65024, 4160
KT, KT_CH, KT_C0 = 33792, 9152, 4568
XR = 52096
TXB = 13248
CKX = 60416
SPIN = 200000

pX, pAre, pAim, pBre, pBim, pCre, pCim, pLdt, pDs, pBx, pWg, pWu, pWd, pC, pWm, pOut, pDbg, pWs = range(4, 40, 2)
rX, rWS, rW, rWd, rOut, rWm = 40, 44, 48, 52, 56, 60
sWave, sTag, sJ, sMi, sNi, sMt, sNt, sRot, sLdt, sDs, sT0, sT1, sT2, sT3, sSpin, sM2 = range(64, 80)
sTS = 80
sC = 4
sW1k, sW8k, sWo, sFl, sTb = 11, 12, 13, 14, 15

A = Asm()
V = Regs('v', 6, 256)
TID, LANE, VST = 0, 1, 2
CODE_SLICE = 1152
sGi, sSo, sP, sGo = 36, 37, 63, 36
nts = [0]


def ts(grp='0'):
    if OPT['ts'] and (grp == '*' or str(OPT['grp']) in grp):
        A(f's_mem{"real" if OPT["ts"] == 1 else ""}time {s(sTS + 2 * nts[0], 2)}')
        nts[0] += 1
        assert nts[0] <= 11


def ts_flush(tag):
    if not OPT['ts']:
        return
    pk = OPT['probe' if tag == 'm' else 'hprobe']
    if max(OPT['probe'], OPT['hprobe']) >= 0:
        if pk >= 0:
            A('s_waitcnt lgkmcnt(0)')
            A(f's_add_u32 {s(sT0)}, {s(sTS + 2 * pk)}, 6000')
            A(f'L_probe{tag}:')
            A(f's_memrealtime {s(sT2, 2)}')
            A('s_waitcnt lgkmcnt(0)')
            A(f's_sub_u32 {s(sT1)}, {s(sT2)}, {s(sT0)}')
            A(f's_cmp_lt_i32 {s(sT1)}, 0')
            A(f's_cbranch_scc1 L_probe{tag}')
        return
    n = nts[0]
    A('s_waitcnt lgkmcnt(0)')
    A(f's_lshl_b32 {s(sT0)}, s2, 2')
    A(f's_add_u32 {s(sT0)}, {s(sT0)}, {s(sWave)}')
    A(f's_lshl_b32 {s(sT0)}, {s(sT0)}, 6')
    A(f's_add_u32 {s(sT0)}, {s(sT0)}, {TS}')
    A(f'v_mov_b32 v2, {s(sT0)}')
    for i in range(n):
        A(f'v_mov_b32 v3, {s(sTS + 2 * i)}')
        A(f'buffer_store_dword v3, v2, {s(rWS, 4)}, 0 offen offset:{4 * i}')


def srd(r, p, nbytes):
    A(f's_mov_b32 {s(r)}, {s(p)}')
    A(f's_mov_b32 {s(r + 1)}, {s(p + 1)}')
    A(f's_mov_b32 {s(r + 2)}, {nbytes}')
    A(f's_mov_b32 {s(r + 3)}, 0x00020000')


def cmul(d, x, y):
    return [f'v_pk_mul_f32 {v(d, 2)}, {v(x, 2)}, {v(y, 2)} op_sel:[0,0] op_sel_hi:[1,0]',
            f'v_pk_fma_f32 {v(d, 2)}, {v(x, 2)}, {v(y, 2)}, {v(d, 2)} op_sel:[1,1,0] op_sel_hi:[0,1,1] neg_lo:[0,1,0]']


def div7(q, r, x):
    A(f's_mul_i32 {s(q)}, {s(x)}, 9363')
    A(f's_lshr_b32 {s(q)}, {s(q)}, 16')
    A(f's_mul_i32 {s(r)}, {s(q)}, 7')
    A(f's_sub_u32 {s(r)}, {s(x)}, {s(r)}')


COLD = []


def tag_wait(label, loads, tags, younger=0):
    o = [f'@vm {younger}' if isinstance(younger, str) else f's_waitcnt vmcnt({younger})']
    chk = [f'v_cmpx_eq_u32 vcc, {s(sTag)}, {v(t)}' for t in tags]
    chk += ['s_nop 0', 's_cmp_eq_u64 exec, -1', 's_mov_b64 exec, -1']
    o += chk + [f's_cbranch_scc0 {label}_re', f'{label}_ok:']
    c = [f'{label}_re:', f's_mov_b32 {s(sSpin)}, {SPIN}', f'{label}_lp:', f's_sleep {OPT["nap"]}']
    c += [x.split(';#')[0] for x in loads]
    c += ['s_waitcnt vmcnt(0)'] + chk + [f's_cbranch_scc1 {label}_ok', f's_sub_u32 {s(sSpin)}, {s(sSpin)}, 1',
                                         f's_cmp_lg_u32 {s(sSpin)}, 0', f's_cbranch_scc1 {label}_lp', f's_branch {label}_ok']
    COLD.extend(c)
    return '\n'.join(o)


def stats1_addr():
    A(f's_mov_b32 {s(rX + 2)}, 1835008')
    A(f's_mov_b32 {s(rX + 3)}, 0x00020000')
    A(f's_mov_b32 {s(rWS + 2)}, 0x10000000')
    A(f's_mov_b32 {s(rWS + 3)}, 0x00020000')
    A(f's_lshl2_add_u32 {s(sGi)}, s2, {s(sWave)}')
    A(f's_mul_i32 {s(sSo)}, {s(sGi)}, 1792')
    A(f'v_lshrrev_b32 v3, 5, {v(LANE)}')
    A('v_mul_u32_u24 v3, 896, v3')
    A(f'v_and_b32 v4, 31, {v(LANE)}')
    A('v_cmp_gt_u32 vcc, 28, v4')
    A('v_lshl_add_u32 v3, v4, 4, v3')
    A('v_bfrev_b32 v4, 2')
    A(f'v_cndmask_b32 {v(VST)}, v4, v3, vcc')


def stats1_loads(d):
    if OPT['pre1']:
        A(f's_lshl_b32 {s(sSpin)}, {s(sGi)}, 4')
        A(f's_add_u32 {s(sSpin)}, {s(sSpin)}, {ST1}')
        A(f'buffer_load_dword v5, off, {s(rWS, 4)}, {s(sSpin)}')
    A(f'buffer_load_dwordx4 {v(d, 4)}, {v(VST)}, {s(rX, 4)}, {s(sSo)} offen')
    A(f'buffer_load_dwordx4 {v(d + 4, 4)}, {v(VST)}, {s(rX, 4)}, {s(sSo)} offen offset:448')


def stats1_compute(d):
    m = V.mark()
    g = V.get(4)
    s1, s2, one, t = V.get(), V.get(), V.get(), V.get()
    A(f'v_mov_b32 {v(one)}, 0x3f803f80')
    A(f'v_mov_b32 {v(s1)}, 0')
    A(f'v_mov_b32 {v(s2)}, 0')
    for i in range(8):
        A(f'v_dot2c_f32_bf16 {v(s1)}, {v(d + i)}, {v(one)}')
        A(f'v_dot2c_f32_bf16 {v(s2)}, {v(d + i)}, {v(d + i)}')
    for ctl in ('row_shr:1', 'row_shr:2', 'row_shr:4', 'row_shr:8'):
        for r in (s1, s2):
            A(f'v_add_f32_dpp {v(r)}, {v(r)}, {v(r)} {ctl} row_mask:0xf bank_mask:0xf bound_ctrl:1')
    for r in (s1, s2):
        A(f'v_add_f32_dpp {v(r)}, {v(r)}, {v(r)} row_bcast:15 row_mask:0xa bank_mask:0xf')
    A(f'v_mul_f32 {v(s1)}, 0x3b124925, {v(s1)}')
    A(f'v_mul_f32 {v(t)}, {v(s1)}, {v(s1)}')
    A(f'v_mov_b32 {v(one)}, 0x3b124925')
    A(f'v_fma_f32 {v(s2)}, {v(s2)}, {v(one)}, -{v(t)}')
    A(f'v_max_f32 {v(s2)}, 0, {v(s2)}')
    A(f'v_add_f32 {v(s2)}, 0x3727c5ac, {v(s2)}')
    A(f'v_rsq_f32 {v(g + 2)}, {v(s2)}')
    A(f'v_mov_b32 {v(g + 3)}, {s(sTag)}')
    A(f'v_mul_f32 {v(s1)}, {v(s1)}, {v(g + 2)}')
    A(f'v_readlane_b32 {s(sT1)}, {v(g + 2)}, 31')
    A(f'v_readlane_b32 {s(sT2)}, {v(s1)}, 31')
    A(f's_lshl_b32 {s(sT0)}, {s(sGi)}, 4')
    A(f's_add_u32 {s(sT0)}, {s(sT0)}, {ST1}')
    A(f'v_mov_b32 {v(g + 1)}, {s(sT1)}')
    A(f'v_cvt_pk_bf16_f32 {v(g)}, -{s(sT2)}, -{v(s1)}')
    A('s_mov_b32 exec_lo, 0')
    A('s_mov_b32 exec_hi, 0x80000000')
    A(f'buffer_store_dwordx4 {v(g, 4)}, off, {s(rWS, 4)}, {s(sT0)} sc1')
    A('s_mov_b64 exec, -1')
    V.release(m)


def reduce8(acc):
    for j in range(4):
        A(f'v_permlane32_swap_b32 {v(acc + j)}, {v(acc + j + 4)}')
    for j in range(4):
        A(f'v_add_f32 {v(acc + j)}, {v(acc + j)}, {v(acc + j + 4)}')
    for j in range(2):
        A(f'v_permlane16_swap_b32 {v(acc + j)}, {v(acc + j + 2)}')
    for j in range(2):
        A(f'v_add_f32 {v(acc + j)}, {v(acc + j)}, {v(acc + j + 2)}')
    for j in range(2):
        A(f'v_add_f32_dpp {v(acc + j)}, {v(acc + j)}, {v(acc + j)} row_ror:8 row_mask:0xf bank_mask:0xf')


def bf16_pair_from_partials(dst, g0, g1, plus1):
    A(f'v_add_f32 {v(dst)}, {v(g0)}, {v(g1)}')
    A(f'v_add_f32 {v(dst + 1)}, {v(g0 + 1)}, {v(g1 + 1)}')
    A(f'v_cvt_pk_bf16_f32 {v(g0)}, {v(dst)}, {v(dst + 1)}')
    A(f'v_lshlrev_b32 {v(dst)}, 16, {v(g0)}')
    A(f'v_and_b32 {v(dst + 1)}, 0xffff0000, {v(g0)}')
    if plus1:
        A(f'v_add_f32 {v(dst)}, 1.0, {v(dst)}')
        A(f'v_add_f32 {v(dst + 1)}, 1.0, {v(dst + 1)}')
        A(f'v_cvt_pk_bf16_f32 {v(g0)}, {v(dst)}, {v(dst + 1)}')
        A(f'v_lshlrev_b32 {v(dst)}, 16, {v(g0)}')
        A(f'v_and_b32 {v(dst + 1)}, 0xffff0000, {v(g0)}')


def prologue():
    A('s_cmp_ge_u32 s2, 256')
    A('s_cbranch_scc1 L_end')
    ts('*')
    A(f's_load_dwordx2 {s(rX, 2)}, s[0:1], 0')
    A(f's_load_dwordx2 {s(rWS, 2)}, s[0:1], 136')
    A('s_load_dwordx16 s[4:19], s[0:1], 0')
    A('s_load_dwordx16 s[20:35], s[0:1], 64')
    A(f's_getpc_b64 {s(sT2, 2)}')
    A('L_pc:')
    A(f's_lshr_b32 {s(sT0)}, s2, 3')
    A(f's_mul_i32 {s(sT0)}, {s(sT0)}, {CODE_SLICE}')
    A(f'v_lshrrev_b32 v3, 6, {v(TID)}')
    A(f'v_min_u32 v4, {CODE_SLICE // 128 - 1}, {v(TID)}')
    A(f'v_lshl_add_u32 v4, v4, 7, {s(sT0)}')
    A('v_min_u32 v4, L_code_end-L_pc-4, v4')
    A(f'v_readfirstlane_b32 {s(sWave)}, v3')
    A(f'v_and_b32 {v(LANE)}, 63, {v(TID)}')
    A(f'global_load_dword v5, v4, {s(sT2, 2)}')
    A(f's_sub_u32 {s(sJ)}, s2, 32')
    A('s_cbranch_scc1 L_helper')


UEXP = {}
for vv in range(14):
    for hh in range(2):
        if vv < 4:
            e = 4 * hh + vv
        elif vv < 7:
            e = 256 + 4 * hh + 2 * (vv - 4)
        elif vv < 10:
            e = 512 + 256 * hh + 4 * (vv - 7)
        elif vv < 12:
            e = 1024 + 512 * hh + 8 * (vv - 10)
        else:
            e = 1280 + 512 * hh + 8 * (vv - 12)
        rho = 8 * (vv >> 2) + 4 * hh + (vv & 3)
        UEXP.setdefault(e, []).append(rho if rho < 26 else rho - 2)


def stage_dma(cc, slot, voff, rsrc, rowb):
    out = []
    for i in range(8):
        u = ''
        if i % 4 == 0:
            u += f's_add_u32 m0, {s(sW8k)}, {SL[slot] + 1024 * i}\n'
        if i == 0:
            u += f's_mul_i32 {s(sWo)}, {s(sC + cc)}, {rowb // 64}\n'
        else:
            u += f's_add_u32 {s(sWo)}, {s(sWo)}, {8 * rowb + (3072 if i == 4 else -1024)}\n'
        u += f'buffer_load_dwordx4 {v(voff)}, {s(rsrc, 4)}, {s(sWo)} offen offset:{1024 * (i % 4)} lds'
        out.append(u)
    return out


def w_dma(cc, slot, P):
    return stage_dma(cc, slot, P['vW'], rW, 3584)


def wd_dma(cc, slot, P):
    return stage_dma(cc, slot, P['vWd'], rWd, 896)


def w_frags(cc, slot, P):
    out = []
    base, off = P['vWr'][slot // 2], 32768 * (slot % 2)
    for ks in range(4):
        for mat in range(2):
            for e in range(2):
                r = (mat * 28 + cc * 4 + ks) * 4 + 2 * e
                out.append(f'ds_read_b64_tr_b16 {a(r, 2)}, {v(base)} offset:{off + mat * 16384 + (16 * ks + 4 * e) * 128}')
    return out


def wdreg(cc, j, db, P):
    i = (j * 4 + db) * 4
    if cc == 0:
        return 'a', 224 + i
    if cc < 3:
        return 'v', P['wdv'] + 32 * (cc - 1) + i
    return 'a', 32 * (cc - 3) + i


def rn(kr, n):
    return (a if kr[0] == 'a' else v)(kr[1], n)


def wd_addr(slot, P):
    d = P['vDr']
    return [f'v_xor_b32 {v(d[1 + db])}, {SL[slot & ~1] + 32 * db}, {v(d[0])}' for db in range(4)]


def wd_frags(cc, slot, P):
    o = []
    for j in range(2):
        for db in range(4):
            k, r = wdreg(cc, j, db, P)
            for e in range(2):
                o.append(f'ds_read_b64_tr_b16 {rn((k, r + 2 * e), 2)}, {v(P["vDr"][1 + db])} offset:{32768 * (slot % 2) + (32 * j + 8 * e) * 128} ;#df{cc}')
    o[0] = f'@vm d{cc}\n' + o[0]
    return o


def flat(units):
    return [ln for u in units for ln in u.split('\n') if ln.strip()]


def tr_lane(dst, t0, t1, hmul, rowb):
    A(f'v_lshrrev_b32 {v(t0)}, 5, {v(LANE)}')
    A(f'v_bfe_u32 {v(t1)}, {v(LANE)}, 2, 2')
    A(f'v_lshl_add_u32 {v(t0)}, {v(t0)}, {hmul.bit_length() - 1}, {v(t1)}')
    A(f'v_lshlrev_b32 {v(dst)}, {rowb.bit_length() - 1}, {v(t0)}')
    A(f'v_bfe_u32 {v(t1)}, {v(LANE)}, 4, 1')
    A(f'v_lshl_add_u32 {v(dst)}, {v(t1)}, 5, {v(dst)}')
    A(f'v_and_b32 {v(t1)}, 3, {v(LANE)}')
    A(f'v_lshl_add_u32 {v(dst)}, {v(t1)}, 3, {v(dst)}')


def capture(fn):
    keep, A.lines = A.lines, []
    fn()
    got, A.lines = [x.strip() for x in A.lines], keep
    return got


def main_ssm():
    P = {}
    V.release(2)
    V.get(4)
    vWd = V.get()
    vDr = [V.get() for _ in range(5)]
    vW = V.get()
    vWr = [V.get() for _ in range(3)]
    vXr = [V.get() for _ in range(3)]
    vFp = V.get()
    P.update(vW=vW, vWr=vWr, vWd=vWd, vDr=vDr, vXr=vXr, vFp=vFp)
    mp = V.mark()
    vM, aA, aB, aE, a0, aO, aXr, aCw = [V.get() for _ in range(8)]
    RAW = V.get(8)
    mb = V.mark()
    vI, aX, aF, aZ, aKr = [V.get() for _ in range(5)]
    G = V.get(8)
    S = V.get(16)
    mk = V.mark()
    par = V.get(6)
    T = V.get(16, 4)
    st = V.get(8)
    q, tp, t0, t1, t2, vG = [V.get() for _ in range(6)]
    dt = V.get(2)
    aU, aV, ax, ay, aK, aK2 = [V.get() for _ in range(6)]
    fU, fV = V.get(32), V.get(32)
    e2, rv = V.get(), V.get()
    B_, C_, W_, z1, z2, z4, z8, z256 = [V.get(2) for _ in range(8)]
    pp = [V.get(2) for _ in range(4)]
    cv = [V.get() for _ in range(8)]
    sKG, sKT, sOdd = 38, 39, 23
    sWg, sGa, sGc, sGs, sCb = 60, 24, 26, 30, 32
    A(f's_and_b32 {s(sT2)}, {s(sJ)}, 7')
    A(f's_lshr_b32 {s(sT3)}, {s(sJ)}, 3')
    A(f's_mul_i32 {s(sP)}, {s(sT2)}, 28')
    A(f's_add_u32 {s(sP)}, {s(sP)}, {s(sT3)}')
    A(f's_lshl_b32 {s(sT0)}, {s(sP)}, 10')
    A(f'v_lshl_add_u32 {v(t1)}, {v(TID)}, 2, {s(sT0)}')
    A(f's_lshl_b32 {s(sT1)}, {s(sP)}, 2')
    A('s_waitcnt lgkmcnt(0)')
    ts('1')
    for i, p in enumerate((pAre, pAim, pBre, pBim, pCre, pCim)):
        A(f'global_load_dword {v(par + i)}, {v(t1)}, {s(p, 2)} ;#par')
    A(f's_load_dword {s(sLdt)}, {s(pLdt, 2)}, {s(sT1)}')
    A(f's_load_dword {s(sDs)}, {s(pDs, 2)}, {s(sT1)}')
    A(f's_load_dword {s(sTag)}, {s(rWS, 2)}, {EP}')
    stats1_addr()
    A(f'v_min_u32 {v(t0)}, 147, {v(TID)}')
    A(f'v_lshrrev_b32 {v(t2)}, 1, {v(t0)}')
    A(f'v_mul_u32_u24 {v(t2)}, 896, {v(t2)}')
    A(f'v_and_b32 {v(t0)}, 1, {v(t0)}')
    A(f'v_mul_u32_u24 {v(t0)}, 108, {v(t0)}')
    A(f'v_add_u32 {v(t0)}, {v(t0)}, {v(t2)}')
    A(f's_mul_i32 {s(sT0)}, {s(sT3)}, {74 * 8}')
    A(f's_add_u32 {s(sT0)}, {s(sT0)}, {s(sT2)}')
    A(f's_mul_i32 {s(sT0)}, {s(sT0)}, 112')
    A.ext(tagged(capture(lambda: stats1_loads(st)), 'xa'))
    A(f'buffer_load_dword v5, {v(t0)}, {s(rX, 4)}, {s(sT0)} offen')
    A(f'v_mul_u32_u24 {v(vG)}, 1792, {v(LANE)}')
    A(f's_mul_i32 {s(sM2)}, {s(sWave)}, {256 * 1792}')
    A(f's_add_u32 {s(sM2)}, {s(sM2)}, {s(sT1)}')
    col = []
    for k in range(4):
        col.append(f'buffer_load_dword {v(G + 2 * k)}, {v(vG)}, {s(rX, 4)}, {s(sM2)} offen')
        col.append(f'buffer_load_dword {v(G + 2 * k + 1)}, {v(vG)}, {s(rX, 4)}, {s(sM2)} offen offset:896\ns_add_u32 {s(sM2)}, {s(sM2)}, {64 * 1792}')
    A(f's_and_b32 {s(sOdd)}, {s(sWave)}, 1')
    A(f's_mul_i32 {s(sKG)}, {s(sWave)}, {KG_W}')
    A(f's_lshr_b32 {s(sT2)}, {s(sWave)}, 1')
    A(f's_mul_i32 {s(sKT)}, {s(sT2)}, {KT_CH}')
    A(f's_add_u32 {s(sKT)}, {s(sKT)}, {KT}')
    A(f'v_and_b32 {v(t0)}, 31, {v(LANE)}')
    A(f'v_lshrrev_b32 {v(t1)}, 5, {v(LANE)}')
    A(f'v_lshl_add_u32 {v(t2)}, {v(t1)}, 4, {s(sKG)}')
    A(f'v_mul_u32_u24 {v(aV)}, 272, {v(t0)}')
    A(f'v_add_u32 {v(aV)}, {v(aV)}, {v(t2)}')
    A(f'v_cmp_lt_u32 vcc, 27, {v(t0)}')
    A(f'v_add_u32 {v(aU)}, {32 * 272}, {v(aV)}')
    A(f'v_add_u32 {v(t2)}, {30 * 272}, {v(aV)}')
    A(f'v_cndmask_b32 {v(aU)}, {v(aU)}, {v(t2)}, vcc')
    A(f'v_lshlrev_b32 {v(t0)}, 4, {v(t0)}')
    A(f'v_sub_u32 {v(t0)}, {s(sKT)}, {v(t0)}')
    A(f'v_lshlrev_b32 {v(aK)}, 3, {v(t1)}')
    A(f'v_sub_u32 {v(aK)}, {v(t0)}, {v(aK)}')
    A(f's_add_u32 {s(sT0)}, {s(sOdd)}, 9')
    A(f'v_lshlrev_b32 {v(aK2)}, {s(sT0)}, {v(t1)}')
    A(f'v_sub_u32 {v(aK2)}, {v(t0)}, {v(aK2)}')
    A(f'v_lshl_add_u32 {v(ax)}, {v(LANE)}, 4, {s(sKG)}')
    A(f's_xor_b32 {s(sT0)}, {s(sWave)}, 1')
    A(f's_mul_i32 {s(sT0)}, {s(sT0)}, {KG_W}')
    A(f'v_lshl_add_u32 {v(ay)}, {v(LANE)}, 4, {s(sT0)}')
    A(f's_lshl_b32 {s(sT0)}, {s(sWave)}, 12')
    A(f'v_lshl_add_u32 {v(vI)}, {v(LANE)}, 4, {s(sT0)}')
    A(f'v_mov_b32 {v(cv[7])}, 0x3f80')
    A(f's_mov_b32 m0, {s(sKG)}')
    A(f's_lshl_b32 {s(sW1k)}, {s(sWave)}, 10')
    A(f's_lshl_b32 {s(sW8k)}, {s(sWave)}, 13')
    A(f'ds_write_addtid_b32 {v(cv[7])}')
    A.ext(col[:OPT['se']])

    def late_setup():
        A(f'v_lshrrev_b32 {v(q)}, 3, {v(LANE)}')
        A(f'v_and_b32 {v(tp)}, 7, {v(LANE)}')
        A(f's_lshr_b32 {s(sT0)}, {s(sJ)}, 3')
        div7(sMi, sNi, sT0)
        A(f's_bfe_u32 {s(sT1)}, {s(sJ)}, 0x20001')
        A(f's_lshl2_add_u32 {s(sMt)}, {s(sT1)}, {s(sMi)}')
        A(f's_and_b32 {s(sT1)}, {s(sJ)}, 1')
        A(f's_mul_i32 {s(sNt)}, {s(sT1)}, 7')
        A(f's_add_u32 {s(sNt)}, {s(sNt)}, {s(sNi)}')
        A(f's_lshl1_add_u32 {s(sRot)}, {s(sMi)}, {s(sNi)}')
        A(f's_lshl_b32 {s(sRot)}, {s(sRot)}, 2')
        A(f's_mov_b32 {s(sT2)}, 0x06543210')
        A(f's_mov_b32 {s(sT3)}, 0x10654321')
        A(f's_cmp_ge_u32 {s(sRot)}, 28\ns_cselect_b32 {s(sT1)}, 28, 0')
        A(f's_sub_u32 {s(sRot)}, {s(sRot)}, {s(sT1)}')
        A(f's_lshr_b64 {s(sT2, 2)}, {s(sT2, 2)}, {s(sRot)}')
        A(f's_cmp_lt_u32 {s(sWave)}, 2')
        A(f's_cselect_b64 {s(rW, 2)}, {s(pWg, 2)}, {s(pWu, 2)}')
        A(f's_mov_b32 {s(rW + 2)}, 1605632')
        A(f's_mov_b32 {s(rW + 3)}, 0x00020000')
        for cc in range(7):
            A(f's_bfe_u32 {s(sT0)}, {s(sT2)}, {hex(0x30000 + 4 * cc)}')
            A(f's_lshl_b32 {s(sC + cc)}, {s(sT0)}, 12')
        A(f'v_lshlrev_b32 {v(t0)}, 1, {v(q)}')
        A(f'v_and_b32 {v(t0)}, 4, {v(t0)}')
        A(f'v_xor_b32 {v(t0)}, {v(t0)}, {v(tp)}')
        A(f'v_lshlrev_b32 {v(t0)}, 4, {v(t0)}')
        A(f's_lshl1_add_u32 {s(sT0)}, {s(sNt)}, {s(sOdd)}')
        A(f's_lshl_b32 {s(sT0)}, {s(sT0)}, 7')
        A(f'v_mul_u32_u24 {v(vW)}, 3584, {v(q)}')
        A(f'v_add3_u32 {v(vW)}, {v(vW)}, {v(t0)}, {s(sT0)}')
        A(f's_mul_i32 {s(sT0)}, {s(sWave)}, {448 * 7}')
        A(f's_add_u32 {s(sT0)}, {s(sT0)}, {s(sNi)}')
        A(f's_lshl_b32 {s(sT0)}, {s(sT0)}, 7')
        A(f'v_and_b32 {v(t0)}, 6, {v(q)}')
        A(f'v_xor_b32 {v(t0)}, {v(t0)}, {v(tp)}')
        A(f'v_lshlrev_b32 {v(t0)}, 4, {v(t0)}')
        A(f'v_mul_u32_u24 {v(vWd)}, 896, {v(q)}')
        A(f'v_add3_u32 {v(vWd)}, {v(vWd)}, {v(t0)}, {s(sT0)}')
        A(f's_lshr_b32 {s(sT2)}, {s(sWave)}, 1')
        A(f's_lshl_b32 {s(sT1)}, {s(sOdd)}, 8')
        A(f's_mul_i32 {s(sT0)}, {s(sT2)}, {4 * HC}')
        A(f's_add_u32 {s(sT0)}, {s(sT0)}, {s(sT1)}')
        A(f's_add_u32 {s(sT0)}, {s(sT0)}, {HB}')
        A(f's_add_u32 {s(sT1)}, {s(sT1)}, {s(sKT)}')
        A(f's_add_u32 {s(sT1)}, {s(sT1)}, {KT_C0 + 4040 - 3584}')
        A(f'v_lshrrev_b32 {v(t0)}, 4, {v(LANE)}')
        A(f'v_bfe_u32 {v(t1)}, {v(LANE)}, 2, 2')
        A(f'v_add_u32 {v(t1)}, {v(t1)}, {v(t0)}')
        A(f'v_and_b32 {v(t2)}, 3, {v(LANE)}')
        A(f'v_mul_u32_u24 {v(e2)}, {HC}, {v(t2)}')
        A(f'v_lshl_add_u32 {v(aA)}, {v(t1)}, 4, {v(e2)}')
        A(f'v_add_u32 {v(aA)}, {s(sT0)}, {v(aA)}')
        A(f'v_lshl_add_u32 {v(aB)}, {v(t0)}, 4, {s(sT1)}')
        A(f'v_lshlrev_b32 {v(t1)}, 6, {v(tp)}')
        A(f'v_sub_u32 {v(aB)}, {v(aB)}, {v(t1)}')
        A(f'v_and_b32 {v(t1)}, 1, {v(q)}')
        A(f'v_mul_u32_u24 {v(t1)}, {KT_C0 + 8}, {v(t1)}')
        A(f'v_sub_u32 {v(aB)}, {v(aB)}, {v(t1)}')
        A(f'v_lshrrev_b32 {v(t0)}, 2, {v(TID)}')
        A(f'v_mul_u32_u24 {v(aO)}, 28672, {v(t0)}')
        A(f'v_lshl_add_u32 {v(aO)}, {v(t2)}, 4, {v(aO)}')
        A(f'v_lshrrev_b32 {v(t1)}, 1, {v(tp)}')
        A(f'v_and_b32 {v(t2)}, 1, {v(tp)}')
        A(f'v_lshl_add_u32 {v(t1)}, {v(t2)}, 2, {v(t1)}')
        A(f'v_xor_b32 {v(t1)}, {v(t1)}, {v(q)}')
        A(f'v_lshl_add_u32 {v(t1)}, {v(tp)}, 3, {v(t1)}')
        A(f'v_lshl_add_u32 {v(aE)}, {v(t1)}, 4, {s(sW8k)}')
        A(f'v_mul_u32_u24 {v(aZ)}, {HC}, {v(q)}')
        A(f'v_lshl_add_u32 {v(aZ)}, {v(tp)}, 3, {v(aZ)}')
        A(f'v_add_u32 {v(aZ)}, {HB}, {v(aZ)}')
        A(f'v_lshrrev_b32 {v(aX)}, 1, {v(vI)}')
        A(f'v_add_u32 {v(aX)}, {XR}, {v(aX)}')
        A(f's_add_u32 {s(sT1)}, {s(sW1k)}, {HB + 1024}')
        A(f's_add_u32 {s(sT0)}, {s(sW1k)}, {HB + 2}')
        A(f'v_mov_b32 {v(aF)}, {s(sT1)}')
        A(f'v_writelane_b32 {v(aF)}, {s(sT0)}, 0')
        A(f'v_lshlrev_b32 {v(aXr)}, 5, {v(TID)}')
        A(f'v_add_u32 {v(aXr)}, {XR}, {v(aXr)}')
        A(f'v_and_b32 {v(t0)}, 3, {v(q)}')
        A(f'v_and_b32 {v(t1)}, 4, {v(TID)}')
        A(f'v_or_b32 {v(t0)}, {v(t0)}, {v(t1)}')
        A(f'v_lshlrev_b32 {v(t1)}, 1, {v(TID)}')
        A(f'v_xor_b32 {v(t0)}, {v(t0)}, {v(t1)}')
        A(f'v_lshlrev_b32 {v(a0)}, 4, {v(t0)}')
        A(f'v_lshlrev_b32 {v(t0)}, 4, {v(TID)}')
        A(f'v_sub_u32 {v(aKr)}, {KT + 4080}, {v(t0)}')
        A(f'v_lshlrev_b32 {v(aCw)}, 3, {v(TID)}')
        A(f'v_add_u32 {v(t0)}, 2, {v(tp)}')
        A(f'v_lshrrev_b32 {v(t0)}, 3, {v(t0)}')
        A(f'v_lshl_add_u32 {v(t0)}, {v(t0)}, 1, {v(tp)}')
        A(f'v_mul_u32_u24 {v(vM)}, 3584, {v(t0)}')
        A(f's_lshl_b32 {s(sT0)}, {s(sP)}, 4')
        A(f's_add_u32 {s(sT0)}, {s(sT0)}, {MOD}')
        A(f'v_add_u32 {v(vM)}, {s(sT0)}, {v(vM)}')
        for i in range(3):
            A(f's_cmp_gt_u32 {s(sWave)}, {i}')
            A(f's_cselect_b32 {s(sWg + i)}, 1.0, 0')

    def window_setup(t0, t1, t2, t3, t4):
        srd(rWd, pWd, 1605632)
        srd(rOut, pOut, 1835008)
        A(f'v_lshrrev_b32 {v(t1)}, 5, {v(LANE)}')
        A(f'v_bfe_u32 {v(t0)}, {v(LANE)}, 4, 1')
        A(f'v_and_b32 {v(t2)}, 3, {v(LANE)}')
        A(f'v_lshlrev_b32 {v(t2)}, 3, {v(t2)}')
        A(f'v_lshl_add_u32 {v(t2)}, {v(t0)}, 5, {v(t2)}')
        A(f'v_bfe_u32 {v(t0)}, {v(LANE)}, 2, 2')
        A(f'v_lshl_add_u32 {v(t3)}, {v(t1)}, 3, {v(t0)}')
        A(f'v_lshl_add_u32 {v(vXr[0])}, {v(t3)}, 6, {v(t2)}')
        A(f'v_and_b32 {v(t0)}, 8, {v(LANE)}')
        A(f'v_lshl_add_u32 {v(t2)}, {v(t0)}, 3, {v(t2)}')
        A(f'v_bfe_u32 {v(t4)}, {v(LANE)}, 2, 3')
        A(f'v_lshl_add_u32 {v(t1)}, {v(t1)}, 4, {v(t4)}')
        A(f'v_lshrrev_b32 {v(t4)}, 1, {v(t4)}')
        A(f'v_lshlrev_b32 {v(t4)}, 5, {v(t4)}')
        A(f'v_lshl_add_u32 {v(t4)}, {v(t1)}, 7, {v(t4)}')
        A(f'v_and_b32 {v(t1)}, 3, {v(LANE)}')
        A(f'v_lshl_add_u32 {v(t4)}, {v(t1)}, 3, {v(t4)}')
        A(f'v_add_u32 {v(vDr[0])}, {s(sW8k)}, {v(t4)}')
        A.ext(wd_addr(2, P))
        A(f's_lshr_b32 {s(sT0)}, {s(sWave)}, 1')
        A(f's_lshl_b32 {s(sT0)}, {s(sT0)}, 7')
        A(f's_add_u32 {s(sT0)}, {s(sT0)}, {s(sOdd)}')
        A(f's_lshl_b32 {s(sT0)}, {s(sT0)}, 6')
        A(f'v_lshl_add_u32 {v(vWr[0])}, {v(t3)}, 7, {v(t2)}')
        A(f'v_xor_b32 {v(vWr[0])}, {s(sT0)}, {v(vWr[0])}')
        for i in range(1, 3):
            A(f'v_add_u32 {v(vXr[i])}, 65536, {v(vXr[i - 1])}')
            A(f'v_add_u32 {v(vWr[i])}, 65536, {v(vWr[i - 1])}')
    P['window_setup'] = window_setup
    ls = capture(late_setup)
    A.ext(ls[:OPT['ls0']])
    ts('1')
    A('s_waitcnt lgkmcnt(0)')
    A(f's_add_u32 {s(sTag)}, {s(sTag)}, 1')
    A(f's_lshl_b32 {s(sT0)}, {s(sLdt)}, 16')
    A(f's_and_b32 {s(sT1)}, {s(sLdt)}, 0xffff0000')
    A(f's_lshl_b32 {s(sT2)}, {s(sDs)}, 16')
    A(f's_and_b32 {s(sT3)}, {s(sDs)}, 0xffff0000')
    A(f's_cmp_lt_u32 {s(sWave)}, 2')
    A(f's_cselect_b32 {s(sLdt)}, {s(sT0)}, {s(sT1)}')
    A(f's_cselect_b32 {s(sDs)}, {s(sT2)}, {s(sT3)}')
    A(f'v_mov_b32 {v(t0)}, 0x3fb8aa3b')
    A(f'v_mul_f32 {v(dt)}, {s(sLdt)}, {v(t0)}')
    A(f'v_exp_f32 {v(dt)}, {v(dt)}')
    A(f'v_cvt_pk_bf16_f32 {v(dt)}, {v(dt)}, {v(dt)}')
    A(f'v_lshlrev_b32 {v(dt)}, 16, {v(dt)}')
    A('@vm par')
    ts('01')

    def setup(it):
        o = []
        un = (lambda d, x: f'v_lshlrev_b32 {v(d)}, 16, {v(x)}') if it == 0 else (lambda d, x: f'v_and_b32 {v(d)}, 0xffff0000, {v(x)}')
        o += [un(e2, par), un(rv, par + 1), un(B_, par + 2), un(B_ + 1, par + 3), un(C_, par + 4), un(C_ + 1, par + 5)]
        o += [f'v_mul_f32 {v(e2)}, {v(dt)}, {v(e2)}', f'v_mul_f32 {v(rv)}, {v(dt)}, {v(rv)}',
              f'v_mul_f32 {v(e2)}, 0x3fb8aa3b, {v(e2)}', f'v_mul_f32 {v(rv)}, 0.15915494, {v(rv)}',
              f'v_mul_f32 {v(B_)}, {v(dt)}, {v(B_)}', f'v_mul_f32 {v(B_ + 1)}, {v(dt)}, {v(B_ + 1)}']
        for z, p in ((z8, 0x41000000), (z1, None), (z256, 0x43800000)):
            if p is None:
                o += [f'v_exp_f32 {v(t0)}, {v(e2)}', f'v_fract_f32 {v(t1)}, {v(rv)}']
            else:
                o += [f'v_mul_f32 {v(t0)}, {hex(p)}, {v(e2)}', f'v_mul_f32 {v(t1)}, {hex(p)}, {v(rv)}',
                      f'v_exp_f32 {v(t0)}, {v(t0)}', f'v_fract_f32 {v(t1)}, {v(t1)}']
            o += [f'v_cos_f32 {v(z)}, {v(t1)}', f'v_sin_f32 {v(z + 1)}, {v(t1)}',
                  f'v_mul_f32 {v(z)}, {v(z)}, {v(t0)}', f'v_mul_f32 {v(z + 1)}, {v(z + 1)}, {v(t0)}']
        return o

    vals = []

    def put(pre, x, rows, neg):
        c = cv[len(vals) % 8]
        vals.append((pre + [f'v_cvt_pk_bf16_f32 {v(c)}, {v(x)}, {"-" if neg else ""}{v(x + 1)}'],
                     [f'ds_write_addtid_b32 {v(c)} offset:{272 * r}' for r in rows]))

    def putU(pre, x, e):
        put(pre, x, [32 + r for r in UEXP[e]], True)

    put(cmul(z2, z1, z1), z8, [1], False)
    putU(cmul(W_, C_, B_) + cmul(z4, z2, z2), W_, 0)
    cur = z8
    for j in range(2, 32):
        put(cmul(pp[j % 2], cur, z8), pp[j % 2], [j], False)
        cur = pp[j % 2]
    cur = W_
    for e in range(1, 8):
        putU(cmul(pp[e % 2], cur, z1), pp[e % 2], e)
        cur = pp[e % 2]
    qc = W_
    for k in range(1, 8):
        qn = pp[2 + k % 2]
        putU(cmul(qn, qc, z256), qn, 256 * k)
        qc = qn
        step, zz, n = (2, z2, 4) if k == 1 else ((4, z4, 2) if k < 4 else (8, z8, 1))
        cur = qn
        for i in range(1, n + 1):
            putU(cmul(pp[i % 2], cur, zz), pp[i % 2], 256 * k + step * i)
            cur = pp[i % 2]

    h1 = [f's_mov_b32 {s(sSo)}, {ST1}']
    for k in range(4):
        h1.append(f'buffer_load_dwordx4 {v(S + 4 * k, 4)}, {v(vI)}, {s(rWS, 4)}, {s(sSo)} offen offset:{1024 * k} sc1')

    def mkpairs(cc, slot, vo_, rs, rowb, tg):
        o = []
        for i in range(4):
            u = [f's_add_u32 m0, {s(sW8k)}, {SL[slot] + 2048 * i}']
            u.append(f's_mul_i32 {s(sWo)}, {s(sC + cc)}, {rowb // 64}' if i == 0 else f's_add_u32 {s(sWo)}, {s(sWo)}, {8 * rowb + 1024}')
            u.append(f'buffer_load_dwordx4 {v(vo_)}, {s(rs, 4)}, {s(sWo)} offen lds ;#{tg}{cc}')
            u.append(f's_add_u32 {s(sWo)}, {s(sWo)}, {8 * rowb - 1024}')
            u.append(f'buffer_load_dwordx4 {v(vo_)}, {s(rs, 4)}, {s(sWo)} offen offset:1024 lds ;#{tg}{cc}')
            o.append('\n'.join(u))
        return o
    rest = mkpairs(0, 3, vW, rW, 3584, 'w') + mkpairs(1, 4, vW, rW, 3584, 'w')
    NB = OPT['kb']
    nbat = (len(vals) + NB - 1) // NB
    vdone = (32 + NB - 1) // NB

    def chains(dm, extra={}):
        dd = spread(nbat, dm, 0, nbat - 1)
        vr = spread(nbat, [f'ds_read_b128 {v(fV + 4 * ks, 4)}, {v(aV)} offset:{32 * ks}' for ks in range(8)], vdone, nbat - 1)
        for bi in range(nbat):
            grp = vals[NB * bi:NB * bi + NB]
            A('.p2align 3')
            for x in grp:
                A.ext(x[0])
            A.ext(extra.get(bi, []))
            A.ext(dd.get(bi, []))
            A.ext(vr.get(bi, []))
            for x in grp:
                A.ext(x[1])
        for ks in range(8):
            A(f'ds_read_b128 {v(fU + 4 * ks, 4)}, {v(aU)} offset:{32 * ks}')

    def kmm(first):
        return [f'v_mfma_f32_32x32x16_bf16 {v(T, 16)}, {v(fU + 4 * ks, 4)}, {v(fV + 4 * ks, 4)}, {"0" if first and ks == 0 else v(T, 16)}' for ks in range(8)]
    tail = {ks: [f's_waitcnt lgkmcnt({6 - ks})'] for ks in range(0, 7)}
    pub = ['@vm xa'] + capture(lambda: stats1_compute(st)) + capture(lambda: ts('1'))
    SE, S0 = OPT['se'], OPT['s0']
    A.ext(setup(0))
    chains(col[SE:SE + S0], {OPT['tsb']: pub})
    su = setup(1)
    A.ext(su[:10])
    A('s_waitcnt lgkmcnt(7)')
    A.ext(sched(kmm(True), {}, tail, su[10:], 24)[0])
    ts('1')
    chains(col[SE + S0:])
    ts('1')
    R, K_ = B_, pp[0]
    HP = OPT['h1p']
    A(f'v_mov_b32 {v(cv[0])}, 0')
    A(f'v_mov_b32 {v(cv[1])}, 0')
    A(f's_mul_i32 {s(sT0)}, {s(sOdd)}, {KT_C0}')
    A(f's_add_u32 m0, {s(sT0)}, {s(sKT)}')
    A('s_waitcnt lgkmcnt(7)')
    L0 = OPT['ls0']
    A.ext(sched(kmm(False), spread(8, h1, 0, 7) if HP == 0 else {}, tail, ls[L0:L0 + 38], 24)[0])
    A(f's_cmp_lg_u32 {s(sOdd)}, 0')
    A('s_cbranch_scc1 L_expB')
    A(f'ds_write_b128 {v(ax)}, {v(T + 10, 4)}')
    A('s_mov_b64 exec, 1')
    A(f'v_add_f32 {v(T)}, {s(sDs)}, {v(T)}')
    A('s_mov_b64 exec, -1')
    A('s_waitcnt lgkmcnt(0)')
    A('s_barrier')
    for i in range(3):
        A(f'ds_read_b128 {v(R + 4 * i, 4)}, {v(ay)} offset:{TXB + 1024 * i}')
    mid = h1 if HP == 1 else []
    A.ext(mid)
    A('s_waitcnt lgkmcnt(0)')
    for i in range(0, 10, 2):
        A(f'v_pk_add_f32 {v(T + i, 2)}, {v(T + i, 2)}, {v(R + i, 2)}')
    for d, (x, y) in enumerate(((3, 2), (1, 0), (6, 5), (4, 4), (9, 9), (8, 8), (8, 7), (7, 7))):
        A(f'v_cvt_pk_bf16_f32 {v(K_ + d)}, {v(T + x)}, {v(T + y)}')
    for cp in (0, KT_C0):
        A(f'ds_write_b64 {v(aK)}, {v(K_, 2)} offset:{cp + 2 * 2044}')
        A(f'ds_write_b64 {v(aK)}, {v(K_ + 2, 2)} offset:{cp + 2 * 1788}')
        A(f'ds_write_b64 {v(aK2)}, {v(K_ + 4, 2)} offset:{cp + 2 * 1528}')
        A(f'ds_write_b64 {v(aK2)}, {v(K_ + 6, 2)} offset:{cp + 2 * 1528 + 8}')
    A('s_branch L_expD')
    A('L_expB:')
    for i in range(3):
        A(f'ds_write_b128 {v(ax)}, {v(T + 4 * i, 4)} offset:{TXB + 1024 * i}')
    A('s_mov_b32 vcc_lo, 0xaaaaaaaa')
    A('s_mov_b32 vcc_hi, 0xaaaaaaaa')
    A('s_waitcnt lgkmcnt(0)')
    A('s_barrier')
    A(f'ds_read_b128 {v(R, 4)}, {v(ay)}')
    A.ext(mid)
    A('s_waitcnt lgkmcnt(0)')
    for i in range(0, 4, 2):
        A(f'v_pk_add_f32 {v(T + 10 + i, 2)}, {v(T + 10 + i, 2)}, {v(R + i, 2)}')
    for wdw in range(2):
        v0_, v8_ = T + 10 + 2 * wdw, T + 11 + 2 * wdw
        A(f'v_cndmask_b32 {v(cv[2])}, {v(v0_)}, {v(v8_)}, vcc')
        A(f'v_cvt_pk_bf16_f32 {v(K_ + 4 * wdw)}, {v(v8_)}, {v(v8_)}')
        A(f'v_cvt_pk_bf16_f32 {v(K_ + 4 * wdw + 1)}, {v(v8_)}, {v(cv[2])}')
        A(f'v_cvt_pk_bf16_f32 {v(K_ + 4 * wdw + 2)}, {v(v0_)}, {v(v0_)}')
        A(f'v_cvt_pk_bf16_f32 {v(K_ + 4 * wdw + 3)}, {v(v0_)}, {v(v0_)}')
    for cp in (0, KT_C0):
        for wdw in range(2):
            base = cp + 2 * (2040 - 1024 - 256 * wdw)
            A(f'ds_write_b64 {v(aK2)}, {v(K_ + 4 * wdw, 2)} offset:{base}')
            A(f'ds_write_b64 {v(aK2)}, {v(K_ + 4 * wdw + 2, 2)} offset:{base + 8}')
    A('L_expD:')
    A(f'ds_write_addtid_b32 {v(cv[0])} offset:4096')
    A(f'ds_write_addtid_b32 {v(cv[0])} offset:4304')
    ts('1')
    if HP == 2:
        A.ext(h1)
    A.ext(ls[L0 + 38:])
    A(f's_cmp_eq_u32 {s(sWave)}, 0')
    A('s_barrier')
    A('s_cbranch_scc0 L_nozero')
    A(f'ds_write_b64 {v(aZ)}, {v(cv[0], 2)}')
    A('L_nozero:')
    V.release(mk)
    E = V.get(8)
    F = V.get(8)
    xa, xb, nn = V.get(2), V.get(2), V.get(2)
    O = V.get(2)
    A(tag_wait('L_h1', h1, [S + 4 * k + 3 for k in range(4)]))
    ts('01')
    A.ext(rest[:OPT['hb0']])
    for k in range(4):
        A(f'ds_write_b64 {v(aX)}, {v(G + 2 * k, 2)} offset:{512 * k}')
    A(f's_add_u32 m0, {s(sW1k)}, {HB}')
    for k in range(4):
        g, sg = G + 2 * k, S + 4 * k
        A(f'v_lshlrev_b32 {v(xa)}, 16, {v(g)}')
        A(f'v_and_b32 {v(xa + 1)}, 0xffff0000, {v(g)}')
        A(f'v_lshlrev_b32 {v(xb)}, 16, {v(g + 1)}')
        A(f'v_and_b32 {v(xb + 1)}, 0xffff0000, {v(g + 1)}')
        A(f'v_lshlrev_b32 {v(nn)}, 16, {v(sg)}')
        A(f'v_and_b32 {v(nn + 1)}, 0xffff0000, {v(sg)}')
        A(f'v_pk_fma_f32 {v(xa, 2)}, {v(xa, 2)}, {v(sg, 2)}, {v(nn, 2)} op_sel:[0,1,0] op_sel_hi:[1,1,0]')
        A(f'v_pk_fma_f32 {v(xb, 2)}, {v(xb, 2)}, {v(sg + 2, 2)}, {v(nn, 2)} op_sel:[0,0,1] op_sel_hi:[1,0,1]')
        if k > 0:
            for ch in range(2):
                A(f'v_mov_b32_dpp {v(O + ch)}, {v(E + 2 * k - 2 + ch)} wave_ror:1 row_mask:0xf bank_mask:0xf')
        for ch in range(2):
            A(f'v_cvt_pk_bf16_f32 {v(E + 2 * k + ch)}, {v(xa + ch)}, {v(xb + ch)}')
        if k == 1:
            A('s_mov_b64 exec, -2')
        if k > 0:
            for ch in range(2):
                A(f'ds_write_addtid_b32 {v(F + 2 * k - 2 + ch)} offset:{(4 * ch + 0) * HC + 256 * (k - 1) + 52}')
                A(f'ds_write_addtid_b32 {v(F + 2 * k - 2 + ch)} offset:{(4 * ch + 2) * HC + 256 * (k - 1) + 48}')
        if k == 1:
            A('s_mov_b64 exec, -1')
        for ch in range(2):
            A(f'ds_write_addtid_b32 {v(E + 2 * k + ch)} offset:{(4 * ch + 1) * HC + 256 * k + 52}')
            A(f'ds_write_addtid_b32 {v(E + 2 * k + ch)} offset:{(4 * ch + 3) * HC + 256 * k + 48}')
        for ch in range(2):
            A(f'v_mov_b32_dpp {v(O + ch)}, {v(E + 2 * k + ch)} wave_shr:1 row_mask:0xf bank_mask:0xf')
        for ch in range(2):
            A(f'v_alignbit_b32 {v(F + 2 * k + ch)}, {v(E + 2 * k + ch)}, {v(O + ch)}, 16')
    for ch in range(2):
        A(f'v_lshrrev_b32 {v(O + ch)}, 16, {v(E + 6 + ch)}')
    A('s_mov_b64 exec, 1')
    for ch in range(2):
        A(f'v_mov_b32 {v(O + ch)}, {v(E + ch)}')
    A('s_mov_b64 exec, -1')
    for ch in range(2):
        A(f'ds_write_addtid_b32 {v(F + 6 + ch)} offset:{(4 * ch + 0) * HC + 768 + 52}')
        A(f'ds_write_addtid_b32 {v(F + 6 + ch)} offset:{(4 * ch + 2) * HC + 768 + 48}')
    A('s_mov_b32 exec_lo, 1')
    A('s_mov_b32 exec_hi, 0x80000000')
    for ch in range(2):
        A(f'ds_write_b16 {v(aF)}, {v(O + ch)} offset:{(4 * ch + 0) * HC + 52}')
        A(f'ds_write_b16 {v(aF)}, {v(O + ch)} offset:{(4 * ch + 2) * HC + 48}')
    A('s_mov_b64 exec, -1')
    A.ext(rest[OPT['hb0']:OPT['hb0'] + OPT['hb1']])
    A('s_waitcnt lgkmcnt(0)')
    A('s_barrier')
    ts()
    for ch in range(2):
        A(f'ds_read_b128 {v(RAW + 4 * ch, 4)}, {v(aKr)} offset:{KT_CH * ch}')
    V.release(mb)
    CK = V.get(16)
    M = V.get(4)
    TT = V.get(8)
    a1, t0, t1 = V.get(), V.get(), V.get()
    acc = V.get(32, 4)
    fa = [V.get(32), V.get(32)]
    fb = [V.get(32), V.get(32)]
    order = [('a', 0)] + [('b', d) for d in range(8)] + [('a', u) for u in range(1, 8)]

    def creads(ul):
        o = []
        for kind, i in order:
            if kind == 'a':
                o.append(f'ds_read_b128 {v(fa[ul % 2] + 4 * i, 4)}, {v(aA)} offset:{512 * i + 64 * ul} ;#c{ul}')
            else:
                o.append(f'ds_read_b128 {v(fb[ul % 2] + 4 * i, 4)}, {v(aB)} offset:{512 * (7 - i) + 64 * ul} ;#c{ul}')
        return o

    def cmf(ul, uh, d):
        g = uh + d
        c = '0' if (ul == 0 and uh == 0) else v(acc + 4 * g, 4)
        return f'v_mfma_f32_16x16x32_bf16 {v(acc + 4 * g, 4)}, {v(fa[ul % 2] + 4 * uh, 4)}, {v(fb[ul % 2] + 4 * d, 4)}, {c}'

    mm = []
    for ul in range(3):
        mm += [cmf(ul, uh, d) for uh in range(8) for d in range(8 - uh)]
    wpos = {}
    for g in range(7, -1, -1):
        mm += [cmf(3, uh, g - uh) for uh in range(g + 1)]
        wpos[g] = len(mm) - 1
    tail = {d: [f's_waitcnt lgkmcnt({13 - d})'] for d in range(7)}
    tail[7] = ['s_waitcnt lgkmcnt(0)']
    for ul in range(1, 4):
        tail[36 * ul - 1] = [f'@lg c{ul}']
    m2 = [f'buffer_load_dwordx4 {v(M, 4)}, {v(vM)}, {s(rWS, 4)}, 0 offen sc1 ;#m2']
    tail[71] = ['s_waitcnt lgkmcnt(0)\ns_barrier']
    head = merge(spread(144, creads(1), 9, 27), spread(144, creads(2), 36, 60), spread(144, creads(3), 75, 99),
                 {8: [f's_lshl_b32 {s(sGo)}, {s(sMt)}, 7'], 27: [f's_add_u32 {s(sGo)}, {s(sGo)}, {GO}'],
                  OPT['m2p']: m2, OPT['m2p'] + 1: [f'buffer_load_dword {v(t1)}, off, {s(rWS, 4)}, {s(sGo)} sc1']},
                 spread(144, flat(rest[OPT['hb0'] + OPT['hb1']:]), OPT['cd0'], OPT['cd1']),
                 {62: [f'ds_read_b128 {v(RAW, 4)}, {v(aXr)}'], 63: [f'ds_read_b128 {v(RAW + 4, 4)}, {v(aXr)} offset:16']},
                 {72 + i: [f'ds_read_b64 {v(TT + 2 + 2 * i, 2)}, {v(t0)} offset:{CKX + 8 * (64 * i + 63)} ;#ck'] for i in range(3)})
    v1 = [f'v_mov_b32 {v(t0)}, 0']
    for i in range(8):
        for ch in range(2):
            src = RAW + 4 * ch + 3 - i // 2
            v1.append(f'v_lshlrev_b32 {v(CK + 8 * ch + i)}, 16, {v(src)}' if i % 2 else f'v_and_b32 {v(CK + 8 * ch + i)}, 0xffff0000, {v(src)}')
    for i in range(1, 8):
        for ch in range(2):
            v1.append(f'v_add_f32 {v(CK + 8 * ch + i)}, {v(CK + 8 * ch + i)}, {v(CK + 8 * ch + i - 1)}')
    for ch in range(2):
        v1.append(f'v_mov_b32 {v(TT + ch)}, {v(CK + 8 * ch + 7)}')
    for ctl in ('row_shr:1 row_mask:0xf bank_mask:0xf bound_ctrl:1', 'row_shr:2 row_mask:0xf bank_mask:0xf bound_ctrl:1',
                'row_shr:4 row_mask:0xf bank_mask:0xf bound_ctrl:1', 'row_shr:8 row_mask:0xf bank_mask:0xf bound_ctrl:1',
                'row_bcast:15 row_mask:0xa bank_mask:0xf', 'row_bcast:31 row_mask:0xc bank_mask:0xf'):
        for ch in range(2):
            v1.append(f'v_add_f32_dpp {v(TT + ch)}, {v(TT + ch)}, {v(TT + ch)} {ctl}')
    v1.append(f'ds_write_b64 {v(aCw)}, {v(TT, 2)} offset:{CKX}')
    for ch in range(2):
        v1.append(f'v_sub_f32 {v(TT + ch)}, {v(TT + ch)}, {v(CK + 8 * ch + 7)}')
    late = []
    for g in range(7, -1, -1):
        w = f'ds_write_b128 {v(aE)}, {v(acc + 4 * g, 4)} offset:{1024 * g}'
        if wpos[g] + 6 < 144:
            head = merge(head, {wpos[g] + 6: [w]})
        else:
            late.append(w)
    v2 = [f'v_xor_b32 {v(a1)}, 16, {v(a0)}', f'v_bfe_u32 {v(t0)}, {v(LANE)}, 1, 1', f'v_cvt_f32_u32 {v(t0)}, {v(t0)}', '@lg ck']
    for i in range(3):
        v2 += [f'v_fmac_f32 {v(TT + ch)}, {s(sWg + i)}, {v(TT + 2 + 2 * i + ch)}' for ch in range(2)]
    for i in range(8):
        v2 += [f'v_add_f32 {v(CK + 8 * ch + i)}, {v(CK + 8 * ch + i)}, {v(TT + ch)}' for ch in range(2)]
    v2.append(tag_wait('L_m2', m2, [M + 3], 'm2'))
    v2 += [f'v_add_f32_dpp {v(M + ch)}, {v(M + ch)}, {v(M + ch)} quad_perm:[1,0,3,2] row_mask:0xf bank_mask:0xf' for ch in range(2)]
    rb = [f'v_cvt_pk_bf16_f32 {v(M + 2)}, {v(M)}, {v(M + 1)}', f'v_lshlrev_b32 {v(M)}, 16, {v(M + 2)}', f'v_and_b32 {v(M + 1)}, 0xffff0000, {v(M + 2)}']
    v2 += rb + [f'v_add_f32 {v(M + ch)}, {v(M + ch)}, {v(t0)}' for ch in range(2)] + rb
    v2 += [f'v_readlane_b32 {s(sGa + ch)}, {v(M + ch)}, 4' for ch in range(2)]
    v2 += [f'v_readlane_b32 {s(sCb + ch)}, {v(M + ch)}, 6' for ch in range(2)]
    v2 += [f'v_mul_f32 {v(M + ch)}, {s(sGa + ch)}, {v(M + ch)}' for ch in range(2)]
    v2 += [f's_lshl_b32 {s(sT0)}, {s(sP)}, 7']
    v2 += [f'v_readlane_b32 {s(sGs + ch)}, {v(M + ch)}, 0' for ch in range(2)]
    v2 += [f'v_readlane_b32 {s(sGc + ch)}, {v(M + ch)}, 2' for ch in range(2)]
    v2 += [f's_add_u32 {s(sT2)}, {s(sT0)}, {XS}', f's_add_u32 {s(sT3)}, {s(sT0)}, {X1P}']
    for i in range(8):
        v2 += [f'v_lshlrev_b32 {v(TT)}, 16, {v(RAW + i)}', f'v_and_b32 {v(TT + 1)}, 0xffff0000, {v(RAW + i)}']
        v2 += [f'v_fma_f32 {v(CK + 8 * ch + i)}, {v(CK + 8 * ch + i)}, {s(sGs + ch)}, {v(TT + ch)}' for ch in range(2)]
    A.ext(creads(0))
    A('s_waitcnt lgkmcnt(14)')
    sub = lambda d, lo, hi: {k - lo: x for k, x in d.items() if lo <= k < hi}
    c1_, r1 = sched(mm[:72], sub(head, 0, 72), sub(tail, 0, 71), v1, 8, vstart=8, vend=61)
    c2_, r2 = sched(mm[72:], sub(head, 72, 144), sub(tail, 72, 144), v2, 8, vstart=3)
    print('conv valu ratios', r1, r2)
    A.ext(c1_ + tail[71] + c2_)
    A.ext(late)
    ts('3')
    Y, o1, o2 = fa[0], fb[0], fb[0] + 8
    A('s_waitcnt lgkmcnt(0)')
    A('s_barrier')
    for w in range(4):
        A(f'ds_read_b128 {v(Y + 8 * w, 4)}, {v(a0)} offset:{8192 * w}')
        A(f'ds_read_b128 {v(Y + 8 * w + 4, 4)}, {v(a1)} offset:{8192 * w}')
    for ch in range(2):
        A(f's_waitcnt lgkmcnt({4 - 4 * ch})')
        sel = f'op_sel:[0,{ch},0] op_sel_hi:[1,{ch},1]'
        for i in range(0, 8, 2):
            y = Y + 16 * ch + i
            A(f'v_pk_add_f32 {v(y, 2)}, {v(y, 2)}, {v(y + 8, 2)}')
            A(f'v_pk_fma_f32 {v(CK + 8 * ch + i, 2)}, {v(y, 2)}, {s(sGc, 2)}, {v(CK + 8 * ch + i, 2)} {sel}')
            A(f'v_pk_mul_f32 {v(y, 2)}, {v(CK + 8 * ch + i, 2)}, {s(sCb, 2)} op_sel:[0,{ch}] op_sel_hi:[1,{ch}]')
            A(f'v_cvt_pk_bf16_f32 {v(o1 + 4 * ch + i // 2)}, {v(y)}, {v(y + 1)}')
    for i in range(8):
        A(f'v_cvt_pk_bf16_f32 {v(o2 + i)}, {v(CK + i)}, {v(CK + 8 + i)}')
    for k in range(2):
        A(f'buffer_store_dwordx4 {v(o1 + 4 * k, 4)}, {v(aO)}, {s(rWS, 4)}, {s(sT2)} offen offset:{64 * k} sc1 ;#xo')
    for k in range(2):
        A(f'buffer_store_dwordx4 {v(o2 + 4 * k, 4)}, {v(aO)}, {s(rWS, 4)}, {s(sT3)} offen offset:{64 * k} sc1 ;#xo')
    ts('03')
    V.release(mp)
    return P


def helper_mod():
    st = V.get(8)
    wm = V.get(84)
    cc = V.get(7)
    ch = V.get(7)
    acc = V.get(8)
    t0, t1, t2, vo, aw, ar, vs, vw, vp = [V.get() for _ in range(9)]
    g = V.get(4)
    rd = V.get(8)
    pf = V.get(4)
    sHm, sHn = 38, 39
    stats1_addr()
    A(f'v_lshrrev_b32 {v(t0)}, 3, {v(LANE)}')
    A(f'v_lshlrev_b32 {v(t2)}, 1, {v(t0)}')
    A(f'v_and_b32 {v(t2)}, 4, {v(t2)}')
    A(f'v_and_b32 {v(t1)}, 7, {v(LANE)}')
    A(f'v_xor_b32 {v(t2)}, {v(t2)}, {v(t1)}')
    A(f'v_mul_u32_u24 {v(vw)}, 3584, {v(t0)}')
    A(f'v_lshl_add_u32 {v(vw)}, {v(t2)}, 4, {v(vw)}')
    A(f'v_lshlrev_b32 {v(vp)}, 4, {v(TID)}')
    A(f's_lshr_b32 {s(sT0)}, s2, 1')
    div7(sHm, sHn, sT0)
    A(f's_and_b32 {s(sT0)}, s2, 1')
    A(f's_mul_i32 {s(sT0)}, {s(sT0)}, 7')
    A(f's_add_u32 {s(sHn)}, {s(sHn)}, {s(sT0)}')
    A(f's_and_b32 {s(sT1)}, {s(sWave)}, 1')
    A(f's_lshr_b32 {s(sT2)}, {s(sWave)}, 1')
    A(f's_lshl1_add_u32 {s(sT0)}, {s(sHn)}, {s(sT1)}')
    A(f's_lshl_b32 {s(sT0)}, {s(sT0)}, 7')
    A(f's_mul_i32 {s(sT3)}, {s(sT2)}, {224 * 3584}')
    A(f's_add_u32 {s(sM2)}, {s(sT0)}, {s(sT3)}')
    A(f's_lshl1_add_u32 {s(sT3)}, {s(sT1)}, {s(sT2)}')
    A(f's_mul_i32 m0, {s(sT3)}, 28672')
    A('s_waitcnt lgkmcnt(0)')
    ts('1')
    A.ext(tagged(capture(lambda: stats1_loads(st)), 'hs'))
    A(f's_load_dword {s(sTag)}, {s(rWS, 2)}, {EP}')
    srd(rWd, pWd, 1605632)
    A('s_cmp_ge_u32 s2, 28')
    A('s_cbranch_scc1 L_hm_skip')
    A(f's_cmp_eq_u32 {s(sHm)}, 0')
    A(f's_cselect_b64 {s(rW, 2)}, {s(pWg, 2)}, {s(pWu, 2)}')
    A(f's_mov_b32 {s(rW + 2)}, 1605632')
    A(f's_mov_b32 {s(rW + 3)}, 0x00020000')
    wsl = [f'buffer_load_dwordx4 {v(vw)}, {s(rW, 4)}, {s(sM2)} offen lds\ns_add_u32 m0, m0, 1024\ns_add_u32 {s(sM2)}, {s(sM2)}, {8 * 3584}' for i in range(28)]
    srd(rWm, pWm, 2408448)
    A('s_cmp_ge_u32 s2, 14')
    A(f's_cselect_b32 {s(sMi)}, 1, 0')
    A(f's_mul_i32 {s(sT0)}, {s(sMi)}, 14')
    A(f's_sub_u32 {s(sNi)}, s2, {s(sT0)}')
    A(f's_lshl2_add_u32 {s(sT0)}, {s(sMi)}, {s(sWave)}')
    A(f's_mul_i32 {s(sT0)}, {s(sT0)}, 56')
    A(f'v_add_u32 {v(t0)}, {s(sT0)}, {v(t0)}')
    A(f'v_lshlrev_b32 {v(t2)}, 1, {v(t0)}')
    A(f'v_mul_u32_u24 {v(vo)}, 5376, {v(t0)}')
    A(f'v_lshl_add_u32 {v(vo)}, {v(t1)}, 4, {v(vo)}')

    def wload(task, i):
        u = f's_lshl_b32 {s(sWo)}, {s(sNi if task == 0 else sNt)}, 7\n' if i == 0 else f's_add_u32 {s(sWo)}, {s(sWo)}, {8 * 5376}\n'
        return u + f'buffer_load_dwordx4 {v(wm + 28 * task + 4 * i, 4)}, {v(vo)}, {s(rWm, 4)}, {s(sWo)} offen offset:{(0, 1792, 2688)[task]} ;#hw{task}_{i}'

    def pload(i):
        u = f's_mul_i32 {s(sWo)}, s2, {6 * 4096}\n' if i == 0 else f's_add_u32 {s(sWo)}, {s(sWo)}, 4096\n'
        return u + f'buffer_load_dwordx4 {v(pf, 4)}, {v(vp)}, {s(rWd, 4)}, {s(sWo)} offen'

    for i in range(7):
        A(f'global_load_ushort {v(cc + i)}, {v(t2)}, {s(pC, 2)} offset:{16 * i} ;#hc')
    for i in range(7):
        A(wload(0, i))
    A(f'v_lshrrev_b32 {v(t0)}, 4, {v(LANE)}')
    A(f'v_lshl_add_u32 {v(t0)}, {v(t1)}, 2, {v(t0)}')
    A(f's_lshl_b32 {s(sT0)}, {s(sWave)}, 8')
    A(f's_add_u32 {s(sT0)}, {s(sT0)}, {SL[4]}')
    A(f'v_lshl_add_u32 {v(aw)}, {v(t0)}, 3, {s(sT0)}')
    A(f'v_and_b32 {v(t0)}, 31, {v(LANE)}')
    A(f'v_lshlrev_b32 {v(ar)}, 3, {v(t0)}')
    A(f'v_add_u32 {v(ar)}, {SL[4]}, {v(ar)}')
    div7(sT2, sT3, sNi)
    A(f's_mul_i32 {s(sMt)}, {s(sT2)}, 7168')
    A(f's_mul_i32 {s(sNt)}, {s(sT2)}, 7')
    A(f's_add_u32 {s(sNt)}, {s(sNt)}, {s(sNi)}')
    A(f's_lshl1_add_u32 {s(sT2)}, {s(sT2)}, {s(sMi)}')
    A(f's_mul_i32 {s(sT2)}, {s(sT2)}, 7')
    A(f's_add_u32 {s(sT2)}, {s(sT2)}, {s(sT3)}')
    A(f's_lshl_b32 {s(sT2)}, {s(sT2)}, 9')
    A(f's_add_u32 {s(sT2)}, {s(sT2)}, {MOD}')
    A(f'v_lshl_add_u32 {v(vs)}, {v(t0)}, 4, {s(sT2)}')
    A('s_waitcnt lgkmcnt(0)')
    A(f's_add_u32 {s(sTag)}, {s(sTag)}, 1')
    ts('1')
    A('@vm hs')
    ts('1')
    stats1_compute(st)
    A('@vm hc')
    ts('1')
    for i in range(7):
        A(f'v_lshlrev_b32 {v(cc + i)}, 16, {v(cc + i)}')
        A(f'v_mul_f32 {v(ch + i)}, 0xbfb8aa3b, {v(cc + i)}')
        A(f'v_exp_f32 {v(ch + i)}, {v(ch + i)}')
    for i in range(7):
        A(f'v_add_f32 {v(ch + i)}, 1.0, {v(ch + i)}')
        A(f'v_rcp_f32 {v(ch + i)}, {v(ch + i)}')
    for i in range(7):
        A(f'v_mul_f32 {v(cc + i)}, {v(cc + i)}, {v(ch + i)}')
        A(f'v_cvt_pk_bf16_f32 {v(cc + i)}, {v(cc + i)}, 0')
        A(f'v_lshlrev_b32 {v(ch + i)}, 16, {v(cc + i)}')
    A(f'v_mov_b32 {v(g + 2)}, 0')
    A(f'v_mov_b32 {v(g + 3)}, {s(sTag)}')
    for task in range(3):
        for j in range(8):
            A(f'v_mov_b32 {v(acc + j)}, 0')
        for i in range(7):
            A(f'@vm hw{task}_{i}')
            if task < 2:
                A(wload(task + 1, i))
            else:
                A(wsl[i])
            for j in range(4):
                w = wm + 28 * task + 4 * i + j
                A(f'v_dot2c_f32_bf16 {v(acc + 2 * j)}, {v(w)}, {v(cc + i)}')
                A(f'v_dot2c_f32_bf16 {v(acc + 2 * j + 1)}, {v(w)}, {v(ch + i)}')
        ts('1')
        reduce8(acc)
        A(f'ds_write_b64 {v(aw)}, {v(acc, 2)} offset:{1024 * task}')
        A('s_waitcnt lgkmcnt(0)')
        A('s_barrier')
        A(f's_cmp_lg_u32 {s(sWave)}, {task}')
        A(f's_cbranch_scc1 L_hm_n{task}')
        for w in range(4):
            A(f'ds_read_b64 {v(rd + 2 * w, 2)}, {v(ar)} offset:{1024 * task + 256 * w}')
        A(f's_mov_b32 {s(sT0)}, 0' if task == 0 else f's_add_u32 {s(sT0)}, {s(sMt)}, {7168 * (task + 1)}')
        A('s_waitcnt lgkmcnt(0)')
        A(f'v_pk_add_f32 {v(rd, 2)}, {v(rd, 2)}, {v(rd + 2, 2)}')
        A(f'v_pk_add_f32 {v(rd + 4, 2)}, {v(rd + 4, 2)}, {v(rd + 6, 2)}')
        A(f'v_pk_add_f32 {v(g, 2)}, {v(rd, 2)}, {v(rd + 4, 2)}')
        A('s_mov_b32 exec_hi, 0')
        A(f'buffer_store_dwordx4 {v(g, 4)}, {v(vs)}, {s(rWS, 4)}, {s(sT0)} offen sc1 ;#cond')
        A('s_mov_b64 exec, -1')
        A(f'L_hm_n{task}:')
        if task == 0:
            ts()
    A.ext(wsl[7:])
    A('s_branch L_hm_done')
    A('L_hm_skip:')
    A('s_waitcnt lgkmcnt(0)')
    A(f's_add_u32 {s(sTag)}, {s(sTag)}, 1')
    A('s_waitcnt vmcnt(0)')
    stats1_compute(st)
    A(f's_sub_u32 {s(sWo)}, s2, 25')
    A(f's_mul_i32 {s(sWo)}, {s(sWo)}, {56 * 4096}')
    A(f's_mov_b32 {s(sT0)}, 14')
    A('L_hm_pf:')
    for i in range(4):
        A(f'buffer_load_dwordx4 {v(pf, 4)}, {v(vp)}, {s(rWd, 4)}, {s(sWo)} offen')
        A(f's_add_u32 {s(sWo)}, {s(sWo)}, 4096')
    A(f's_sub_u32 {s(sT0)}, {s(sT0)}, 1')
    A(f's_cmp_lg_u32 {s(sT0)}, 0')
    A('s_cbranch_scc1 L_hm_pf')
    A('s_waitcnt vmcnt(0)')
    A('L_hm_done:')
    ts()


def flag_store(vTag, soff):
    return ('s_mov_b64 exec, 1\n'
            f'buffer_store_dword {v(vTag)}, off, {s(rWS, 4)}, {s(soff)} sc1 ;#fl\n'
            's_mov_b64 exec, -1')


def main_ffn(P):
    vW, vXr, vFp = P['vW'], P['vXr'], P['vFp']
    vXs, vL16, vTag, vSt = 2, 3, 4, 5
    gbp = V.get(4)
    x1r = V.get(8)
    Ag, Au = V.get(4), V.get(4)
    stt = V.get(16)
    xr = V.get(24)
    tmp = V.get(6)
    outp = V.get(8)
    acc = V.get(96)
    P['wdv'] = V.get(64)
    fp = P['vWr'][0]
    t0, t1, t2 = tmp, tmp + 1, tmp + 2
    XSLOT = [0, 1, 4, 2]
    FS = OPT['fs']
    sSt, sAo, sAi, sOo, sGb, sAu, sHf = 16, 17, 18, 19, 20, 21, 22
    A('@vm w0 w1')
    A('s_barrier')
    A.ext(w_dma(2, 0, P))
    P['window_setup'](*range(tmp, tmp + 5))
    A.ext(w_frags(0, 3, P) + w_frags(1, 4, P))
    A(f'v_mov_b32 {v(vTag)}, {s(sTag)}')
    A(f's_mul_i32 {s(sFl)}, {s(sWave)}, 224')
    A(f's_add_u32 {s(sFl)}, {s(sFl)}, {s(sJ)}')
    A(f's_lshl_b32 {s(sFl)}, {s(sFl)}, 7')
    A(f's_add_u32 {s(sFl)}, {s(sFl)}, {FL2}')
    ts('3')
    A('@vm xo')
    A(flag_store(vTag, sFl))
    ts('3')
    A.ext(w_dma(3, 1, P))
    A(f'v_lshlrev_b32 {v(vL16)}, 4, {v(LANE)}')
    A(f's_mul_i32 {s(sT0)}, {s(sMt)}, {4 * 28672}')
    A(f's_add_u32 {s(sT0)}, {s(sT0)}, {XS}')
    A(f'v_lshl_add_u32 {v(vXs)}, {v(TID)}, 4, {s(sT0)}')
    A(f'v_and_b32 {v(t0)}, 31, {v(LANE)}')
    A(f'v_lshlrev_b32 {v(vSt)}, 4, {v(t0)}')
    A(f'v_lshrrev_b32 {v(t1)}, 5, {v(LANE)}')
    A(f'v_mul_u32_u24 {v(t1)}, 28672, {v(t1)}')
    A(f'v_add_u32 {v(outp)}, {v(t1)}, {v(vSt)}')
    A(f's_lshl_b32 {s(sSt)}, {s(sMt)}, 11')
    A(f's_add_u32 {s(sSt)}, {s(sSt)}, {ST2}')
    A(f's_lshl2_add_u32 {s(sM2)}, {s(sNt)}, {s(sWave)}')
    A(f's_lshl_b32 {s(sAu)}, {s(sM2)}, 9')
    A(f's_add_u32 {s(sAu)}, {s(sAu)}, {AUG}')
    A(f's_mul_i32 {s(sT1)}, {s(sMt)}, 224')
    A(f's_add_u32 {s(sM2)}, {s(sM2)}, {s(sT1)}')
    A(f's_lshl_b32 {s(sAo)}, {s(sM2)}, 11')
    A(f's_add_u32 {s(sAo)}, {s(sAo)}, {ACT}')
    A(f's_lshl2_add_u32 {s(sT0)}, {s(sNt)}, {s(sWave)}')
    A(f's_mul_i32 {s(sT1)}, {s(sT0)}, 4682')
    A(f's_lshr_b32 {s(sT1)}, {s(sT1)}, 16')
    A(f's_lshl1_add_u32 {s(sT0)}, {s(sT1)}, {s(sT0)}')
    A(f's_lshl_b32 {s(sT1)}, {s(sMt)}, 8')
    A(f's_add_u32 {s(sT0)}, {s(sT0)}, {s(sT1)}')
    A(f's_mul_i32 {s(sFl)}, {s(sT0)}, {FS}')
    A(f's_add_u32 {s(sFl)}, {s(sFl)}, {FL3}')
    A(f's_and_b32 {s(sT0)}, {s(sJ)}, 7')
    A(f's_lshr_b32 {s(sT1)}, {s(sMi)}, 1')
    A(f's_lshl1_add_u32 {s(sT0)}, {s(sT0)}, {s(sT1)}')
    A(f's_lshl_b32 {s(sTb)}, {s(sT0)}, 2')
    A(f's_and_b32 {s(sHf)}, {s(sMi)}, 1')
    A(f's_lshl2_add_u32 {s(sRot)}, {s(sTb)}, {s(sWave)}')
    A(f's_mul_i32 {s(sRot)}, {s(sRot)}, 14')
    A(f's_lshl3_add_u32 {s(sAi)}, {s(sRot)}, {s(sHf)}')
    A(f's_lshl_b32 {s(sAi)}, {s(sAi)}, 8')
    A(f's_add_u32 {s(sAi)}, {s(sAi)}, {ACT}')
    A(f's_lshl1_add_u32 {s(sOo)}, {s(sTb)}, {s(sHf)}')
    A(f's_mul_i32 {s(sOo)}, {s(sOo)}, {16 * 7}')
    A(f's_add_u32 {s(sOo)}, {s(sOo)}, {s(sNi)}')
    A(f's_lshl_b32 {s(sOo)}, {s(sOo)}, 7')
    A(f's_lshl_b32 {s(sGb)}, {s(sNi)}, 9')
    A(f's_add_u32 {s(sGb)}, {s(sGb)}, {MOD + 5 * 7168}')
    A(f'v_bfe_u32 {v(t2)}, {v(TID)}, 3, 2')
    A(f'v_bfe_u32 {v(t0)}, {v(TID)}, 5, 1')
    A(f'v_lshl_add_u32 {v(t2)}, {v(t0)}, 4, {v(t2)}')
    A(f'v_and_b32 {v(t0)}, 7, {v(TID)}')
    A(f'v_lshl_add_u32 {v(t2)}, {v(t0)}, 7, {v(t2)}')
    A(f's_lshr_b32 {s(sT1)}, {s(sWave)}, 1')
    A(f's_add_u32 {s(sT0)}, {s(sTb)}, {s(sT1)}')
    A(f's_mul_i32 {s(sT0)}, {s(sT0)}, 7')
    A(f's_add_u32 {s(sT0)}, {s(sT0)}, {s(sNi)}')
    A(f's_lshl_b32 {s(sT0)}, {s(sT0)}, 8')
    A(f's_and_b32 {s(sT1)}, {s(sWave)}, 1')
    A(f's_lshl1_add_u32 {s(sT1)}, {s(sHf)}, {s(sT1)}')
    A(f's_add_u32 {s(sT0)}, {s(sT0)}, {s(sT1)}')
    A(f's_lshl_b32 {s(sT0)}, {s(sT0)}, 4')
    A(f's_add_u32 {s(sT0)}, {s(sT0)}, {X1P}')
    A(f'v_lshl_add_u32 {v(outp + 2)}, {v(t2)}, 2, {s(sT0)}')
    A(f'v_lshlrev_b32 {v(outp + 1)}, 4, {v(t0)}')
    for i in range(4):
        A(f'v_mov_b32 {v(Au + i)}, 0')
    A.ext(w_dma(4, 2, P))
    A('@vm w3')
    A('s_waitcnt lgkmcnt(0)')
    A('s_barrier')
    A.ext(interleave(w_dma(5, 3, P) + w_dma(6, 4, P), w_frags(2, 0, P) + w_frags(3, 1, P)))
    ts('3')
    pl = [f'buffer_load_dword {v(stt + 8)}, off, {s(rWS, 4)}, {s(sGo)} sc1']
    if OPT['mdelay']:
        A(f's_sleep {OPT["mdelay"]}')
    A.ext(pl)
    A(tag_wait('L_f2', pl, [stt + 8]))
    A('s_waitcnt lgkmcnt(0)')
    A('s_barrier')
    ts('03')

    def xs_dma(b):
        o = []
        for cc in range(7):
            u = f's_add_u32 m0, {s(sW1k)}, {SL[XSLOT[b]] + 4096 * cc}\n'
            u += f's_add_u32 {s(sT0)}, {s(sC + cc)}, {28672 * b}\n'
            u += f'buffer_load_dwordx4 {v(vXs)}, {s(rWS, 4)}, {s(sT0)} offen sc1 lds ;#x{b}'
            o.append(u)
        return o

    A.ext(xs_dma(0))
    A.ext(w_frags(4, 2, P) + w_frags(5, 3, P) + w_frags(6, 4, P))
    A(f'v_mov_b32 {v(vW)}, {v(outp + 2)}')
    A(f'v_min_u32 {v(vFp)}, 13, {v(LANE)}')
    A(f's_lshl2_add_u32 {s(sT1)}, {s(sTb)}, {s(sWave)}')
    A(f's_mul_i32 {s(sT1)}, {s(sT1)}, {16 * FS}')
    A(f's_add_u32 {s(sT1)}, {s(sT1)}, {FL3}')
    A(f'v_lshl_add_u32 {v(vFp)}, {v(vFp)}, {FS.bit_length() - 1}, {s(sT1)}')
    A.ext(xs_dma(1)[:OPT['x1e']])
    A('@vm x0')
    A('s_waitcnt lgkmcnt(0)')
    A('s_barrier')
    ts('023')
    g = [f'buffer_load_dwordx4 {v(stt, 4)}, {v(vSt)}, {s(rWS, 4)}, {s(sGb)} offen sc1 ;#g',
         f'buffer_load_dwordx4 {v(stt + 4, 4)}, {v(vSt)}, {s(rWS, 4)}, {s(sGb)} offen offset:3584 sc1 ;#g',
         f'buffer_load_dwordx4 {v(Ag, 4)}, {v(outp)}, {s(rWS, 4)}, {s(sAu)} offen sc1 ;#g']
    gv = [tag_wait('L_g', g, [stt + 3, stt + 7, Ag + 3], 'g'),
          f'v_add_f32 {v(stt)}, {v(stt)}, {v(stt + 4)}\nv_add_f32 {v(stt + 1)}, {v(stt + 1)}, {v(stt + 5)}\n'
          f'v_cvt_pk_bf16_f32 {v(stt)}, {v(stt)}, {v(stt + 1)}\nv_mov_b32 {v(Ag + 3)}, 0']
    for i in range(3):
        gv.append(f's_mov_b32 exec_lo, 0\nv_mov_b32 {v(Au + i)}, {v(Ag + i)}\nv_mov_b32 {v(Ag + i)}, 0\ns_mov_b32 exec_lo, -1')
    gp = [f'ds_bpermute_b32 {v(gbp + i)}, {v(outp + 1)}, {v(stt)} offset:{4 * i}' for i in range(4)]
    def poll3(st_):
        return [f's_mov_b32 {s(sT3)}, {64 * FS * st_}\nbuffer_load_dword {v(fp)}, {v(vFp)}, {s(rWS, 4)}, {s(sT3)} offen sc1 ;#pe{st_}']
    pre3 = [poll3(i)[0].replace(';#pe', ';#pre') for i in range(4)]

    def xread(n):
        b, ks = divmod(n, 28)
        sl = XSLOT[b]
        r = xr + 4 * (n % 6)
        return [f'ds_read_b64_tr_b16 {v(r + 2 * e, 2)}, {v(vXr[sl // 2])} offset:{32768 * (sl % 2) + 1024 * ks + 256 * e} ;#xf{n}' for e in range(2)]

    def accr(b):
        return acc + 32 * (b % 3)

    def aug(b):
        gg, uu, st = accr(b), accr(b) + 16, stt + 4 * b
        return [f'v_mov_b32 {v(st + 3)}, 0',
                f'v_lshlrev_b32 {v(tmp + 4)}, 16, {v(st + 2)}',
                f'v_and_b32 {v(tmp + 5)}, 0xffff0000, {v(st + 2)}',
                f'v_mfma_f32_32x32x16_bf16 {v(gg, 16)}, {v(Ag, 4)}, {v(st, 4)}, {v(gg, 16)}',
                f'v_add_f32 {v(tmp + 4)}, {v(tmp + 4)}, {v(tmp + 5)}',
                f'v_rcp_f32 {v(tmp + 5)}, {v(tmp + 4)}',
                f'v_mfma_f32_32x32x16_bf16 {v(uu, 16)}, {v(Au, 4)}, {v(st, 4)}, {v(uu, 16)}',
                's_nop 1',
                f'v_mul_f32 {v(st)}, {v(tmp + 4)}, {v(tmp + 4)}',
                f'v_mul_f32 {v(st + 1)}, 0xbfb8aa3b, {v(tmp + 5)}']

    def epi(b, q):
        gg, uu, st = accr(b), accr(b) + 16, stt + 4 * b
        r4 = range(4 * q, 4 * q + 4)
        o = [f'v_mul_f32 {v(tmp + i % 4)}, {v(st + 1)}, {v(gg + i)}' for i in r4]
        for i in r4:
            o += [f'v_exp_f32 {v(tmp + i % 4)}, {v(tmp + i % 4)}', f'v_mul_f32 {v(gg + i)}, {v(gg + i)}, {v(uu + i)}']
        for i in r4:
            o += [f'v_fma_f32 {v(tmp + i % 4)}, {v(tmp + i % 4)}, {v(st)}, {v(st)}', f'v_rcp_f32 {v(tmp + i % 4)}, {v(tmp + i % 4)}']
        o += [f'v_mul_f32 {v(gg + i)}, {v(gg + i)}, {v(tmp + i % 4)}' for i in r4]
        o += [f'v_cvt_pk_bf16_f32 {v(outp + 2 * q + k)}, {v(gg + 4 * q + 2 * k)}, {v(gg + 4 * q + 2 * k + 1)}' for k in range(2)]
        if q % 2:
            o.append(f'buffer_store_dwordx4 {v(outp + 2 * q - 2, 4)}, {v(vL16)}, {s(rWS, 4)}, {s(sAo)} offen offset:{1024 * (q // 2)} sc1 ;#ao{b}')
        if q == 3:
            o.append(f's_add_u32 {s(sAo)}, {s(sAo)}, {112 * 1024}')
        return o

    def act_flag(b):
        return f'@vm ao{b}\n' + flag_store(vTag, sFl) + f'\ns_add_u32 {s(sFl)}, {s(sFl)}, {64 * FS}'

    def st_loads(b0):
        return [f'buffer_load_dwordx4 {v(stt + 4 * b, 4)}, {v(vSt)}, {s(rWS, 4)}, {s(sSt)} offen offset:{512 * b} sc1 ;#s{b0}' for b in (b0, b0 + 1)]

    res = []
    for blk in range(2):
        res += [f'buffer_load_dword {v(x1r + 4 * blk + i)}, {v(vW)}, {s(rWS, 4)}, {s(sT3) if blk else 0} offen offset:{128 * i} sc1 ;#res' for i in range(4)]
    res[0] = f's_mov_b32 {s(sT3)}, {2 * 28672}\n' + res[0]
    mm, head, tail = [], {}, {}
    for n in range(112):
        b, ks = divmod(n, 28)
        for mat in range(2):
            d = accr(b) + 16 * mat
            mm.append(f'v_mfma_f32_32x32x16_bf16 {v(d, 16)}, {a((mat * 28 + ks) * 4, 4)}, {v(xr + 4 * (n % 6), 4)}, {"0" if ks == 0 else v(d, 16)}')
        if n + 4 < 112:
            rd = xread(n + 4)
            head[2 * n] = [rd[0]]
            head[2 * n + 1] = [rd[1]]
        if n % 2 and n < 111:
            tail[2 * n + 1] = [f'@lg xf{n + 2}']
        if ks == 24 and b < 3:
            head[2 * n], head[2 * n + 1] = [], [f'@vm x{b + 1}\ns_waitcnt lgkmcnt(0)\ns_barrier'] + xread(n + 4)
    E0 = OPT['e0']
    Q = (OPT['q0'], OPT['q1'], OPT['q2'])
    head = merge(head,
                 spread(224, xs_dma(1)[OPT['x1e']:], 0, 8), spread(224, wd_dma(0, 3, P), 10, Q[0]),
                 spread(224, xs_dma(2), Q[0], Q[1]), spread(224, wd_dma(1, 2, P), Q[1], Q[2]),
                 spread(224, wd_frags(0, 3, P), 70, 86), spread(224, wd_dma(2, 0, P), Q[2], 107),
                 spread(224, wd_frags(1, 2, P), 92, 104), spread(224, xs_dma(3), 107, 122),
                 spread(224, wd_frags(2, 0, P), 122, 138),
                 spread(224, wd_dma(3, 3, P) + wd_dma(4, 1, P), 122, 160), spread(224, res, 160, 168),
                 spread(224, wd_dma(5, 0, P) + wd_dma(6, 4, P), 168, 208),
                 {E0 - 14: st_loads(0), E0 + 30: st_loads(2)},
                 spread(224, g + pre3, 1, 15), spread(224, gp, 66, 70))
    tail = merge(tail, spread(224, gv, 56, 66), {116: wd_addr(0, P)})
    head = merge(head, {OPT['p0']: poll3(0)})
    chk0 = tag_wait('L_s0', st_loads(0), [stt + 3, stt + 7], 's0')
    chk2 = tag_wait('L_s2', st_loads(2), [stt + 11, stt + 15], 's2')
    tail = merge(tail, {E0 - 4: [chk0] + aug(0)})
    parts = [epi(0, 0), epi(0, 1), epi(0, 2) + aug(1), epi(0, 3), epi(1, 0), epi(1, 1), epi(1, 2) + [chk2] + aug(2), epi(1, 3),
             epi(2, 0), epi(2, 1), epi(2, 2), epi(2, 3)]
    F0, F1 = OPT['f0'], OPT['f1']
    parts[F0] = parts[F0] + [act_flag(0)]
    if F1 < 12:
        parts[F1] = parts[F1] + [act_flag(1)]
    vs = sum(parts, [])
    for n in range(4):
        A.ext(xread(n))
    A('@lg xf1')
    code, ratio = sched(mm, head, tail, vs, 24, vstart=E0)
    print('gemm1 valu ratio', ratio)
    nm_ = 0
    first_aug2 = None
    for u in code:
        if u.startswith('v_mfma') and f', {v(Ag, 4)}, {v(stt + 8, 4)}' in u:
            first_aug2 = nm_
        if u.startswith('v_mfma') and ', a[' in u:
            nm_ += 1
            if nm_ == 169:
                assert f'ao0' in ''.join(code[:code.index(u)]).split('offset:1024 sc1 ;#')[-1][:3] or True
        A(u)
        if u.startswith('v_mfma') and ', a[' in u and nm_ % 112 == 0:
            ts('2')
    assert first_aug2 >= 168, first_aug2
    last0 = max(i for i, u in enumerate(code) if ';#ao0' in u and 'buffer_store' in u)
    assert sum(1 for u in code[:last0] if u.startswith('v_mfma') and ', a[' in u) <= 168
    ts('04')
    abuf = [('a', 128 + 4 * i) for i in range(24)]
    LA = OPT['la']

    def aload(n):
        st_, kp = divmod(n, 14)
        u = ''
        if kp == 0:
            u = '\n'.join(capture(lambda: ts('4')) + [tag_wait(f'L_p{st_}', poll3(st_), [fp], f'pe{st_}')] + capture(lambda: ts('4'))) + '\n'
            if st_:
                u += f'v_add_u32 {v(vXs)}, {112 * 1024}, {v(vXs)}\n'
        return u + f'buffer_load_dwordx4 {rn(abuf[n % 24], 4)}, {v(vXs)}, {s(rWS, 4)}, {s(sC + kp // 2)} offen offset:{2048 * (kp % 2)} sc1 ;#a{n}'

    A.ext(aug(3))
    A(f'v_lshrrev_b32 {v(t0)}, 4, {v(LANE)}')
    A(f'v_and_b32 {v(t1)}, 15, {v(LANE)}')
    A(f'v_lshl_add_u32 {v(t0)}, {v(t0)}, 5, {v(t1)}')
    A(f'v_lshl_add_u32 {v(vXs)}, {v(t0)}, 4, {s(sAi)}')
    G0, G1 = OPT['g0'], OPT['g0'] + OPT['g1']
    A.ext([aload(n) for n in range(G0)])
    A.ext(wd_frags(4, 1, P) + wd_frags(5, 0, P))
    A.ext(wd_addr(2, P))
    e01 = epi(3, 0) + epi(3, 1)
    A.ext(e01[:-1] + [aload(n) for n in range(G0, G1)] + e01[-1:])
    if F1 >= 12:
        A(act_flag(1))
    A.ext(wd_frags(3, 3, P))
    A.ext(wd_addr(4, P))
    A.ext(epi(3, 2) + epi(3, 3))
    if OPT['f2'] < 0:
        A(act_flag(2))
    A.ext([aload(n) for n in range(G1, LA)])
    A.ext(wd_frags(6, 4, P))
    ts('2')
    wa = [stt, stt + 1]
    ra0, ra1, ao = stt + 4, stt + 5, stt + 6
    xu, gu = xr, xr + 16
    su = [f'v_and_b32 {v(t0)}, 15, {v(LANE)}',
          f'v_lshlrev_b32 {v(t0)}, 8, {v(t0)}',
          f'v_add_u32 {v(t0)}, {s(sW8k)}, {v(t0)}',
          f'v_lshrrev_b32 {v(t1)}, 4, {v(LANE)}',
          f'v_and_b32 {v(t2)}, 7, {v(LANE)}',
          f'v_xor_b32 {v(t1)}, {v(t1)}, {v(t2)}',
          f'v_lshl_add_u32 {v(wa[0])}, {v(t1)}, 4, {v(t0)}',
          f'v_add_u32 {v(wa[0])}, {SL[2]}, {v(wa[0])}',
          f'v_xor_b32 {v(wa[1])}, 64, {v(wa[0])}',
          f'v_lshrrev_b32 {v(t0)}, 3, {v(TID)}',
          f'v_and_b32 {v(t1)}, 7, {v(t0)}',
          f'v_lshlrev_b32 {v(ra0)}, 1, {v(t2)}',
          f'v_xor_b32 {v(ra0)}, {v(ra0)}, {v(t1)}',
          f'v_lshlrev_b32 {v(ra0)}, 4, {v(ra0)}',
          f'v_lshl_add_u32 {v(ra0)}, {v(t0)}, 8, {v(ra0)}',
          f'v_add_u32 {v(ra0)}, {SL[2]}, {v(ra0)}',
          f'v_xor_b32 {v(ra1)}, 16, {v(ra0)}',
          f'v_and_b32 {v(t1)}, 16, {v(t0)}',
          f'v_add_u32 {v(t0)}, {v(t0)}, {v(t1)}',
          f'v_mul_u32_u24 {v(ao)}, 896, {v(t0)}',
          f'v_lshl_add_u32 {v(ao)}, {v(t2)}, 4, {v(ao)}']
    for i in range(4):
        su += [f'v_lshlrev_b32 {v(gu + 2 * i)}, 16, {v(gbp + i)}', f'v_and_b32 {v(gu + 2 * i + 1)}, 0xffff0000, {v(gbp + i)}']
    for i in range(8):
        su += [f'v_lshlrev_b32 {v(xu + 2 * i)}, 16, {v(x1r + i)}', f'v_and_b32 {v(xu + 2 * i + 1)}, 0xffff0000, {v(x1r + i)}']
    Y = acc

    def red_write(st_):
        d = acc + 32 + 16 * st_
        return [f'ds_write_b128 {v(wa[db % 2])}, {v(d + 4 * db, 4)} offset:{32768 * (st_ // 2) + 4096 * (st_ % 2) + 128 * (db // 2)}' for db in range(4)]

    def red_read(blk):
        o = []
        for w in range(4):
            o += [f'ds_read_b128 {v(Y + 8 * w, 4)}, {v(ra0)} offset:{32768 * blk + 8192 * w}',
                  f'ds_read_b128 {v(Y + 8 * w + 4, 4)}, {v(ra1)} offset:{32768 * blk + 8192 * w}']
        o[0] = 's_waitcnt lgkmcnt(0)\ns_barrier\n' + o[0]
        return o

    def red_final(blk, pk):
        o = ['s_waitcnt lgkmcnt(0)']
        x = xu + 8 * blk
        if pk:
            for i in range(0, 8, 2):
                o += [f'v_pk_add_f32 {v(Y + i, 2)}, {v(Y + i, 2)}, {v(Y + 8 + i, 2)}', f'v_pk_add_f32 {v(Y + 16 + i, 2)}, {v(Y + 16 + i, 2)}, {v(Y + 24 + i, 2)}',
                      f'v_pk_add_f32 {v(Y + i, 2)}, {v(Y + i, 2)}, {v(Y + 16 + i, 2)}', f'v_pk_fma_f32 {v(x + i, 2)}, {v(Y + i, 2)}, {v(gu + i, 2)}, {v(x + i, 2)}']
        else:
            for i in range(8):
                o += [f'v_add_f32 {v(Y + i)}, {v(Y + i)}, {v(Y + 8 + i)}', f'v_add_f32 {v(Y + 16 + i)}, {v(Y + 16 + i)}, {v(Y + 24 + i)}',
                      f'v_add_f32 {v(Y + i)}, {v(Y + i)}, {v(Y + 16 + i)}', f'v_fmac_f32 {v(x + i)}, {v(Y + i)}, {v(gu + i)}']
        o += [f'v_cvt_pk_bf16_f32 {v(outp + 4 * blk + i)}, {v(x + 2 * i)}, {v(x + 2 * i + 1)}' for i in range(4)]
        o.append(f'buffer_store_dwordx4 {v(outp + 4 * blk, 4)}, {v(ao)}, {s(rOut, 4)}, {s(sOo)} offen {"sc1" if OPT["osc"] else ""}')
        o.append(f's_add_u32 {s(sOo)}, {s(sOo)}, {64 * 896}')
        return o

    mm, head, tail = [], {}, {}
    for n in range(56):
        st_, kp = divmod(n, 14)
        for db in range(4):
            d = acc + 32 + 16 * st_ + 4 * db
            mm.append(f'v_mfma_f32_16x16x32_bf16 {v(d, 4)}, {rn(wdreg(kp // 2, kp % 2, db, P), 4)}, {rn(abuf[n % 24], 4)}, {"0" if kp == 0 else v(d, 4)}')
        if n + LA < 56:
            head[4 * n] = [aload(n + LA)]
        if n < 55:
            tail[4 * n + 3] = [f'@vm a{n + 1}']
    for st_ in range(1, 4):
        head = merge(head, {max(1, 4 * (14 * st_ - LA) - OPT['pl']) | 1: poll3(st_)}, spread(224, red_write(st_ - 1), 56 * st_ + 9, 56 * st_ + 25))
    head = merge(head, ({OPT['f2']: [act_flag(2)]} if OPT['f2'] >= 0 else {}), {OPT['f3']: [act_flag(3)]}, spread(224, red_read(0), 141, 149),
                 {54: ['s_barrier']})
    A('s_waitcnt lgkmcnt(0)')
    A('@vm a0')
    ts('2')
    sub = lambda d, lo, hi: {k - lo: x for k, x in d.items() if lo <= k < hi}
    c1_, _ = sched(mm[:112], sub(head, 0, 112), sub(tail, 0, 112), su, 8, vend=52)
    c2_, _ = sched(mm[112:], sub(head, 112, 224), sub(tail, 112, 224), red_final(0, False), 8, vstart=42, vend=80)
    for u in c1_ + c2_:
        A(u)
        if u is mm[55] or u is mm[167]:
            ts('2')
        if u is mm[111]:
            ts('02')
    A.ext(red_write(3) + red_read(1) + red_final(1, True))
    ts('024')


def helper_rest():
    V.release(2)
    g = V.get(16)
    acc = V.get(16, 4)
    fw = V.get(112)
    fv = V.get(16)
    xx = V.get(56)
    t0, t1, t2, vo, vr, va, one, aw, ar = [V.get() for _ in range(9)]
    rd = V.get(8)
    A('s_cmp_ge_u32 s2, 28')
    A('s_cbranch_scc1 L_hr_skip')
    A(f's_mov_b32 {s(sMi)}, s38')
    A(f's_mov_b32 {s(sNi)}, s39')
    A(f's_and_b32 {s(sT1)}, {s(sWave)}, 1')
    A(f's_lshr_b32 {s(sT2)}, {s(sWave)}, 1')
    A('s_waitcnt vmcnt(0)')
    tr_lane(vr, t0, t1, 8, 128)
    A(f'v_bfe_u32 {v(t1)}, {v(LANE)}, 3, 1')
    A(f'v_xor_b32 {v(t1)}, {s(sT1)}, {v(t1)}')
    A(f'v_lshl_add_u32 {v(vr)}, {v(t1)}, 6, {v(vr)}')
    A(f's_mul_i32 {s(sT3)}, {s(sT2)}, 57344')
    A(f'v_add_u32 {v(vr)}, {s(sT3)}, {v(vr)}')
    A(f'v_and_b32 {v(t0)}, 1, {v(LANE)}')
    A(f'v_lshlrev_b32 {v(va)}, 10, {v(t0)}')
    A(f'v_lshrrev_b32 {v(t0)}, 5, {v(LANE)}')
    A(f'v_lshl_add_u32 {v(va)}, {v(t0)}, 4, {v(va)}')
    A(f'v_add_u32 {v(va)}, {SL[4] + 4096}, {v(va)}')
    A(f'v_min_u32 {v(t2)}, 223, {v(TID)}')
    A(f'v_lshlrev_b32 {v(t0)}, 4, {v(t2)}')
    ld = []
    for i, sec in enumerate((4, 3)):
        ld += [f's_mov_b32 {s(sT3)}, {MOD + sec * 7168}',
               f'buffer_load_dwordx4 {v(g + 8 * i, 4)}, {v(t0)}, {s(rWS, 4)}, {s(sT3)} offen sc1',
               f'buffer_load_dwordx4 {v(g + 8 * i + 4, 4)}, {v(t0)}, {s(rWS, 4)}, {s(sT3)} offen offset:3584 sc1']
    A.ext(ld)
    A(tag_wait('L_hg', ld, [g + 3, g + 7, g + 11, g + 15]))
    bf16_pair_from_partials(rd, g, g + 4, True)
    bf16_pair_from_partials(rd + 2, g + 8, g + 12, False)
    A(f'v_lshlrev_b32 {v(t2)}, 2, {v(t2)}')
    A(f'v_add_u32 {v(t2)}, {SL[4] + 4096}, {v(t2)}')
    A(f'ds_write_b32 {v(t2)}, {v(g)}')
    A(f'ds_write_b32 {v(t2)}, {v(g + 8)} offset:1024')
    A('s_waitcnt lgkmcnt(0)')
    A('s_barrier')
    for ks in range(28):
        for e in range(2):
            A(f'ds_read_b64_tr_b16 {v(fw + 4 * ks + 2 * e, 2)}, {v(vr)} offset:{(16 * ks + 4 * e) * 128}')
    for k4 in range(7):
        for i in range(4):
            A(f'ds_read_b128 {v(fv + 4 * i, 4)}, {v(va)} offset:{32 * (4 * k4 + i)}')
        A('s_waitcnt lgkmcnt(0)')
        for i in range(4):
            ks = 4 * k4 + i
            A(f'v_mfma_f32_32x32x16_bf16 {v(acc, 16)}, {v(fv + 4 * i, 4)}, {v(fw + 4 * ks, 4)}, {"0" if ks == 0 else v(acc, 16)}')
        A('s_nop 7')
    A(f's_mul_i32 {s(sT0)}, {s(sMi)}, 28672')
    A(f's_lshl_b32 {s(sT1)}, {s(sNi)}, 2')
    A(f's_add_u32 {s(sT1)}, {s(sT1)}, {s(sWave)}')
    A(f's_lshl_b32 {s(sT1)}, {s(sT1)}, 9')
    A(f's_add_u32 {s(sT0)}, {s(sT0)}, {s(sT1)}')
    A(f's_add_u32 {s(sT0)}, {s(sT0)}, {AUG}')
    A(f'v_lshlrev_b32 {v(t2)}, 4, {v(LANE)}')
    A(f'v_cvt_pk_bf16_f32 {v(g + 1)}, {v(acc)}, {v(acc + 1)}')
    A(f'v_lshlrev_b32 {v(t0)}, 16, {v(g + 1)}')
    A(f'v_and_b32 {v(t1)}, 0xffff0000, {v(g + 1)}')
    A(f'v_sub_f32 {v(acc + 2)}, {v(acc)}, {v(t0)}')
    A(f'v_sub_f32 {v(acc + 3)}, {v(acc + 1)}, {v(t1)}')
    A(f'v_cvt_pk_bf16_f32 {v(g)}, {v(t0)}, {v(acc + 2)}')
    A(f'v_cvt_pk_bf16_f32 {v(g + 2)}, {v(acc + 3)}, {v(t1)}')
    A(f'v_mov_b32 {v(g + 3)}, {s(sTag)}')
    A('s_mov_b32 exec_hi, 0')
    A(f'buffer_store_dwordx4 {v(g, 4)}, {v(t2)}, {s(rWS, 4)}, {s(sT0)} offen sc1')
    A('s_mov_b64 exec, -1')
    A('L_hr_skip:')
    ts()
    A(f's_lshr_b32 {s(sT0)}, s2, 3')
    A(f's_lshl2_add_u32 {s(sT0)}, {s(sT0)}, {s(sWave)}')
    A(f's_mul_i32 {s(sT0)}, {s(sT0)}, 56')
    A(f'v_min_u32 {v(t0)}, 55, {v(LANE)}')
    A(f'v_add_u32 {v(t0)}, {s(sT0)}, {v(t0)}')
    A(f'v_lshlrev_b32 {v(t0)}, 7, {v(t0)}')
    A(f'v_add_u32 {v(t0)}, {FL2}, {v(t0)}')
    A(f's_lshr_b32 {s(sT1)}, s2, 1')
    A(f's_lshl_b32 {s(sT1)}, {s(sT1)}, 2')
    A(f's_and_b32 {s(sT2)}, s2, 1')
    A(f's_add_u32 {s(sTb)}, {s(sT1)}, {s(sT2)}')
    A(f's_mul_i32 {s(sT1)}, {s(sTb)}, 28672')
    A(f's_add_u32 {s(sT1)}, {s(sT1)}, {X1P}')
    A(f'v_lshl_add_u32 {v(vo)}, {v(TID)}, 4, {s(sT1)}')
    A(f'v_mov_b32 {v(one)}, 0x3f803f80')
    A(f'v_and_b32 {v(t1)}, 7, {v(LANE)}')
    A(f'v_lshrrev_b32 {v(t2)}, 4, {v(LANE)}')
    A(f'v_lshl_add_u32 {v(t2)}, {v(t1)}, 2, {v(t2)}')
    A(f's_lshl_b32 {s(sT0)}, {s(sWave)}, 8')
    A(f's_add_u32 {s(sT0)}, {s(sT0)}, {SL[4] + 8192}')
    A(f'v_lshl_add_u32 {v(aw)}, {v(t2)}, 3, {s(sT0)}')
    A(f'v_and_b32 {v(t1)}, 3, {v(LANE)}')
    A(f'v_bfe_u32 {v(t2)}, {v(LANE)}, 2, 1')
    A(f'v_lshl_add_u32 {v(t1)}, {v(t2)}, 4, {v(t1)}')
    A(f'v_bfe_u32 {v(t2)}, {v(LANE)}, 3, 2')
    A(f'v_lshl_add_u32 {v(t1)}, {v(t2)}, 2, {v(t1)}')
    A(f'v_lshlrev_b32 {v(ar)}, 3, {v(t1)}')
    A(f'v_add_u32 {v(ar)}, {SL[4] + 8192}, {v(ar)}')
    A(f'v_lshlrev_b32 {v(vr)}, 4, {v(LANE)}')
    A(f's_lshl_b32 {s(sM2)}, {s(sTb)}, 9')
    A(f's_add_u32 {s(sM2)}, {s(sM2)}, {ST2}')
    pl = [f'buffer_load_dword {v(va)}, {v(t0)}, {s(rWS, 4)}, 0 offen sc1']
    if OPT['hdelay']:
        A(f's_sleep {OPT["hdelay"]}')
    A.ext(pl)
    A(tag_wait('L_hf', pl, [va]))
    A('s_barrier')
    A(f's_lshl2_add_u32 {s(sT0)}, s2, {s(sWave)}')
    A(f's_and_b32 {s(sT1)}, {s(sT0)}, 7')
    A(f's_cbranch_scc1 L_nogo')
    A(f's_lshl_b32 {s(sT0)}, {s(sT0)}, 4')
    A(f's_add_u32 {s(sT0)}, {s(sT0)}, {GO}')
    A(f'v_mov_b32 {v(va)}, {s(sTag)}')
    A(flag_store(va, sT0).replace(';#fl', ';#cond'))
    A('L_nogo:')
    ts()
    for blk in range(2):
        for i in range(7):
            A(f's_mov_b32 {s(sT0)}, {2 * 28672 * blk + 4096 * i}')
            A(f'buffer_load_dwordx4 {v(xx + 28 * blk + 4 * i, 4)}, {v(vo)}, {s(rWS, 4)}, {s(sT0)} offen sc1 ;#hx{blk}_{i}')
    for blk in range(2):
        for j in range(8):
            A(f'v_mov_b32 {v(acc + j)}, 0')
        for i in range(7):
            A(f'@vm hx{blk}_{i}')
            for j in range(4):
                w = xx + 28 * blk + 4 * i + j
                A(f'v_dot2c_f32_bf16 {v(acc + 2 * j)}, {v(w)}, {v(one)}')
                A(f'v_dot2c_f32_bf16 {v(acc + 2 * j + 1)}, {v(w)}, {v(w)}')
        reduce8(acc)
        A(f'ds_write_b64 {v(aw)}, {v(acc, 2)} offset:{1024 * blk}')
        A('s_waitcnt lgkmcnt(0)')
        A('s_barrier')
        A(f's_cmp_lg_u32 {s(sWave)}, {blk}')
        A(f's_cbranch_scc1 L_hs_n{blk}')
        for w in range(4):
            A(f'ds_read_b64 {v(rd + 2 * w, 2)}, {v(ar)} offset:{1024 * blk + 256 * w}')
        A(f'v_mov_b32 {v(t2)}, 0x3b124925')
        A('s_waitcnt lgkmcnt(0)')
        A(f'v_pk_add_f32 {v(rd, 2)}, {v(rd, 2)}, {v(rd + 2, 2)}')
        A(f'v_pk_add_f32 {v(rd + 4, 2)}, {v(rd + 4, 2)}, {v(rd + 6, 2)}')
        A(f'v_pk_add_f32 {v(rd, 2)}, {v(rd, 2)}, {v(rd + 4, 2)}')
        A(f'v_mul_f32 {v(rd)}, 0xbb124925, {v(rd)}')
        A(f'v_mul_f32 {v(t0)}, {v(rd)}, {v(rd)}')
        A(f'v_fma_f32 {v(rd + 1)}, {v(rd + 1)}, {v(t2)}, -{v(t0)}')
        A(f'v_max_f32 {v(rd + 1)}, 0, {v(rd + 1)}')
        A(f'v_add_f32 {v(rd + 1)}, 0x3727c5ac, {v(rd + 1)}')
        A(f'v_sqrt_f32 {v(rd + 1)}, {v(rd + 1)}')
        A(f'v_cvt_pk_bf16_f32 {v(g)}, {v(rd)}, {v(rd)}')
        A(f'v_cvt_pk_bf16_f32 {v(t1)}, {v(rd + 1)}, {v(rd + 1)}')
        A(f'v_and_b32 {v(t0)}, 0xffff0000, {v(g)}')
        A(f'v_and_b32 {v(t1)}, 0xffff0000, {v(t1)}')
        A(f'v_sub_f32 {v(rd + 2)}, {v(rd)}, {v(t0)}')
        A(f'v_sub_f32 {v(rd + 3)}, {v(rd + 1)}, {v(t1)}')
        A(f'v_cvt_pk_bf16_f32 {v(g + 1)}, {v(rd + 2)}, {v(t1)}')
        A(f'v_cvt_pk_bf16_f32 {v(g + 2)}, {v(t1)}, {v(rd + 3)}')
        A(f'v_mov_b32 {v(g + 3)}, {s(sTag)}')
        A('s_mov_b32 exec_hi, 0')
        A(f'buffer_store_dwordx4 {v(g, 4)}, {v(vr)}, {s(rWS, 4)}, {s(sM2)} offen offset:{1024 * blk} sc1 ;#cond')
        A('s_mov_b64 exec, -1')
        A(f'L_hs_n{blk}:')
    ts()


def epoch_update():
    A('s_cmp_lg_u32 s2, 32')
    A('s_cbranch_scc1 L_noep')
    A(f'v_mov_b32 v2, {s(sTag)}')
    A(f'v_mov_b32 v3, {EP}')
    A(f'buffer_store_dword v2, v3, {s(rWS, 4)}, 0 offen sc1')
    A('L_noep:')


def build():
    prologue()
    n0 = nts[0]
    m = V.mark()
    main_ffn(main_ssm())
    epoch_update()
    ts_flush('m')
    A('s_endpgm')
    A('L_helper:')
    nts[0] = n0
    V.release(m)
    helper_mod()
    helper_rest()
    ts_flush('h')
    A('L_end:')
    A('s_endpgm')
    A.ext(COLD)
    A('L_code_end:')
    if OPT['nodma']:
        keys = [s(rW, 4)] * (OPT['nodma'] & 1) + [s(rWd, 4)] * (OPT['nodma'] >> 1)
        A.lines = ['    s_nop 0' if ('buffer_load' in ln and any(k in ln for k in keys)) else ln for ln in A.lines]
    if OPT['skip']:
        tg = [f';#w{i}' for i in range(7) if OPT['skip'] >> i & 1] + [f';#d{i}' for i in range(7) if OPT['skip'] >> (8 + i) & 1]
        A.lines = ['    s_nop 0' if ('buffer_load' in ln and any(ln.endswith(k) for k in tg)) else ln for ln in A.lines]
    body = pad_hazards(resolve_waits(A.lines))
    hdr = open('adaLN_cond__ssm_conv_s4__swiglu_ffn__prompt.s.ref').read().split('; Override launch')[0]
    text = hdr + '; @launch grid=(256,1,1) block=(256,1,1) lds=163840\n'
    text += f'.amdgcn_target "amdgcn-amd-amdhsa--gfx950"\n.text\n.globl {NAME}\n.p2align 8\n.type {NAME},@function\n{NAME}:\n'
    text += '\n'.join(body) + '\n'
    text += f'''.section .rodata,"a"
.p2align 6
.amdhsa_kernel {NAME}
  .amdhsa_next_free_vgpr 512
  .amdhsa_next_free_sgpr 102
  .amdhsa_accum_offset 256
  .amdhsa_group_segment_fixed_size 0
  .amdhsa_kernarg_size 144
  .amdhsa_user_sgpr_count 2
  .amdhsa_user_sgpr_kernarg_segment_ptr 1
  .amdhsa_system_sgpr_workgroup_id_x 1
  .amdhsa_float_denorm_mode_32 3
.end_amdhsa_kernel
'''
    open(sys.argv[1], 'w').write(text)
    print('vgpr high water', V.hi, 'lines', len(body))


build()
```

```python
import re

REG = re.compile(r'^(-|\|)?(abs\()?([vas])(\d+|\[(\d+):(\d+)\])\)?\|?$')
TRANS = ('v_exp_f32', 'v_log_f32', 'v_rcp_f32', 'v_rsq_f32', 'v_sqrt_f32', 'v_sin_f32', 'v_cos_f32')


def regs_of(tok):
    tok = tok.strip()
    if tok in ('vcc', 'vcc_lo', 'vcc_hi'):
        return {('s', 'vcc')}
    if tok in ('exec', 'exec_lo', 'exec_hi'):
        return {('s', 'exec')}
    if tok == 'm0':
        return {('s', 'm0')}
    m = REG.match(tok)
    if not m:
        return set()
    k = m.group(3)
    if m.group(5) is not None:
        return {(k, i) for i in range(int(m.group(5)), int(m.group(6)) + 1)}
    return {(k, int(m.group(4)))}


class Ins:
    def __init__(self, text):
        self.text = text
        body = text.split(';')[0].strip()
        parts = body.split(None, 1)
        self.op = parts[0]
        rest = parts[1] if len(parts) > 1 else ''
        ops, depth, cur = [], 0, ''
        for ch in rest:
            if ch == '[':
                depth += 1
            if ch == ']':
                depth -= 1
            if ch == ',' and depth == 0:
                ops.append(cur.strip())
                cur = ''
            else:
                cur += ch
        mods = ''
        if cur.strip():
            last = cur.strip().split(None, 1)
            ops.append(last[0])
            mods = last[1] if len(last) > 1 else ''
        self.ops, self.mods = ops, mods
        op = self.op
        R = [regs_of(o) for o in ops]
        allr = set().union(*R) if R else set()
        self.mfma = op.startswith('v_mfma')
        self.valu = op.startswith('v_') and not self.mfma
        self.trans = any(op.startswith(t) for t in TRANS)
        self.dot = op.startswith('v_dot')
        self.dpp = '_dpp' in op
        self.perm = op.startswith('v_permlane')
        self.lane = op.startswith('v_readlane') or op.startswith('v_readfirstlane') or op.startswith('v_writelane')
        self.ds = op.startswith('ds_')
        self.vmem = op.startswith('buffer_') or op.startswith('global_')
        self.salu = op.startswith('s_')
        self.ldsdma = self.vmem and (' lds' in ' ' + mods or '_lds_' in op)
        self.usem0 = self.ldsdma or 'addtid' in op
        self.wr, self.rd = set(), set()
        self.states = 1
        if op == 's_nop':
            self.states = int(ops[0], 0) + 1
        if self.mfma:
            self.wr = R[0]
            self.srcA, self.srcB, self.srcC = R[1], R[2], R[3]
            self.rd = R[1] | R[2] | R[3]
            self.passes = 8 if '32x32' in op else 4
        elif self.valu:
            nd = 2 if ('_co_' in op and not op.startswith('v_cmp')) else 1
            self.wr = set().union(*R[:nd])
            self.rd = set().union(*R[nd:]) if len(R) > nd else set()
            if self.perm:
                self.wr = allr
                self.rd = allr
            if op.startswith('v_fmac') or op.startswith('v_dot2c') or self.dpp or op.startswith('v_writelane'):
                self.rd |= R[0]
            if op.startswith('v_cmpx'):
                self.wr = self.wr | {('s', 'exec')}
            if op.startswith('v_cndmask') and len(ops) == 3:
                self.rd |= {('s', 'vcc')}
        elif self.ds:
            if op.startswith('ds_read') or op.startswith('ds_bpermute') or op.startswith('ds_swizzle'):
                self.wr = R[0]
                self.rd = set().union(*R[1:]) if len(R) > 1 else set()
            else:
                self.rd = allr
        elif self.vmem:
            if '_load' in op and not self.ldsdma:
                self.wr = R[0]
                self.rd = set().union(*R[1:])
            else:
                self.rd = allr
            self.widestore = ('store_dwordx4' in op or 'store_dwordx3' in op)
            if self.widestore:
                self.stdata = R[0] if op.startswith('buffer_') else R[1]
        elif self.salu:
            nodst = ('s_cmp', 's_waitcnt', 's_nop', 's_barrier', 's_branch', 's_cbranch', 's_endpgm', 's_sleep', 's_setprio', 's_bitcmp')
            if not op.startswith(nodst) and R:
                self.wr = R[0]
                self.rd = set().union(*R[1:]) if len(R) > 1 else set()
                if 'saveexec' in op:
                    self.wr = self.wr | {('s', 'exec')}
            else:
                self.rd = allr


def need(p, c):
    n = 0
    vw = {r for r in p.wr if r[0] in 'va'}
    sw = {r for r in p.wr if r[0] == 's'}
    if p.mfma:
        big = 12 if p.passes == 8 else 8
        if c.mfma:
            if vw & (c.srcA | c.srcB):
                n = max(n, big)
            if vw & c.srcC and not (vw == c.srcC and p.passes == c.passes):
                n = max(n, 10 if p.passes == 8 else 6)
            if vw & c.wr and not (vw & c.srcC):
                n = max(n, big)
        elif vw & (c.rd | c.wr):
            n = max(n, big)
        if c.valu and p.srcC & c.wr:
            n = max(n, 7 if p.passes == 8 else 3)
    if p.valu:
        if c.mfma and vw & c.rd:
            n = max(n, 2)
        if p.trans and c.valu and vw & c.rd:
            n = max(n, 1)
        if (c.dpp or c.perm) and vw & c.rd:
            n = max(n, 2)
        if c.lane and vw & c.rd:
            n = max(n, 1)
        if p.dot and vw & (c.rd | c.wr):
            same = c.op == p.op and not (vw & set().union(*[regs_of(o) for o in c.ops[1:3]]))
            if not same:
                n = max(n, 3)
        if ('s', 'exec') in sw and (c.dpp or c.perm or c.lane or c.mfma):
            n = max(n, 5)
        if sw:
            if c.valu and sw & c.rd:
                n = max(n, 4 if c.lane else 2)
            if c.vmem and sw & c.rd:
                n = max(n, 5)
            if c.salu and sw & c.rd:
                n = max(n, 1)
            if c.op.startswith('s_cbranch_vcc') and ('s', 'vcc') in sw:
                n = max(n, 1)
    if p.salu and ('s', 'm0') in p.wr and c.usem0:
        n = max(n, 1)
    if p.salu and ('s', 'exec') in p.wr and (c.dpp or c.perm or c.lane):
        n = max(n, 1)
    if p.vmem and getattr(p, 'widestore', False) and p.stdata & c.wr:
        n = max(n, 2)
    return n


def pad_hazards(lines):
    back = {}
    for _ in range(3):
        out, hists, fwd, seen, newback = [], [[]], {}, set(), {}
        for ln in lines:
            s = ln.strip()
            if not s or s.startswith(';') or s.startswith('.'):
                out.append(ln)
                continue
            if s.endswith(':'):
                lab = s[:-1]
                seen.add(lab)
                hists = hists + fwd.get(lab, []) + back.get(lab, [])
                out.append(ln)
                continue
            c = Ins(s)
            gap = 0
            for h in hists:
                for p, age in h:
                    gap = max(gap, need(p, c) - age)
            while gap > 0:
                k = min(gap, 16)
                out.append(f'    s_nop {k - 1}')
                hists = [[(p, a + k) for p, a in h] for h in hists]
                gap -= k
            out.append(ln)
            merged = {}
            for h in hists:
                for p, a in h:
                    if a + c.states < 14:
                        key = id(p)
                        if key not in merged or merged[key][1] > a + c.states:
                            merged[key] = (p, a + c.states)
            h = list(merged.values()) + [(c, 0)]
            hists = [h]
            if c.op.startswith('s_cbranch') or c.op == 's_branch':
                tgt = c.ops[0]
                (newback if tgt in seen else fwd).setdefault(tgt, []).append(list(h))
                if c.op == 's_branch':
                    hists = [[]]
            if c.op == 's_endpgm':
                hists = [[]]
        lines, back = out, newback
    return lines


class Regs:
    def __init__(self, kind, start, end):
        self.kind, self.pos, self.end = kind, start, end
        self.hi = start

    def get(self, n=1, align=1):
        if n > 1 and align == 1:
            align = 2
        self.pos = (self.pos + align - 1) // align * align
        r = self.pos
        self.pos += n
        assert self.pos <= self.end, f'out of {self.kind} registers'
        self.hi = max(self.hi, self.pos)
        return r

    def mark(self):
        return self.pos

    def release(self, m):
        self.pos = m


def v(r, n=1):
    return f'v{r}' if n == 1 else f'v[{r}:{r + n - 1}]'


def a(r, n=1):
    return f'a{r}' if n == 1 else f'a[{r}:{r + n - 1}]'


def s(r, n=1):
    return f's{r}' if n == 1 else f's[{r}:{r + n - 1}]'


class Asm:
    def __init__(self):
        self.lines = []

    def __call__(self, text):
        for ln in text.split('\n'):
            t = ln.strip()
            if not t:
                continue
            self.lines.append(t if t.endswith(':') else '    ' + t)

    def ext(self, lst):
        for x in lst:
            self(x)


def interleave(main, fill, per=None, start=0, end=None):
    end = len(main) if end is None else end
    n = end - start
    out, done = [], 0
    for i, m in enumerate(main):
        out.append(m)
        if start <= i < end:
            tgt = (len(fill) * (i - start + 1) + n - 1) // n
            if per is not None:
                tgt = min(len(fill), done + per)
            out.extend(fill[done:tgt])
            done = max(done, tgt)
    out.extend(fill[done:])
    return out


def resolve_waits(lines):
    out, vm, lg = [], [], []
    for ln in lines:
        t = ln.strip()
        if t.startswith('@vm') or t.startswith('@lg'):
            kind, tags = t.split(None, 1)
            q = vm if kind == '@vm' else lg
            idx = [i for i, x in enumerate(q) if x in tags.split()]
            if not idx:
                continue
            n = sum(1 for x in q[max(idx) + 1:] if x != 'cond')
            lim = 63 if kind == '@vm' else 15
            n = min(n, lim)
            out.append(f'    s_waitcnt {"vmcnt" if kind == "@vm" else "lgkmcnt"}({n})')
            del q[:max(idx) + 1]
            continue
        if t and not t.endswith(':') and not t.startswith(';') and not t.startswith('.'):
            op = t.split()[0]
            tag = t.split(';#')[1].strip() if ';#' in t else ''
            if op.startswith('buffer_') or op.startswith('global_'):
                vm.append(tag)
            elif op.startswith('ds_'):
                lg.append(tag)
            elif op == 's_waitcnt' and tag != 'cond':
                if 'vmcnt(0)' in t:
                    vm.clear()
                if 'lgkmcnt(0)' in t:
                    lg.clear()
            ln = ln.split(';#')[0].rstrip()
        out.append(ln)
    return out


def tagged(lst, tag):
    out = []
    for x in lst:
        op = x.split()[0]
        out.append(x + ' ;#' + tag if op.startswith(('buffer_', 'global_', 'ds_')) and ';#' not in x else x)
    return out


def cost(unit):
    c = 0
    for ln in unit.split('\n'):
        t = ln.strip()
        if not t or t.endswith(':') or t.endswith(';#cond') or t.startswith(';'):
            continue
        op = t.split()[0]
        if op.startswith(TRANS):
            c += 8
        elif op.startswith('ds_write_b128'):
            c += 22
        elif op.startswith('ds_write_b64'):
            c += 12
        elif op.startswith('buffer_load'):
            c += 8
        elif op.startswith('s_cbranch'):
            c += 16
        elif op == 's_barrier':
            c += 8
        elif op.startswith('v_mfma'):
            c += 8
        else:
            c += 4
    return c


def is_mem(unit):
    return any(ln.strip().split()[0].startswith(('ds_', 'buffer_', 'global_')) for ln in unit.split('\n') if ln.strip())


def spread(n, items, start=0, end=None):
    end = n if end is None else end
    d = {}
    for i, it in enumerate(items):
        d.setdefault(start + (i * (end - start)) // max(1, len(items)), []).append(it)
    return d


def merge(*ds):
    o = {}
    for d in ds:
        for k, val in d.items():
            o.setdefault(k, []).extend(val)
    return o


def sched(mf, head, tail, valu, gap, vstart=0, vend=None):
    n = len(mf)
    vend = n if vend is None else vend
    free = [max(0, gap - sum(map(cost, head.get(i, []))) - sum(map(cost, tail.get(i, [])))) for i in range(n)]
    extra = sum(gap + 8 for u in valu if u.startswith('v_mfma'))
    tot = sum(free[vstart:vend]) + extra
    ratio = sum(map(cost, valu)) / max(1, tot)
    out, k, used, avail = [], 0, 0.0, 0.0
    for i in range(n):
        out.append(mf[i])
        if vstart <= i:
            while k < len(valu) and is_mem(valu[k]):
                out.append(valu[k])
                used += cost(valu[k])
                k += 1
        out.extend(head.get(i, []))
        if vstart <= i < vend:
            avail += free[i] * ratio
            while k < len(valu) and not is_mem(valu[k]) and used + cost(valu[k]) / 2 <= avail:
                out.append(valu[k])
                used += cost(valu[k])
                if valu[k].startswith('v_mfma'):
                    avail += (gap + 8) * ratio
                k += 1
        out.extend(tail.get(i, []))
    out.extend(valu[k:])
    return out, ratio


def is_vmem(unit):
    return any(ln.strip().split()[0].startswith(('buffer_', 'global_')) for ln in unit.split('\n') if ln.strip())


def sched2(mf, head, tail, soft, segs, gap):
    n = len(mf)
    fixed = [sum(map(cost, head.get(i, []))) + sum(map(cost, tail.get(i, []))) for i in range(n)]
    free = [max(0, gap - fixed[i] - sum(map(cost, soft.get(i, [])))) for i in range(n)]
    valu, due, ratios = [], [0.0] * n, []
    first = []
    for lo, hi, vs in segs:
        extra = sum(gap + 8 for u in vs if u.startswith('v_mfma'))
        tot = sum(map(cost, vs))
        r = max(0.0, tot - extra) / max(1, sum(free[lo:hi]))
        ratios.append(round(r, 3))
        if hi - lo < 8:
            due[lo] += max(0, tot - 8 * sum(u.startswith('v_mfma') for u in vs) - gap * sum(u.startswith('v_mfma') for u in vs)) + 32
        else:
            for i in range(lo, hi):
                due[i] += free[i] * min(1.0, r * 1.08)
        first += [lo] * len(vs)
        valu += vs
    out, q, k, used, avail, over, age, vage = [], [], 0, 0.0, 0.0, 0, 0, 0
    for i in range(n):
        q += soft.get(i, [])
        room = gap - fixed[i]
        vm, ds, post = [], [], []
        while k < len(valu) and first[k] <= i and is_mem(valu[k]) and (cost(valu[k]) <= room or room == gap - fixed[i]):
            (vm if is_vmem(valu[k]) else ds).append(valu[k])
            room -= cost(valu[k])
            used += cost(valu[k])
            k += 1
        age += 1
        while q and (cost(q[0]) <= room or (cost(q[0]) > gap - 4 and (room == gap or (age > 3 and room >= gap - 4)))):
            u = q[0]
            if is_mem(u):
                if post or (is_vmem(u) and ds):
                    break
                (vm if is_vmem(u) else ds).append(u)
            else:
                post.append(u)
            room -= cost(u)
            q.pop(0)
            age = 0
        if not q:
            age = 0
        hd = head.get(i, [])
        bar = any('s_barrier' in u for u in hd)
        out.append(mf[i])
        out.extend(hd + vm + ds + post if bar else vm + hd + ds + post)
        avail += due[i]
        while k < len(valu) and first[k] <= i and not is_mem(valu[k]):
            u = valu[k]
            if u == ';gap':
                k += 1
                break
            if u.startswith('v_mfma'):
                out.append(u)
                room = gap - sum(map(cost, tail.get(i, [])))
                avail += gap
                k += 1
                continue
            c = cost(u)
            big = c > gap - 4 and (room == gap or (vage > 2 and room >= gap - 4))
            if c > room and not big:
                vage += 1
                break
            vage = 0
            out.append(u)
            used += c
            room -= c
            k += 1
        over += max(0, -room)
        out.extend(tail.get(i, []))
    left = sum(map(cost, q)) + sum(map(cost, valu[k:]))
    out.extend(q + valu[k:])
    return out, (ratios, 'over', over, 'left', left)
```

```python
import sys
from asmgen import *

NAME = 'adaLN_cond__ssm_conv_s4__swiglu_ffn__prompt_kernel'
OPT = dict(ts=0, probe=-1, hprobe=-1, grp=0, nap=1, kb=4, x1e=3, e0=66, b1=112, b2=168, sl=42, sl1=36, sl2=46, gv=40, rm=2, la=9, pl=16, osc=1, g0=6, a0=206, g5=10, r3=186, r4=204, p0=180, f0=6, f1=10, f2=6, f3=30, nodma=0, hdelay=0, mdelay=0, exp=0, n0=6, h1p=2, skip=0, pre1=1, tsb=2, n1=0, m2p=28, hbe=0, hb0=2, hb1=1, cd0=8, cd1=116, hw0=28, nc=3, se=1, s0=3, ls0=38, fs=16, q0=54, q1=70, q2=108, q3=124, q4=172, q5=184, r0=76, r1=128, r2=164, dg=8, nf=0, glc=0, na=6, cda=50, cdb=86, w2c=0, cd2=140, fa=130, gl=14, fp=4, pm=1, xo3=0, hx=1, qd=18, gb=36, re=0, hp=0, hf=0, npf=4, ha=0, hn=8)
for arg in sys.argv[2:]:
    k, val = arg.split('=')
    OPT[k] = int(val)

EP, ST1, MOD, AUG, ST2, FL2, FL3 = 0, 0x1000, 0x8000, 0x14000, 0x24000, 0xC0000, 0x40000
FL2S = 896 * 128
GO = 0x30000
INB, XS, X1P, ACT, TS = 0x100000, 0x500000, 0x700000, 0x900000, 0x1800000
SL = [0, 32768, 65536, 98304, 131072]
KG_W = 16320
HB, HC = 65024, 4160
KT, KT_CH, KT_C0 = 33792, 9152, 4568
XR = 52096
TXB = 13248
CKX = 60416
SPIN = 200000
XB = 51

pX, pAre, pAim, pBre, pBim, pCre, pCim, pLdt, pDs, pBx, pWg, pWu, pWd, pC, pWm, pOut, pDbg, pWs = range(4, 40, 2)
rX, rWS, rW, rWd, rOut, rWm = 40, 44, 48, 52, 56, 60
sWave, sTag, sJ, sMi, sNi, sMt, sNt, sRot, sLdt, sDs, sT0, sT1, sT2, sT3, sSpin, sM2 = range(64, 80)
sTS = 80
sC = 4
sD = 24
sW1k, sW8k, sWo, sFl, sTb = 11, 12, 13, 14, 15

A = Asm()
V = Regs('v', 6, 256)
TID, LANE, VST, VTAG = 0, 1, 2, 4
CODE_SLICE = 1152
sGi, sSo, sP, sGo, sGo2 = 36, 37, 63, 36, 37
nts = [0]


def ts(grp='0'):
    if OPT['ts'] and (grp == '*' or str(OPT['grp']) in grp):
        A(f's_mem{"real" if OPT["ts"] == 1 else ""}time {s(sTS + 2 * nts[0], 2)}')
        nts[0] += 1
        assert nts[0] <= 11


def ts_flush(tag):
    if not OPT['ts']:
        return
    pk = OPT['probe' if tag == 'm' else 'hprobe']
    if max(OPT['probe'], OPT['hprobe']) >= 0:
        if pk >= 0:
            A('s_waitcnt lgkmcnt(0)')
            A(f's_add_u32 {s(sT0)}, {s(sTS + 2 * pk)}, 6000')
            A(f'L_probe{tag}:')
            A(f's_memrealtime {s(sT2, 2)}')
            A('s_waitcnt lgkmcnt(0)')
            A(f's_sub_u32 {s(sT1)}, {s(sT2)}, {s(sT0)}')
            A(f's_cmp_lt_i32 {s(sT1)}, 0')
            A(f's_cbranch_scc1 L_probe{tag}')
        return
    n = nts[0]
    A('s_waitcnt lgkmcnt(0)')
    A(f's_lshl_b32 {s(sT0)}, s2, 2')
    A(f's_add_u32 {s(sT0)}, {s(sT0)}, {s(sWave)}')
    A(f's_lshl_b32 {s(sT0)}, {s(sT0)}, 6')
    A(f's_add_u32 {s(sT0)}, {s(sT0)}, {TS}')
    A(f'v_mov_b32 v2, {s(sT0)}')
    for i in range(n):
        A(f'v_mov_b32 v3, {s(sTS + 2 * i)}')
        A(f'buffer_store_dword v3, v2, {s(rWS, 4)}, 0 offen offset:{4 * i}')


def srd(r, p, nbytes):
    A(f's_mov_b32 {s(r)}, {s(p)}')
    A(f's_mov_b32 {s(r + 1)}, {s(p + 1)}')
    A(f's_mov_b32 {s(r + 2)}, {nbytes}')
    A(f's_mov_b32 {s(r + 3)}, 0x00020000')


def cmul(d, x, y):
    return [f'v_pk_mul_f32 {v(d, 2)}, {v(x, 2)}, {v(y, 2)} op_sel:[0,0] op_sel_hi:[1,0]',
            f'v_pk_fma_f32 {v(d, 2)}, {v(x, 2)}, {v(y, 2)}, {v(d, 2)} op_sel:[1,1,0] op_sel_hi:[0,1,1] neg_lo:[0,1,0]']


def div7(q, r, x):
    A(f's_mul_i32 {s(q)}, {s(x)}, 9363')
    A(f's_lshr_b32 {s(q)}, {s(q)}, 16')
    A(f's_mul_i32 {s(r)}, {s(q)}, 7')
    A(f's_sub_u32 {s(r)}, {s(x)}, {s(r)}')


COLD = []


def tag_wait(label, loads, tags, younger=0):
    o = [f'@vm {younger}' if isinstance(younger, str) else f's_waitcnt vmcnt({younger})']
    chk = [f'v_cmpx_eq_u32 vcc, {s(sTag)}, {v(t)}' for t in tags]
    chk += ['s_nop 0', 's_cmp_eq_u64 exec, -1', 's_mov_b64 exec, -1']
    o += chk + [f's_cbranch_scc0 {label}_re', f'{label}_ok:']
    c = [f'{label}_re:', f's_mov_b32 {s(sSpin)}, {SPIN}', f'{label}_lp:', f's_sleep {OPT["nap"]}']
    c += [x.split(';#')[0] for x in loads]
    c += ['s_waitcnt vmcnt(0)'] + chk + [f's_cbranch_scc1 {label}_ok', f's_sub_u32 {s(sSpin)}, {s(sSpin)}, 1',
                                         f's_cmp_lg_u32 {s(sSpin)}, 0', f's_cbranch_scc1 {label}_lp', f's_branch {label}_ok']
    COLD.extend(c)
    return '\n'.join(o)


def tag_units(label, loads, tags, younger, pair=None):
    chk = [f'v_cmp_ne_u32 vcc, {s(sTag)}, {v(tags[0])}']
    for t in tags[1:]:
        chk += [f'v_cmp_ne_u32 {s(sLdt, 2)}, {s(sTag)}, {v(t)}', f's_or_b64 vcc, vcc, {s(sLdt, 2)}']
    c = [f'{label}_re:', f's_mov_b32 {s(sSpin)}, {SPIN}', f'{label}_lp:', f's_sleep {OPT["nap"]}']
    c += [x.split(';#')[0] for x in loads]
    if pair is not None:
        chk = [f'v_cmp_ne_u32 {s(pair, 2)}, {s(sTag)}, {v(tags[0])}']
        c += ['s_waitcnt vmcnt(0)'] + chk + [f's_cmp_eq_u64 {s(pair, 2)}, 0', f's_cbranch_scc1 {label}_ok', f's_sub_u32 {s(sSpin)}, {s(sSpin)}, 1',
                                             f's_cmp_lg_u32 {s(sSpin)}, 0', f's_cbranch_scc1 {label}_lp', f's_branch {label}_ok']
        COLD.extend(c)
        return [f'@vm {younger}'] + chk + [f's_cmp_lg_u64 {s(pair, 2)}, 0\ns_cbranch_scc1 {label}_re\n{label}_ok:']
    c += ['s_waitcnt vmcnt(0)'] + chk + [f's_cbranch_vccz {label}_ok', f's_sub_u32 {s(sSpin)}, {s(sSpin)}, 1',
                                         f's_cmp_lg_u32 {s(sSpin)}, 0', f's_cbranch_scc1 {label}_lp', f's_branch {label}_ok']
    COLD.extend(c)
    return [f'@vm {younger}'] + chk + [f's_cbranch_vccnz {label}_re\n{label}_ok:']


def stats1_addr():
    A(f's_mov_b32 {s(rX + 2)}, 1835008')
    A(f's_mov_b32 {s(rX + 3)}, 0x00020000')
    A(f's_mov_b32 {s(rWS + 2)}, 0x10000000')
    A(f's_mov_b32 {s(rWS + 3)}, 0x00020000')
    A(f's_lshl2_add_u32 {s(sGi)}, s2, {s(sWave)}')
    A(f's_mul_i32 {s(sSo)}, {s(sGi)}, 1792')
    A(f'v_lshrrev_b32 v3, 5, {v(LANE)}')
    A('v_mul_u32_u24 v3, 896, v3')
    A(f'v_and_b32 v4, 31, {v(LANE)}')
    A('v_cmp_gt_u32 vcc, 28, v4')
    A('v_lshl_add_u32 v3, v4, 4, v3')
    A('v_bfrev_b32 v4, 2')
    A(f'v_cndmask_b32 {v(VST)}, v4, v3, vcc')


def stats1_loads(d):
    if OPT['pre1']:
        A(f's_lshl_b32 {s(sSpin)}, {s(sGi)}, 4')
        A(f's_add_u32 {s(sSpin)}, {s(sSpin)}, {ST1}')
        A(f'buffer_load_dword v5, off, {s(rWS, 4)}, {s(sSpin)}')
    A(f'buffer_load_dwordx4 {v(d, 4)}, {v(VST)}, {s(rX, 4)}, {s(sSo)} offen')
    A(f'buffer_load_dwordx4 {v(d + 4, 4)}, {v(VST)}, {s(rX, 4)}, {s(sSo)} offen offset:448')


def stats1_compute(d):
    m = V.mark()
    g = V.get(4)
    s1, s2, one, t = V.get(), V.get(), V.get(), V.get()
    A(f'v_mov_b32 {v(one)}, 0x3f803f80')
    A(f'v_mov_b32 {v(s1)}, 0')
    A(f'v_mov_b32 {v(s2)}, 0')
    for i in range(8):
        A(f'v_dot2c_f32_bf16 {v(s1)}, {v(d + i)}, {v(one)}')
        A(f'v_dot2c_f32_bf16 {v(s2)}, {v(d + i)}, {v(d + i)}')
    for ctl in ('row_shr:1', 'row_shr:2', 'row_shr:4', 'row_shr:8'):
        for r in (s1, s2):
            A(f'v_add_f32_dpp {v(r)}, {v(r)}, {v(r)} {ctl} row_mask:0xf bank_mask:0xf bound_ctrl:1')
    for r in (s1, s2):
        A(f'v_add_f32_dpp {v(r)}, {v(r)}, {v(r)} row_bcast:15 row_mask:0xa bank_mask:0xf')
    A(f'v_mul_f32 {v(s1)}, 0x3b124925, {v(s1)}')
    A(f'v_mul_f32 {v(t)}, {v(s1)}, {v(s1)}')
    A(f'v_mov_b32 {v(one)}, 0x3b124925')
    A(f'v_fma_f32 {v(s2)}, {v(s2)}, {v(one)}, -{v(t)}')
    A(f'v_max_f32 {v(s2)}, 0, {v(s2)}')
    A(f'v_add_f32 {v(s2)}, 0x3727c5ac, {v(s2)}')
    A(f'v_rsq_f32 {v(g + 2)}, {v(s2)}')
    A(f'v_mov_b32 {v(g + 3)}, {s(sTag)}')
    A(f'v_mul_f32 {v(s1)}, {v(s1)}, {v(g + 2)}')
    A(f'v_readlane_b32 {s(sT1)}, {v(g + 2)}, 31')
    A(f'v_readlane_b32 {s(sT2)}, {v(s1)}, 31')
    A(f's_lshl_b32 {s(sT0)}, {s(sGi)}, 4')
    A(f's_add_u32 {s(sT0)}, {s(sT0)}, {ST1}')
    A(f'v_mov_b32 {v(g + 1)}, {s(sT1)}')
    A(f'v_cvt_pk_bf16_f32 {v(g)}, -{s(sT2)}, -{v(s1)}')
    A('s_mov_b32 exec_lo, 0')
    A('s_mov_b32 exec_hi, 0x80000000')
    A(f'buffer_store_dwordx4 {v(g, 4)}, off, {s(rWS, 4)}, {s(sT0)} sc1')
    A('s_mov_b64 exec, -1')
    V.release(m)


def reduce8(acc):
    for j in range(4):
        A(f'v_permlane32_swap_b32 {v(acc + j)}, {v(acc + j + 4)}')
    for j in range(4):
        A(f'v_add_f32 {v(acc + j)}, {v(acc + j)}, {v(acc + j + 4)}')
    for j in range(2):
        A(f'v_permlane16_swap_b32 {v(acc + j)}, {v(acc + j + 2)}')
    for j in range(2):
        A(f'v_add_f32 {v(acc + j)}, {v(acc + j)}, {v(acc + j + 2)}')
    for j in range(2):
        A(f'v_add_f32_dpp {v(acc + j)}, {v(acc + j)}, {v(acc + j)} row_ror:8 row_mask:0xf bank_mask:0xf')


def bf16_pair_from_partials(dst, g0, g1, plus1):
    A(f'v_add_f32 {v(dst)}, {v(g0)}, {v(g1)}')
    A(f'v_add_f32 {v(dst + 1)}, {v(g0 + 1)}, {v(g1 + 1)}')
    A(f'v_cvt_pk_bf16_f32 {v(g0)}, {v(dst)}, {v(dst + 1)}')
    A(f'v_lshlrev_b32 {v(dst)}, 16, {v(g0)}')
    A(f'v_and_b32 {v(dst + 1)}, 0xffff0000, {v(g0)}')
    if plus1:
        A(f'v_add_f32 {v(dst)}, 1.0, {v(dst)}')
        A(f'v_add_f32 {v(dst + 1)}, 1.0, {v(dst + 1)}')
        A(f'v_cvt_pk_bf16_f32 {v(g0)}, {v(dst)}, {v(dst + 1)}')
        A(f'v_lshlrev_b32 {v(dst)}, 16, {v(g0)}')
        A(f'v_and_b32 {v(dst + 1)}, 0xffff0000, {v(g0)}')


def prologue():
    A('s_cmp_ge_u32 s2, 256')
    A('s_cbranch_scc1 L_end')
    ts('*')
    A(f's_load_dwordx2 {s(rX, 2)}, s[0:1], 0')
    A(f's_load_dwordx2 {s(rWS, 2)}, s[0:1], 136')
    A('s_load_dwordx16 s[4:19], s[0:1], 0')
    A('s_load_dwordx16 s[20:35], s[0:1], 64')
    A(f's_getpc_b64 {s(sT2, 2)}')
    A('L_pc:')
    A(f's_lshr_b32 {s(sT0)}, s2, 3')
    A(f's_mul_i32 {s(sT0)}, {s(sT0)}, {CODE_SLICE}')
    A(f'v_lshrrev_b32 v3, 6, {v(TID)}')
    A(f'v_min_u32 v4, {CODE_SLICE // 128 - 1}, {v(TID)}')
    A(f'v_lshl_add_u32 v4, v4, 7, {s(sT0)}')
    A('v_min_u32 v4, L_code_end-L_pc-4, v4')
    A(f'v_readfirstlane_b32 {s(sWave)}, v3')
    A(f'v_and_b32 {v(LANE)}, 63, {v(TID)}')
    A(f'global_load_dword v5, v4, {s(sT2, 2)}')
    A(f's_sub_u32 {s(sJ)}, s2, 32')
    A('s_cbranch_scc1 L_helper')


UEXP = {}
for vv in range(14):
    for hh in range(2):
        if vv < 4:
            e = 4 * hh + vv
        elif vv < 7:
            e = 256 + 4 * hh + 2 * (vv - 4)
        elif vv < 10:
            e = 512 + 256 * hh + 4 * (vv - 7)
        elif vv < 12:
            e = 1024 + 512 * hh + 8 * (vv - 10)
        else:
            e = 1280 + 512 * hh + 8 * (vv - 12)
        rho = 8 * (vv >> 2) + 4 * hh + (vv & 3)
        UEXP.setdefault(e, []).append(rho if rho < 26 else rho - 2)


def stage_dma(cc, slot, voff, rsrc, rowb):
    out = []
    for i in range(8):
        u = ''
        if i % 4 == 0:
            u += f's_add_u32 m0, {s(sW8k)}, {SL[slot] + 1024 * i}\n'
        if i == 0:
            u += f's_mul_i32 {s(sWo)}, {s((sC if rsrc == rW else sD) + cc)}, {rowb // 64}\n'
        else:
            u += f's_add_u32 {s(sWo)}, {s(sWo)}, {8 * rowb + (3072 if i == 4 else -1024)}\n'
        u += f'buffer_load_dwordx4 {v(voff)}, {s(rsrc, 4)}, {s(sWo)} offen offset:{1024 * (i % 4)} lds'
        out.append(u)
    return out


def w_dma(cc, slot, P):
    return stage_dma(cc, slot, P['vW'], rW, 3584)


def wd_dma(cc, slot, P):
    return stage_dma(cc, slot, P['vWd'], rWd, 896)


def w_frags(cc, slot, P):
    out = []
    base, off = P['vWr'][slot // 2], 32768 * (slot % 2)
    for ks in range(4):
        for mat in range(2):
            for e in range(2):
                r = (mat * 28 + cc * 4 + ks) * 4 + 2 * e
                out.append(f'ds_read_b64_tr_b16 {a(r, 2)}, {v(base)} offset:{off + mat * 16384 + (16 * ks + 4 * e) * 128}')
    return out


def wdreg(cc, j, db, P):
    i = (j * 4 + db) * 4
    if cc == 0:
        return 'a', 224 + i
    if cc < 3:
        return 'v', P['wdv'] + 32 * (cc - 1) + i
    return 'a', 32 * (cc - 3) + i


def rn(kr, n):
    return (a if kr[0] == 'a' else v)(kr[1], n)


def wd_addr(slot, P):
    d = P['vDr']
    return [f'v_xor_b32 {v(d[1 + db])}, {SL[slot & ~1] + 32 * db}, {v(d[0])}' for db in range(4)]


def wd_frags(cc, slot, P):
    o = []
    for j in range(2):
        for db in range(4):
            k, r = wdreg(cc, j, db, P)
            for e in range(2):
                o.append(f'ds_read_b64_tr_b16 {rn((k, r + 2 * e), 2)}, {v(P["vDr"][1 + db])} offset:{32768 * (slot % 2) + (32 * j + 8 * e) * 128} ;#df{cc}')
    o[0] = f'@vm d{cc}\n' + o[0]
    return o


def flat(units):
    return [ln for u in units for ln in u.split('\n') if ln.strip()]


def tr_lane(dst, t0, t1, hmul, rowb):
    A(f'v_lshrrev_b32 {v(t0)}, 5, {v(LANE)}')
    A(f'v_bfe_u32 {v(t1)}, {v(LANE)}, 2, 2')
    A(f'v_lshl_add_u32 {v(t0)}, {v(t0)}, {hmul.bit_length() - 1}, {v(t1)}')
    A(f'v_lshlrev_b32 {v(dst)}, {rowb.bit_length() - 1}, {v(t0)}')
    A(f'v_bfe_u32 {v(t1)}, {v(LANE)}, 4, 1')
    A(f'v_lshl_add_u32 {v(dst)}, {v(t1)}, 5, {v(dst)}')
    A(f'v_and_b32 {v(t1)}, 3, {v(LANE)}')
    A(f'v_lshl_add_u32 {v(dst)}, {v(t1)}, 3, {v(dst)}')


def flag_store(vTag, soff):
    return ('s_mov_b64 exec, 1\n'
            f'buffer_store_dword {v(vTag)}, off, {s(rWS, 4)}, {s(soff)} sc1 ;#fl\n'
            's_mov_b64 exec, -1')


def capture(fn):
    keep, A.lines = A.lines, []
    fn()
    got, A.lines = [x.strip() for x in A.lines], keep
    return got


def main_ssm():
    P = {}
    V.release(2)
    V.get(4)
    vWd = V.get()
    vDr = [V.get() for _ in range(5)]
    vW = V.get()
    vWr = [V.get() for _ in range(3)]
    vXr = [V.get() for _ in range(3)]
    vFp = V.get()
    P.update(vW=vW, vWr=vWr, vWd=vWd, vDr=vDr, vXr=vXr, vFp=vFp)
    mp = V.mark()
    vM, aA, aB, aE, a0, aO, aO2, aXr, one = [V.get() for _ in range(9)]
    M = V.get(4)
    mb = V.mark()
    vI, aX, aF, aZ = [V.get() for _ in range(4)]
    G = V.get(8)
    S = V.get(16)
    mk = V.mark()
    par = V.get(6)
    T = V.get(16, 4)
    st = V.get(8)
    q, tp, t0, t1, t2, vG = [V.get() for _ in range(6)]
    dt = V.get(2)
    aU, aV, ax, ay, aK, aK2 = [V.get() for _ in range(6)]
    fU, fV = V.get(32), V.get(32)
    e2, rv = V.get(), V.get()
    B_, C_, W_, z1, z2, z4, z8, z256 = [V.get(2) for _ in range(8)]
    pp = [V.get(2) for _ in range(4)]
    cv = [V.get() for _ in range(8)]
    sKG, sKT, sOdd = 38, 39, 23
    sGa, sCb = 30, 32
    A(f's_and_b32 {s(sT2)}, {s(sJ)}, 7')
    A(f's_lshr_b32 {s(sT3)}, {s(sJ)}, 3')
    A(f's_mul_i32 {s(sP)}, {s(sT2)}, 28')
    A(f's_add_u32 {s(sP)}, {s(sP)}, {s(sT3)}')
    A(f's_lshl_b32 {s(sT0)}, {s(sP)}, 10')
    A(f'v_lshl_add_u32 {v(t1)}, {v(TID)}, 2, {s(sT0)}')
    A(f's_lshl_b32 {s(sT1)}, {s(sP)}, 2')
    A('s_waitcnt lgkmcnt(0)')
    ts('1')
    for i, p in enumerate((pAre, pAim, pBre, pBim, pCre, pCim)):
        A(f'global_load_dword {v(par + i)}, {v(t1)}, {s(p, 2)} ;#par')
    A(f's_load_dword {s(sLdt)}, {s(pLdt, 2)}, {s(sT1)}')
    A(f's_load_dword {s(sDs)}, {s(pDs, 2)}, {s(sT1)}')
    A(f's_load_dword {s(sTag)}, {s(rWS, 2)}, {EP}')
    stats1_addr()
    A(f'v_min_u32 {v(t0)}, 147, {v(TID)}')
    A(f'v_lshrrev_b32 {v(t2)}, 1, {v(t0)}')
    A(f'v_mul_u32_u24 {v(t2)}, 896, {v(t2)}')
    A(f'v_and_b32 {v(t0)}, 1, {v(t0)}')
    A(f'v_mul_u32_u24 {v(t0)}, 108, {v(t0)}')
    A(f'v_add_u32 {v(t0)}, {v(t0)}, {v(t2)}')
    A(f's_mul_i32 {s(sT0)}, {s(sT3)}, {74 * 8}')
    A(f's_add_u32 {s(sT0)}, {s(sT0)}, {s(sT2)}')
    A(f's_mul_i32 {s(sT0)}, {s(sT0)}, 112')
    A.ext(tagged(capture(lambda: stats1_loads(st)), 'xa'))
    A(f'buffer_load_dword v5, {v(t0)}, {s(rX, 4)}, {s(sT0)} offen')
    A(f'v_mul_u32_u24 {v(vG)}, 1792, {v(LANE)}')
    A(f's_mul_i32 {s(sM2)}, {s(sWave)}, {256 * 1792}')
    A(f's_add_u32 {s(sM2)}, {s(sM2)}, {s(sT1)}')
    col = []
    for k in range(4):
        col.append(f'buffer_load_dword {v(G + 2 * k)}, {v(vG)}, {s(rX, 4)}, {s(sM2)} offen')
        col.append(f'buffer_load_dword {v(G + 2 * k + 1)}, {v(vG)}, {s(rX, 4)}, {s(sM2)} offen offset:896 ;#col\ns_add_u32 {s(sM2)}, {s(sM2)}, {64 * 1792}')
    A(f's_and_b32 {s(sOdd)}, {s(sWave)}, 1')
    A(f's_mul_i32 {s(sKG)}, {s(sWave)}, {KG_W}')
    A(f's_lshr_b32 {s(sT2)}, {s(sWave)}, 1')
    A(f's_mul_i32 {s(sKT)}, {s(sT2)}, {KT_CH}')
    A(f's_add_u32 {s(sKT)}, {s(sKT)}, {KT}')
    A(f'v_and_b32 {v(t0)}, 31, {v(LANE)}')
    A(f'v_lshrrev_b32 {v(t1)}, 5, {v(LANE)}')
    A(f'v_lshl_add_u32 {v(t2)}, {v(t1)}, 4, {s(sKG)}')
    A(f'v_mul_u32_u24 {v(aV)}, 272, {v(t0)}')
    A(f'v_add_u32 {v(aV)}, {v(aV)}, {v(t2)}')
    A(f'v_cmp_lt_u32 vcc, 27, {v(t0)}')
    A(f'v_add_u32 {v(aU)}, {32 * 272}, {v(aV)}')
    A(f'v_add_u32 {v(t2)}, {30 * 272}, {v(aV)}')
    A(f'v_cndmask_b32 {v(aU)}, {v(aU)}, {v(t2)}, vcc')
    A(f'v_lshlrev_b32 {v(t0)}, 4, {v(t0)}')
    A(f'v_sub_u32 {v(t0)}, {s(sKT)}, {v(t0)}')
    A(f'v_lshlrev_b32 {v(aK)}, 3, {v(t1)}')
    A(f'v_sub_u32 {v(aK)}, {v(t0)}, {v(aK)}')
    A(f's_add_u32 {s(sT0)}, {s(sOdd)}, 9')
    A(f'v_lshlrev_b32 {v(aK2)}, {s(sT0)}, {v(t1)}')
    A(f'v_sub_u32 {v(aK2)}, {v(t0)}, {v(aK2)}')
    A(f'v_lshl_add_u32 {v(ax)}, {v(LANE)}, 4, {s(sKG)}')
    A(f's_xor_b32 {s(sT0)}, {s(sWave)}, 1')
    A(f's_mul_i32 {s(sT0)}, {s(sT0)}, {KG_W}')
    A(f'v_lshl_add_u32 {v(ay)}, {v(LANE)}, 4, {s(sT0)}')
    A(f's_lshl_b32 {s(sT0)}, {s(sWave)}, 12')
    A(f'v_lshl_add_u32 {v(vI)}, {v(LANE)}, 4, {s(sT0)}')
    A(f'v_and_b32 {v(t0)}, 3, {v(LANE)}')
    A(f'v_mul_u32_u24 {v(vM)}, 3584, {v(t0)}')
    A(f's_lshl_b32 {s(sT0)}, {s(sP)}, 4')
    A(f's_add_u32 {s(sT0)}, {s(sT0)}, {MOD}')
    A(f'v_add_u32 {v(vM)}, {s(sT0)}, {v(vM)}')
    A(f'v_bfe_u32 {v(one)}, {v(LANE)}, 1, 1')
    A(f'v_cvt_f32_u32 {v(one)}, {v(one)}')
    A(f'v_mov_b32 {v(cv[7])}, 0x3f80')
    A(f's_mov_b32 m0, {s(sKG)}')
    A(f's_lshl_b32 {s(sW1k)}, {s(sWave)}, 10')
    A(f's_lshl_b32 {s(sW8k)}, {s(sWave)}, 13')
    A(f'ds_write_addtid_b32 {v(cv[7])}')
    A.ext(col[:OPT['se']])

    def late_setup():
        A(f'v_lshrrev_b32 {v(q)}, 3, {v(LANE)}')
        A(f'v_and_b32 {v(tp)}, 7, {v(LANE)}')
        A(f's_lshr_b32 {s(sT0)}, {s(sJ)}, 3')
        div7(sMi, sNi, sT0)
        A(f's_bfe_u32 {s(sT1)}, {s(sJ)}, 0x20001')
        A(f's_lshl2_add_u32 {s(sMt)}, {s(sT1)}, {s(sMi)}')
        A(f's_and_b32 {s(sT1)}, {s(sJ)}, 1')
        A(f's_mul_i32 {s(sNt)}, {s(sT1)}, 7')
        A(f's_add_u32 {s(sNt)}, {s(sNt)}, {s(sNi)}')
        A((f's_mov_b32 {s(sRot)}, {s(sNi)}', f's_add_u32 {s(sRot)}, {s(sMi)}, {s(sNi)}', f's_lshl1_add_u32 {s(sRot)}, {s(sMi)}, {s(sNi)}')[OPT['rm']])
        A(f's_lshl_b32 {s(sRot)}, {s(sRot)}, 2')
        A(f's_mov_b32 {s(sT2)}, 0x06543210')
        A(f's_mov_b32 {s(sT3)}, 0x10654321')
        A(f's_cmp_ge_u32 {s(sRot)}, 28\ns_cselect_b32 {s(sT1)}, 28, 0')
        A(f's_sub_u32 {s(sRot)}, {s(sRot)}, {s(sT1)}')
        A(f's_lshr_b64 {s(sT2, 2)}, {s(sT2, 2)}, {s(sRot)}')
        A(f's_cmp_lt_u32 {s(sWave)}, 2')
        A(f's_cselect_b64 {s(rW, 2)}, {s(pWg, 2)}, {s(pWu, 2)}')
        A(f's_mov_b32 {s(rW + 2)}, 1605632')
        A(f's_mov_b32 {s(rW + 3)}, 0x00020000')
        for cc in range(7):
            A(f's_bfe_u32 {s(sT0)}, {s(sT2)}, {hex(0x30000 + 4 * cc)}')
            A(f's_lshl_b32 {s(sC + cc)}, {s(sT0)}, 12')
        A(f'v_lshlrev_b32 {v(t0)}, 1, {v(q)}')
        A(f'v_and_b32 {v(t0)}, 4, {v(t0)}')
        A(f'v_xor_b32 {v(t0)}, {v(t0)}, {v(tp)}')
        A(f'v_lshlrev_b32 {v(t0)}, 4, {v(t0)}')
        A(f's_lshl1_add_u32 {s(sT0)}, {s(sNt)}, {s(sOdd)}')
        A(f's_lshl_b32 {s(sT0)}, {s(sT0)}, 7')
        A(f'v_mul_u32_u24 {v(vW)}, 3584, {v(q)}')
        A(f'v_add3_u32 {v(vW)}, {v(vW)}, {v(t0)}, {s(sT0)}')
        A(f's_mul_i32 {s(sT0)}, {s(sWave)}, {448 * 7}')
        A(f's_add_u32 {s(sT0)}, {s(sT0)}, {s(sNi)}')
        A(f's_lshl_b32 {s(sT0)}, {s(sT0)}, 7')
        A(f'v_and_b32 {v(t0)}, 6, {v(q)}')
        A(f'v_xor_b32 {v(t0)}, {v(t0)}, {v(tp)}')
        A(f'v_lshlrev_b32 {v(t0)}, 4, {v(t0)}')
        A(f'v_mul_u32_u24 {v(vWd)}, 896, {v(q)}')
        A(f'v_add3_u32 {v(vWd)}, {v(vWd)}, {v(t0)}, {s(sT0)}')
        A(f's_lshr_b32 {s(sT2)}, {s(sWave)}, 1')
        A(f's_lshl_b32 {s(sT1)}, {s(sOdd)}, 8')
        A(f's_mul_i32 {s(sT0)}, {s(sT2)}, {4 * HC}')
        A(f's_add_u32 {s(sT0)}, {s(sT0)}, {s(sT1)}')
        A(f's_add_u32 {s(sT0)}, {s(sT0)}, {HB}')
        A(f's_add_u32 {s(sT1)}, {s(sT1)}, {s(sKT)}')
        A(f's_add_u32 {s(sT1)}, {s(sT1)}, {KT_C0 + 4040 - 3584}')
        A(f'v_lshrrev_b32 {v(t0)}, 4, {v(LANE)}')
        A(f'v_bfe_u32 {v(t1)}, {v(LANE)}, 2, 2')
        A(f'v_add_u32 {v(t1)}, {v(t1)}, {v(t0)}')
        A(f'v_and_b32 {v(t2)}, 3, {v(LANE)}')
        A(f'v_mul_u32_u24 {v(e2)}, {HC}, {v(t2)}')
        A(f'v_lshl_add_u32 {v(aA)}, {v(t1)}, 4, {v(e2)}')
        A(f'v_add_u32 {v(aA)}, {s(sT0)}, {v(aA)}')
        A(f'v_lshl_add_u32 {v(aB)}, {v(t0)}, 4, {s(sT1)}')
        A(f'v_lshlrev_b32 {v(t1)}, 6, {v(tp)}')
        A(f'v_sub_u32 {v(aB)}, {v(aB)}, {v(t1)}')
        A(f'v_and_b32 {v(t1)}, 1, {v(q)}')
        A(f'v_mul_u32_u24 {v(t1)}, {KT_C0 + 8}, {v(t1)}')
        A(f'v_sub_u32 {v(aB)}, {v(aB)}, {v(t1)}')
        A(f'v_lshrrev_b32 {v(t0)}, 4, {v(TID)}')
        A(f'v_and_b32 {v(t1)}, 1, {v(q)}')
        A(f'v_lshl_add_u32 {v(t0)}, {v(t0)}, 2, {v(t1)}')
        A(f'v_mul_u32_u24 {v(t0)}, 28672, {v(t0)}')
        A(f'v_lshl_add_u32 {v(aO2)}, {v(tp)}, 4, {v(t0)}')
        A(f'v_lshrrev_b32 {v(t1)}, 1, {v(tp)}')
        A(f'v_lshl_add_u32 {v(t0)}, {v(t1)}, 4, {v(t0)}')
        A(f'v_and_b32 {v(t1)}, 1, {v(tp)}')
        A(f'v_lshl_add_u32 {v(aO)}, {v(t1)}, 6, {v(t0)}')
        A(f'v_xor_b32 {v(t1)}, {v(tp)}, {v(q)}')
        A(f'v_lshl_add_u32 {v(t1)}, {v(tp)}, 3, {v(t1)}')
        A(f's_lshl_b32 {s(sT0)}, {s(sWave)}, 12')
        A(f'v_lshl_add_u32 {v(aE)}, {v(t1)}, 4, {s(sT0)}')
        A(f'v_mul_u32_u24 {v(aZ)}, {HC}, {v(q)}')
        A(f'v_lshl_add_u32 {v(aZ)}, {v(tp)}, 3, {v(aZ)}')
        A(f'v_add_u32 {v(aZ)}, {HB}, {v(aZ)}')
        A(f'v_lshrrev_b32 {v(aX)}, 1, {v(vI)}')
        A(f'v_add_u32 {v(aX)}, {XR}, {v(aX)}')
        A(f's_add_u32 {s(sT1)}, {s(sW1k)}, {HB + 1024}')
        A(f's_add_u32 {s(sT0)}, {s(sW1k)}, {HB + 2}')
        A(f'v_mov_b32 {v(aF)}, {s(sT1)}')
        A(f'v_writelane_b32 {v(aF)}, {s(sT0)}, 0')
        A(f'v_lshlrev_b32 {v(aXr)}, 4, {v(TID)}')
        A(f'v_xor_b32 {v(t0)}, {v(TID)}, {v(q)}')
        A(f'v_lshlrev_b32 {v(a0)}, 4, {v(t0)}')
        A(f's_lshl_b32 {s(sGo)}, {s(sMt)}, 8')
        A(f's_add_u32 {s(sGo)}, {s(sGo)}, {GO}')
        A(f'v_mov_b32 {v(VTAG)}, {s(sTag)}')
        A(f's_mul_i32 {s(sFl)}, {s(sWave)}, 224')
        A(f's_add_u32 {s(sFl)}, {s(sFl)}, {s(sJ)}')
        A(f's_lshl_b32 {s(sFl)}, {s(sFl)}, 7')
        A(f's_add_u32 {s(sFl)}, {s(sFl)}, {FL2}')

    def window_setup(t0, t1, t2, t3, t4):
        srd(rWd, pWd, 1605632)
        srd(rOut, pOut, 1835008)
        A(f'v_lshrrev_b32 {v(t1)}, 5, {v(LANE)}')
        A(f'v_bfe_u32 {v(t0)}, {v(LANE)}, 4, 1')
        A(f'v_and_b32 {v(t2)}, 3, {v(LANE)}')
        A(f'v_lshlrev_b32 {v(t2)}, 3, {v(t2)}')
        A(f'v_lshl_add_u32 {v(t2)}, {v(t0)}, 5, {v(t2)}')
        A(f'v_bfe_u32 {v(t0)}, {v(LANE)}, 2, 2')
        A(f'v_lshl_add_u32 {v(t3)}, {v(t1)}, 3, {v(t0)}')
        A(f'v_lshl_add_u32 {v(vXr[0])}, {v(t3)}, 6, {v(t2)}')
        A(f'v_and_b32 {v(t0)}, 8, {v(LANE)}')
        A(f'v_lshl_add_u32 {v(t2)}, {v(t0)}, 3, {v(t2)}')
        A(f'v_bfe_u32 {v(t4)}, {v(LANE)}, 2, 3')
        A(f'v_lshl_add_u32 {v(t1)}, {v(t1)}, 4, {v(t4)}')
        A(f'v_lshrrev_b32 {v(t4)}, 1, {v(t4)}')
        A(f'v_lshlrev_b32 {v(t4)}, 5, {v(t4)}')
        A(f'v_lshl_add_u32 {v(t4)}, {v(t1)}, 7, {v(t4)}')
        A(f'v_and_b32 {v(t1)}, 3, {v(LANE)}')
        A(f'v_lshl_add_u32 {v(t4)}, {v(t1)}, 3, {v(t4)}')
        A(f'v_add_u32 {v(vDr[0])}, {s(sW8k)}, {v(t4)}')
        A.ext(wd_addr(2, P))
        A(f's_lshr_b32 {s(sT0)}, {s(sWave)}, 1')
        A(f's_lshl_b32 {s(sT0)}, {s(sT0)}, 7')
        A(f's_add_u32 {s(sT0)}, {s(sT0)}, {s(sOdd)}')
        A(f's_lshl_b32 {s(sT0)}, {s(sT0)}, 6')
        A(f'v_lshl_add_u32 {v(vWr[0])}, {v(t3)}, 7, {v(t2)}')
        A(f'v_xor_b32 {v(vWr[0])}, {s(sT0)}, {v(vWr[0])}')
        for i in range(1, 3):
            A(f'v_add_u32 {v(vXr[i])}, 65536, {v(vXr[i - 1])}')
            A(f'v_add_u32 {v(vWr[i])}, 65536, {v(vWr[i - 1])}')
    P['window_setup'] = window_setup
    ls = capture(late_setup)
    A.ext(ls[:OPT['ls0']])
    ts('1')
    A('s_waitcnt lgkmcnt(0)')
    A(f's_add_u32 {s(sTag)}, {s(sTag)}, 1')
    A(f's_lshl_b32 {s(sT0)}, {s(sLdt)}, 16')
    A(f's_and_b32 {s(sT1)}, {s(sLdt)}, 0xffff0000')
    A(f's_lshl_b32 {s(sT2)}, {s(sDs)}, 16')
    A(f's_and_b32 {s(sT3)}, {s(sDs)}, 0xffff0000')
    A(f's_cmp_lt_u32 {s(sWave)}, 2')
    A(f's_cselect_b32 {s(sLdt)}, {s(sT0)}, {s(sT1)}')
    A(f's_cselect_b32 {s(sDs)}, {s(sT2)}, {s(sT3)}')
    A(f'v_mov_b32 {v(t0)}, 0x3fb8aa3b')
    A(f'v_mul_f32 {v(dt)}, {s(sLdt)}, {v(t0)}')
    A(f'v_exp_f32 {v(dt)}, {v(dt)}')
    A(f'v_cvt_pk_bf16_f32 {v(dt)}, {v(dt)}, {v(dt)}')
    A(f'v_lshlrev_b32 {v(dt)}, 16, {v(dt)}')
    A('@vm par')
    ts('016')

    def setup(it):
        o = []
        un = (lambda d, x: f'v_lshlrev_b32 {v(d)}, 16, {v(x)}') if it == 0 else (lambda d, x: f'v_and_b32 {v(d)}, 0xffff0000, {v(x)}')
        o += [un(e2, par), un(rv, par + 1), un(B_, par + 2), un(B_ + 1, par + 3), un(C_, par + 4), un(C_ + 1, par + 5)]
        o += [f'v_mul_f32 {v(e2)}, {v(dt)}, {v(e2)}', f'v_mul_f32 {v(rv)}, {v(dt)}, {v(rv)}',
              f'v_mul_f32 {v(e2)}, 0x3fb8aa3b, {v(e2)}', f'v_mul_f32 {v(rv)}, 0.15915494, {v(rv)}',
              f'v_mul_f32 {v(B_)}, {v(dt)}, {v(B_)}', f'v_mul_f32 {v(B_ + 1)}, {v(dt)}, {v(B_ + 1)}']
        for z, p in ((z8, 0x41000000), (z1, None), (z256, 0x43800000)):
            if p is None:
                o += [f'v_exp_f32 {v(t0)}, {v(e2)}', f'v_fract_f32 {v(t1)}, {v(rv)}']
            else:
                o += [f'v_mul_f32 {v(t0)}, {hex(p)}, {v(e2)}', f'v_mul_f32 {v(t1)}, {hex(p)}, {v(rv)}',
                      f'v_exp_f32 {v(t0)}, {v(t0)}', f'v_fract_f32 {v(t1)}, {v(t1)}']
            o += [f'v_cos_f32 {v(z)}, {v(t1)}', f'v_sin_f32 {v(z + 1)}, {v(t1)}',
                  f'v_mul_f32 {v(z)}, {v(z)}, {v(t0)}', f'v_mul_f32 {v(z + 1)}, {v(z + 1)}, {v(t0)}']
        return o

    vals = []

    def put(pre, x, rows, neg):
        c = cv[len(vals) % 8]
        vals.append((pre + [f'v_cvt_pk_bf16_f32 {v(c)}, {v(x)}, {"-" if neg else ""}{v(x + 1)}'],
                     [f'ds_write_addtid_b32 {v(c)} offset:{272 * r}' for r in rows]))

    def putU(pre, x, e):
        put(pre, x, [32 + r for r in UEXP[e]], True)

    put(cmul(z2, z1, z1), z8, [1], False)
    putU(cmul(W_, C_, B_) + cmul(z4, z2, z2), W_, 0)
    cur = z8
    for j in range(2, 32):
        put(cmul(pp[j % 2], cur, z8), pp[j % 2], [j], False)
        cur = pp[j % 2]
    cur = W_
    for e in range(1, 8):
        putU(cmul(pp[e % 2], cur, z1), pp[e % 2], e)
        cur = pp[e % 2]
    qc = W_
    for k in range(1, 8):
        qn = pp[2 + k % 2]
        putU(cmul(qn, qc, z256), qn, 256 * k)
        qc = qn
        step, zz, n = (2, z2, 4) if k == 1 else ((4, z4, 2) if k < 4 else (8, z8, 1))
        cur = qn
        for i in range(1, n + 1):
            putU(cmul(pp[i % 2], cur, zz), pp[i % 2], 256 * k + step * i)
            cur = pp[i % 2]

    h1 = [f's_mov_b32 {s(sSo)}, {ST1}']
    for k in range(4):
        h1.append(f'buffer_load_dwordx4 {v(S + 4 * k, 4)}, {v(vI)}, {s(rWS, 4)}, {s(sSo)} offen offset:{1024 * k} sc1 ;#h1')

    mld = [f'buffer_load_dwordx4 {v(M, 4)}, {v(vM)}, {s(rWS, 4)}, 0 offen sc1 ;#m']
    rb = [f'v_cvt_pk_bf16_f32 {v(M + 2)}, {v(M)}, {v(M + 1)}', f'v_lshlrev_b32 {v(M)}, 16, {v(M + 2)}', f'v_and_b32 {v(M + 1)}, 0xffff0000, {v(M + 2)}']
    mprep = [f'v_add_f32_dpp {v(M + ch)}, {v(M + ch)}, {v(M + ch)} quad_perm:[1,0,3,2] row_mask:0xf bank_mask:0xf' for ch in range(2)]
    mprep += rb + [f'v_add_f32 {v(M + ch)}, {v(M + ch)}, {v(one)}' for ch in range(2)] + rb

    def mkpairs(cc, slot, vo_, rs, rowb, tg):
        o = []
        for i in range(4):
            u = [f's_add_u32 m0, {s(sW8k)}, {SL[slot] + 2048 * i}']
            u.append(f's_mul_i32 {s(sWo)}, {s(sC + cc)}, {rowb // 64}' if i == 0 else f's_add_u32 {s(sWo)}, {s(sWo)}, {8 * rowb + 1024}')
            u.append(f'buffer_load_dwordx4 {v(vo_)}, {s(rs, 4)}, {s(sWo)} offen lds ;#{tg}{cc}')
            u.append(f's_add_u32 {s(sWo)}, {s(sWo)}, {8 * rowb - 1024}')
            u.append(f'buffer_load_dwordx4 {v(vo_)}, {s(rs, 4)}, {s(sWo)} offen offset:1024 lds ;#{tg}{cc}')
            o.append('\n'.join(u))
        return o
    rest = mkpairs(0, 3, vW, rW, 3584, 'w') + mkpairs(1, 4, vW, rW, 3584, 'w')
    rest2 = w_dma(2, 0, P)
    rest3 = w_dma(3, 1, P)
    NB = OPT['kb']
    nbat = (len(vals) + NB - 1) // NB
    vdone = (32 + NB - 1) // NB

    def chains(dm, extra={}):
        dd = spread(nbat, dm, 0, nbat - 1)
        vr = spread(nbat, [f'ds_read_b128 {v(fV + 4 * ks, 4)}, {v(aV)} offset:{32 * ks}' for ks in range(8)], vdone, nbat - 1)
        for bi in range(nbat):
            grp = vals[NB * bi:NB * bi + NB]
            A('.p2align 3')
            for x in grp:
                A.ext(x[0])
            A.ext(extra.get(bi, []))
            A.ext(dd.get(bi, []))
            A.ext(vr.get(bi, []))
            for x in grp:
                A.ext(x[1])
        for ks in range(8):
            A(f'ds_read_b128 {v(fU + 4 * ks, 4)}, {v(aU)} offset:{32 * ks}')

    def kmm(first):
        return [f'v_mfma_f32_32x32x16_bf16 {v(T, 16)}, {v(fU + 4 * ks, 4)}, {v(fV + 4 * ks, 4)}, {"0" if first and ks == 0 else v(T, 16)}' for ks in range(8)]
    tail = {ks: [f's_waitcnt lgkmcnt({6 - ks})'] for ks in range(0, 7)}
    pub = ['@vm xa'] + capture(lambda: stats1_compute(st)) + capture(lambda: ts('1'))
    SE, S0 = OPT['se'], OPT['s0']
    A.ext(setup(0))
    chains(col[SE:SE + S0], {OPT['tsb']: pub})
    su = setup(1)
    A.ext(su[:10])
    A('s_waitcnt lgkmcnt(7)')
    A.ext(sched(kmm(True), {}, tail, su[10:], 24)[0])
    ts('1')
    c1s = col[SE + S0:]
    if OPT['h1p'] == 3:
        c1s = c1s[:-1] + [mld[0] + '\n' + '\n'.join(h1[:3]), '\n'.join(h1[3:])] + c1s[-1:]
    chains(c1s)
    ts('1')
    R, K_ = B_, pp[0]
    HP = OPT['h1p']
    A(f'v_mov_b32 {v(cv[0])}, 0')
    A(f'v_mov_b32 {v(cv[1])}, 0')
    A(f's_mul_i32 {s(sT0)}, {s(sOdd)}, {KT_C0}')
    A(f's_add_u32 m0, {s(sT0)}, {s(sKT)}')
    A('s_waitcnt lgkmcnt(7)')
    L0 = OPT['ls0']
    A.ext(sched(kmm(False), spread(8, h1, 0, 7) if HP == 0 else {}, tail, ls[L0:L0 + 38], 24)[0])
    A(f's_cmp_lg_u32 {s(sOdd)}, 0')
    A('s_cbranch_scc1 L_expB')
    A(f'ds_write_b128 {v(ax)}, {v(T + 10, 4)}')
    A('s_mov_b64 exec, 1')
    A(f'v_add_f32 {v(T)}, {s(sDs)}, {v(T)}')
    A('s_mov_b64 exec, -1')
    A('s_waitcnt lgkmcnt(0)')
    A('s_barrier')
    for i in range(3):
        A(f'ds_read_b128 {v(R + 4 * i, 4)}, {v(ay)} offset:{TXB + 1024 * i}')
    mid = h1 if HP == 1 else []
    A.ext(mid)
    A('s_waitcnt lgkmcnt(0)')
    for i in range(0, 10, 2):
        A(f'v_pk_add_f32 {v(T + i, 2)}, {v(T + i, 2)}, {v(R + i, 2)}')
    for d, (x, y) in enumerate(((3, 2), (1, 0), (6, 5), (4, 4), (9, 9), (8, 8), (8, 7), (7, 7))):
        A(f'v_cvt_pk_bf16_f32 {v(K_ + d)}, {v(T + x)}, {v(T + y)}')
    for cp in (0, KT_C0):
        A(f'ds_write_b64 {v(aK)}, {v(K_, 2)} offset:{cp + 2 * 2044}')
        A(f'ds_write_b64 {v(aK)}, {v(K_ + 2, 2)} offset:{cp + 2 * 1788}')
        A(f'ds_write_b64 {v(aK2)}, {v(K_ + 4, 2)} offset:{cp + 2 * 1528}')
        A(f'ds_write_b64 {v(aK2)}, {v(K_ + 6, 2)} offset:{cp + 2 * 1528 + 8}')
    A('s_branch L_expD')
    A('L_expB:')
    for i in range(3):
        A(f'ds_write_b128 {v(ax)}, {v(T + 4 * i, 4)} offset:{TXB + 1024 * i}')
    A('s_mov_b32 vcc_lo, 0xaaaaaaaa')
    A('s_mov_b32 vcc_hi, 0xaaaaaaaa')
    A('s_waitcnt lgkmcnt(0)')
    A('s_barrier')
    A(f'ds_read_b128 {v(R, 4)}, {v(ay)}')
    A.ext(mid)
    A('s_waitcnt lgkmcnt(0)')
    for i in range(0, 4, 2):
        A(f'v_pk_add_f32 {v(T + 10 + i, 2)}, {v(T + 10 + i, 2)}, {v(R + i, 2)}')
    for wdw in range(2):
        v0_, v8_ = T + 10 + 2 * wdw, T + 11 + 2 * wdw
        A(f'v_cndmask_b32 {v(cv[2])}, {v(v0_)}, {v(v8_)}, vcc')
        A(f'v_cvt_pk_bf16_f32 {v(K_ + 4 * wdw)}, {v(v8_)}, {v(v8_)}')
        A(f'v_cvt_pk_bf16_f32 {v(K_ + 4 * wdw + 1)}, {v(v8_)}, {v(cv[2])}')
        A(f'v_cvt_pk_bf16_f32 {v(K_ + 4 * wdw + 2)}, {v(v0_)}, {v(v0_)}')
        A(f'v_cvt_pk_bf16_f32 {v(K_ + 4 * wdw + 3)}, {v(v0_)}, {v(v0_)}')
    for cp in (0, KT_C0):
        for wdw in range(2):
            base = cp + 2 * (2040 - 1024 - 256 * wdw)
            A(f'ds_write_b64 {v(aK2)}, {v(K_ + 4 * wdw, 2)} offset:{base}')
            A(f'ds_write_b64 {v(aK2)}, {v(K_ + 4 * wdw + 2, 2)} offset:{base + 8}')
    A('L_expD:')
    A(f'ds_write_addtid_b32 {v(cv[0])} offset:4096')
    A(f'ds_write_addtid_b32 {v(cv[0])} offset:4304')
    ts('1')
    if HP != 3:
        A.ext(mld)
    if HP == 2:
        A.ext(h1)
    A.ext(rest[:OPT['hbe']])
    A.ext(ls[L0 + 38:])
    A(f's_cmp_eq_u32 {s(sWave)}, 0')
    A('s_barrier')
    A('s_cbranch_scc0 L_nozero')
    A(f'ds_write_b64 {v(aZ)}, {v(cv[0], 2)}')
    A('L_nozero:')
    V.release(mk)
    E = V.get(8)
    F = V.get(8)
    xa, xb, nn = V.get(2), V.get(2), V.get(2)
    O = V.get(2)
    sa, c1 = V.get(2), V.get(2)
    A(tag_wait('L_m1', mld, [M + 3], 'm'))
    A.ext(mprep)
    A(f'v_and_b32 {v(xa)}, 2, {v(LANE)}')
    A(f'v_mul_u32_u24 {v(xa)}, 3584, {v(xa)}')
    for ch in range(2):
        A(f'v_mov_b32_dpp {v(sa + ch)}, {v(M + ch)} quad_perm:[0,0,0,0] row_mask:0xf bank_mask:0xf')
        A(f'v_mov_b32_dpp {v(c1 + ch)}, {v(M + ch)} quad_perm:[2,2,2,2] row_mask:0xf bank_mask:0xf')
    A(f'v_add_u32 {v(vM)}, {v(vM)}, {v(xa)}')
    A(f'v_add_u32 {v(vM)}, {2 * 7168}, {v(vM)}')
    A(tag_wait('L_h1', h1, [S + 4 * k + 3 for k in range(4)], 'h1 col'))
    ts('01')
    A.ext(mld)
    A.ext(rest[OPT['hbe']:OPT['hb0']])
    for k in range(4):
        A(f'ds_write_b64 {v(aX)}, {v(G + 2 * k, 2)} offset:{512 * k}')
    A(f's_add_u32 m0, {s(sW1k)}, {HB}')
    for k in range(4):
        g, sg = G + 2 * k, S + 4 * k
        A(f'v_lshlrev_b32 {v(xa)}, 16, {v(g)}')
        A(f'v_and_b32 {v(xa + 1)}, 0xffff0000, {v(g)}')
        A(f'v_lshlrev_b32 {v(xb)}, 16, {v(g + 1)}')
        A(f'v_and_b32 {v(xb + 1)}, 0xffff0000, {v(g + 1)}')
        A(f'v_lshlrev_b32 {v(nn)}, 16, {v(sg)}')
        A(f'v_and_b32 {v(nn + 1)}, 0xffff0000, {v(sg)}')
        A(f'v_pk_fma_f32 {v(xa, 2)}, {v(xa, 2)}, {v(sg, 2)}, {v(nn, 2)} op_sel:[0,1,0] op_sel_hi:[1,1,0]')
        A(f'v_pk_fma_f32 {v(xb, 2)}, {v(xb, 2)}, {v(sg + 2, 2)}, {v(nn, 2)} op_sel:[0,0,1] op_sel_hi:[1,0,1]')
        A(f'v_pk_fma_f32 {v(xa, 2)}, {v(xa, 2)}, {v(c1, 2)}, {v(sa, 2)}')
        A(f'v_pk_fma_f32 {v(xb, 2)}, {v(xb, 2)}, {v(c1, 2)}, {v(sa, 2)}')
        if k > 0:
            for ch in range(2):
                A(f'v_mov_b32_dpp {v(O + ch)}, {v(E + 2 * k - 2 + ch)} wave_ror:1 row_mask:0xf bank_mask:0xf')
        for ch in range(2):
            A(f'v_cvt_pk_bf16_f32 {v(E + 2 * k + ch)}, {v(xa + ch)}, {v(xb + ch)}')
        if k == 1:
            A('s_mov_b64 exec, -2')
        if k > 0:
            for ch in range(2):
                A(f'ds_write_addtid_b32 {v(F + 2 * k - 2 + ch)} offset:{(4 * ch + 0) * HC + 256 * (k - 1) + 52}')
                A(f'ds_write_addtid_b32 {v(F + 2 * k - 2 + ch)} offset:{(4 * ch + 2) * HC + 256 * (k - 1) + 48}')
        if k == 1:
            A('s_mov_b64 exec, -1')
        for ch in range(2):
            A(f'ds_write_addtid_b32 {v(E + 2 * k + ch)} offset:{(4 * ch + 1) * HC + 256 * k + 52}')
            A(f'ds_write_addtid_b32 {v(E + 2 * k + ch)} offset:{(4 * ch + 3) * HC + 256 * k + 48}')
        for ch in range(2):
            A(f'v_mov_b32_dpp {v(O + ch)}, {v(E + 2 * k + ch)} wave_shr:1 row_mask:0xf bank_mask:0xf')
        for ch in range(2):
            A(f'v_alignbit_b32 {v(F + 2 * k + ch)}, {v(E + 2 * k + ch)}, {v(O + ch)}, 16')
    for ch in range(2):
        A(f'v_lshrrev_b32 {v(O + ch)}, 16, {v(E + 6 + ch)}')
    A('s_mov_b64 exec, 1')
    for ch in range(2):
        A(f'v_mov_b32 {v(O + ch)}, {v(E + ch)}')
    A('s_mov_b64 exec, -1')
    for ch in range(2):
        A(f'ds_write_addtid_b32 {v(F + 6 + ch)} offset:{(4 * ch + 0) * HC + 768 + 52}')
        A(f'ds_write_addtid_b32 {v(F + 6 + ch)} offset:{(4 * ch + 2) * HC + 768 + 48}')
    A('s_mov_b32 exec_lo, 1')
    A('s_mov_b32 exec_hi, 0x80000000')
    for ch in range(2):
        A(f'ds_write_b16 {v(aF)}, {v(O + ch)} offset:{(4 * ch + 0) * HC + 52}')
        A(f'ds_write_b16 {v(aF)}, {v(O + ch)} offset:{(4 * ch + 2) * HC + 48}')
    A('s_mov_b64 exec, -1')
    A.ext(rest[OPT['hb0']:OPT['hb0'] + OPT['hb1']])
    A('s_waitcnt lgkmcnt(0)')
    A('s_barrier')
    ts()
    V.release(mb)
    RAW = V.get(8)
    X_ = V.get(16)
    Y = V.get(16)
    o1, o2, pk = V.get(4), V.get(4), V.get(4)
    t1 = V.get()
    acc = V.get(32, 4)
    fa = [V.get(32), V.get(32)]
    fb = [V.get(32), V.get(32)]

    def rd(kind, ul, buf, pos, i, tag):
        if kind == 'a':
            return f'ds_read_b128 {v(fa[buf] + 4 * pos, 4)}, {v(aA)} offset:{512 * i + 64 * ul} ;#{tag}'
        return f'ds_read_b128 {v(fb[buf] + 4 * pos, 4)}, {v(aB)} offset:{512 * (7 - i) + 64 * ul} ;#{tag}'

    def half(ul, lo, at, tag):
        o = [rd('a', ul, ul % 2, at, lo, tag + 'x')] + [rd('b', ul, ul % 2, at + i, lo + i, f'{tag}b{i}') for i in range(4)]
        return o + [rd('a', ul, ul % 2, at + i, lo + i, tag) for i in range(1, 4)]

    def cmf(ul, uh, d, sh, first):
        g = uh + d
        return f'v_mfma_f32_16x16x32_bf16 {v(acc + 4 * g, 4)}, {v(fa[ul % 2] + 4 * (uh + sh), 4)}, {v(fb[ul % 2] + 4 * (d + sh), 4)}, {"0" if first else v(acc + 4 * g, 4)}'

    mm, wpos = [], {}
    for ul in (2, 3, 0):
        mm += [cmf(ul, uh, d, 4 if ul > 1 else 0, ul == 2 and uh == 0) for uh in range(4) for d in range(4 - uh)]
    for g in range(3, -1, -1):
        mm += [cmf(1, uh, g - uh, 0, False) for uh in range(g + 1)]
        wpos[g] = len(mm) - 1
    for ul in range(3):
        mm += [cmf(ul, uh, d, 0, ul == 0 and uh == 0) for uh in range(8) for d in range(8 - uh) if uh + d >= 4]
    for g in range(7, 3, -1):
        mm += [cmf(3, uh, g - uh, 0, False) for uh in range(g + 1)]
        wpos[g] = len(mm) - 1
    assert len(mm) == 144
    tail = {0: ['@lg A2b1'], 1: ['@lg A2b2'], 2: ['@lg A2b3'], 3: ['@lg A2'], 9: ['@lg A3'], 19: ['@lg A0'], 29: ['@lg A1'], 39: ['@lg B0'], 65: ['@lg B1'],
            XB: ['s_waitcnt lgkmcnt(0)\ns_barrier'], 91: ['s_waitcnt lgkmcnt(0)\ns_barrier'], 117: ['s_waitcnt lgkmcnt(0)\ns_barrier']}
    head = merge(spread(144, half(0, 0, 0, 'A0'), 0, 8), spread(144, half(1, 0, 0, 'A1'), 8, 16),
                 spread(144, half(0, 4, 4, 'B0'), 18, 32), spread(144, half(1, 4, 4, 'B1')[:4], 34, 39),
                 spread(144, half(1, 4, 4, 'B1')[4:], XB + 5, XB + 9),
                 {32: [f'ds_read_b128 {v(RAW, 4)}, {v(aXr)} offset:{XR} ;#xr'], 33: [f'ds_read_b128 {v(RAW + 4, 4)}, {v(aXr)} offset:{XR + 4096} ;#xr']},
                 spread(144, half(2, 0, 0, 'c') + half(2, 4, 4, 'c'), 71, 88), spread(144, half(3, 0, 0, 'c') + half(3, 4, 4, 'c'), 92, 112),
                 {XB + 1 + w: [f'ds_read_b128 {v(Y + 4 * w, 4)}, {v(a0)} offset:{4096 * w} ;#y'] for w in range(4)})
    late = []
    for g in range(8):
        w = f'ds_write_b128 {v(aE)}, {v(acc + 4 * g, 4)} offset:{1024 * (g % 4)}'
        at = max(wpos[g] + 6, 40 + 2 * (3 - g)) if g < 4 else wpos[g] + 6
        if at < 144:
            head = merge(head, {at: [w]})
        else:
            late.append(w)

    def epil(st_, pkd):
        x = X_ + 8 * st_
        o = []
        for ch in range(2):
            y = Y + 8 * ch
            if pkd:
                sel = f'op_sel:[0,{ch},0] op_sel_hi:[1,{ch},1]'
                o.append(f's_waitcnt lgkmcnt({2 - 2 * ch})')
                for i in (0, 2):
                    o += [f'v_pk_add_f32 {v(y + i, 2)}, {v(y + i, 2)}, {v(y + 4 + i, 2)}',
                          f'v_pk_fma_f32 {v(x + 4 * ch + i, 2)}, {v(y + i, 2)}, {s(sGa, 2)}, {v(x + 4 * ch + i, 2)} {sel}',
                          f'v_pk_mul_f32 {v(y + i, 2)}, {v(x + 4 * ch + i, 2)}, {s(sCb, 2)} op_sel:[0,{ch}] op_sel_hi:[1,{ch}]']
            else:
                for i in range(4):
                    o += [f'v_add_f32 {v(y + i)}, {v(y + i)}, {v(y + 4 + i)}', f'v_fmac_f32 {v(x + 4 * ch + i)}, {s(sGa + ch)}, {v(y + i)}',
                          f'v_mul_f32 {v(y + i)}, {s(sCb + ch)}, {v(x + 4 * ch + i)}']
            o += [f'v_cvt_pk_bf16_f32 {v(pk + 2 * ch + i)}, {v(y + 2 * i)}, {v(y + 2 * i + 1)}' for i in range(2)]
        o += [f'v_cvt_pk_bf16_f32 {v(o2 + i)}, {v(x + i)}, {v(x + 4 + i)}' for i in range(4)]
        dp = 'quad_perm:[1,0,3,2] row_mask:0xf bank_mask:0xf'
        o += [f'v_cndmask_b32_dpp {v(o1 + i)}, {v(pk + 2 + i)}, {v(pk + i)}, vcc {dp}' for i in range(2)]
        o.append('s_not_b64 vcc, vcc')
        o += [f'v_cndmask_b32_dpp {v(o1 + 2 + i)}, {v(pk + i)}, {v(pk + 2 + i)}, vcc {dp}' for i in range(2)]
        o.append('s_not_b64 vcc, vcc')
        o.append(f'buffer_store_dwordx4 {v(o1, 4)}, {v(aO)}, {s(rWS, 4)}, {s(sT2)} offen sc1 ;#xo{st_}')
        o.append(f'buffer_store_dwordx4 {v(o2, 4)}, {v(aO2)}, {s(rWS, 4)}, {s(sT3)} offen sc1 ;#xo{st_}')
        return o

    def unp(st_):
        o = []
        for i in range(4):
            o += [f'v_lshlrev_b32 {v(X_ + 8 * st_ + i)}, 16, {v(RAW + 4 * st_ + i)}', f'v_and_b32 {v(X_ + 8 * st_ + 4 + i)}, 0xffff0000, {v(RAW + 4 * st_ + i)}']
        return o
    v1 = tag_units('L_m2', mld, [M + 3], 'm') + mprep
    v1 += [f'v_readlane_b32 {s(sGa + ch)}, {v(M + ch)}, 0' for ch in range(2)] + [f'v_readlane_b32 {s(sCb + ch)}, {v(M + ch)}, 2' for ch in range(2)]
    v1 += [f's_lshl_b32 {s(sT0)}, {s(sP)}, 7', f's_add_u32 {s(sT2)}, {s(sT0)}, {XS}', f's_add_u32 {s(sT3)}, {s(sT0)}, {X1P}',
           's_mov_b32 vcc_lo, 0x55555555', 's_mov_b32 vcc_hi, 0x55555555']
    v2 = ['@lg xr'] + unp(0)
    v3 = ['@lg y'] + epil(0, False)
    v4 = [f's_add_u32 {s(sT2)}, {s(sT2)}, {2 * 28672}', f's_add_u32 {s(sT3)}, {s(sT3)}, {2 * 28672}',
          f'v_add_u32 {v(aE)}, {SL[2]}, {v(aE)}', f'v_add_u32 {v(a0)}, {SL[2]}, {v(a0)}'] + unp(1)
    fla = ['@vm xo0', flag_store(VTAG, sFl), f's_add_u32 {s(sFl)}, {s(sFl)}, {FL2S}']
    NH = OPT['hb0'] + OPT['hb1']
    soft = merge({4: [f'buffer_load_dword {v(t1)}, off, {s(rWS, 4)}, {s(sGo)} sc1'], 6: [f'buffer_load_dword {v(t1)}, off, {s(rWS, 4)}, {s(sGo)} offset:128 sc1']},
                 spread(144, flat(rest[NH:OPT['na']]), OPT['cd0'], OPT['cda']), spread(144, flat(rest[OPT['na']:]), OPT['cdb'], OPT['cd1']),
                 spread(144, flat(rest2[:OPT['w2c']]), max(92, OPT['cd1']), OPT['cd2']),
                 ({OPT['fa']: fla} if OPT['fa'] < 144 else {}))
    A.ext(half(2, 0, 4, 'A2') + half(3, 0, 4, 'A3'))
    A('@lg A2b0')
    code, info = sched2(mm, head, tail, soft, [(12, 40, v1), (40, XB + 4, v2), (XB + 8, XB + 12, v3), (92, 116, v4)], 8)
    print('conv', info)
    A.ext(code)
    A.ext(late)
    ts('3')
    A('s_waitcnt lgkmcnt(0)')
    A('s_barrier')
    for w in range(4):
        A(f'ds_read_b128 {v(Y + 4 * w, 4)}, {v(a0)} offset:{4096 * w}')
    if OPT['fa'] >= 144:
        A.ext(fla)
    A.ext(epil(1, True))
    ts('03')
    P['w23'] = rest2[OPT['w2c']:] + rest3
    V.release(mp)
    return P


def helper_flag_touch():
    A(f's_and_b32 {s(sT0)}, s2, 3')
    A(f's_lshl2_add_u32 {s(sT0)}, {s(sT0)}, {s(sWave)}')
    A(f's_mul_i32 {s(sT0)}, {s(sT0)}, 56')
    A(f'v_min_u32 v250, 55, {v(LANE)}')
    A(f'v_add_u32 v250, {s(sT0)}, v250')
    A('v_lshlrev_b32 v250, 7, v250')
    A(f'v_add_u32 v250, {FL2}, v250')
    A(f'buffer_load_dword v251, v250, {s(rWS, 4)}, 0 offen sc1')
    A(f's_mov_b32 {s(sT0)}, {FL2S}')
    A(f'buffer_load_dword v251, v250, {s(rWS, 4)}, {s(sT0)} offen sc1')


def helper_mod():
    st = V.get(8)
    wm = V.get(84)
    cc = V.get(7)
    ch = V.get(7)
    acc = V.get(8)
    t0, t1, t2, vo, aw, ar, vs, vw, vp = [V.get() for _ in range(9)]
    g = V.get(4)
    rd = V.get(8)
    pf = V.get(4)
    sHm, sHn = 38, 39
    stats1_addr()
    A('v_mov_b32 v250, 0')
    A(f'v_lshrrev_b32 {v(t0)}, 3, {v(LANE)}')
    A(f'v_lshlrev_b32 {v(t2)}, 1, {v(t0)}')
    A(f'v_and_b32 {v(t2)}, 4, {v(t2)}')
    A(f'v_and_b32 {v(t1)}, 7, {v(LANE)}')
    A(f'v_xor_b32 {v(t2)}, {v(t2)}, {v(t1)}')
    A(f'v_mul_u32_u24 {v(vw)}, 3584, {v(t0)}')
    A(f'v_lshl_add_u32 {v(vw)}, {v(t2)}, 4, {v(vw)}')
    A(f'v_lshlrev_b32 {v(vp)}, 4, {v(TID)}')
    A(f's_lshr_b32 {s(sT0)}, s2, 1')
    div7(sHm, sHn, sT0)
    A(f's_and_b32 {s(sT0)}, s2, 1')
    A(f's_mul_i32 {s(sT0)}, {s(sT0)}, 7')
    A(f's_add_u32 {s(sHn)}, {s(sHn)}, {s(sT0)}')
    A(f's_and_b32 {s(sT1)}, {s(sWave)}, 1')
    A(f's_lshr_b32 {s(sT2)}, {s(sWave)}, 1')
    A(f's_lshl1_add_u32 {s(sT0)}, {s(sHn)}, {s(sT1)}')
    A(f's_lshl_b32 {s(sT0)}, {s(sT0)}, 7')
    A(f's_mul_i32 {s(sT3)}, {s(sT2)}, {224 * 3584}')
    A(f's_add_u32 {s(sM2)}, {s(sT0)}, {s(sT3)}')
    A(f's_lshl1_add_u32 {s(sT3)}, {s(sT1)}, {s(sT2)}')
    A(f's_mul_i32 m0, {s(sT3)}, 28672')
    A('s_waitcnt lgkmcnt(0)')
    ts('1')
    A.ext(tagged(capture(lambda: stats1_loads(st)), 'hs'))
    A(f's_load_dword {s(sTag)}, {s(rWS, 2)}, {EP}')
    srd(rWd, pWd, 1605632)
    A('s_cmp_ge_u32 s2, 28')
    A('s_cbranch_scc1 L_hm_skip')
    A(f's_cmp_eq_u32 {s(sHm)}, 0')
    A(f's_cselect_b64 {s(rW, 2)}, {s(pWg, 2)}, {s(pWu, 2)}')
    A(f's_mov_b32 {s(rW + 2)}, 1605632')
    A(f's_mov_b32 {s(rW + 3)}, 0x00020000')
    wsl = [f'buffer_load_dwordx4 {v(vw)}, {s(rW, 4)}, {s(sM2)} offen lds\ns_add_u32 m0, m0, 1024\ns_add_u32 {s(sM2)}, {s(sM2)}, {8 * 3584}' for i in range(28)]
    srd(rWm, pWm, 2408448)
    A('s_cmp_ge_u32 s2, 14')
    A(f's_cselect_b32 {s(sMi)}, 1, 0')
    A(f's_mul_i32 {s(sT0)}, {s(sMi)}, 14')
    A(f's_sub_u32 {s(sNi)}, s2, {s(sT0)}')
    A(f's_lshl2_add_u32 {s(sT0)}, {s(sMi)}, {s(sWave)}')
    A(f's_mul_i32 {s(sT0)}, {s(sT0)}, 56')
    A(f'v_add_u32 {v(t0)}, {s(sT0)}, {v(t0)}')
    A(f'v_lshlrev_b32 {v(t2)}, 1, {v(t0)}')
    A(f'v_mul_u32_u24 {v(vo)}, 5376, {v(t0)}')
    A(f'v_lshl_add_u32 {v(vo)}, {v(t1)}, 4, {v(vo)}')

    def wload(task, i):
        u = f's_lshl_b32 {s(sWo)}, {s(sNi if task == 0 else sNt)}, 7\n' if i == 0 else f's_add_u32 {s(sWo)}, {s(sWo)}, {8 * 5376}\n'
        return u + f'buffer_load_dwordx4 {v(wm + 28 * task + 4 * i, 4)}, {v(vo)}, {s(rWm, 4)}, {s(sWo)} offen offset:{(0, 1792, 2688)[task]} ;#hw{task}_{i}'

    def pload(i):
        u = f's_mul_i32 {s(sWo)}, s2, {6 * 4096}\n' if i == 0 else f's_add_u32 {s(sWo)}, {s(sWo)}, 4096\n'
        return u + f'buffer_load_dwordx4 {v(pf, 4)}, {v(vp)}, {s(rWd, 4)}, {s(sWo)} offen'

    for i in range(7):
        A(f'global_load_ushort {v(cc + i)}, {v(t2)}, {s(pC, 2)} offset:{16 * i} ;#hc')
    for i in range(7):
        A(wload(0, i))
    A(f'v_lshrrev_b32 {v(t0)}, 4, {v(LANE)}')
    A(f'v_lshl_add_u32 {v(t0)}, {v(t1)}, 2, {v(t0)}')
    A(f's_lshl_b32 {s(sT0)}, {s(sWave)}, 8')
    A(f's_add_u32 {s(sT0)}, {s(sT0)}, {SL[4]}')
    A(f'v_lshl_add_u32 {v(aw)}, {v(t0)}, 3, {s(sT0)}')
    A(f'v_and_b32 {v(t0)}, 31, {v(LANE)}')
    A(f'v_lshlrev_b32 {v(ar)}, 3, {v(t0)}')
    A(f'v_add_u32 {v(ar)}, {SL[4]}, {v(ar)}')
    div7(sT2, sT3, sNi)
    A(f's_mul_i32 {s(sMt)}, {s(sT2)}, 7168')
    A(f's_mul_i32 {s(sNt)}, {s(sT2)}, 7')
    A(f's_add_u32 {s(sNt)}, {s(sNt)}, {s(sNi)}')
    A(f's_lshl1_add_u32 {s(sT2)}, {s(sT2)}, {s(sMi)}')
    A(f's_mul_i32 {s(sT2)}, {s(sT2)}, 7')
    A(f's_add_u32 {s(sT2)}, {s(sT2)}, {s(sT3)}')
    A(f's_lshl_b32 {s(sT2)}, {s(sT2)}, 9')
    A(f's_add_u32 {s(sT2)}, {s(sT2)}, {MOD}')
    A(f'v_lshl_add_u32 {v(vs)}, {v(t0)}, 4, {s(sT2)}')
    A('s_waitcnt lgkmcnt(0)')
    A(f's_add_u32 {s(sTag)}, {s(sTag)}, 1')
    ts('1')
    A('@vm hs')
    ts('1')
    stats1_compute(st)
    A('@vm hc')
    ts('1')
    for i in range(7):
        A(f'v_lshlrev_b32 {v(cc + i)}, 16, {v(cc + i)}')
        A(f'v_mul_f32 {v(ch + i)}, 0xbfb8aa3b, {v(cc + i)}')
        A(f'v_exp_f32 {v(ch + i)}, {v(ch + i)}')
    for i in range(7):
        A(f'v_add_f32 {v(ch + i)}, 1.0, {v(ch + i)}')
        A(f'v_rcp_f32 {v(ch + i)}, {v(ch + i)}')
    for i in range(7):
        A(f'v_mul_f32 {v(cc + i)}, {v(cc + i)}, {v(ch + i)}')
        A(f'v_cvt_pk_bf16_f32 {v(cc + i)}, {v(cc + i)}, 0')
        A(f'v_lshlrev_b32 {v(ch + i)}, 16, {v(cc + i)}')
    A(f'v_mov_b32 {v(g + 2)}, 0')
    A(f'v_mov_b32 {v(g + 3)}, {s(sTag)}')
    for task in range(3):
        for j in range(8):
            A(f'v_mov_b32 {v(acc + j)}, 0')
        for i in range(7):
            A(f'@vm hw{task}_{i}')
            if task < 2:
                A(wload(task + 1, i))
            else:
                A(wsl[i])
            for j in range(4):
                w = wm + 28 * task + 4 * i + j
                A(f'v_dot2c_f32_bf16 {v(acc + 2 * j)}, {v(w)}, {v(cc + i)}')
                A(f'v_dot2c_f32_bf16 {v(acc + 2 * j + 1)}, {v(w)}, {v(ch + i)}')
        ts('1')
        reduce8(acc)
        A(f'ds_write_b64 {v(aw)}, {v(acc, 2)} offset:{1024 * task}')
        A('s_waitcnt lgkmcnt(0)')
        A('s_barrier')
        A(f's_cmp_lg_u32 {s(sWave)}, {task}')
        A(f's_cbranch_scc1 L_hm_n{task}')
        for w in range(4):
            A(f'ds_read_b64 {v(rd + 2 * w, 2)}, {v(ar)} offset:{1024 * task + 256 * w}')
        A(f's_mov_b32 {s(sT0)}, 0' if task == 0 else f's_add_u32 {s(sT0)}, {s(sMt)}, {7168 * (task + 1)}')
        A('s_waitcnt lgkmcnt(0)')
        A(f'v_pk_add_f32 {v(rd, 2)}, {v(rd, 2)}, {v(rd + 2, 2)}')
        A(f'v_pk_add_f32 {v(rd + 4, 2)}, {v(rd + 4, 2)}, {v(rd + 6, 2)}')
        A(f'v_pk_add_f32 {v(g, 2)}, {v(rd, 2)}, {v(rd + 4, 2)}')
        A('s_mov_b32 exec_hi, 0')
        A(f'buffer_store_dwordx4 {v(g, 4)}, {v(vs)}, {s(rWS, 4)}, {s(sT0)} offen sc1 ;#cond')
        A('s_mov_b64 exec, -1')
        A(f'L_hm_n{task}:')
        if task == 0:
            ts()
    A.ext(wsl[7:])
    if OPT['hp']:
        A.ext([pload(i).replace(v(pf, 4), 'v[244:247]') for i in range(6)])
    A('s_branch L_hm_done')
    A('L_hm_skip:')
    A('s_waitcnt lgkmcnt(0)')
    A(f's_add_u32 {s(sTag)}, {s(sTag)}, 1')
    A('s_waitcnt vmcnt(0)')
    stats1_compute(st)
    helper_flag_touch()
    A(f's_sub_u32 {s(sWo)}, s2, 25')
    A(f's_mul_i32 {s(sWo)}, {s(sWo)}, {56 * 4096}')
    A(f's_mov_b32 {s(sT0)}, {OPT["npf"]}')
    A('L_hm_pf:')
    for i in range(4):
        A(f'buffer_load_dwordx4 {v(pf, 4)}, {v(vp)}, {s(rWd, 4)}, {s(sWo)} offen')
        A(f's_add_u32 {s(sWo)}, {s(sWo)}, 4096')
    A(f's_sub_u32 {s(sT0)}, {s(sT0)}, 1')
    A(f's_cmp_lg_u32 {s(sT0)}, 0')
    A('s_cbranch_scc1 L_hm_pf')
    A('s_waitcnt vmcnt(0)')
    A('L_hm_done:')
    ts()


def main_ffn(P):
    vW, vXr, vFp = P['vW'], P['vXr'], P['vFp']
    vXs, vL16, vTag, vSt = 2, 3, 4, 5
    gbp = V.get(4)
    x1r = V.get(8)
    Ag, Au = V.get(4), V.get(4)
    stt = V.get(16)
    xr = V.get(24)
    tmp = V.get(6)
    outp = V.get(8)
    acc = V.get(96)
    P['wdv'] = V.get(64)
    fp = P['vWr'][0]
    t0, t1, t2 = tmp, tmp + 1, tmp + 2
    XSLOT = [0, 1, 4, 2]
    FS = OPT['fs']
    sSt, sAo, sAi, sOo, sGb, sAu, sHf = 16, 17, 18, 19, 20, 21, 22
    def ffn_setup():
        perms = (('0142356', '1053246', '0216345', '1302456'), ('0123456', '2345601', '4560123', '6012345'), ('0123456', '1032546', '0213465', '1023456'))[OPT['pm']]
        pk = [int(x[::-1], 16) for x in perms]
        A(f's_mov_b32 {s(sT0)}, {hex(pk[0])}')
        for i in range(1, 4):
            A(f's_cmp_eq_u32 {s(sMi)}, {i}@@s_cselect_b32 {s(sT0)}, {hex(pk[i])}, {s(sT0)}')
        for cc in range(7):
            A(f's_bfe_u32 {s(sT1)}, {s(sT0)}, {hex(0x30000 + 4 * cc)}')
            A(f's_add_u32 {s(sT1)}, {s(sT1)}, {s(sNi)}')
            A(f's_sub_u32 {s(sT2)}, {s(sT1)}, 7')
            A(f's_min_u32 {s(sT1)}, {s(sT1)}, {s(sT2)}')
            A(f's_lshl_b32 {s(sD + cc)}, {s(sT1)}, 12')
        A(f'v_lshlrev_b32 {v(vL16)}, 4, {v(LANE)}')
        A(f's_mul_i32 {s(sT0)}, {s(sMt)}, {4 * 28672}')
        A(f's_add_u32 {s(sT0)}, {s(sT0)}, {XS}')
        A(f'v_lshl_add_u32 {v(vXs)}, {v(TID)}, 4, {s(sT0)}')
        A(f'v_and_b32 {v(t0)}, 31, {v(LANE)}')
        A(f'v_lshlrev_b32 {v(vSt)}, 4, {v(t0)}')
        A(f'v_lshrrev_b32 {v(t1)}, 5, {v(LANE)}')
        A(f'v_mul_u32_u24 {v(t1)}, 28672, {v(t1)}')
        A(f'v_add_u32 {v(outp)}, {v(t1)}, {v(vSt)}')
        A(f's_lshl_b32 {s(sSt)}, {s(sMt)}, 11')
        A(f's_add_u32 {s(sSt)}, {s(sSt)}, {ST2}')
        A(f's_lshl2_add_u32 {s(sM2)}, {s(sNt)}, {s(sWave)}')
        A(f's_lshl_b32 {s(sAu)}, {s(sM2)}, 9')
        A(f's_add_u32 {s(sAu)}, {s(sAu)}, {AUG}')
        A(f's_mul_i32 {s(sT1)}, {s(sMt)}, 224')
        A(f's_add_u32 {s(sM2)}, {s(sM2)}, {s(sT1)}')
        A(f's_lshl_b32 {s(sAo)}, {s(sM2)}, 11')
        A(f's_add_u32 {s(sAo)}, {s(sAo)}, {ACT}')
        A(f's_lshl2_add_u32 {s(sT0)}, {s(sNt)}, {s(sWave)}')
        A(f's_mul_i32 {s(sT1)}, {s(sT0)}, 4682')
        A(f's_lshr_b32 {s(sT1)}, {s(sT1)}, 16')
        A(f's_lshl1_add_u32 {s(sT0)}, {s(sT1)}, {s(sT0)}')
        A(f's_lshl_b32 {s(sT1)}, {s(sMt)}, 8')
        A(f's_add_u32 {s(sT0)}, {s(sT0)}, {s(sT1)}')
        A(f's_mul_i32 {s(sFl)}, {s(sT0)}, {FS}')
        A(f's_add_u32 {s(sFl)}, {s(sFl)}, {FL3}')
        A(f's_and_b32 {s(sT0)}, {s(sJ)}, 7')
        A(f's_lshr_b32 {s(sT1)}, {s(sMi)}, 1')
        A(f's_lshl1_add_u32 {s(sT0)}, {s(sT0)}, {s(sT1)}')
        A(f's_lshl_b32 {s(sTb)}, {s(sT0)}, 2')
        A(f's_and_b32 {s(sHf)}, {s(sMi)}, 1')
        A(f's_lshl2_add_u32 {s(sRot)}, {s(sTb)}, {s(sWave)}')
        A(f's_mul_i32 {s(sRot)}, {s(sRot)}, 14')
        A(f's_lshl3_add_u32 {s(sAi)}, {s(sRot)}, {s(sHf)}')
        A(f's_lshl_b32 {s(sAi)}, {s(sAi)}, 8')
        A(f's_add_u32 {s(sAi)}, {s(sAi)}, {ACT}')
        A(f's_add_u32 {s(sOo)}, {s(sTb)}, {s(sHf)}')
        A(f's_mul_i32 {s(sOo)}, {s(sOo)}, {16 * 7}')
        A(f's_add_u32 {s(sOo)}, {s(sOo)}, {s(sNi)}')
        A(f's_lshl_b32 {s(sOo)}, {s(sOo)}, 7')
        A(f's_lshl_b32 {s(sGb)}, {s(sNi)}, 9')
        A(f's_add_u32 {s(sGb)}, {s(sGb)}, {MOD + 5 * 7168}')
        A(f'v_bfe_u32 {v(t2)}, {v(TID)}, 3, 3')
        A(f'v_and_b32 {v(t0)}, 7, {v(TID)}')
        A(f'v_lshl_add_u32 {v(t2)}, {v(t0)}, 7, {v(t2)}')
        A(f's_lshr_b32 {s(sT1)}, {s(sWave)}, 1')
        A(f's_add_u32 {s(sT0)}, {s(sTb)}, {s(sT1)}')
        A(f's_mul_i32 {s(sT0)}, {s(sT0)}, 7')
        A(f's_add_u32 {s(sT0)}, {s(sT0)}, {s(sNi)}')
        A(f's_lshl_b32 {s(sT0)}, {s(sT0)}, 7')
        A(f's_and_b32 {s(sT1)}, {s(sWave)}, 1')
        A(f's_lshl1_add_u32 {s(sT1)}, {s(sHf)}, {s(sT1)}')
        A(f's_add_u32 {s(sT0)}, {s(sT0)}, {s(sT1)}')
        A(f's_lshl_b32 {s(sT0)}, {s(sT0)}, 5')
        A(f's_add_u32 {s(sT0)}, {s(sT0)}, {X1P}')
        A(f'v_lshl_add_u32 {v(outp + 2)}, {v(t2)}, 2, {s(sT0)}')
        A(f'v_lshlrev_b32 {v(outp + 1)}, 4, {v(t0)}')
        for i in range(4):
            A(f'v_mov_b32 {v(Au + i)}, 0')

    FP = OPT['fp']
    A.ext(interleave(P['w23'], capture(lambda: P['window_setup'](*range(tmp, tmp + 5)))))
    A('@vm w0 w1')
    A('s_barrier')
    A.ext(interleave(w_dma(4, 2, P)[:FP], w_frags(0, 3, P) + w_frags(1, 4, P)))
    ts('3')
    A('@vm xo1')
    A(flag_store(vTag, sFl))
    ts('3')
    A.ext(w_dma(4, 2, P)[FP:])
    pl = [f'buffer_load_dword {v(stt + 8)}, off, {s(rWS, 4)}, {s(sGo)} sc1 ;#go']
    A.ext(pl)
    A('@vm w3')
    A('s_waitcnt lgkmcnt(0)')
    A('s_barrier')
    A.ext(interleave(w_dma(5, 3, P), w_frags(2, 0, P) + w_frags(3, 1, P) + [x.replace('@@', '\n') for x in capture(ffn_setup)]))
    ts('3')
    A(tag_wait('L_f2', pl, [stt + 8], 'go'))
    A('s_waitcnt lgkmcnt(0)')
    A('s_barrier')
    ts('03')

    def xs_dma(b):
        o = []
        for cc in range(7):
            u = f's_add_u32 m0, {s(sW1k)}, {SL[XSLOT[b]] + 4096 * cc}\n'
            o += [u.strip(), f'buffer_load_dwordx4 {v(vXs)}, {s(rWS, 4)}, {s(sC + cc)} offen sc1 lds ;#x{b}']
        return o + [f'v_add_u32 {v(vXs)}, 28672, {v(vXs)}']

    A.ext(xs_dma(0))
    A.ext(w_frags(4, 2, P))
    A.ext(w_dma(6, 4, P))
    A(f'v_mov_b32 {v(vW)}, {v(outp + 2)}')
    A(f'v_min_u32 {v(vFp)}, 13, {v(LANE)}')
    A(f's_lshl2_add_u32 {s(sT1)}, {s(sTb)}, {s(sWave)}')
    A(f's_mul_i32 {s(sT1)}, {s(sT1)}, {16 * FS}')
    A(f's_add_u32 {s(sT1)}, {s(sT1)}, {FL3}')
    A(f'v_lshl_add_u32 {v(vFp)}, {v(vFp)}, {FS.bit_length() - 1}, {s(sT1)}')
    A('@vm x0')
    A('s_waitcnt lgkmcnt(0)')
    A('s_barrier')
    ts('0235')
    g = [f'buffer_load_dwordx4 {v(x1r, 4)}, {v(vSt)}, {s(rWS, 4)}, {s(sGb)} offen sc1 ;#g',
         f'buffer_load_dwordx4 {v(x1r + 4, 4)}, {v(vSt)}, {s(rWS, 4)}, {s(sGb)} offen offset:3584 sc1 ;#g',
         f'buffer_load_dwordx4 {v(Ag, 4)}, {v(outp)}, {s(rWS, 4)}, {s(sAu)} offen sc1 ;#g']
    gv = tag_units('L_g', g, [x1r + 3, x1r + 7, Ag + 3], 'g')
    gv += [f'v_add_f32 {v(x1r)}, {v(x1r)}, {v(x1r + 4)}', f'v_add_f32 {v(x1r + 1)}, {v(x1r + 1)}, {v(x1r + 5)}',
           f'v_cvt_pk_bf16_f32 {v(x1r)}, {v(x1r)}, {v(x1r + 1)}', f'v_mov_b32 {v(Ag + 3)}, 0']
    for i in range(3):
        gv.append(f's_mov_b32 exec_lo, 0\nv_mov_b32 {v(Au + i)}, {v(Ag + i)}\nv_mov_b32 {v(Ag + i)}, 0\ns_mov_b32 exec_lo, -1')
    gp = [f'ds_bpermute_b32 {v(gbp + i)}, {v(outp + 1)}, {v(x1r)} offset:{4 * i}' for i in range(4)]
    def poll3(st_):
        return [f's_mov_b32 {s(sT3)}, {64 * FS * st_}\nbuffer_load_dword {v(fp)}, {v(vFp)}, {s(rWS, 4)}, {s(sT3)} offen sc1 ;#pe{st_}']
    pre3 = [poll3(i)[0].replace(';#pe', ';#pre') for i in range(4)]

    def xread(n):
        b, ks = divmod(n, 28)
        sl = XSLOT[b]
        r = xr + 4 * (n % 6)
        return [f'ds_read_b64_tr_b16 {v(r + 2 * e, 2)}, {v(vXr[sl // 2])} offset:{32768 * (sl % 2) + 1024 * ks + 256 * e} ;#xf{n}' for e in range(2)]

    def accr(b):
        return acc + 32 * (b % 3)

    def aug(b):
        gg, uu, st = accr(b), accr(b) + 16, stt + 4 * b
        return [f'v_mov_b32 {v(st + 3)}, 0',
                f'v_lshlrev_b32 {v(tmp + 4)}, 16, {v(st + 2)}',
                f'v_and_b32 {v(tmp + 5)}, 0xffff0000, {v(st + 2)}',
                f'v_mfma_f32_32x32x16_bf16 {v(gg, 16)}, {v(Ag, 4)}, {v(st, 4)}, {v(gg, 16)}',
                f'v_add_f32 {v(tmp + 4)}, {v(tmp + 4)}, {v(tmp + 5)}',
                f'v_rcp_f32 {v(tmp + 5)}, {v(tmp + 4)}',
                f'v_mfma_f32_32x32x16_bf16 {v(uu, 16)}, {v(Au, 4)}, {v(st, 4)}, {v(uu, 16)}',
                f'v_mul_f32 {v(st)}, {v(tmp + 4)}, {v(tmp + 4)}',
                f'v_mul_f32 {v(st + 1)}, 0xbfb8aa3b, {v(tmp + 5)}']

    def epi(b, q):
        gg, uu, st = accr(b), accr(b) + 16, stt + 4 * b
        r4 = range(4 * q, 4 * q + 4)
        o = [f'v_mul_f32 {v(tmp + i % 4)}, {v(st + 1)}, {v(gg + i)}' for i in r4]
        for i in r4:
            o += [f'v_exp_f32 {v(tmp + i % 4)}, {v(tmp + i % 4)}', f'v_mul_f32 {v(gg + i)}, {v(gg + i)}, {v(uu + i)}']
        for i in r4:
            o += [f'v_fma_f32 {v(tmp + i % 4)}, {v(tmp + i % 4)}, {v(st)}, {v(st)}', f'v_rcp_f32 {v(tmp + i % 4)}, {v(tmp + i % 4)}']
        o += [f'v_mul_f32 {v(gg + i)}, {v(gg + i)}, {v(tmp + i % 4)}' for i in r4]
        o += [f'v_cvt_pk_bf16_f32 {v(outp + 2 * q + k)}, {v(gg + 4 * q + 2 * k)}, {v(gg + 4 * q + 2 * k + 1)}' for k in range(2)]
        if q % 2:
            o.append(f'buffer_store_dwordx4 {v(outp + 2 * q - 2, 4)}, {v(vL16)}, {s(rWS, 4)}, {s(sAo)} offen offset:{1024 * (q // 2)} sc1 ;#ao{b}')
        if q == 3:
            o.append(f's_add_u32 {s(sAo)}, {s(sAo)}, {112 * 1024}')
        return o

    def act_flag(b):
        return [f'@vm ao{b}', flag_store(vTag, sFl), f's_add_u32 {s(sFl)}, {s(sFl)}, {64 * FS}']

    def st_loads(b):
        return [f'buffer_load_dwordx4 {v(stt + 4 * b, 4)}, {v(vSt)}, {s(rWS, 4)}, {s(sSt)} offen offset:{512 * b} sc1 ;#s{b}']

    res = []
    for blk in range(2):
        res += [f'buffer_load_dword {v(x1r + 4 * blk + i)}, {v(vW)}, {s(rWS, 4)}, {s(sT2) if blk else 0} offen offset:{128 * i} sc1 ;#res' for i in range(4)]
    res[4] = f's_mov_b32 {s(sT2)}, {2 * 28672}\n' + res[4]
    abuf = [('a', 128 + 4 * i) for i in range(24)]
    LA, G0 = OPT['la'], OPT['g0']
    vAl = P['vWr'][1]

    def aload(n):
        st_, kp = divmod(n, 14)
        return f'buffer_load_dwordx4 {rn(abuf[n % 24], 4)}, {v(vAl)}, {s(rWS, 4)}, {s(sD + kp // 2)} offen offset:{2048 * (kp % 2)} sc1 ;#a{n}'

    def astage(st_):
        u = tag_units(f'L_p{st_}', poll3(st_), [fp], f'pe{st_}', None if st_ else 34)
        return u + ([f'v_add_u32 {v(vAl)}, {112 * 1024}, {v(vAl)}'] if st_ else [])
    aadr = [f'v_lshrrev_b32 {v(vAl)}, 4, {v(LANE)}', f'v_lshlrev_b32 {v(vAl)}, 9, {v(vAl)}',
            f'v_and_b32 {v(P["vWr"][2])}, 0xf0, {v(vL16)}', f'v_add3_u32 {v(vAl)}, {v(vAl)}, {v(P["vWr"][2])}, {s(sAi)}']
    mm, head, tail = [], {}, {}
    for n in range(112):
        b, ks = divmod(n, 28)
        for mat in range(2):
            d = accr(b) + 16 * mat
            mm.append(f'v_mfma_f32_32x32x16_bf16 {v(d, 16)}, {a((mat * 28 + ks) * 4, 4)}, {v(xr + 4 * (n % 6), 4)}, {"0" if ks == 0 else v(d, 16)}')
        if n + 4 < 112:
            rd = xread(n + 4)
            head[2 * n] = [rd[0]]
            head[2 * n + 1] = [rd[1]]
        if n % 2 and n < 111:
            tail[2 * n + 1] = [f'@lg xf{n + 2}']
        if ks == 24 and b < 3:
            head[2 * n], head[2 * n + 1] = [], [f'@vm x{b + 1}\ns_waitcnt lgkmcnt(0)\ns_barrier'] + xread(n + 4)
    E0 = OPT['e0']
    GV = OPT['gv']
    assert GV + 10 <= E0 - 4
    Q = [OPT[f'q{i}'] for i in range(6)]
    R = [OPT[f'r{i}'] for i in range(5)]
    assert R[3] >= max(185, R[2] + 16) and R[4] >= max(201, R[3] + 14) and OPT['a0'] >= 180 + 2 * G0
    DG = OPT['dg']
    NF = OPT['nf']
    fr34 = [wd_frags(3, 1, P) + wd_addr(2, P), wd_frags(4, 3, P) + wd_addr(4, P), wd_frags(6, 4, P)]
    d56 = wd_dma(6, 4, P) + ['@lg df2\n' + wd_dma(5, 0, P)[0]] + wd_dma(5, 0, P)[1:]
    gob = [f'buffer_load_dword {v(fp)}, off, {s(rWS, 4)}, {s(sGo)} offset:128 sc1 ;#gob']
    tag_units('L_gb', gob, [fp], 'gob', 34)
    gsl = [f's_add_u32 {s(sGo2)}, {s(sGo)}, 128', f's_load_dword {s(sGo2)}, {s(rWS, 2)}, {s(sGo2)} {"glc" if OPT["glc"] else ""}']
    gsc = [f's_cmp_lg_u32 {s(sGo2)}, {s(sTag)}\ns_cbranch_scc1 L_gb_re\nL_gb_ok:']
    assert OPT['gb'] <= 44 and Q[0] >= 52 and Q[2] >= 107 and Q[3] <= 150 and R[0] + 20 <= 104 and R[1] + 24 <= Q[3] + 2 * (Q[4] - Q[3]) // 3 and Q[5] >= 163
    soft = merge({},
                 spread(224, xs_dma(1), 0, 14), spread(224, w_frags(5, 3, P), 0, 14), {20: ['@vm w6\ns_barrier']},
                 spread(224, tagged(w_frags(6, 4, P), 'wf') + ['@lg wf'], 21, 38),
                 spread(224, wd_dma(0, 2, P), OPT['qd'], Q[0]), {OPT['gb']: gsl}, {50: gsc},
                 spread(224, xs_dma(2), Q[0], Q[1]), spread(224, wd_dma(1, 3, P), Q[1], Q[2]),
                 spread(224, xs_dma(3), Q[2], Q[3]),
                 spread(224, wd_dma(2, 0, P) + wd_dma(3, 1, P) + wd_dma(4, 3, P), Q[3], Q[4]), spread(224, res[:OPT['re']], 18, 27), spread(224, res[OPT['re']:], Q[4], Q[5]),
                 spread(224, d56[:DG], Q[5], OPT['a0'] - 4), {60: aadr},
                 {OPT['a0'] - 4: astage(0)}, spread(224, [aload(n) for n in range(G0)], OPT['a0'], 223),
                 spread(224, fr34[0] if NF > 0 else [], R[3], R[3] + 14), spread(224, fr34[1] if NF > 1 else [], R[4], R[4] + 14),
                 spread(224, wd_frags(0, 2, P), R[0], R[0] + 16), spread(224, wd_frags(1, 3, P), R[1], R[1] + 16),
                 spread(224, wd_frags(2, 0, P), R[2], R[2] + 16),
                 {E0 - OPT['sl']: st_loads(0), OPT['b1'] - OPT['sl1']: st_loads(1), OPT['b2'] - OPT['sl2']: st_loads(2), OPT['b2'] - OPT['sl2'] + 20: st_loads(3)},
                 spread(224, pre3, 14, 18), spread(224, g, OPT['gl'], OPT['gl'] + 3),
                 {R[2] - 3: wd_addr(0, P)}, {OPT['p0']: poll3(0)})
    chk0, chk1, chk2, chk3 = [tag_units(f'L_s{b}', st_loads(b), [stt + 4 * b + 3], f's{b}') for b in range(4)]
    gp3 = [';gap'] * 3
    parts = [epi(0, 0), epi(0, 1), epi(0, 2), epi(0, 3) + chk1, aug(1) + gp3 + epi(1, 0), epi(1, 1), epi(1, 2), epi(1, 3) + chk2,
             aug(2) + gp3 + epi(2, 0) + chk3, epi(2, 1), epi(2, 2), epi(2, 3)]
    F0, F1 = OPT['f0'], OPT['f1']
    parts[F0] = parts[F0] + act_flag(0)
    if F1 < 12:
        parts[F1] = parts[F1] + act_flag(1)
    for n in range(4):
        A.ext(xread(n))
    A('@lg xf1')
    B1, B2 = OPT['b1'], OPT['b2']
    segs = [(GV, E0 - 8, gv + gp), (E0 - 8, E0 - 3, chk0 + aug(0) + [';gap'] * 3), (E0, B1, sum(parts[:4], [])), (B1, B2, sum(parts[4:8], [])), (B2, 224, sum(parts[8:], []))]
    code, info = sched2(mm, head, tail, soft, segs, 24)
    print('gemm1', info)
    gapof, g_ = [], -1
    for u in code:
        g_ += u.startswith('v_mfma') and ', a[' in u
        gapof.append(g_)

    def span(key):
        ix = [gapof[i] for i, u in enumerate(code) if any(ln.endswith(key) for ln in u.split('\n'))]
        return (min(ix), max(ix)) if ix else (999, -1)
    seq = [OPT['qd']] + Q + [OPT['a0'] - 4]
    assert all(b_ - a_ >= 6 for a_, b_ in zip(seq, seq[1:])) and OPT['qd'] >= 14
    assert OPT['p0'] <= OPT['a0'] - 10 and LA >= G0 and F0 < F1 and OPT['f2'] + 4 < OPT['f3'] and LA <= 13
    assert span(';#df0')[1] < 104 and span(';#df1')[1] + 8 < span(';#d4')[0] and span(';#d6')[0] > 161 and span(';#x3')[0] > 105
    assert span(';#x1')[1] < 48 and span(';#x2')[1] < 104 and span(';#x3')[1] < 160 and span(';#wf')[1] < 44
    assert min(span(';#x2')[0], span(';#d1')[0], span(';#d2')[0]) > span('L_gb_ok:')[0] > 49 and span(';#d3')[0] > 105
    assert span(';#d0')[1] < span(';#df0')[0] and span(';#d1')[1] < span(';#df1')[0] and span(';#d2')[1] < span(';#df2')[0]
    assert span(';#df2')[1] < span(';#d5')[0] and span(';#d3')[1] < span(';#df3')[0] and span(';#d4')[1] < span(';#df4')[0]
    assert span(';#g')[1] < GV and all(span(f';#s{b}')[1] + 3 < span(f'L_s{b}_ok:')[0] for b in range(4))
    assert span(';#df1')[1] < R[2] - 3 and OPT['re'] == 0
    nm_ = 0
    first_aug2 = None
    for u in code:
        if u.startswith('v_mfma') and f', {v(Ag, 4)}, {v(stt + 8, 4)}' in u:
            first_aug2 = nm_
        if u.startswith('v_mfma') and ', a[' in u:
            nm_ += 1
            if nm_ == 169:
                assert f'ao0' in ''.join(code[:code.index(u)]).split('offset:1024 sc1 ;#')[-1][:3] or True
        A(u)
        if u.startswith('v_mfma') and ', a[' in u and nm_ % 112 == 0:
            ts('2')
        if u.startswith('v_mfma') and ', a[' in u and nm_ % 28 == 0:
            ts('5')
    assert first_aug2 >= 168, first_aug2
    last0 = max(i for i, u in enumerate(code) if ';#ao0' in u and 'buffer_store' in u)
    assert sum(1 for u in code[:last0] if u.startswith('v_mfma') and ', a[' in u) <= 168
    ts('04')
    assert DG >= 8
    A.ext(aug(3))
    fr34 = fr34[NF:] + [[], [], [], []]
    A.ext(fr34[0])
    d56 = d56[DG:]
    late_ld = [aload(n) for n in range(G0, LA)]
    nq = (len(d56) + len(late_ld) + 3) // 4
    mem = d56 + late_ld
    A.ext(mem[:nq])
    for q_ in range(4):
        A.ext(epi(3, q_))
        if q_ == 1 and F1 >= 12:
            A.ext(act_flag(1))
        A.ext(mem[nq * (q_ + 1):nq * (q_ + 2)])
        A.ext(fr34[1 + q_ // 2] if q_ % 2 else [])
    if OPT['f2'] < 0:
        A.ext(act_flag(2))
    ts('2')
    wa = [stt, stt + 1]
    ra0, ra1, ao = stt + 4, stt + 5, stt + 6
    xu, gu = xr, xr + 16
    su = [f'v_and_b32 {v(t0)}, 15, {v(LANE)}',
          f'v_lshlrev_b32 {v(t0)}, 8, {v(t0)}',
          f'v_add_u32 {v(t0)}, {s(sW8k)}, {v(t0)}',
          f'v_lshrrev_b32 {v(t1)}, 4, {v(LANE)}',
          f'v_and_b32 {v(t2)}, 7, {v(LANE)}',
          f'v_xor_b32 {v(t1)}, {v(t1)}, {v(t2)}',
          f'v_lshl_add_u32 {v(wa[0])}, {v(t1)}, 4, {v(t0)}',
          f'v_add_u32 {v(wa[0])}, {SL[2]}, {v(wa[0])}',
          f'v_xor_b32 {v(wa[1])}, 64, {v(wa[0])}',
          f'v_lshrrev_b32 {v(t0)}, 3, {v(TID)}',
          f'v_and_b32 {v(t1)}, 7, {v(t0)}',
          f'v_lshlrev_b32 {v(ra0)}, 1, {v(t2)}',
          f'v_xor_b32 {v(ra0)}, {v(ra0)}, {v(t1)}',
          f'v_lshlrev_b32 {v(ra0)}, 4, {v(ra0)}',
          f'v_lshl_add_u32 {v(ra0)}, {v(t0)}, 8, {v(ra0)}',
          f'v_add_u32 {v(ra0)}, {SL[2]}, {v(ra0)}',
          f'v_xor_b32 {v(ra1)}, 16, {v(ra0)}',
          f'v_and_b32 {v(t1)}, 16, {v(t0)}',
          f'v_add_u32 {v(t0)}, {v(t0)}, {v(t1)}',
          f'v_mul_u32_u24 {v(ao)}, 896, {v(t0)}',
          f'v_lshl_add_u32 {v(ao)}, {v(t2)}, 4, {v(ao)}']
    for i in range(4):
        su += [f'v_lshlrev_b32 {v(gu + 2 * i)}, 16, {v(gbp + i)}', f'v_and_b32 {v(gu + 2 * i + 1)}, 0xffff0000, {v(gbp + i)}']
    for i in range(8):
        su += [f'v_lshlrev_b32 {v(xu + 2 * i)}, 16, {v(x1r + i)}', f'v_and_b32 {v(xu + 2 * i + 1)}, 0xffff0000, {v(x1r + i)}']
    Y = acc

    def red_write(st_):
        d = acc + 32 + 16 * st_
        return [f'ds_write_b128 {v(wa[db % 2])}, {v(d + 4 * db, 4)} offset:{32768 * (st_ // 2) + 4096 * (st_ % 2) + 128 * (db // 2)}' for db in range(4)]

    def red_read(blk):
        o = []
        for w in range(4):
            o += [f'ds_read_b128 {v(Y + 8 * w, 4)}, {v(ra0)} offset:{32768 * blk + 8192 * w}',
                  f'ds_read_b128 {v(Y + 8 * w + 4, 4)}, {v(ra1)} offset:{32768 * blk + 8192 * w}']
        o[0] = 's_waitcnt lgkmcnt(0)\ns_barrier\n' + o[0]
        return o

    def red_final(blk, pk):
        o = ['s_waitcnt lgkmcnt(0)']
        x = xu + 8 * blk
        if pk:
            for i in range(0, 8, 2):
                o += [f'v_pk_add_f32 {v(Y + i, 2)}, {v(Y + i, 2)}, {v(Y + 8 + i, 2)}', f'v_pk_add_f32 {v(Y + 16 + i, 2)}, {v(Y + 16 + i, 2)}, {v(Y + 24 + i, 2)}',
                      f'v_pk_add_f32 {v(Y + i, 2)}, {v(Y + i, 2)}, {v(Y + 16 + i, 2)}', f'v_pk_fma_f32 {v(x + i, 2)}, {v(Y + i, 2)}, {v(gu + i, 2)}, {v(x + i, 2)}']
        else:
            for i in range(8):
                o += [f'v_add_f32 {v(Y + i)}, {v(Y + i)}, {v(Y + 8 + i)}', f'v_add_f32 {v(Y + 16 + i)}, {v(Y + 16 + i)}, {v(Y + 24 + i)}',
                      f'v_add_f32 {v(Y + i)}, {v(Y + i)}, {v(Y + 16 + i)}', f'v_fmac_f32 {v(x + i)}, {v(Y + i)}, {v(gu + i)}']
        o += [f'v_cvt_pk_bf16_f32 {v(outp + 4 * blk + i)}, {v(x + 2 * i)}, {v(x + 2 * i + 1)}' for i in range(4)]
        o.append(f'buffer_store_dwordx4 {v(outp + 4 * blk, 4)}, {v(ao)}, {s(rOut, 4)}, {s(sOo)} offen {"sc1" if OPT["osc"] else ""}')
        o.append(f's_add_u32 {s(sOo)}, {s(sOo)}, {1024 * 896}')
        return o

    mm, head, tail, soft = [], {}, {}, {}
    for n in range(56):
        st_, kp = divmod(n, 14)
        for db in range(4):
            d = acc + 32 + 16 * st_ + 4 * db
            mm.append(f'v_mfma_f32_16x16x32_bf16 {v(d, 4)}, {rn(wdreg(kp // 2, kp % 2, db, P), 4)}, {rn(abuf[n % 24], 4)}, {"0" if kp == 0 else v(d, 4)}')
        if n + LA < 56:
            m_ = n + LA
            if m_ % 14 == 0:
                as_ = astage(m_ // 14)
                soft = merge(soft, {max(0, 4 * n - 5): as_[:-1]}, {max(0, 4 * n - 2): as_[-1:]})
            soft = merge(soft, {4 * n: [aload(m_)]})
        if n < 55:
            tail[4 * n + 3] = [f'@vm a{n + 1}']
    for st_ in range(1, 4):
        soft = merge({max(0, 4 * (14 * st_ - LA) - OPT['pl'] - 5): flat(poll3(st_))}, soft, spread(224, red_write(st_ - 1), 56 * st_ + 9, 56 * st_ + 25))
    soft = merge(soft, ({OPT['f2']: act_flag(2)} if OPT['f2'] >= 0 else {}), {OPT['f3']: act_flag(3)}, spread(224, red_read(0), 141, 149),
                 spread(224, wd_addr(0, P) + flat(wd_frags(5, 0, P)), OPT['g5'], 30))
    tail = merge(tail, {6: ['@lg df4 df6'], 38: ['@lg df5'], 54: ['s_barrier']})
    A('@vm a0')
    ts('2')
    c1_, info = sched2(mm, head, tail, soft, [(36, 60, su[:9]), (60, 130, su[9:]), (156, 200, red_final(0, False))], 8)
    print('gemm2', info)
    pos = {u: i for i, u in enumerate(c1_)}
    assert max(i for i, u in enumerate(c1_) if ';#df5' in u) < pos[mm[38]]
    assert pos[su[8]] < pos[red_write(0)[0]] and pos[red_read(0)[-1]] < pos[red_final(0, False)[1]]
    for n in range(LA, 56):
        assert pos[aload(n)] < pos[mm[4 * (n - 3)]]
    c2_ = []
    for u in c1_ + c2_:
        A(u)
        if u is mm[55] or u is mm[167]:
            ts('2')
        if u is mm[111]:
            ts('02')
    A.ext(red_write(3) + red_read(1) + red_final(1, True))
    ts('0246')


def helper_rest():
    V.release(2)
    g = V.get(16)
    acc = V.get(16, 4)
    fw = V.get(112)
    fv = V.get(16)
    xx = V.get(56)
    t0, t1, t2, vo, vr, va, one, aw, ar, vl = [V.get() for _ in range(10)]
    rd = V.get(8)
    def fold_vectors():
        A('s_cmp_ge_u32 s2, 28')
        A('s_cbranch_scc1 L_hr_skip')
        A(f's_mov_b32 {s(sMi)}, s38')
        A(f's_mov_b32 {s(sNi)}, s39')
        A(f's_and_b32 {s(sT1)}, {s(sWave)}, 1')
        A(f's_lshr_b32 {s(sT2)}, {s(sWave)}, 1')
        tr_lane(vr, t0, t1, 8, 128)
        A(f'v_bfe_u32 {v(t1)}, {v(LANE)}, 3, 1')
        A(f'v_xor_b32 {v(t1)}, {s(sT1)}, {v(t1)}')
        A(f'v_lshl_add_u32 {v(vr)}, {v(t1)}, 6, {v(vr)}')
        A(f's_mul_i32 {s(sT3)}, {s(sT2)}, 57344')
        A(f'v_add_u32 {v(vr)}, {s(sT3)}, {v(vr)}')
        A(f'v_and_b32 {v(t0)}, 1, {v(LANE)}')
        A(f'v_lshlrev_b32 {v(va)}, 10, {v(t0)}')
        A(f'v_lshrrev_b32 {v(t0)}, 5, {v(LANE)}')
        A(f'v_lshl_add_u32 {v(va)}, {v(t0)}, 4, {v(va)}')
        A(f'v_add_u32 {v(va)}, {SL[4] + 4096}, {v(va)}')
        A(f'v_min_u32 {v(t2)}, 223, {v(TID)}')
        A(f'v_lshlrev_b32 {v(t0)}, 4, {v(t2)}')
        ld = []
        for i, sec in enumerate((4, 3)):
            ld += [f's_mov_b32 {s(sT3)}, {MOD + sec * 7168}',
                   f'buffer_load_dwordx4 {v(g + 8 * i, 4)}, {v(t0)}, {s(rWS, 4)}, {s(sT3)} offen sc1',
                   f'buffer_load_dwordx4 {v(g + 8 * i + 4, 4)}, {v(t0)}, {s(rWS, 4)}, {s(sT3)} offen offset:3584 sc1']
        A.ext(ld)
        A(tag_wait('L_hg', ld, [g + 3, g + 7, g + 11, g + 15]))
        bf16_pair_from_partials(rd, g, g + 4, True)
        bf16_pair_from_partials(rd + 2, g + 8, g + 12, False)
        A(f'v_lshlrev_b32 {v(t2)}, 2, {v(t2)}')
        A(f'v_add_u32 {v(t2)}, {SL[4] + 4096}, {v(t2)}')
        A(f'ds_write_b32 {v(t2)}, {v(g)}')
        A(f'ds_write_b32 {v(t2)}, {v(g + 8)} offset:1024')
        A('s_waitcnt lgkmcnt(0)')
        A('s_barrier')
        def hrd(ks):
            return [f'ds_read_b128 {v(xx + 4 * (ks % 8), 4)}, {v(va)} offset:{32 * ks}'] + [
                f'ds_read_b64_tr_b16 {v(fw + 4 * ks + 2 * e, 2)}, {v(vr)} offset:{(16 * ks + 4 * e) * 128} ;#hr{ks}' for e in range(2)]
        for ks in range(4):
            A.ext(hrd(ks))
        for ks in range(28):
            A(f'@lg hr{ks}')
            A(f'v_mfma_f32_32x32x16_bf16 {v(acc, 16)}, {v(xx + 4 * (ks % 8), 4)}, {v(fw + 4 * ks, 4)}, {"0" if ks == 0 else v(acc, 16)}')
            if ks + 4 < 28:
                A.ext(hrd(ks + 4))
        A(f's_mul_i32 {s(sT0)}, {s(sMi)}, 28672')
        A(f's_lshl_b32 {s(sT1)}, {s(sNi)}, 2')
        A(f's_add_u32 {s(sT1)}, {s(sT1)}, {s(sWave)}')
        A(f's_lshl_b32 {s(sT1)}, {s(sT1)}, 9')
        A(f's_add_u32 {s(sT0)}, {s(sT0)}, {s(sT1)}')
        A(f's_add_u32 {s(sT0)}, {s(sT0)}, {AUG}')
        A(f'v_lshlrev_b32 {v(t2)}, 4, {v(LANE)}')
        A(f'v_cvt_pk_bf16_f32 {v(g + 1)}, {v(acc)}, {v(acc + 1)}')
        A(f'v_lshlrev_b32 {v(t0)}, 16, {v(g + 1)}')
        A(f'v_and_b32 {v(t1)}, 0xffff0000, {v(g + 1)}')
        A(f'v_sub_f32 {v(acc + 2)}, {v(acc)}, {v(t0)}')
        A(f'v_sub_f32 {v(acc + 3)}, {v(acc + 1)}, {v(t1)}')
        A(f'v_cvt_pk_bf16_f32 {v(g)}, {v(t0)}, {v(acc + 2)}')
        A(f'v_cvt_pk_bf16_f32 {v(g + 2)}, {v(acc + 3)}, {v(t1)}')
        A(f'v_mov_b32 {v(g + 3)}, {s(sTag)}')
        A('s_mov_b32 exec_hi, 0')
        A(f'buffer_store_dwordx4 {v(g, 4)}, {v(t2)}, {s(rWS, 4)}, {s(sT0)} offen sc1')
        A('s_mov_b64 exec, -1')
        A('L_hr_skip:')
        ts('03')

    A(f's_and_b32 {s(sT1)}, s2, 7')
    A(f's_bfe_u32 {s(sT2)}, s2, 0x10003')
    A(f's_lshl1_add_u32 {s(sMt)}, {s(sT1)}, {s(sT2)}')
    A(f's_lshr_b32 {s(sT2)}, s2, 4')
    A(f's_lshl2_add_u32 {s(sTb)}, {s(sMt)}, {s(sT2)}')
    A(f's_mul_i32 {s(sT1)}, {s(sTb)}, 28672')
    A(f's_add_u32 {s(sT1)}, {s(sT1)}, {X1P}')
    A(f'v_lshl_add_u32 {v(vo)}, {v(TID)}, 4, {s(sT1)}')
    A(f'v_mov_b32 {v(one)}, 0x3f803f80')
    A(f'v_and_b32 {v(t1)}, 7, {v(LANE)}')
    A(f'v_lshrrev_b32 {v(t2)}, 4, {v(LANE)}')
    A(f'v_lshl_add_u32 {v(t2)}, {v(t1)}, 2, {v(t2)}')
    A(f's_lshl_b32 {s(sT0)}, {s(sWave)}, 8')
    A(f's_add_u32 {s(sT0)}, {s(sT0)}, {SL[4] + 8192}')
    A(f'v_lshl_add_u32 {v(aw)}, {v(t2)}, 3, {s(sT0)}')
    A(f'v_and_b32 {v(t1)}, 31, {v(LANE)}')
    A(f'v_lshlrev_b32 {v(ar)}, 3, {v(t1)}')
    A(f'v_add_u32 {v(ar)}, {SL[4] + 8192}, {v(ar)}')
    A(f'v_lshlrev_b32 {v(vl)}, 4, {v(LANE)}')
    A(f's_lshl_b32 {s(sM2)}, {s(sTb)}, 9')
    A(f's_add_u32 {s(sM2)}, {s(sM2)}, {ST2}')
    A(f's_bfe_u32 {s(sT0)}, s2, 0x20001')
    A(f's_lshr_b32 {s(sT1)}, s2, 3')
    A(f's_lshl2_add_u32 {s(sT0)}, {s(sT0)}, {s(sT1)}')
    A(f's_mul_i32 {s(sT0)}, {s(sT0)}, {4 * 28672}')
    A(f's_add_u32 {s(sT0)}, {s(sT0)}, {XS}')
    A(f'v_min_u32 v249, 223, {v(TID)}')
    A(f'v_lshl_add_u32 v249, v249, 7, {s(sT0)}')
    for blk in range(2):
        A('s_cmp_lt_u32 s2, 28')
        A(f's_cbranch_scc1 L_nogo{blk}')
        A(f's_mov_b32 {s(sSpin)}, {SPIN}')
        A(f's_mov_b32 {s(sT3)}, {FL2S * blk}')
        A(f'L_hf{blk}:')
        A(f'buffer_load_dword v251, v250, {s(rWS, 4)}, {s(sT3)} offen sc1')
        A(f's_sub_u32 {s(sSpin)}, {s(sSpin)}, 1')
        A(f's_cbranch_scc1 L_hf{blk}_ok')
        A('s_waitcnt vmcnt(0)')
        A(f'v_cmpx_ne_u32 vcc, {s(sTag)}, v251')
        A('s_nop 0')
        A(f's_cbranch_execnz L_hf{blk}')
        A(f'L_hf{blk}_ok:')
        A('s_mov_b64 exec, -1')
        A('s_barrier')
        A(f's_and_b32 {s(sT0)}, s2, 3')
        A(f's_lshl2_add_u32 {s(sT0)}, {s(sT0)}, {s(sWave)}')
        A(f's_lshl_b32 {s(sT0)}, {s(sT0)}, 8')
        A(f's_add_u32 {s(sT0)}, {s(sT0)}, {GO + 128 * blk}')
        A(f'v_mov_b32 v252, {s(sTag)}')
        A(flag_store(252, sT0).replace(';#fl', ';#cond'))
        A(f'L_nogo{blk}:')
    for blk in range(2):
        if blk == OPT['hf']:
            fold_vectors()
        A(f's_lshl_b32 {s(sT3)}, {s(sMt)}, 8')
        A(f's_add_u32 {s(sT3)}, {s(sT3)}, {GO + 128 * blk}')
        gl = [f'buffer_load_dword v251, off, {s(rWS, 4)}, {s(sT3)} sc1']
        A.ext(gl)
        A(tag_wait(f'L_hg{blk}', gl, [251]))
        if OPT['hx'] and blk == 0:
            A(f'buffer_load_dword v251, v249, {s(rWS, 4)}, 0 offen sc1')
        ts('03')
        for i in range(7):
            A(f's_mov_b32 {s(sT0)}, {2 * 28672 * blk + 4096 * i}')
            A(f'buffer_load_dwordx4 {v(xx + 28 * blk + 4 * i, 4)}, {v(vo)}, {s(rWS, 4)}, {s(sT0)} offen sc1 ;#hx{blk}_{i}')
        for j in range(8):
            A(f'v_mov_b32 {v(acc + j)}, 0')
        for i in range(7):
            A(f'@vm hx{blk}_{i}')
            for j in range(4):
                w = xx + 28 * blk + 4 * i + j
                A(f'v_dot2c_f32_bf16 {v(acc + 2 * j)}, {v(w)}, {v(one)}')
                A(f'v_dot2c_f32_bf16 {v(acc + 2 * j + 1)}, {v(w)}, {v(w)}')
        reduce8(acc)
        A(f'ds_write_b64 {v(aw)}, {v(acc, 2)} offset:{1024 * blk}')
        A('s_waitcnt lgkmcnt(0)')
        A('s_barrier')
        A(f's_cmp_lg_u32 {s(sWave)}, {blk}')
        A(f's_cbranch_scc1 L_hs_n{blk}')
        for w in range(4):
            A(f'ds_read_b64 {v(rd + 2 * w, 2)}, {v(ar)} offset:{1024 * blk + 256 * w}')
        A(f'v_mov_b32 {v(t2)}, 0x3b124925')
        A('s_waitcnt lgkmcnt(0)')
        A(f'v_pk_add_f32 {v(rd, 2)}, {v(rd, 2)}, {v(rd + 2, 2)}')
        A(f'v_pk_add_f32 {v(rd + 4, 2)}, {v(rd + 4, 2)}, {v(rd + 6, 2)}')
        A(f'v_pk_add_f32 {v(rd, 2)}, {v(rd, 2)}, {v(rd + 4, 2)}')
        A(f'v_mul_f32 {v(rd)}, 0xbb124925, {v(rd)}')
        A(f'v_mul_f32 {v(t0)}, {v(rd)}, {v(rd)}')
        A(f'v_fma_f32 {v(rd + 1)}, {v(rd + 1)}, {v(t2)}, -{v(t0)}')
        A(f'v_max_f32 {v(rd + 1)}, 0, {v(rd + 1)}')
        A(f'v_add_f32 {v(rd + 1)}, 0x3727c5ac, {v(rd + 1)}')
        A(f'v_sqrt_f32 {v(rd + 1)}, {v(rd + 1)}')
        A(f'v_cvt_pk_bf16_f32 {v(g)}, {v(rd)}, {v(rd)}')
        A(f'v_cvt_pk_bf16_f32 {v(t1)}, {v(rd + 1)}, {v(rd + 1)}')
        A(f'v_and_b32 {v(t0)}, 0xffff0000, {v(g)}')
        A(f'v_and_b32 {v(t1)}, 0xffff0000, {v(t1)}')
        A(f'v_sub_f32 {v(rd + 2)}, {v(rd)}, {v(t0)}')
        A(f'v_sub_f32 {v(rd + 3)}, {v(rd + 1)}, {v(t1)}')
        A(f'v_cvt_pk_bf16_f32 {v(g + 1)}, {v(rd + 2)}, {v(t1)}')
        A(f'v_cvt_pk_bf16_f32 {v(g + 2)}, {v(t1)}, {v(rd + 3)}')
        A(f'v_mov_b32 {v(g + 3)}, {s(sTag)}')
        A('s_mov_b32 exec_hi, 0')
        A(f'buffer_store_dwordx4 {v(g, 4)}, {v(vl)}, {s(rWS, 4)}, {s(sM2)} offen offset:{1024 * blk} sc1 ;#cond')
        A('s_mov_b64 exec, -1')
        A(f'L_hs_n{blk}:')
    ts()
    if OPT['ha']:
        FS = OPT['fs']
        A(f's_lshr_b32 {s(sT0)}, s2, 4')
        A(f's_lshl2_add_u32 {s(sT0)}, {s(sT0)}, {s(sWave)}')
        A(f's_lshr_b32 {s(sT1)}, {s(sT0)}, 1')
        A(f's_lshl4_add_u32 {s(sT1)}, {s(sMt)}, {s(sT1)}')
        A(f's_mul_i32 {s(sT1)}, {s(sT1)}, {16 * FS}')
        A(f's_add_u32 {s(sT1)}, {s(sT1)}, {FL3}')
        A(f'v_min_u32 v250, 13, {v(LANE)}')
        A(f'v_lshl_add_u32 v250, v250, {FS.bit_length() - 1}, {s(sT1)}')
        A(f's_lshl_b32 {s(sT1)}, {s(sMt)}, 5')
        A(f's_add_u32 {s(sT0)}, {s(sT0)}, {s(sT1)}')
        A(f's_mul_i32 {s(sT0)}, {s(sT0)}, 14336')
        A(f's_add_u32 {s(sT0)}, {s(sT0)}, {ACT}')
        A(f'v_min_u32 v249, 55, {v(LANE)}')
        A(f'v_lshl_add_u32 v249, v249, 8, {s(sT0)}')
        A(f's_mov_b32 {s(sT2)}, {OPT["ha"]}')
        A(f's_mov_b32 {s(sSpin)}, {SPIN}')
        A('L_ha:')
        A(f's_sleep {OPT["hn"]}')
        A(f'buffer_load_dword v251, v250, {s(rWS, 4)}, 0 offen sc1')
        A(f's_sub_u32 {s(sSpin)}, {s(sSpin)}, 1')
        A('s_cbranch_scc1 L_ha_end')
        A('s_waitcnt vmcnt(0)')
        A(f'v_cmp_ne_u32 vcc, {s(sTag)}, v251')
        A('s_cbranch_vccnz L_ha')
        A(f'buffer_load_dword v252, v249, {s(rWS, 4)}, 0 offen sc1')
        A(f'buffer_load_dword v253, v249, {s(rWS, 4)}, 0 offen offset:128 sc1')
        A(f'v_add_u32 v250, {64 * FS}, v250')
        A(f'v_add_u32 v249, {112 * 1024}, v249')
        A(f's_sub_u32 {s(sT2)}, {s(sT2)}, 1')
        A(f's_cmp_lg_u32 {s(sT2)}, 0')
        A('s_cbranch_scc1 L_ha')
        A('L_ha_end:')


def epoch_update():
    A('s_cmp_lg_u32 s2, 32')
    A('s_cbranch_scc1 L_noep')
    A(f'v_mov_b32 v2, {s(sTag)}')
    A(f'v_mov_b32 v3, {EP}')
    A(f'buffer_store_dword v2, v3, {s(rWS, 4)}, 0 offen sc1')
    A('L_noep:')


def build():
    prologue()
    n0 = nts[0]
    m = V.mark()
    main_ffn(main_ssm())
    epoch_update()
    ts_flush('m')
    A('s_endpgm')
    A('L_helper:')
    nts[0] = n0
    V.release(m)
    helper_mod()
    helper_rest()
    ts_flush('h')
    A('L_end:')
    A('s_endpgm')
    A.ext(COLD)
    A('L_code_end:')
    if OPT['nodma']:
        keys = [s(rW, 4)] * (OPT['nodma'] & 1) + [s(rWd, 4)] * (OPT['nodma'] >> 1)
        A.lines = ['    s_nop 0' if ('buffer_load' in ln and any(k in ln for k in keys)) else ln for ln in A.lines]
    if OPT['skip']:
        tg = [f';#w{i}' for i in range(7) if OPT['skip'] >> i & 1] + [f';#d{i}' for i in range(7) if OPT['skip'] >> (8 + i) & 1]
        A.lines = ['    s_nop 0' if ('buffer_load' in ln and any(ln.endswith(k) for k in tg)) else ln for ln in A.lines]
    X = OPT['exp']
    def drop(ln):
        if X & 1 and 'buffer_load_dword ' in ln and s(rX, 4) in ln and s(sM2) in ln:
            return True
        if X & 2 and ln.endswith(';#res'):
            return True
        if X & 4 and ';#xo' in ln and s(sT3) in ln:
            return True
        if X & 8 and ';#ao' in ln:
            return True
        if X & 16 and ';#a' in ln and 'buffer_load' in ln and int(ln.split(';#a')[1]) % 2:
            return True
        if X & 32 and ';#x' in ln and ' lds' in ln and not ln.endswith('x0'):
            return True
        return False
    A.lines = ['    s_nop 0' if drop(ln) else ln for ln in A.lines]
    body = pad_hazards(resolve_waits(A.lines))
    hdr = open('adaLN_cond__ssm_conv_s4__swiglu_ffn__prompt.s.ref').read().split('; Override launch')[0]
    text = hdr + '; @launch grid=(256,1,1) block=(256,1,1) lds=163840\n'
    text += f'.amdgcn_target "amdgcn-amd-amdhsa--gfx950"\n.text\n.globl {NAME}\n.p2align 8\n.type {NAME},@function\n{NAME}:\n'
    text += '\n'.join(body) + '\n'
    text += f'''.section .rodata,"a"
.p2align 6
.amdhsa_kernel {NAME}
  .amdhsa_next_free_vgpr 512
  .amdhsa_next_free_sgpr 102
  .amdhsa_accum_offset 256
  .amdhsa_group_segment_fixed_size 0
  .amdhsa_kernarg_size 144
  .amdhsa_user_sgpr_count 2
  .amdhsa_user_sgpr_kernarg_segment_ptr 1
  .amdhsa_system_sgpr_workgroup_id_x 1
  .amdhsa_float_denorm_mode_32 3
.end_amdhsa_kernel
'''
    open(sys.argv[1], 'w').write(text)
    print('vgpr high water', V.hi, 'lines', len(body))


build()
```

```python
import re

REG = re.compile(r'^(-|\|)?(abs\()?([vas])(\d+|\[(\d+):(\d+)\])\)?\|?$')
TRANS = ('v_exp_f32', 'v_log_f32', 'v_rcp_f32', 'v_rsq_f32', 'v_sqrt_f32', 'v_sin_f32', 'v_cos_f32')


def regs_of(tok):
    tok = tok.strip()
    if tok in ('vcc', 'vcc_lo', 'vcc_hi'):
        return {('s', 'vcc')}
    if tok in ('exec', 'exec_lo', 'exec_hi'):
        return {('s', 'exec')}
    if tok == 'm0':
        return {('s', 'm0')}
    m = REG.match(tok)
    if not m:
        return set()
    k = m.group(3)
    if m.group(5) is not None:
        return {(k, i) for i in range(int(m.group(5)), int(m.group(6)) + 1)}
    return {(k, int(m.group(4)))}


class Ins:
    def __init__(self, text):
        self.text = text
        body = text.split(';')[0].strip()
        parts = body.split(None, 1)
        self.op = parts[0]
        rest = parts[1] if len(parts) > 1 else ''
        ops, depth, cur = [], 0, ''
        for ch in rest:
            if ch == '[':
                depth += 1
            if ch == ']':
                depth -= 1
            if ch == ',' and depth == 0:
                ops.append(cur.strip())
                cur = ''
            else:
                cur += ch
        mods = ''
        if cur.strip():
            last = cur.strip().split(None, 1)
            ops.append(last[0])
            mods = last[1] if len(last) > 1 else ''
        self.ops, self.mods = ops, mods
        op = self.op
        R = [regs_of(o) for o in ops]
        allr = set().union(*R) if R else set()
        self.mfma = op.startswith('v_mfma')
        self.valu = op.startswith('v_') and not self.mfma
        self.trans = any(op.startswith(t) for t in TRANS)
        self.dot = op.startswith('v_dot')
        self.dpp = '_dpp' in op
        self.perm = op.startswith('v_permlane')
        self.lane = op.startswith('v_readlane') or op.startswith('v_readfirstlane') or op.startswith('v_writelane')
        self.ds = op.startswith('ds_')
        self.vmem = op.startswith('buffer_') or op.startswith('global_')
        self.salu = op.startswith('s_')
        self.ldsdma = self.vmem and (' lds' in ' ' + mods or '_lds_' in op)
        self.usem0 = self.ldsdma or 'addtid' in op
        self.wr, self.rd = set(), set()
        self.states = 1
        if op == 's_nop':
            self.states = int(ops[0], 0) + 1
        if self.mfma:
            self.wr = R[0]
            self.srcA, self.srcB, self.srcC = R[1], R[2], R[3]
            self.rd = R[1] | R[2] | R[3]
            self.passes = 8 if '32x32' in op else 4
        elif self.valu:
            nd = 2 if ('_co_' in op and not op.startswith('v_cmp')) else 1
            self.wr = set().union(*R[:nd])
            self.rd = set().union(*R[nd:]) if len(R) > nd else set()
            if self.perm:
                self.wr = allr
                self.rd = allr
            if op.startswith('v_fmac') or op.startswith('v_dot2c') or self.dpp or op.startswith('v_writelane'):
                self.rd |= R[0]
            if op.startswith('v_cmpx'):
                self.wr = self.wr | {('s', 'exec')}
            if op.startswith('v_cndmask') and len(ops) == 3:
                self.rd |= {('s', 'vcc')}
        elif self.ds:
            if op.startswith('ds_read') or op.startswith('ds_bpermute') or op.startswith('ds_swizzle'):
                self.wr = R[0]
                self.rd = set().union(*R[1:]) if len(R) > 1 else set()
            else:
                self.rd = allr
        elif self.vmem:
            if '_load' in op and not self.ldsdma:
                self.wr = R[0]
                self.rd = set().union(*R[1:])
            else:
                self.rd = allr
            self.widestore = ('store_dwordx4' in op or 'store_dwordx3' in op)
            if self.widestore:
                self.stdata = R[0] if op.startswith('buffer_') else R[1]
        elif self.salu:
            nodst = ('s_cmp', 's_waitcnt', 's_nop', 's_barrier', 's_branch', 's_cbranch', 's_endpgm', 's_sleep', 's_setprio', 's_bitcmp')
            if not op.startswith(nodst) and R:
                self.wr = R[0]
                self.rd = set().union(*R[1:]) if len(R) > 1 else set()
                if 'saveexec' in op:
                    self.wr = self.wr | {('s', 'exec')}
            else:
                self.rd = allr


def need(p, c):
    n = 0
    vw = {r for r in p.wr if r[0] in 'va'}
    sw = {r for r in p.wr if r[0] == 's'}
    if p.mfma:
        big = 12 if p.passes == 8 else 8
        if c.mfma:
            if vw & (c.srcA | c.srcB):
                n = max(n, big)
            if vw & c.srcC and not (vw == c.srcC and p.passes == c.passes):
                n = max(n, 10 if p.passes == 8 else 6)
            if vw & c.wr and not (vw & c.srcC):
                n = max(n, big)
        elif vw & (c.rd | c.wr):
            n = max(n, big)
        if c.valu and p.srcC & c.wr:
            n = max(n, 7 if p.passes == 8 else 3)
    if p.valu:
        if c.mfma and vw & c.rd:
            n = max(n, 2)
        if p.trans and c.valu and vw & c.rd:
            n = max(n, 1)
        if (c.dpp or c.perm) and vw & c.rd:
            n = max(n, 2)
        if c.lane and vw & c.rd:
            n = max(n, 1)
        if p.dot and vw & (c.rd | c.wr):
            same = c.op == p.op and not (vw & set().union(*[regs_of(o) for o in c.ops[1:3]]))
            if not same:
                n = max(n, 3)
        if ('s', 'exec') in sw and (c.dpp or c.perm or c.lane or c.mfma):
            n = max(n, 5)
        if sw:
            if c.valu and sw & c.rd:
                n = max(n, 4 if c.lane else 2)
            if c.vmem and sw & c.rd:
                n = max(n, 5)
            if c.salu and sw & c.rd:
                n = max(n, 1)
            if c.op.startswith('s_cbranch_vcc') and ('s', 'vcc') in sw:
                n = max(n, 1)
    if p.salu and ('s', 'm0') in p.wr and c.usem0:
        n = max(n, 1)
    if p.salu and ('s', 'exec') in p.wr and (c.dpp or c.perm or c.lane):
        n = max(n, 1)
    if p.vmem and getattr(p, 'widestore', False) and p.stdata & c.wr:
        n = max(n, 2)
    return n


def pad_hazards(lines):
    back = {}
    for _ in range(3):
        out, hists, fwd, seen, newback = [], [[]], {}, set(), {}
        for ln in lines:
            s = ln.strip()
            if not s or s.startswith(';') or s.startswith('.'):
                out.append(ln)
                continue
            if s.endswith(':'):
                lab = s[:-1]
                seen.add(lab)
                hists = hists + fwd.get(lab, []) + back.get(lab, [])
                out.append(ln)
                continue
            c = Ins(s)
            gap = 0
            for h in hists:
                for p, age in h:
                    gap = max(gap, need(p, c) - age)
            while gap > 0:
                k = min(gap, 16)
                out.append(f'    s_nop {k - 1}')
                hists = [[(p, a + k) for p, a in h] for h in hists]
                gap -= k
            out.append(ln)
            merged = {}
            for h in hists:
                for p, a in h:
                    if a + c.states < 14:
                        key = id(p)
                        if key not in merged or merged[key][1] > a + c.states:
                            merged[key] = (p, a + c.states)
            h = list(merged.values()) + [(c, 0)]
            hists = [h]
            if c.op.startswith('s_cbranch') or c.op == 's_branch':
                tgt = c.ops[0]
                (newback if tgt in seen else fwd).setdefault(tgt, []).append(list(h))
                if c.op == 's_branch':
                    hists = [[]]
            if c.op == 's_endpgm':
                hists = [[]]
        lines, back = out, newback
    return lines


class Regs:
    def __init__(self, kind, start, end):
        self.kind, self.pos, self.end = kind, start, end
        self.hi = start

    def get(self, n=1, align=1):
        if n > 1 and align == 1:
            align = 2
        self.pos = (self.pos + align - 1) // align * align
        r = self.pos
        self.pos += n
        assert self.pos <= self.end, f'out of {self.kind} registers'
        self.hi = max(self.hi, self.pos)
        return r

    def mark(self):
        return self.pos

    def release(self, m):
        self.pos = m


def v(r, n=1):
    return f'v{r}' if n == 1 else f'v[{r}:{r + n - 1}]'


def a(r, n=1):
    return f'a{r}' if n == 1 else f'a[{r}:{r + n - 1}]'


def s(r, n=1):
    return f's{r}' if n == 1 else f's[{r}:{r + n - 1}]'


class Asm:
    def __init__(self):
        self.lines = []

    def __call__(self, text):
        for ln in text.split('\n'):
            t = ln.strip()
            if not t:
                continue
            self.lines.append(t if t.endswith(':') else '    ' + t)

    def ext(self, lst):
        for x in lst:
            self(x)


def interleave(main, fill, per=None, start=0, end=None):
    end = len(main) if end is None else end
    n = end - start
    out, done = [], 0
    for i, m in enumerate(main):
        out.append(m)
        if start <= i < end:
            tgt = (len(fill) * (i - start + 1) + n - 1) // n
            if per is not None:
                tgt = min(len(fill), done + per)
            out.extend(fill[done:tgt])
            done = max(done, tgt)
    out.extend(fill[done:])
    return out


def resolve_waits(lines):
    out, vm, lg = [], [], []
    for ln in lines:
        t = ln.strip()
        if t.startswith('@vm') or t.startswith('@lg'):
            kind, tags = t.split(None, 1)
            q = vm if kind == '@vm' else lg
            idx = [i for i, x in enumerate(q) if x in tags.split()]
            if not idx:
                continue
            n = sum(1 for x in q[max(idx) + 1:] if x != 'cond')
            lim = 63 if kind == '@vm' else 15
            n = min(n, lim)
            out.append(f'    s_waitcnt {"vmcnt" if kind == "@vm" else "lgkmcnt"}({n})')
            del q[:max(idx) + 1]
            continue
        if t and not t.endswith(':') and not t.startswith(';') and not t.startswith('.'):
            op = t.split()[0]
            tag = t.split(';#')[1].strip() if ';#' in t else ''
            if op.startswith('buffer_') or op.startswith('global_'):
                vm.append(tag)
            elif op.startswith('ds_'):
                lg.append(tag)
            elif op == 's_waitcnt' and tag != 'cond':
                if 'vmcnt(0)' in t:
                    vm.clear()
                if 'lgkmcnt(0)' in t:
                    lg.clear()
            ln = ln.split(';#')[0].rstrip()
        out.append(ln)
    return out


def tagged(lst, tag):
    out = []
    for x in lst:
        op = x.split()[0]
        out.append(x + ' ;#' + tag if op.startswith(('buffer_', 'global_', 'ds_')) and ';#' not in x else x)
    return out


def cost(unit):
    c = 0
    for ln in unit.split('\n'):
        t = ln.strip()
        if not t or t.endswith(':') or t.endswith(';#cond') or t.startswith(';'):
            continue
        op = t.split()[0]
        if op.startswith(TRANS):
            c += 8
        elif op.startswith('ds_write_b128'):
            c += 22
        elif op.startswith('ds_write_b64'):
            c += 12
        elif op.startswith('buffer_load'):
            c += 8
        elif op.startswith('s_cbranch'):
            c += 16
        elif op == 's_barrier':
            c += 8
        elif op.startswith('v_mfma'):
            c += 8
        else:
            c += 4
    return c


def is_mem(unit):
    return any(ln.strip().split()[0].startswith(('ds_', 'buffer_', 'global_')) for ln in unit.split('\n') if ln.strip())


def spread(n, items, start=0, end=None):
    end = n if end is None else end
    d = {}
    for i, it in enumerate(items):
        d.setdefault(start + (i * (end - start)) // max(1, len(items)), []).append(it)
    return d


def merge(*ds):
    o = {}
    for d in ds:
        for k, val in d.items():
            o.setdefault(k, []).extend(val)
    return o


def sched(mf, head, tail, valu, gap, vstart=0, vend=None):
    n = len(mf)
    vend = n if vend is None else vend
    free = [max(0, gap - sum(map(cost, head.get(i, []))) - sum(map(cost, tail.get(i, [])))) for i in range(n)]
    extra = sum(gap + 8 for u in valu if u.startswith('v_mfma'))
    tot = sum(free[vstart:vend]) + extra
    ratio = sum(map(cost, valu)) / max(1, tot)
    out, k, used, avail = [], 0, 0.0, 0.0
    for i in range(n):
        out.append(mf[i])
        if vstart <= i:
            while k < len(valu) and is_mem(valu[k]):
                out.append(valu[k])
                used += cost(valu[k])
                k += 1
        out.extend(head.get(i, []))
        if vstart <= i < vend:
            avail += free[i] * ratio
            while k < len(valu) and not is_mem(valu[k]) and used + cost(valu[k]) / 2 <= avail:
                out.append(valu[k])
                used += cost(valu[k])
                if valu[k].startswith('v_mfma'):
                    avail += (gap + 8) * ratio
                k += 1
        out.extend(tail.get(i, []))
    out.extend(valu[k:])
    return out, ratio


def is_vmem(unit):
    return any(ln.strip().split()[0].startswith(('buffer_', 'global_')) for ln in unit.split('\n') if ln.strip())


def simple(u):
    return '\n' not in u and u.startswith('v_') and not u.startswith(('v_mfma', 'v_cmp', 'v_readlane')) and 'vcc' not in u and '_dpp' not in u


def pull(valu, first, k, i, room):
    if not simple(valu[k]):
        return None
    passed = [Ins(valu[k])]
    for j in range(k + 1, min(k + 6, len(valu))):
        if not simple(valu[j]) or first[j] > i:
            return None
        c = Ins(valu[j])
        if cost(valu[j]) <= room and all(not (c.wr & (p.rd | p.wr)) and not (c.rd & p.wr) for p in passed):
            return j
        passed.append(c)
    return None


def sched2(mf, head, tail, soft, segs, gap):
    n = len(mf)
    fixed = [sum(map(cost, head.get(i, []))) + sum(map(cost, tail.get(i, []))) for i in range(n)]
    free = [max(0, gap - fixed[i] - sum(map(cost, soft.get(i, [])))) for i in range(n)]
    valu, due, ratios = [], [0.0] * n, []
    first = []
    for lo, hi, vs in segs:
        extra = sum(gap + 8 for u in vs if u.startswith('v_mfma'))
        tot = sum(map(cost, vs))
        r = max(0.0, tot - extra) / max(1, sum(free[lo:hi]))
        ratios.append(round(r, 3))
        if hi - lo < 8:
            due[lo] += max(0, tot - 8 * sum(u.startswith('v_mfma') for u in vs) - gap * sum(u.startswith('v_mfma') for u in vs)) + 32
        else:
            for i in range(lo, hi):
                due[i] += free[i] * min(1.0, r * 1.08)
        first += [lo] * len(vs)
        valu += vs
    out, q, k, used, avail, over, age, vage = [], [], 0, 0.0, 0.0, 0, 0, 0
    for i in range(n):
        q += soft.get(i, [])
        room = gap - fixed[i]
        vm, ds, post = [], [], []
        while k < len(valu) and first[k] <= i and is_mem(valu[k]) and (cost(valu[k]) <= room or room == gap - fixed[i]):
            (vm if is_vmem(valu[k]) else ds).append(valu[k])
            room -= cost(valu[k])
            used += cost(valu[k])
            k += 1
        age += 1
        while q and (cost(q[0]) <= room or (cost(q[0]) > gap - 4 and (room == gap or (age > 3 and room >= gap - 4)))):
            u = q[0]
            if is_mem(u):
                if post or (is_vmem(u) and ds):
                    break
                (vm if is_vmem(u) else ds).append(u)
            else:
                post.append(u)
            room -= cost(u)
            q.pop(0)
            age = 0
        if not q:
            age = 0
        hd = head.get(i, [])
        bar = any('s_barrier' in u for u in hd)
        out.append(mf[i])
        out.extend(hd + vm + ds + post if bar else vm + hd + ds + post)
        avail += due[i]
        while k < len(valu) and first[k] <= i and not is_mem(valu[k]):
            u = valu[k]
            if u == ';gap':
                k += 1
                break
            if u.startswith('v_mfma'):
                out.append(u)
                room = gap - sum(map(cost, tail.get(i, [])))
                avail += gap
                k += 1
                continue
            c = cost(u)
            big = (c > gap - 4 and (room == gap or (vage > 2 and room >= gap - 4))) or (vage > 1 and c <= room + 4 and c >= 16)
            if c > room and not big:
                j = pull(valu, first, k, i, room)
                if j is not None:
                    valu.insert(k, valu.pop(j))
                    continue
                vage += 1
                break
            vage = 0
            out.append(u)
            used += c
            room -= c
            k += 1
        over += max(0, -room)
        out.extend(tail.get(i, []))
    left = sum(map(cost, q)) + sum(map(cost, valu[k:]))
    out.extend(q + valu[k:])
    return out, (ratios, 'over', over, 'left', left)
```

```python
import sys
from asmgen import *

NAME = 'adaLN_cond__ssm_conv_s4__swiglu_ffn__prompt_kernel'
OPT = dict(ts=0, probe=-1, hprobe=-1, grp=0, nap=1, pp=10, pc=20, sp=3, cb0=0, cb1=1, nb=2, w5=4, wb=24, nt=3, kb=4, x1e=3, e0=70, b1=113, b2=168, sl=30, sl1=36, sl2=46, gv=50, rm=2, la=8, pl=16, osc=1, g0=5, a0=206, g5=10, r3=192, r4=208, p0=196, f0=5, f1=9, f2=14, f3=30, nodma=0, hdelay=0, mdelay=0, exp=0, n0=6, n2=2, k0=2, xp=5, h1p=2, skip=0, pre1=1, tsb=2, n1=4, m2p=16, hbe=0, hb0=2, hb1=1, cd0=4, cd1=116, hw0=28, nc=4, se=1, s0=3, ls0=46, fs=16, q0=66, q1=82, q2=124, q3=140, q4=172, q5=180, r0=88, r1=122, r2=170, dg=8, nf=0, glc=0, na=0, cda=56, cdb=84, w2c=0, cd2=140, fa=20, gl=26, fp=8, pm=1, xo3=0, hx=1, qd=30, gb=42, re=0, hp=0, hf=0, npf=4, ha=0, hn=8)
for arg in sys.argv[2:]:
    k, val = arg.split('=')
    OPT[k] = int(val)

EP, ST1, MOD, AUG, ST2, FL2, FL3 = 0, 0x1000, 0x8000, 0x14000, 0x24000, 0xC0000, 0x40000
FL2S = 896 * 128
GO = 0x30000
INB, XS, X1P, ACT, TS = 0x100000, 0x500000, 0x700000, 0x900000, 0x1800000
SL = [0, 32768, 65536, 98304, 131072]
KG_W = 16320
HB, HC = 65024, 4160
KT, KT_CH, KT_C0 = 33792, 9152, 4568
XR = 52096
TXB = 13248
CKX = 60416
SPIN = 200000
XB = 51

pX, pAre, pAim, pBre, pBim, pCre, pCim, pLdt, pDs, pBx, pWg, pWu, pWd, pC, pWm, pOut, pDbg, pWs = range(4, 40, 2)
rX, rWS, rW, rWd, rOut, rWm = 40, 44, 48, 52, 56, 60
sWave, sTag, sJ, sMi, sNi, sMt, sNt, sRot, sLdt, sDs, sT0, sT1, sT2, sT3, sSpin, sM2 = range(64, 80)
sTS = 80
sC = 4
sD = 4
sW1k, sW8k, sWo, sFl, sTb = 11, 12, 13, 14, 15

A = Asm()
V = Regs('v', 6, 256)
TID, LANE, VST, VTAG = 0, 1, 2, 4
CODE_SLICE = 1152
sGi, sSo, sP, sGo, sGo2 = 36, 37, 63, 36, 37
nts = [0]


def ts(grp='0'):
    if OPT['ts'] and (grp == '*' or str(OPT['grp']) in grp):
        A(f's_mem{"real" if OPT["ts"] == 1 else ""}time {s(sTS + 2 * nts[0], 2)}')
        nts[0] += 1
        assert nts[0] <= 11


def ts_flush(tag):
    if not OPT['ts']:
        return
    pk = OPT['probe' if tag == 'm' else 'hprobe']
    if max(OPT['probe'], OPT['hprobe']) >= 0:
        if pk >= 0:
            A('s_waitcnt lgkmcnt(0)')
            A(f's_add_u32 {s(sT0)}, {s(sTS + 2 * pk)}, 6000')
            A(f'L_probe{tag}:')
            A(f's_memrealtime {s(sT2, 2)}')
            A('s_waitcnt lgkmcnt(0)')
            A(f's_sub_u32 {s(sT1)}, {s(sT2)}, {s(sT0)}')
            A(f's_cmp_lt_i32 {s(sT1)}, 0')
            A(f's_cbranch_scc1 L_probe{tag}')
        return
    n = nts[0]
    A('s_waitcnt lgkmcnt(0)')
    A(f's_lshl_b32 {s(sT0)}, s2, 2')
    A(f's_add_u32 {s(sT0)}, {s(sT0)}, {s(sWave)}')
    A(f's_lshl_b32 {s(sT0)}, {s(sT0)}, 6')
    A(f's_add_u32 {s(sT0)}, {s(sT0)}, {TS}')
    A(f'v_mov_b32 v2, {s(sT0)}')
    for i in range(n):
        A(f'v_mov_b32 v3, {s(sTS + 2 * i)}')
        A(f'buffer_store_dword v3, v2, {s(rWS, 4)}, 0 offen offset:{4 * i}')


def srd(r, p, nbytes):
    A(f's_mov_b32 {s(r)}, {s(p)}')
    A(f's_mov_b32 {s(r + 1)}, {s(p + 1)}')
    A(f's_mov_b32 {s(r + 2)}, {nbytes}')
    A(f's_mov_b32 {s(r + 3)}, 0x00020000')


def cmul(d, x, y):
    return [f'v_pk_mul_f32 {v(d, 2)}, {v(x, 2)}, {v(y, 2)} op_sel:[0,0] op_sel_hi:[1,0]',
            f'v_pk_fma_f32 {v(d, 2)}, {v(x, 2)}, {v(y, 2)}, {v(d, 2)} op_sel:[1,1,0] op_sel_hi:[0,1,1] neg_lo:[0,1,0]']


def div7(q, r, x):
    A(f's_mul_i32 {s(q)}, {s(x)}, 9363')
    A(f's_lshr_b32 {s(q)}, {s(q)}, 16')
    A(f's_mul_i32 {s(r)}, {s(q)}, 7')
    A(f's_sub_u32 {s(r)}, {s(x)}, {s(r)}')


COLD = []


def tag_wait(label, loads, tags, younger=0):
    o = [f'@vm {younger}' if isinstance(younger, str) else f's_waitcnt vmcnt({younger})']
    chk = [f'v_cmpx_eq_u32 vcc, {s(sTag)}, {v(t)}' for t in tags]
    chk += ['s_nop 0', 's_cmp_eq_u64 exec, -1', 's_mov_b64 exec, -1']
    o += chk + [f's_cbranch_scc0 {label}_re', f'{label}_ok:']
    c = [f'{label}_re:', f's_mov_b32 {s(sSpin)}, {SPIN}', f'{label}_lp:', f's_sleep {OPT["nap"]}']
    c += [x.split(';#')[0] for x in loads]
    c += ['s_waitcnt vmcnt(0)'] + chk + [f's_cbranch_scc1 {label}_ok', f's_sub_u32 {s(sSpin)}, {s(sSpin)}, 1',
                                         f's_cmp_lg_u32 {s(sSpin)}, 0', f's_cbranch_scc1 {label}_lp', f's_branch {label}_ok']
    COLD.extend(c)
    return '\n'.join(o)


def tag_units(label, loads, tags, younger, pair=None):
    chk = [f'v_cmp_ne_u32 vcc, {s(sTag)}, {v(tags[0])}']
    for t in tags[1:]:
        chk += [f'v_cmp_ne_u32 {s(sLdt, 2)}, {s(sTag)}, {v(t)}', f's_or_b64 vcc, vcc, {s(sLdt, 2)}']
    c = [f'{label}_re:', f's_mov_b32 {s(sSpin)}, {SPIN}', f'{label}_lp:', f's_sleep {OPT["nap"]}']
    c += [x.split(';#')[0] for x in loads]
    if pair is not None:
        chk = [f'v_cmp_ne_u32 {s(pair, 2)}, {s(sTag)}, {v(tags[0])}']
        c += ['s_waitcnt vmcnt(0)'] + chk + [f's_cmp_eq_u64 {s(pair, 2)}, 0', f's_cbranch_scc1 {label}_ok', f's_sub_u32 {s(sSpin)}, {s(sSpin)}, 1',
                                             f's_cmp_lg_u32 {s(sSpin)}, 0', f's_cbranch_scc1 {label}_lp', f's_branch {label}_ok']
        COLD.extend(c)
        return [f'@vm {younger}'] + chk + [f's_cmp_lg_u64 {s(pair, 2)}, 0\ns_cbranch_scc1 {label}_re\n{label}_ok:']
    c += ['s_waitcnt vmcnt(0)'] + chk + [f's_cbranch_vccz {label}_ok', f's_sub_u32 {s(sSpin)}, {s(sSpin)}, 1',
                                         f's_cmp_lg_u32 {s(sSpin)}, 0', f's_cbranch_scc1 {label}_lp', f's_branch {label}_ok']
    COLD.extend(c)
    return [f'@vm {younger}'] + chk + [f's_cbranch_vccnz {label}_re\n{label}_ok:']


def stats1_addr():
    A(f's_mov_b32 {s(rX + 2)}, 1835008')
    A(f's_mov_b32 {s(rX + 3)}, 0x00020000')
    A(f's_mov_b32 {s(rWS + 2)}, 0x10000000')
    A(f's_mov_b32 {s(rWS + 3)}, 0x00020000')
    A(f's_lshl2_add_u32 {s(sGi)}, s2, {s(sWave)}')
    A(f's_mul_i32 {s(sSo)}, {s(sGi)}, 1792')
    A(f'v_lshrrev_b32 v3, 5, {v(LANE)}')
    A('v_mul_u32_u24 v3, 896, v3')
    A(f'v_and_b32 v4, 31, {v(LANE)}')
    A('v_cmp_gt_u32 vcc, 28, v4')
    A('v_lshl_add_u32 v3, v4, 4, v3')
    A('v_bfrev_b32 v4, 2')
    A(f'v_cndmask_b32 {v(VST)}, v4, v3, vcc')


def stats1_loads(d):
    if OPT['pre1']:
        A(f's_lshl_b32 {s(sSpin)}, {s(sGi)}, 4')
        A(f's_add_u32 {s(sSpin)}, {s(sSpin)}, {ST1}')
        A(f'buffer_load_dword v5, off, {s(rWS, 4)}, {s(sSpin)}')
    A(f'buffer_load_dwordx4 {v(d, 4)}, {v(VST)}, {s(rX, 4)}, {s(sSo)} offen {"nt" if OPT["nt"] & 4 else ""}')
    A(f'buffer_load_dwordx4 {v(d + 4, 4)}, {v(VST)}, {s(rX, 4)}, {s(sSo)} offen offset:448 {"nt" if OPT["nt"] & 4 else ""}')


def stats1_compute(d):
    m = V.mark()
    g = V.get(4)
    s1, s2, one, t = V.get(), V.get(), V.get(), V.get()
    A(f'v_mov_b32 {v(one)}, 0x3f803f80')
    A(f'v_mov_b32 {v(s1)}, 0')
    A(f'v_mov_b32 {v(s2)}, 0')
    for i in range(8):
        A(f'v_dot2c_f32_bf16 {v(s1)}, {v(d + i)}, {v(one)}')
        A(f'v_dot2c_f32_bf16 {v(s2)}, {v(d + i)}, {v(d + i)}')
    for ctl in ('row_shr:1', 'row_shr:2', 'row_shr:4', 'row_shr:8'):
        for r in (s1, s2):
            A(f'v_add_f32_dpp {v(r)}, {v(r)}, {v(r)} {ctl} row_mask:0xf bank_mask:0xf bound_ctrl:1')
    for r in (s1, s2):
        A(f'v_add_f32_dpp {v(r)}, {v(r)}, {v(r)} row_bcast:15 row_mask:0xa bank_mask:0xf')
    A(f'v_mul_f32 {v(s1)}, 0x3b124925, {v(s1)}')
    A(f'v_mul_f32 {v(t)}, {v(s1)}, {v(s1)}')
    A(f'v_mov_b32 {v(one)}, 0x3b124925')
    A(f'v_fma_f32 {v(s2)}, {v(s2)}, {v(one)}, -{v(t)}')
    A(f'v_max_f32 {v(s2)}, 0, {v(s2)}')
    A(f'v_add_f32 {v(s2)}, 0x3727c5ac, {v(s2)}')
    A(f'v_rsq_f32 {v(g + 2)}, {v(s2)}')
    A(f'v_mov_b32 {v(g + 3)}, {s(sTag)}')
    A(f'v_mul_f32 {v(s1)}, {v(s1)}, {v(g + 2)}')
    A(f'v_readlane_b32 {s(sT1)}, {v(g + 2)}, 31')
    A(f'v_readlane_b32 {s(sT2)}, {v(s1)}, 31')
    A(f's_lshl_b32 {s(sT0)}, {s(sGi)}, 4')
    A(f's_add_u32 {s(sT0)}, {s(sT0)}, {ST1}')
    A(f'v_mov_b32 {v(g + 1)}, {s(sT1)}')
    A(f'v_cvt_pk_bf16_f32 {v(g)}, -{s(sT2)}, -{v(s1)}')
    A('s_mov_b32 exec_lo, 0')
    A('s_mov_b32 exec_hi, 0x80000000')
    A(f'buffer_store_dwordx4 {v(g, 4)}, off, {s(rWS, 4)}, {s(sT0)} sc1')
    A('s_mov_b64 exec, -1')
    V.release(m)


def reduce8(acc):
    for j in range(4):
        A(f'v_permlane32_swap_b32 {v(acc + j)}, {v(acc + j + 4)}')
    for j in range(4):
        A(f'v_add_f32 {v(acc + j)}, {v(acc + j)}, {v(acc + j + 4)}')
    for j in range(2):
        A(f'v_permlane16_swap_b32 {v(acc + j)}, {v(acc + j + 2)}')
    for j in range(2):
        A(f'v_add_f32 {v(acc + j)}, {v(acc + j)}, {v(acc + j + 2)}')
    for j in range(2):
        A(f'v_add_f32_dpp {v(acc + j)}, {v(acc + j)}, {v(acc + j)} row_ror:8 row_mask:0xf bank_mask:0xf')


def bf16_pair_from_partials(dst, g0, g1, plus1):
    A(f'v_add_f32 {v(dst)}, {v(g0)}, {v(g1)}')
    A(f'v_add_f32 {v(dst + 1)}, {v(g0 + 1)}, {v(g1 + 1)}')
    A(f'v_cvt_pk_bf16_f32 {v(g0)}, {v(dst)}, {v(dst + 1)}')
    A(f'v_lshlrev_b32 {v(dst)}, 16, {v(g0)}')
    A(f'v_and_b32 {v(dst + 1)}, 0xffff0000, {v(g0)}')
    if plus1:
        A(f'v_add_f32 {v(dst)}, 1.0, {v(dst)}')
        A(f'v_add_f32 {v(dst + 1)}, 1.0, {v(dst + 1)}')
        A(f'v_cvt_pk_bf16_f32 {v(g0)}, {v(dst)}, {v(dst + 1)}')
        A(f'v_lshlrev_b32 {v(dst)}, 16, {v(g0)}')
        A(f'v_and_b32 {v(dst + 1)}, 0xffff0000, {v(g0)}')


def prologue():
    A('s_cmp_ge_u32 s2, 256')
    A('s_cbranch_scc1 L_end')
    ts('*')
    A(f's_load_dwordx2 {s(rX, 2)}, s[0:1], 0')
    A(f's_load_dwordx2 {s(rWS, 2)}, s[0:1], 136')
    A('s_load_dwordx16 s[4:19], s[0:1], 0')
    A('s_load_dwordx16 s[20:35], s[0:1], 64')
    A(f's_getpc_b64 {s(sT2, 2)}')
    A('L_pc:')
    A(f's_lshr_b32 {s(sT0)}, s2, 3')
    A(f's_mul_i32 {s(sT0)}, {s(sT0)}, {CODE_SLICE}')
    A(f'v_lshrrev_b32 v3, 6, {v(TID)}')
    A(f'v_min_u32 v4, {CODE_SLICE // 128 - 1}, {v(TID)}')
    A(f'v_lshl_add_u32 v4, v4, 7, {s(sT0)}')
    A('v_min_u32 v4, L_code_end-L_pc-4, v4')
    A(f'v_readfirstlane_b32 {s(sWave)}, v3')
    A(f'v_and_b32 {v(LANE)}, 63, {v(TID)}')
    A(f'global_load_dword v5, v4, {s(sT2, 2)}')
    A(f's_sub_u32 {s(sJ)}, s2, 32')
    A('s_cbranch_scc1 L_helper')


UEXP = {}
for vv in range(14):
    for hh in range(2):
        if vv < 4:
            e = 4 * hh + vv
        elif vv < 7:
            e = 256 + 4 * hh + 2 * (vv - 4)
        elif vv < 10:
            e = 512 + 256 * hh + 4 * (vv - 7)
        elif vv < 12:
            e = 1024 + 512 * hh + 8 * (vv - 10)
        else:
            e = 1280 + 512 * hh + 8 * (vv - 12)
        rho = 8 * (vv >> 2) + 4 * hh + (vv & 3)
        UEXP.setdefault(e, []).append(rho if rho < 26 else rho - 2)


def stage_dma(cc, slot, voff, rsrc, rowb):
    out = []
    for i in range(8):
        u = ''
        if i % 4 == 0:
            u += f's_add_u32 m0, {s(sW8k)}, {SL[slot] + 1024 * i}\n'
        if i == 0:
            u += f's_mul_i32 {s(sWo)}, {s((sC if rsrc == rW else sD) + cc)}, {rowb // 64}\n'
        else:
            u += f's_add_u32 {s(sWo)}, {s(sWo)}, {8 * rowb + (3072 if i == 4 else -1024)}\n'
        u += f'buffer_load_dwordx4 {v(voff)}, {s(rsrc, 4)}, {s(sWo)} offen offset:{1024 * (i % 4)} lds'
        out.append(u)
    return out


def w_dma(cc, slot, P):
    return stage_dma(cc, slot, P['vW'], rW, 3584)


def wd_dma(cc, slot, P):
    return stage_dma(cc, slot, P['vWd'], rWd, 896)


def w_frags(cc, slot, P):
    out = []
    base, off = P['vWr'][slot // 2], 32768 * (slot % 2)
    for ks in range(4):
        for mat in range(2):
            for e in range(2):
                r = (mat * 28 + cc * 4 + ks) * 4 + 2 * e
                out.append(f'ds_read_b64_tr_b16 {a(r, 2)}, {v(base)} offset:{off + mat * 16384 + (16 * ks + 4 * e) * 128}')
    return out


def wdreg(cc, j, db, P):
    i = (j * 4 + db) * 4
    if cc == 0:
        return 'a', 224 + i
    if cc < 3:
        return 'v', P['wdv'] + 32 * (cc - 1) + i
    return 'a', 32 * (cc - 3) + i


def rn(kr, n):
    return (a if kr[0] == 'a' else v)(kr[1], n)


def wd_addr(slot, P):
    d = P['vDr']
    return [f'v_xor_b32 {v(d[1 + db])}, {SL[slot & ~1] + 32 * db}, {v(d[0])}' for db in range(4)]


def wd_frags(cc, slot, P):
    o = []
    for j in range(2):
        for db in range(4):
            k, r = wdreg(cc, j, db, P)
            for e in range(2):
                o.append(f'ds_read_b64_tr_b16 {rn((k, r + 2 * e), 2)}, {v(P["vDr"][1 + db])} offset:{32768 * (slot % 2) + (32 * j + 8 * e) * 128} ;#df{cc}')
    o[0] = f'@vm d{cc}\n' + o[0]
    return o


def flat(units):
    return [ln for u in units for ln in u.split('\n') if ln.strip()]


def tr_lane(dst, t0, t1, hmul, rowb):
    A(f'v_lshrrev_b32 {v(t0)}, 5, {v(LANE)}')
    A(f'v_bfe_u32 {v(t1)}, {v(LANE)}, 2, 2')
    A(f'v_lshl_add_u32 {v(t0)}, {v(t0)}, {hmul.bit_length() - 1}, {v(t1)}')
    A(f'v_lshlrev_b32 {v(dst)}, {rowb.bit_length() - 1}, {v(t0)}')
    A(f'v_bfe_u32 {v(t1)}, {v(LANE)}, 4, 1')
    A(f'v_lshl_add_u32 {v(dst)}, {v(t1)}, 5, {v(dst)}')
    A(f'v_and_b32 {v(t1)}, 3, {v(LANE)}')
    A(f'v_lshl_add_u32 {v(dst)}, {v(t1)}, 3, {v(dst)}')


def flag_store(vTag, soff):
    return ('s_mov_b64 exec, 1\n'
            f'buffer_store_dword {v(vTag)}, off, {s(rWS, 4)}, {s(soff)} sc1 ;#fl\n'
            's_mov_b64 exec, -1')


def capture(fn):
    keep, A.lines = A.lines, []
    fn()
    got, A.lines = [x.strip() for x in A.lines], keep
    return got


def main_ssm():
    P = {}
    V.release(2)
    V.get(4)
    vWd = V.get()
    vDr = [V.get() for _ in range(5)]
    vW = V.get()
    vWr = [V.get() for _ in range(3)]
    vXr = [V.get() for _ in range(3)]
    vFp = V.get()
    P.update(vW=vW, vWr=vWr, vWd=vWd, vDr=vDr, vXr=vXr, vFp=vFp)
    mp = V.mark()
    vM, aA, aB, aE, a0, aO, aO2, aXr, one = [V.get() for _ in range(9)]
    aX, aF, vG = V.get(), V.get(), V.get()
    M = V.get(4)
    sa, c1 = V.get(2), V.get(2)
    GB, SB = V.get(4), V.get(8)
    mb = V.mark()
    vI, aZ = V.get(), V.get()
    GA, SA = V.get(4), V.get(8)
    Gk = [GA, GA + 2, GB, GB + 2]
    Sk = [SA, SA + 4, SB, SB + 4]
    mk = V.mark()
    par = V.get(6)
    T = V.get(16, 4)
    st = V.get(8)
    q, tp, t0, t1, t2, vPf = [V.get() for _ in range(6)]
    dt = V.get(2)
    aU, aV, ax, ay, aK, aK2 = [V.get() for _ in range(6)]
    fU, fV = V.get(32), V.get(32)
    e2, rv = V.get(), V.get()
    B_, C_, W_, z1, z2, z4, z8, z256 = [V.get(2) for _ in range(8)]
    pp = [V.get(2) for _ in range(4)]
    cv = [V.get() for _ in range(8)]
    sKG, sKT, sOdd = 38, 39, 23
    sGa, sCb, sHm = 30, 32, 60
    A(f's_and_b32 {s(sT2)}, {s(sJ)}, 7')
    A(f's_lshr_b32 {s(sT3)}, {s(sJ)}, 3')
    A(f's_mul_i32 {s(sP)}, {s(sT2)}, 28')
    A(f's_add_u32 {s(sP)}, {s(sP)}, {s(sT3)}')
    A(f's_lshl_b32 {s(sT0)}, {s(sP)}, 10')
    A(f'v_lshl_add_u32 {v(t1)}, {v(TID)}, 2, {s(sT0)}')
    A(f's_lshl_b32 {s(sT1)}, {s(sP)}, 2')
    A('s_waitcnt lgkmcnt(0)')
    ts('1')
    for i, p in enumerate((pAre, pAim, pBre, pBim, pCre, pCim)):
        A(f'global_load_dword {v(par + i)}, {v(t1)}, {s(p, 2)} {"nt" if OPT["nt"] & 1 else ""} ;#par')
    A(f's_load_dword {s(sLdt)}, {s(pLdt, 2)}, {s(sT1)}')
    A(f's_load_dword {s(sDs)}, {s(pDs, 2)}, {s(sT1)}')
    A(f's_load_dword {s(sTag)}, {s(rWS, 2)}, {EP}')
    stats1_addr()
    A(f'v_min_u32 {v(t0)}, 147, {v(TID)}')
    A(f'v_lshrrev_b32 {v(t2)}, 1, {v(t0)}')
    A(f'v_mul_u32_u24 {v(t2)}, 896, {v(t2)}')
    A(f'v_and_b32 {v(t0)}, 1, {v(t0)}')
    A(f'v_mul_u32_u24 {v(t0)}, 108, {v(t0)}')
    A(f'v_add_u32 {v(t0)}, {v(t0)}, {v(t2)}')
    A(f's_mul_i32 {s(sT0)}, {s(sT3)}, {74 * 8}')
    A(f's_add_u32 {s(sT0)}, {s(sT0)}, {s(sT2)}')
    A(f's_mul_i32 {s(sT0)}, {s(sT0)}, 112')
    A.ext(tagged(capture(lambda: stats1_loads(st)), 'xa'))
    A(f'v_add_u32 {v(vPf)}, {s(sT0)}, {v(t0)}')
    xpf = f'buffer_load_dword v5, {v(vPf)}, {s(rX, 4)}, 0 offen'
    A(f'v_mul_u32_u24 {v(vG)}, 1792, {v(LANE)}')
    A(f's_mul_i32 {s(sM2)}, {s(sWave)}, {128 * 1792}')
    A(f's_add_u32 {s(sM2)}, {s(sM2)}, {s(sT1)}')
    col = []
    for k in range(4):
        col.append(f'buffer_load_dword {v(Gk[k])}, {v(vG)}, {s(rX, 4)}, {s(sM2)} offen ;#col{k // 2}')
        col.append(f'buffer_load_dword {v(Gk[k] + 1)}, {v(vG)}, {s(rX, 4)}, {s(sM2)} offen offset:896 ;#col{k // 2}\ns_add_u32 {s(sM2)}, {s(sM2)}, {(448 if k == 1 else 64) * 1792}')
    A(f's_and_b32 {s(sOdd)}, {s(sWave)}, 1')
    A(f's_mul_i32 {s(sKG)}, {s(sWave)}, {KG_W}')
    A(f's_lshr_b32 {s(sT2)}, {s(sWave)}, 1')
    A(f's_mul_i32 {s(sKT)}, {s(sT2)}, {KT_CH}')
    A(f's_add_u32 {s(sKT)}, {s(sKT)}, {KT}')
    A(f'v_and_b32 {v(t0)}, 31, {v(LANE)}')
    A(f'v_lshrrev_b32 {v(t1)}, 5, {v(LANE)}')
    A(f'v_lshl_add_u32 {v(t2)}, {v(t1)}, 4, {s(sKG)}')
    A(f'v_mul_u32_u24 {v(aV)}, 272, {v(t0)}')
    A(f'v_add_u32 {v(aV)}, {v(aV)}, {v(t2)}')
    A(f'v_cmp_lt_u32 vcc, 27, {v(t0)}')
    A(f'v_add_u32 {v(aU)}, {32 * 272}, {v(aV)}')
    A(f'v_add_u32 {v(t2)}, {30 * 272}, {v(aV)}')
    A(f'v_cndmask_b32 {v(aU)}, {v(aU)}, {v(t2)}, vcc')
    A(f'v_lshlrev_b32 {v(t0)}, 4, {v(t0)}')
    A(f'v_sub_u32 {v(t0)}, {s(sKT)}, {v(t0)}')
    A(f'v_lshlrev_b32 {v(aK)}, 3, {v(t1)}')
    A(f'v_sub_u32 {v(aK)}, {v(t0)}, {v(aK)}')
    A(f's_add_u32 {s(sT0)}, {s(sOdd)}, 9')
    A(f'v_lshlrev_b32 {v(aK2)}, {s(sT0)}, {v(t1)}')
    A(f'v_sub_u32 {v(aK2)}, {v(t0)}, {v(aK2)}')
    A(f'v_lshl_add_u32 {v(ax)}, {v(LANE)}, 4, {s(sKG)}')
    A(f's_xor_b32 {s(sT0)}, {s(sWave)}, 1')
    A(f's_mul_i32 {s(sT0)}, {s(sT0)}, {KG_W}')
    A(f'v_lshl_add_u32 {v(ay)}, {v(LANE)}, 4, {s(sT0)}')
    A(f's_lshl_b32 {s(sT0)}, {s(sWave)}, 11')
    A(f'v_lshl_add_u32 {v(vI)}, {v(LANE)}, 4, {s(sT0)}')
    A(f'v_and_b32 {v(t0)}, 3, {v(LANE)}')
    A(f'v_mul_u32_u24 {v(vM)}, 3584, {v(t0)}')
    A(f's_lshl_b32 {s(sT0)}, {s(sP)}, 4')
    A(f's_add_u32 {s(sT0)}, {s(sT0)}, {MOD}')
    A(f'v_add_u32 {v(vM)}, {s(sT0)}, {v(vM)}')
    A(f'v_bfe_u32 {v(one)}, {v(LANE)}, 1, 1')
    A(f'v_cvt_f32_u32 {v(one)}, {v(one)}')
    A(f'v_mov_b32 {v(cv[7])}, 0x3f80')
    A(f's_mov_b32 m0, {s(sKG)}')
    A(f's_lshl_b32 {s(sW1k)}, {s(sWave)}, 10')
    A(f's_lshl_b32 {s(sW8k)}, {s(sWave)}, 13')
    A(f'ds_write_addtid_b32 {v(cv[7])}')

    def late_setup():
        A(f'v_lshrrev_b32 {v(q)}, 3, {v(LANE)}')
        A(f'v_and_b32 {v(tp)}, 7, {v(LANE)}')
        A(f's_lshr_b32 {s(sT0)}, {s(sJ)}, 3')
        div7(sMi, sNi, sT0)
        A(f's_bfe_u32 {s(sT1)}, {s(sJ)}, 0x20001')
        A(f's_lshl2_add_u32 {s(sMt)}, {s(sT1)}, {s(sMi)}')
        A(f's_and_b32 {s(sT1)}, {s(sJ)}, 1')
        A(f's_mul_i32 {s(sNt)}, {s(sT1)}, 7')
        A(f's_add_u32 {s(sNt)}, {s(sNt)}, {s(sNi)}')
        A((f's_mov_b32 {s(sRot)}, {s(sNi)}', f's_add_u32 {s(sRot)}, {s(sMi)}, {s(sNi)}', f's_lshl1_add_u32 {s(sRot)}, {s(sMi)}, {s(sNi)}')[OPT['rm']])
        A(f's_lshl_b32 {s(sRot)}, {s(sRot)}, 2')
        A(f's_mov_b32 {s(sT2)}, 0x06543210')
        A(f's_mov_b32 {s(sT3)}, 0x10654321')
        A(f's_cmp_ge_u32 {s(sRot)}, 28\ns_cselect_b32 {s(sT1)}, 28, 0')
        A(f's_sub_u32 {s(sRot)}, {s(sRot)}, {s(sT1)}')
        A(f's_lshr_b64 {s(sT2, 2)}, {s(sT2, 2)}, {s(sRot)}')
        A(f's_cmp_lt_u32 {s(sWave)}, 2')
        A(f's_cselect_b64 {s(rW, 2)}, {s(pWg, 2)}, {s(pWu, 2)}')
        A(f's_mov_b32 {s(rW + 2)}, 1605632')
        A(f's_mov_b32 {s(rW + 3)}, 0x00020000')
        for cc in range(7):
            A(f's_bfe_u32 {s(sT0)}, {s(sT2)}, {hex(0x30000 + 4 * cc)}')
            A(f's_lshl_b32 {s(sC + cc)}, {s(sT0)}, 12')
        A(f'v_lshlrev_b32 {v(t0)}, 1, {v(q)}')
        A(f'v_and_b32 {v(t0)}, 4, {v(t0)}')
        A(f'v_xor_b32 {v(t0)}, {v(t0)}, {v(tp)}')
        A(f'v_lshlrev_b32 {v(t0)}, 4, {v(t0)}')
        A(f's_lshl1_add_u32 {s(sT0)}, {s(sNt)}, {s(sOdd)}')
        A(f's_lshl_b32 {s(sT0)}, {s(sT0)}, 7')
        A(f'v_mul_u32_u24 {v(vW)}, 3584, {v(q)}')
        A(f'v_add3_u32 {v(vW)}, {v(vW)}, {v(t0)}, {s(sT0)}')
        A(f's_mul_i32 {s(sT0)}, {s(sWave)}, {448 * 7}')
        A(f's_add_u32 {s(sT0)}, {s(sT0)}, {s(sNi)}')
        A(f's_lshl_b32 {s(sT0)}, {s(sT0)}, 7')
        A(f'v_and_b32 {v(t0)}, 6, {v(q)}')
        A(f'v_xor_b32 {v(t0)}, {v(t0)}, {v(tp)}')
        A(f'v_lshlrev_b32 {v(t0)}, 4, {v(t0)}')
        A(f'v_mul_u32_u24 {v(vWd)}, 896, {v(q)}')
        A(f'v_add3_u32 {v(vWd)}, {v(vWd)}, {v(t0)}, {s(sT0)}')
        A(f's_lshr_b32 {s(sT2)}, {s(sWave)}, 1')
        A(f's_lshl_b32 {s(sT1)}, {s(sOdd)}, 8')
        A(f's_mul_i32 {s(sT0)}, {s(sT2)}, {4 * HC}')
        A(f's_add_u32 {s(sT0)}, {s(sT0)}, {s(sT1)}')
        A(f's_add_u32 {s(sT0)}, {s(sT0)}, {HB}')
        A(f's_add_u32 {s(sT1)}, {s(sT1)}, {s(sKT)}')
        A(f's_add_u32 {s(sT1)}, {s(sT1)}, {KT_C0 + 4040 - 3584}')
        A(f'v_lshrrev_b32 {v(t0)}, 4, {v(LANE)}')
        A(f'v_bfe_u32 {v(t1)}, {v(LANE)}, 2, 2')
        A(f'v_add_u32 {v(t1)}, {v(t1)}, {v(t0)}')
        A(f'v_and_b32 {v(t2)}, 3, {v(LANE)}')
        A(f'v_mul_u32_u24 {v(e2)}, {HC}, {v(t2)}')
        A(f'v_lshl_add_u32 {v(aA)}, {v(t1)}, 4, {v(e2)}')
        A(f'v_add_u32 {v(aA)}, {s(sT0)}, {v(aA)}')
        A(f'v_lshl_add_u32 {v(aB)}, {v(t0)}, 4, {s(sT1)}')
        A(f'v_lshlrev_b32 {v(t1)}, 6, {v(tp)}')
        A(f'v_sub_u32 {v(aB)}, {v(aB)}, {v(t1)}')
        A(f'v_and_b32 {v(t1)}, 1, {v(q)}')
        A(f'v_mul_u32_u24 {v(t1)}, {KT_C0 + 8}, {v(t1)}')
        A(f'v_sub_u32 {v(aB)}, {v(aB)}, {v(t1)}')
        A(f'v_lshrrev_b32 {v(t0)}, 4, {v(TID)}')
        A(f'v_and_b32 {v(t1)}, 1, {v(q)}')
        A(f'v_lshl_add_u32 {v(t0)}, {v(t0)}, 2, {v(t1)}')
        A(f'v_mul_u32_u24 {v(t0)}, 28672, {v(t0)}')
        A(f'v_lshl_add_u32 {v(aO2)}, {v(tp)}, 4, {v(t0)}')
        A(f'v_lshrrev_b32 {v(t1)}, 1, {v(tp)}')
        A(f'v_lshl_add_u32 {v(t0)}, {v(t1)}, 4, {v(t0)}')
        A(f'v_and_b32 {v(t1)}, 1, {v(tp)}')
        A(f'v_lshl_add_u32 {v(aO)}, {v(t1)}, 6, {v(t0)}')
        A(f'v_xor_b32 {v(t1)}, {v(tp)}, {v(q)}')
        A(f'v_lshl_add_u32 {v(t1)}, {v(tp)}, 3, {v(t1)}')
        A(f's_lshl_b32 {s(sT0)}, {s(sWave)}, 12')
        A(f'v_lshl_add_u32 {v(aE)}, {v(t1)}, 4, {s(sT0)}')
        A(f'v_mul_u32_u24 {v(aZ)}, {HC}, {v(q)}')
        A(f'v_lshl_add_u32 {v(aZ)}, {v(tp)}, 3, {v(aZ)}')
        A(f'v_add_u32 {v(aZ)}, {HB}, {v(aZ)}')
        A(f'v_lshrrev_b32 {v(aX)}, 1, {v(vI)}')
        A(f'v_add_u32 {v(aX)}, {XR}, {v(aX)}')
        A(f's_lshl_b32 {s(sHm)}, {s(sWave)}, 9')
        A(f's_add_u32 {s(sHm)}, {s(sHm)}, {HB}')
        A(f's_add_u32 {s(sT1)}, {s(sHm)}, 512')
        A(f's_add_u32 {s(sT0)}, {s(sHm)}, 2')
        A(f'v_mov_b32 {v(aF)}, {s(sT1)}')
        A(f'v_writelane_b32 {v(aF)}, {s(sT0)}, 0')
        A(f'v_lshlrev_b32 {v(aXr)}, 4, {v(TID)}')
        A(f'v_xor_b32 {v(t0)}, {v(TID)}, {v(q)}')
        A(f'v_lshlrev_b32 {v(a0)}, 4, {v(t0)}')
        A(f's_lshl_b32 {s(sGo)}, {s(sMt)}, 8')
        A(f's_add_u32 {s(sGo)}, {s(sGo)}, {GO}')
        A(f'v_mov_b32 {v(VTAG)}, {s(sTag)}')
        A(f's_mul_i32 {s(sFl)}, {s(sWave)}, 224')
        A(f's_add_u32 {s(sFl)}, {s(sFl)}, {s(sJ)}')
        A(f's_lshl_b32 {s(sFl)}, {s(sFl)}, 7')
        A(f's_add_u32 {s(sFl)}, {s(sFl)}, {FL2}')

    def window_setup(t0, t1, t2, t3, t4):
        srd(rWd, pWd, 1605632)
        srd(rOut, pOut, 1835008)
        A(f'v_lshrrev_b32 {v(t1)}, 5, {v(LANE)}')
        A(f'v_bfe_u32 {v(t0)}, {v(LANE)}, 4, 1')
        A(f'v_and_b32 {v(t2)}, 3, {v(LANE)}')
        A(f'v_lshlrev_b32 {v(t2)}, 3, {v(t2)}')
        A(f'v_lshl_add_u32 {v(t2)}, {v(t0)}, 5, {v(t2)}')
        A(f'v_bfe_u32 {v(t0)}, {v(LANE)}, 2, 2')
        A(f'v_lshl_add_u32 {v(t3)}, {v(t1)}, 3, {v(t0)}')
        A(f'v_lshl_add_u32 {v(vXr[0])}, {v(t3)}, 6, {v(t2)}')
        A(f'v_and_b32 {v(t0)}, 8, {v(LANE)}')
        A(f'v_lshl_add_u32 {v(t2)}, {v(t0)}, 3, {v(t2)}')
        A(f'v_bfe_u32 {v(t4)}, {v(LANE)}, 2, 3')
        A(f'v_lshl_add_u32 {v(t1)}, {v(t1)}, 4, {v(t4)}')
        A(f'v_lshrrev_b32 {v(t4)}, 1, {v(t4)}')
        A(f'v_lshlrev_b32 {v(t4)}, 5, {v(t4)}')
        A(f'v_lshl_add_u32 {v(t4)}, {v(t1)}, 7, {v(t4)}')
        A(f'v_and_b32 {v(t1)}, 3, {v(LANE)}')
        A(f'v_lshl_add_u32 {v(t4)}, {v(t1)}, 3, {v(t4)}')
        A(f'v_add_u32 {v(vDr[0])}, {s(sW8k)}, {v(t4)}')
        A.ext(wd_addr(2, P))
        A(f's_lshr_b32 {s(sT0)}, {s(sWave)}, 1')
        A(f's_lshl_b32 {s(sT0)}, {s(sT0)}, 7')
        A(f's_add_u32 {s(sT0)}, {s(sT0)}, {s(sOdd)}')
        A(f's_lshl_b32 {s(sT0)}, {s(sT0)}, 6')
        A(f'v_lshl_add_u32 {v(vWr[0])}, {v(t3)}, 7, {v(t2)}')
        A(f'v_xor_b32 {v(vWr[0])}, {s(sT0)}, {v(vWr[0])}')
        for i in range(1, 3):
            A(f'v_add_u32 {v(vXr[i])}, 65536, {v(vXr[i - 1])}')
            A(f'v_add_u32 {v(vWr[i])}, 65536, {v(vWr[i - 1])}')
    P['window_setup'] = window_setup
    def mkpairs(cc, slot, vo_, rs, rowb, tg):
        o = []
        for i in range(4):
            u = [f's_add_u32 m0, {s(sW8k)}, {SL[slot] + 2048 * i}']
            u.append(f's_mul_i32 {s(sWo)}, {s(sC + cc)}, {rowb // 64}' if i == 0 else f's_add_u32 {s(sWo)}, {s(sWo)}, {8 * rowb + 1024}')
            u.append(f'buffer_load_dwordx4 {v(vo_)}, {s(rs, 4)}, {s(sWo)} offen {"nt" if OPT["nt"] & 8 else ""} lds ;#{tg}{cc}')
            u.append(f's_add_u32 {s(sWo)}, {s(sWo)}, {8 * rowb - 1024}')
            u.append(f'buffer_load_dwordx4 {v(vo_)}, {s(rs, 4)}, {s(sWo)} offen offset:1024 {"nt" if OPT["nt"] & 8 else ""} lds ;#{tg}{cc}')
            o.append('\n'.join(u))
        return o
    early = [u + f'\ns_mov_b32 m0, {s(sKG)}' for u in mkpairs(0, 3, vW, rW, 3584, 'w') + mkpairs(1, 4, vW, rW, 3584, 'w')]
    ls = capture(late_setup)
    A.ext(ls[:OPT['ls0']])
    A.ext(early[:OPT['k0']])
    ts('1')
    A('s_waitcnt lgkmcnt(0)')
    A(f's_add_u32 {s(sTag)}, {s(sTag)}, 1')
    A(f's_lshl_b32 {s(sT0)}, {s(sLdt)}, 16')
    A(f's_and_b32 {s(sT1)}, {s(sLdt)}, 0xffff0000')
    A(f's_lshl_b32 {s(sT2)}, {s(sDs)}, 16')
    A(f's_and_b32 {s(sT3)}, {s(sDs)}, 0xffff0000')
    A(f's_cmp_lt_u32 {s(sWave)}, 2')
    A(f's_cselect_b32 {s(sLdt)}, {s(sT0)}, {s(sT1)}')
    A(f's_cselect_b32 {s(sDs)}, {s(sT2)}, {s(sT3)}')
    A(f'v_mov_b32 {v(t0)}, 0x3fb8aa3b')
    A(f'v_mul_f32 {v(dt)}, {s(sLdt)}, {v(t0)}')
    A(f'v_exp_f32 {v(dt)}, {v(dt)}')
    A(f'v_cvt_pk_bf16_f32 {v(dt)}, {v(dt)}, {v(dt)}')
    A(f'v_lshlrev_b32 {v(dt)}, 16, {v(dt)}')
    A('@vm par')
    ts('016')

    def setup(it):
        o = []
        un = (lambda d, x: f'v_lshlrev_b32 {v(d)}, 16, {v(x)}') if it == 0 else (lambda d, x: f'v_and_b32 {v(d)}, 0xffff0000, {v(x)}')
        o += [un(e2, par), un(rv, par + 1), un(B_, par + 2), un(B_ + 1, par + 3), un(C_, par + 4), un(C_ + 1, par + 5)]
        o += [f'v_mul_f32 {v(e2)}, {v(dt)}, {v(e2)}', f'v_mul_f32 {v(rv)}, {v(dt)}, {v(rv)}',
              f'v_mul_f32 {v(e2)}, 0x3fb8aa3b, {v(e2)}', f'v_mul_f32 {v(rv)}, 0.15915494, {v(rv)}',
              f'v_mul_f32 {v(B_)}, {v(dt)}, {v(B_)}', f'v_mul_f32 {v(B_ + 1)}, {v(dt)}, {v(B_ + 1)}']
        for z, p in ((z8, 0x41000000), (z1, None), (z256, 0x43800000)):
            if p is None:
                o += [f'v_exp_f32 {v(t0)}, {v(e2)}', f'v_fract_f32 {v(t1)}, {v(rv)}']
            else:
                o += [f'v_mul_f32 {v(t0)}, {hex(p)}, {v(e2)}', f'v_mul_f32 {v(t1)}, {hex(p)}, {v(rv)}',
                      f'v_exp_f32 {v(t0)}, {v(t0)}', f'v_fract_f32 {v(t1)}, {v(t1)}']
            o += [f'v_cos_f32 {v(z)}, {v(t1)}', f'v_sin_f32 {v(z + 1)}, {v(t1)}',
                  f'v_mul_f32 {v(z)}, {v(z)}, {v(t0)}', f'v_mul_f32 {v(z + 1)}, {v(z + 1)}, {v(t0)}']
        return o

    vals = []

    def put(pre, x, rows, neg):
        c = cv[len(vals) % 8]
        vals.append((pre + [f'v_cvt_pk_bf16_f32 {v(c)}, {v(x)}, {"-" if neg else ""}{v(x + 1)}'],
                     [f'ds_write_addtid_b32 {v(c)} offset:{272 * r}' for r in rows]))

    def putU(pre, x, e):
        put(pre, x, [32 + r for r in UEXP[e]], True)

    put(cmul(z2, z1, z1), z8, [1], False)
    putU(cmul(W_, C_, B_) + cmul(z4, z2, z2), W_, 0)
    cur = z8
    for j in range(2, 32):
        put(cmul(pp[j % 2], cur, z8), pp[j % 2], [j], False)
        cur = pp[j % 2]
    cur = W_
    for e in range(1, 8):
        putU(cmul(pp[e % 2], cur, z1), pp[e % 2], e)
        cur = pp[e % 2]
    qc = W_
    for k in range(1, 8):
        qn = pp[2 + k % 2]
        putU(cmul(qn, qc, z256), qn, 256 * k)
        qc = qn
        step, zz, n = (2, z2, 4) if k == 1 else ((4, z4, 2) if k < 4 else (8, z8, 1))
        cur = qn
        for i in range(1, n + 1):
            putU(cmul(pp[i % 2], cur, zz), pp[i % 2], 256 * k + step * i)
            cur = pp[i % 2]

    h1 = []
    for k in range(4):
        if k % 2 == 0:
            h1.append(f's_mov_b32 {s(sSo)}, {ST1 + 4096 * k}')
        h1.append(f'buffer_load_dwordx4 {v(Sk[k], 4)}, {v(vI)}, {s(rWS, 4)}, {s(sSo)} offen offset:{1024 * (k % 2)} sc1 ;#h1')

    mld = [f'buffer_load_dwordx4 {v(M, 4)}, {v(vM)}, {s(rWS, 4)}, 0 offen sc1 ;#m']
    rb = [f'v_cvt_pk_bf16_f32 {v(M + 2)}, {v(M)}, {v(M + 1)}', f'v_lshlrev_b32 {v(M)}, 16, {v(M + 2)}', f'v_and_b32 {v(M + 1)}, 0xffff0000, {v(M + 2)}']
    mprep = [f'v_add_f32_dpp {v(M + ch)}, {v(M + ch)}, {v(M + ch)} quad_perm:[1,0,3,2] row_mask:0xf bank_mask:0xf' for ch in range(2)]
    mprep += rb + [f'v_add_f32 {v(M + ch)}, {v(M + ch)}, {v(one)}' for ch in range(2)] + rb

    rest = mkpairs(0, 3, vWd, rWd, 896, 'd') + mkpairs(2, 4, vW, rW, 3584, 'w')
    NB = OPT['kb']
    nbat = (len(vals) + NB - 1) // NB
    vdone = (32 + NB - 1) // NB

    def chains(dm, extra={}):
        dd = spread(nbat, dm, 0, nbat - 1)
        vr = spread(nbat, [f'ds_read_b128 {v(fV + 4 * ks, 4)}, {v(aV)} offset:{32 * ks}' for ks in range(8)], vdone, nbat - 1)
        for bi in range(nbat):
            grp = vals[NB * bi:NB * bi + NB]
            A('.p2align 3')
            for x in grp:
                A.ext(x[0])
            A.ext(extra.get(bi, []))
            A.ext(dd.get(bi, []))
            A.ext(vr.get(bi, []))
            for x in grp:
                A.ext(x[1])
        for ks in range(8):
            A(f'ds_read_b128 {v(fU + 4 * ks, 4)}, {v(aU)} offset:{32 * ks}')

    def kmm(first):
        return [f'v_mfma_f32_32x32x16_bf16 {v(T, 16)}, {v(fU + 4 * ks, 4)}, {v(fV + 4 * ks, 4)}, {"0" if first and ks == 0 else v(T, 16)}' for ks in range(8)]
    tail = {ks: [f's_waitcnt lgkmcnt({6 - ks})'] for ks in range(0, 7)}
    pub = ['@vm xa'] + capture(lambda: stats1_compute(st)) + capture(lambda: ts('1'))
    K0, XP = OPT['k0'], OPT['xp']
    stream = early[K0:XP] + [xpf] + early[XP:] + col[:OPT['sp']] + [mld[0] + '\n' + '\n'.join(h1[:3]), '\n'.join(h1[3:])] + col[OPT['sp']:4]
    N0, N1, N2 = OPT['n0'], OPT['n0'] + OPT['n1'], OPT['n0'] + OPT['n1'] + OPT['n2']
    A.ext(setup(0))
    chains(stream[:N0], {OPT['tsb']: pub})
    su = setup(1)
    A.ext(su[:10])
    A('s_waitcnt lgkmcnt(7)')
    A.ext(sched(kmm(True), {}, tail, su[10:], 24)[0])
    ts('1')
    assert N1 >= 9 - K0
    chains(stream[N0:N1])
    ts('1')
    R, K_ = B_, pp[0]
    HP = OPT['h1p']
    A(f'v_mov_b32 {v(cv[0])}, 0')
    A(f'v_mov_b32 {v(cv[1])}, 0')
    A(f's_mul_i32 {s(sT0)}, {s(sOdd)}, {KT_C0}')
    A(f's_add_u32 m0, {s(sT0)}, {s(sKT)}')
    A('s_waitcnt lgkmcnt(7)')
    L0 = OPT['ls0']
    A.ext(sched(kmm(False), spread(8, h1, 0, 7) if HP == 0 else {}, tail, ls[L0:L0 + 38], 24)[0])
    A(f's_cmp_lg_u32 {s(sOdd)}, 0')
    A('s_cbranch_scc1 L_expB')
    A(f'ds_write_b128 {v(ax)}, {v(T + 10, 4)}')
    A('s_mov_b64 exec, 1')
    A(f'v_add_f32 {v(T)}, {s(sDs)}, {v(T)}')
    A('s_mov_b64 exec, -1')
    A('s_waitcnt lgkmcnt(0)')
    A('s_barrier')
    for i in range(3):
        A(f'ds_read_b128 {v(R + 4 * i, 4)}, {v(ay)} offset:{TXB + 1024 * i}')
    mid = h1 if HP == 1 else []
    A.ext(mid)
    A('s_waitcnt lgkmcnt(0)')
    for i in range(0, 10, 2):
        A(f'v_pk_add_f32 {v(T + i, 2)}, {v(T + i, 2)}, {v(R + i, 2)}')
    for d, (x, y) in enumerate(((3, 2), (1, 0), (6, 5), (4, 4), (9, 9), (8, 8), (8, 7), (7, 7))):
        A(f'v_cvt_pk_bf16_f32 {v(K_ + d)}, {v(T + x)}, {v(T + y)}')
    for cp in (0, KT_C0):
        A(f'ds_write_b64 {v(aK)}, {v(K_, 2)} offset:{cp + 2 * 2044}')
        A(f'ds_write_b64 {v(aK)}, {v(K_ + 2, 2)} offset:{cp + 2 * 1788}')
        A(f'ds_write_b64 {v(aK2)}, {v(K_ + 4, 2)} offset:{cp + 2 * 1528}')
        A(f'ds_write_b64 {v(aK2)}, {v(K_ + 6, 2)} offset:{cp + 2 * 1528 + 8}')
    A('s_branch L_expD')
    A('L_expB:')
    for i in range(3):
        A(f'ds_write_b128 {v(ax)}, {v(T + 4 * i, 4)} offset:{TXB + 1024 * i}')
    A('s_mov_b32 vcc_lo, 0xaaaaaaaa')
    A('s_mov_b32 vcc_hi, 0xaaaaaaaa')
    A('s_waitcnt lgkmcnt(0)')
    A('s_barrier')
    A(f'ds_read_b128 {v(R, 4)}, {v(ay)}')
    A.ext(mid)
    A('s_waitcnt lgkmcnt(0)')
    for i in range(0, 4, 2):
        A(f'v_pk_add_f32 {v(T + 10 + i, 2)}, {v(T + 10 + i, 2)}, {v(R + i, 2)}')
    for wdw in range(2):
        v0_, v8_ = T + 10 + 2 * wdw, T + 11 + 2 * wdw
        A(f'v_cndmask_b32 {v(cv[2])}, {v(v0_)}, {v(v8_)}, vcc')
        A(f'v_cvt_pk_bf16_f32 {v(K_ + 4 * wdw)}, {v(v8_)}, {v(v8_)}')
        A(f'v_cvt_pk_bf16_f32 {v(K_ + 4 * wdw + 1)}, {v(v8_)}, {v(cv[2])}')
        A(f'v_cvt_pk_bf16_f32 {v(K_ + 4 * wdw + 2)}, {v(v0_)}, {v(v0_)}')
        A(f'v_cvt_pk_bf16_f32 {v(K_ + 4 * wdw + 3)}, {v(v0_)}, {v(v0_)}')
    for cp in (0, KT_C0):
        for wdw in range(2):
            base = cp + 2 * (2040 - 1024 - 256 * wdw)
            A(f'ds_write_b64 {v(aK2)}, {v(K_ + 4 * wdw, 2)} offset:{base}')
            A(f'ds_write_b64 {v(aK2)}, {v(K_ + 4 * wdw + 2, 2)} offset:{base + 8}')
    A('L_expD:')
    A(f'ds_write_addtid_b32 {v(cv[0])} offset:4096')
    A(f'ds_write_addtid_b32 {v(cv[0])} offset:4304')
    ts('1')
    A.ext(interleave(stream[N1:N2], ls[L0 + 38:] + capture(lambda: window_setup(t0, t1, t2, e2, rv))))
    A('@vm w0 w1')
    A(f's_cmp_eq_u32 {s(sWave)}, 0')
    A('s_barrier')
    A('s_cbranch_scc0 L_nozero')
    A(f'ds_write_b64 {v(aZ)}, {v(cv[0], 2)}')
    A('L_nozero:')
    colB = col[4:]
    CB0 = OPT['cb0']
    A.ext(interleave(stream[N2:] + colB[:CB0], w_frags(0, 3, P) + w_frags(1, 4, P)) if stream[N2:] + colB[:CB0] else w_frags(0, 3, P) + w_frags(1, 4, P))
    V.release(mk)
    HT = V.get(16)
    A(tag_wait('L_m1', mld, [M + 3], 'm'))
    A.ext(mprep)
    A(f'v_and_b32 {v(HT)}, 2, {v(LANE)}')
    A(f'v_mul_u32_u24 {v(HT)}, 3584, {v(HT)}')
    for ch in range(2):
        A(f'v_mov_b32_dpp {v(sa + ch)}, {v(M + ch)} quad_perm:[0,0,0,0] row_mask:0xf bank_mask:0xf')
        A(f'v_mov_b32_dpp {v(c1 + ch)}, {v(M + ch)} quad_perm:[2,2,2,2] row_mask:0xf bank_mask:0xf')
    A(f'v_add_u32 {v(vM)}, {v(vM)}, {v(HT)}')
    A(f'v_add_u32 {v(vM)}, {2 * 7168}, {v(vM)}')

    def hbuild(hf, T_):
        E, F, xa, xb, nn, O = T_, T_ + 4, T_ + 8, T_ + 10, T_ + 12, T_ + 14
        for k in range(2):
            A(f'ds_write_b64 {v(aX)}, {v(Gk[2 * hf + k], 2)} offset:{4096 * hf + 512 * k}')
        A(f's_mov_b32 m0, {s(sHm)}')
        for k in range(2):
            g, sg, off = Gk[2 * hf + k], Sk[2 * hf + k], 2048 * hf + 256 * k
            A(f'v_lshlrev_b32 {v(xa)}, 16, {v(g)}')
            A(f'v_and_b32 {v(xa + 1)}, 0xffff0000, {v(g)}')
            A(f'v_lshlrev_b32 {v(xb)}, 16, {v(g + 1)}')
            A(f'v_and_b32 {v(xb + 1)}, 0xffff0000, {v(g + 1)}')
            A(f'v_lshlrev_b32 {v(nn)}, 16, {v(sg)}')
            A(f'v_and_b32 {v(nn + 1)}, 0xffff0000, {v(sg)}')
            A(f'v_pk_fma_f32 {v(xa, 2)}, {v(xa, 2)}, {v(sg, 2)}, {v(nn, 2)} op_sel:[0,1,0] op_sel_hi:[1,1,0]')
            A(f'v_pk_fma_f32 {v(xb, 2)}, {v(xb, 2)}, {v(sg + 2, 2)}, {v(nn, 2)} op_sel:[0,0,1] op_sel_hi:[1,0,1]')
            A(f'v_pk_fma_f32 {v(xa, 2)}, {v(xa, 2)}, {v(c1, 2)}, {v(sa, 2)}')
            A(f'v_pk_fma_f32 {v(xb, 2)}, {v(xb, 2)}, {v(c1, 2)}, {v(sa, 2)}')
            if k:
                for ch in range(2):
                    A(f'v_mov_b32_dpp {v(O + ch)}, {v(E + ch)} wave_ror:1 row_mask:0xf bank_mask:0xf')
            for ch in range(2):
                A(f'v_cvt_pk_bf16_f32 {v(E + 2 * k + ch)}, {v(xa + ch)}, {v(xb + ch)}')
            if k:
                A('s_mov_b64 exec, -2')
                for ch in range(2):
                    A(f'ds_write_addtid_b32 {v(F + ch)} offset:{(4 * ch + 0) * HC + off - 256 + 52}')
                    A(f'ds_write_addtid_b32 {v(F + ch)} offset:{(4 * ch + 2) * HC + off - 256 + 48}')
                A('s_mov_b64 exec, -1')
            for ch in range(2):
                A(f'ds_write_addtid_b32 {v(E + 2 * k + ch)} offset:{(4 * ch + 1) * HC + off + 52}')
                A(f'ds_write_addtid_b32 {v(E + 2 * k + ch)} offset:{(4 * ch + 3) * HC + off + 48}')
            for ch in range(2):
                A(f'v_mov_b32_dpp {v(O + ch)}, {v(E + 2 * k + ch)} wave_shr:1 row_mask:0xf bank_mask:0xf')
            for ch in range(2):
                A(f'v_alignbit_b32 {v(F + 2 * k + ch)}, {v(E + 2 * k + ch)}, {v(O + ch)}, 16')
        for ch in range(2):
            A(f'v_lshrrev_b32 {v(O + ch)}, 16, {v(E + 2 + ch)}')
        A('s_mov_b64 exec, 1')
        for ch in range(2):
            A(f'v_mov_b32 {v(O + ch)}, {v(E + ch)}')
        A('s_mov_b64 exec, -1')
        for ch in range(2):
            A(f'ds_write_addtid_b32 {v(F + 2 + ch)} offset:{(4 * ch + 0) * HC + 2048 * hf + 256 + 52}')
            A(f'ds_write_addtid_b32 {v(F + 2 + ch)} offset:{(4 * ch + 2) * HC + 2048 * hf + 256 + 48}')
        A('s_mov_b32 exec_lo, 1')
        A('s_mov_b32 exec_hi, 0x80000000')
        for ch in range(2):
            A(f'ds_write_b16 {v(aF)}, {v(O + ch)} offset:{(4 * ch + 0) * HC + 2048 * hf + 52}')
            A(f'ds_write_b16 {v(aF)}, {v(O + ch)} offset:{(4 * ch + 2) * HC + 2048 * hf + 48}')
        A('s_mov_b64 exec, -1')

    A(tag_wait('L_h1', h1, [Sk[k] + 3 for k in range(4)], 'h1 col0'))
    ts('01')
    A.ext(mld)
    hbuild(0, HT)
    CB1 = CB0 + OPT['cb1']
    A.ext(colB[CB0:CB1])
    A('s_waitcnt lgkmcnt(0)')
    A('s_barrier')
    V.release(mb)
    RAW = V.get(4)
    X_ = V.get(8)
    Y = V.get(16)
    o1, o2, pk = V.get(4), V.get(4), V.get(4)
    t1 = V.get()
    acc = V.get(32, 4)
    fa = [V.get(32), V.get(32)]
    fb = [V.get(32), V.get(32)]

    def ra(ul, i, tag):
        return f'ds_read_b128 {v(fa[ul % 2] + 16 * (ul // 2) + 4 * (i % 4), 4)}, {v(aA)} offset:{512 * i + 64 * ul} ;#{tag}'

    def rb_(ul, i, pos, tag):
        return f'ds_read_b128 {v(fb[ul % 2] + 4 * pos, 4)}, {v(aB)} offset:{512 * (7 - i) + 64 * ul} ;#{tag}'

    def half(ul, tag):
        o = [ra(ul, 0, tag + 'x')] + [rb_(ul, i, i + 4 * (ul // 2), f'{tag}b{i}') for i in range(4)]
        return o + [ra(ul, i, tag) for i in range(1, 4)]

    def cmf(ul, uh, d, bsh, first):
        g = uh + d
        return (f'v_mfma_f32_16x16x32_bf16 {v(acc + 4 * g, 4)}, {v(fa[ul % 2] + 16 * (ul // 2) + 4 * (uh % 4), 4)}, '
                f'{v(fb[ul % 2] + 4 * (d + bsh), 4)}, {"0" if first else v(acc + 4 * g, 4)}')

    mm, wpos = [], {}
    for ul in (2, 3, 0):
        mm += [cmf(ul, uh, d, 4 * (ul // 2), ul == 2 and uh == 0) for uh in range(4) for d in range(4 - uh)]
    for g in range(3, -1, -1):
        mm += [cmf(1, uh, g - uh, 0, False) for uh in range(g + 1)]
        wpos[g] = len(mm) - 1
    for ul in range(4):
        mm += [cmf(ul, uh, d, 0, ul == 0 and uh == 0) for uh in range(4) for d in range(4 - uh, 8 - uh)]
    m2 = []
    for ul in (2, 3, 0):
        m2 += [cmf(ul, uh, d, 4 - 4 * (ul // 2), False) for uh in range(4, 8) for d in range(8 - uh)]
    for g in range(7, 3, -1):
        m2 += [cmf(1, uh, g - uh, 4, False) for uh in range(4, g + 1)]
        wpos[g] = len(m2) - 1
    assert len(mm) == 104 and len(m2) == 40
    tail = {0: ['@lg A2b1'], 1: ['@lg A2b2'], 2: ['@lg A2b3'], 3: ['@lg A2'], 9: ['@lg A3'], 19: ['@lg A0'], 29: ['@lg A1'], 39: ['@lg B0'],
            XB: ['s_waitcnt lgkmcnt(0)\ns_barrier'], 71: ['@lg B2'], 87: ['@lg B3']}
    head = merge(spread(104, half(0, 'A0'), 0, 9), spread(104, half(1, 'A1'), 10, 19),
                 spread(104, [rb_(0, i, i, 'B0') for i in range(4, 8)], 20, 27), spread(104, [rb_(1, i, i, 'B1') for i in range(4, 8)], 30, 38),
                 {28: [f'ds_read_b128 {v(RAW, 4)}, {v(aXr)} offset:{XR} ;#xr']},
                 spread(104, [rb_(2, i, i, 'B2') for i in range(8)], 56, 66), spread(104, [rb_(3, i, i, 'B3') for i in range(8)], 72, 83),
                 spread(104, [rb_(0, i, i + 4, 'C') for i in range(4)], 90, 98),
                 {XB + 1 + w: [f'ds_read_b128 {v(Y + 4 * w, 4)}, {v(a0)} offset:{4096 * w} ;#y'] for w in range(4)})
    wr = [f'ds_write_b128 {v(aE)}, {v(acc + 4 * g, 4)} offset:{16384 * (g // 4) + 1024 * (g % 4)}' for g in range(8)]
    for g in range(4):
        head = merge(head, {max(wpos[g] + 6, 40 + 2 * (3 - g)): [wr[g]]})

    def epil(st_, pkd):
        x = X_
        o = []
        for ch in range(2):
            y = Y + 8 * ch
            if pkd:
                sel = f'op_sel:[0,{ch},0] op_sel_hi:[1,{ch},1]'
                o.append(f's_waitcnt lgkmcnt({2 - 2 * ch})')
                for i in (0, 2):
                    o += [f'v_pk_add_f32 {v(y + i, 2)}, {v(y + i, 2)}, {v(y + 4 + i, 2)}',
                          f'v_pk_fma_f32 {v(x + 4 * ch + i, 2)}, {v(y + i, 2)}, {s(sGa, 2)}, {v(x + 4 * ch + i, 2)} {sel}',
                          f'v_pk_mul_f32 {v(y + i, 2)}, {v(x + 4 * ch + i, 2)}, {s(sCb, 2)} op_sel:[0,{ch}] op_sel_hi:[1,{ch}]']
            else:
                for i in range(4):
                    o += [f'v_add_f32 {v(y + i)}, {v(y + i)}, {v(y + 4 + i)}', f'v_fmac_f32 {v(x + 4 * ch + i)}, {s(sGa + ch)}, {v(y + i)}',
                          f'v_mul_f32 {v(y + i)}, {s(sCb + ch)}, {v(x + 4 * ch + i)}']
            o += [f'v_cvt_pk_bf16_f32 {v(pk + 2 * ch + i)}, {v(y + 2 * i)}, {v(y + 2 * i + 1)}' for i in range(2)]
        o += [f'v_cvt_pk_bf16_f32 {v(o2 + i)}, {v(x + i)}, {v(x + 4 + i)}' for i in range(4)]
        dp = 'quad_perm:[1,0,3,2] row_mask:0xf bank_mask:0xf'
        o += [f'v_cndmask_b32_dpp {v(o1 + i)}, {v(pk + 2 + i)}, {v(pk + i)}, vcc {dp}' for i in range(2)]
        o.append('s_not_b64 vcc, vcc')
        o += [f'v_cndmask_b32_dpp {v(o1 + 2 + i)}, {v(pk + i)}, {v(pk + 2 + i)}, vcc {dp}' for i in range(2)]
        o.append('s_not_b64 vcc, vcc')
        o.append(f'buffer_store_dwordx4 {v(o1, 4)}, {v(aO)}, {s(rWS, 4)}, {s(sT2)} offen sc1 ;#xo{st_}')
        o.append(f'buffer_store_dwordx4 {v(o2, 4)}, {v(aO2)}, {s(rWS, 4)}, {s(sT3)} offen sc1 ;#xo{st_}')
        return o

    unp = ['@lg xr']
    for i in range(4):
        unp += [f'v_lshlrev_b32 {v(X_ + i)}, 16, {v(RAW + i)}', f'v_and_b32 {v(X_ + 4 + i)}, 0xffff0000, {v(RAW + i)}']
    v1 = tag_units('L_m2', mld, [M + 3], 'm') + mprep
    v1 += [f'v_readlane_b32 {s(sGa + ch)}, {v(M + ch)}, 0' for ch in range(2)] + [f'v_readlane_b32 {s(sCb + ch)}, {v(M + ch)}, 2' for ch in range(2)]
    v1 += [f's_lshl_b32 {s(sT0)}, {s(sP)}, 7', f's_add_u32 {s(sT2)}, {s(sT0)}, {XS}', f's_add_u32 {s(sT3)}, {s(sT0)}, {X1P}',
           's_mov_b32 vcc_lo, 0x55555555', 's_mov_b32 vcc_hi, 0x55555555']
    v3 = ['@lg y'] + epil(0, False) + [f's_add_u32 {s(sT2)}, {s(sT2)}, {2 * 28672}', f's_add_u32 {s(sT3)}, {s(sT3)}, {2 * 28672}']
    fla = ['@vm xo0', flag_store(VTAG, sFl), f's_add_u32 {s(sFl)}, {s(sFl)}, {FL2S}']
    NA, NB_ = OPT['na'], OPT['na'] + OPT['nb']
    soft = merge(spread(104, flat(colB[CB1:]), OPT['cd0'], OPT['cda']),
                 {OPT['cda']: [f'buffer_load_dword {v(t1)}, off, {s(rWS, 4)}, {s(sGo)} sc1', f'buffer_load_dword {v(t1)}, off, {s(rWS, 4)}, {s(sGo)} offset:128 sc1']},
                 spread(104, flat(rest[:NA]), OPT['cdb'], 100))
    A.ext(half(2, 'A2') + half(3, 'A3'))
    A('@lg A2b0')
    code, info = sched2(mm, head, tail, soft, [(OPT['m2p'], 40, v1), (36, XB + 4, unp), (XB + 8, XB + 12, v3)], 8)
    print('conv', info)
    A.ext(code)
    A.ext([rb_(1, i, i + 4, 'C') for i in range(4)])
    A('@vm col1')
    ts()
    hbuild(1, Y)
    A.ext(rest[NA:NB_])
    A('s_waitcnt lgkmcnt(0)')
    A('s_barrier')
    first = [ra(ul, i, f'D{ul}_{i}') for ul in (2, 3) for i in range(4, 8)]
    A.ext(first)
    A('@lg D2_4')
    tail = {3: ['@lg D2_5'], 6: ['@lg D2_7'], 9: ['@lg D3_7'], 19: ['@lg D0_7'], 29: ['@lg D1_7']}
    head = merge(spread(40, [ra(ul, i, f'D{ul}_{i}') for ul in (0, 1) for i in range(4, 8)], 0, 12),
                 {13: [f'ds_read_b128 {v(RAW, 4)}, {v(aXr)} offset:{XR + 4096} ;#xr']})
    soft = merge(spread(40, flat(rest[NB_:OPT['nc']]), 2, 34), {OPT['fa']: fla} if OPT['fa'] < 40 else {})
    code, info = sched2(m2, head, tail, soft, [(22, 38, unp)], 8)
    print('conv2', info)
    A.ext(code)
    A.ext([wr[g] for g in range(7, 3, -1)])
    ts('3')
    A('s_waitcnt lgkmcnt(0)')
    A('s_barrier')
    for w in range(4):
        A(f'ds_read_b128 {v(Y + 4 * w, 4)}, {v(a0)} offset:{16384 + 4096 * w}')
    if OPT['fa'] >= 40:
        A.ext(fla)
    A.ext(epil(1, True))
    ts('03')
    P['rest'] = rest[max(NB_, OPT['nc']):]
    V.release(mp)
    return P


def helper_flag_touch():
    A(f's_and_b32 {s(sT0)}, s2, 3')
    A(f's_lshl2_add_u32 {s(sT0)}, {s(sT0)}, {s(sWave)}')
    A(f's_mul_i32 {s(sT0)}, {s(sT0)}, 56')
    A(f'v_min_u32 v250, 55, {v(LANE)}')
    A(f'v_add_u32 v250, {s(sT0)}, v250')
    A('v_lshlrev_b32 v250, 7, v250')
    A(f'v_add_u32 v250, {FL2}, v250')
    A(f'buffer_load_dword v251, v250, {s(rWS, 4)}, 0 offen sc1')
    A(f's_mov_b32 {s(sT0)}, {FL2S}')
    A(f'buffer_load_dword v251, v250, {s(rWS, 4)}, {s(sT0)} offen sc1')


def helper_mod():
    st = V.get(8)
    wm = V.get(84)
    cc = V.get(7)
    ch = V.get(7)
    acc = V.get(8)
    t0, t1, t2, vo, aw, ar, vs, vw, vp = [V.get() for _ in range(9)]
    g = V.get(4)
    rd = V.get(8)
    pf = V.get(4)
    sHm, sHn = 38, 39
    stats1_addr()
    A('v_mov_b32 v250, 0')
    A(f'v_lshrrev_b32 {v(t0)}, 3, {v(LANE)}')
    A(f'v_lshlrev_b32 {v(t2)}, 1, {v(t0)}')
    A(f'v_and_b32 {v(t2)}, 4, {v(t2)}')
    A(f'v_and_b32 {v(t1)}, 7, {v(LANE)}')
    A(f'v_xor_b32 {v(t2)}, {v(t2)}, {v(t1)}')
    A(f'v_mul_u32_u24 {v(vw)}, 3584, {v(t0)}')
    A(f'v_lshl_add_u32 {v(vw)}, {v(t2)}, 4, {v(vw)}')
    A(f'v_lshlrev_b32 {v(vp)}, 4, {v(TID)}')
    A(f's_lshr_b32 {s(sT0)}, s2, 1')
    div7(sHm, sHn, sT0)
    A(f's_and_b32 {s(sT0)}, s2, 1')
    A(f's_mul_i32 {s(sT0)}, {s(sT0)}, 7')
    A(f's_add_u32 {s(sHn)}, {s(sHn)}, {s(sT0)}')
    A(f's_and_b32 {s(sT1)}, {s(sWave)}, 1')
    A(f's_lshr_b32 {s(sT2)}, {s(sWave)}, 1')
    A(f's_lshl1_add_u32 {s(sT0)}, {s(sHn)}, {s(sT1)}')
    A(f's_lshl_b32 {s(sT0)}, {s(sT0)}, 7')
    A(f's_mul_i32 {s(sT3)}, {s(sT2)}, {224 * 3584}')
    A(f's_add_u32 {s(sM2)}, {s(sT0)}, {s(sT3)}')
    A(f's_lshl1_add_u32 {s(sT3)}, {s(sT1)}, {s(sT2)}')
    A(f's_mul_i32 m0, {s(sT3)}, 28672')
    A('s_waitcnt lgkmcnt(0)')
    ts('1')
    A.ext(tagged(capture(lambda: stats1_loads(st)), 'hs'))
    A(f's_load_dword {s(sTag)}, {s(rWS, 2)}, {EP}')
    srd(rWd, pWd, 1605632)
    A('s_cmp_ge_u32 s2, 28')
    A('s_cbranch_scc1 L_hm_skip')
    A(f's_cmp_eq_u32 {s(sHm)}, 0')
    A(f's_cselect_b64 {s(rW, 2)}, {s(pWg, 2)}, {s(pWu, 2)}')
    A(f's_mov_b32 {s(rW + 2)}, 1605632')
    A(f's_mov_b32 {s(rW + 3)}, 0x00020000')
    wsl = [f'buffer_load_dwordx4 {v(vw)}, {s(rW, 4)}, {s(sM2)} offen lds\ns_add_u32 m0, m0, 1024\ns_add_u32 {s(sM2)}, {s(sM2)}, {8 * 3584}' for i in range(28)]
    srd(rWm, pWm, 2408448)
    A('s_cmp_ge_u32 s2, 14')
    A(f's_cselect_b32 {s(sMi)}, 1, 0')
    A(f's_mul_i32 {s(sT0)}, {s(sMi)}, 14')
    A(f's_sub_u32 {s(sNi)}, s2, {s(sT0)}')
    A(f's_lshl2_add_u32 {s(sT0)}, {s(sMi)}, {s(sWave)}')
    A(f's_mul_i32 {s(sT0)}, {s(sT0)}, 56')
    A(f'v_add_u32 {v(t0)}, {s(sT0)}, {v(t0)}')
    A(f'v_lshlrev_b32 {v(t2)}, 1, {v(t0)}')
    A(f'v_mul_u32_u24 {v(vo)}, 5376, {v(t0)}')
    A(f'v_lshl_add_u32 {v(vo)}, {v(t1)}, 4, {v(vo)}')

    def wload(task, i):
        u = f's_lshl_b32 {s(sWo)}, {s(sNi if task == 0 else sNt)}, 7\n' if i == 0 else f's_add_u32 {s(sWo)}, {s(sWo)}, {8 * 5376}\n'
        return u + f'buffer_load_dwordx4 {v(wm + 28 * task + 4 * i, 4)}, {v(vo)}, {s(rWm, 4)}, {s(sWo)} offen offset:{(0, 1792, 2688)[task]} {"nt" if OPT["nt"] & 2 else ""} ;#hw{task}_{i}'

    def pload(i):
        u = f's_mul_i32 {s(sWo)}, s2, {6 * 4096}\n' if i == 0 else f's_add_u32 {s(sWo)}, {s(sWo)}, 4096\n'
        return u + f'buffer_load_dwordx4 {v(pf, 4)}, {v(vp)}, {s(rWd, 4)}, {s(sWo)} offen'

    for i in range(7):
        A(f'global_load_ushort {v(cc + i)}, {v(t2)}, {s(pC, 2)} offset:{16 * i} ;#hc')
    for i in range(7):
        A(wload(0, i))
    A(f'v_lshrrev_b32 {v(t0)}, 4, {v(LANE)}')
    A(f'v_lshl_add_u32 {v(t0)}, {v(t1)}, 2, {v(t0)}')
    A(f's_lshl_b32 {s(sT0)}, {s(sWave)}, 8')
    A(f's_add_u32 {s(sT0)}, {s(sT0)}, {SL[4]}')
    A(f'v_lshl_add_u32 {v(aw)}, {v(t0)}, 3, {s(sT0)}')
    A(f'v_and_b32 {v(t0)}, 31, {v(LANE)}')
    A(f'v_lshlrev_b32 {v(ar)}, 3, {v(t0)}')
    A(f'v_add_u32 {v(ar)}, {SL[4]}, {v(ar)}')
    div7(sT2, sT3, sNi)
    A(f's_mul_i32 {s(sMt)}, {s(sT2)}, 7168')
    A(f's_mul_i32 {s(sNt)}, {s(sT2)}, 7')
    A(f's_add_u32 {s(sNt)}, {s(sNt)}, {s(sNi)}')
    A(f's_lshl1_add_u32 {s(sT2)}, {s(sT2)}, {s(sMi)}')
    A(f's_mul_i32 {s(sT2)}, {s(sT2)}, 7')
    A(f's_add_u32 {s(sT2)}, {s(sT2)}, {s(sT3)}')
    A(f's_lshl_b32 {s(sT2)}, {s(sT2)}, 9')
    A(f's_add_u32 {s(sT2)}, {s(sT2)}, {MOD}')
    A(f'v_lshl_add_u32 {v(vs)}, {v(t0)}, 4, {s(sT2)}')
    A('s_waitcnt lgkmcnt(0)')
    A(f's_add_u32 {s(sTag)}, {s(sTag)}, 1')
    ts('1')
    A('@vm hs')
    ts('1')
    stats1_compute(st)
    A('@vm hc')
    ts('1')
    for i in range(7):
        A(f'v_lshlrev_b32 {v(cc + i)}, 16, {v(cc + i)}')
        A(f'v_mul_f32 {v(ch + i)}, 0xbfb8aa3b, {v(cc + i)}')
        A(f'v_exp_f32 {v(ch + i)}, {v(ch + i)}')
    for i in range(7):
        A(f'v_add_f32 {v(ch + i)}, 1.0, {v(ch + i)}')
        A(f'v_rcp_f32 {v(ch + i)}, {v(ch + i)}')
    for i in range(7):
        A(f'v_mul_f32 {v(cc + i)}, {v(cc + i)}, {v(ch + i)}')
        A(f'v_cvt_pk_bf16_f32 {v(cc + i)}, {v(cc + i)}, 0')
        A(f'v_lshlrev_b32 {v(ch + i)}, 16, {v(cc + i)}')
    A(f'v_mov_b32 {v(g + 2)}, 0')
    A(f'v_mov_b32 {v(g + 3)}, {s(sTag)}')
    for task in range(3):
        for j in range(8):
            A(f'v_mov_b32 {v(acc + j)}, 0')
        for i in range(7):
            A(f'@vm hw{task}_{i}')
            if task < 2:
                A(wload(task + 1, i))
            else:
                A(wsl[i])
            for j in range(4):
                w = wm + 28 * task + 4 * i + j
                A(f'v_dot2c_f32_bf16 {v(acc + 2 * j)}, {v(w)}, {v(cc + i)}')
                A(f'v_dot2c_f32_bf16 {v(acc + 2 * j + 1)}, {v(w)}, {v(ch + i)}')
        ts('1')
        reduce8(acc)
        A(f'ds_write_b64 {v(aw)}, {v(acc, 2)} offset:{1024 * task}')
        A('s_waitcnt lgkmcnt(0)')
        A('s_barrier')
        A(f's_cmp_lg_u32 {s(sWave)}, {task}')
        A(f's_cbranch_scc1 L_hm_n{task}')
        for w in range(4):
            A(f'ds_read_b64 {v(rd + 2 * w, 2)}, {v(ar)} offset:{1024 * task + 256 * w}')
        A(f's_mov_b32 {s(sT0)}, 0' if task == 0 else f's_add_u32 {s(sT0)}, {s(sMt)}, {7168 * (task + 1)}')
        A('s_waitcnt lgkmcnt(0)')
        A(f'v_pk_add_f32 {v(rd, 2)}, {v(rd, 2)}, {v(rd + 2, 2)}')
        A(f'v_pk_add_f32 {v(rd + 4, 2)}, {v(rd + 4, 2)}, {v(rd + 6, 2)}')
        A(f'v_pk_add_f32 {v(g, 2)}, {v(rd, 2)}, {v(rd + 4, 2)}')
        A('s_mov_b32 exec_hi, 0')
        A(f'buffer_store_dwordx4 {v(g, 4)}, {v(vs)}, {s(rWS, 4)}, {s(sT0)} offen sc1 ;#cond')
        A('s_mov_b64 exec, -1')
        A(f'L_hm_n{task}:')
        if task == 0:
            ts()
    A.ext(wsl[7:])
    if OPT['hp']:
        A.ext([pload(i).replace(v(pf, 4), 'v[244:247]') for i in range(6)])
    A('s_branch L_hm_done')
    A('L_hm_skip:')
    A('s_waitcnt lgkmcnt(0)')
    A(f's_add_u32 {s(sTag)}, {s(sTag)}, 1')
    A('s_waitcnt vmcnt(0)')
    stats1_compute(st)
    helper_flag_touch()
    A(f's_sub_u32 {s(sWo)}, s2, 25')
    A(f's_mul_i32 {s(sWo)}, {s(sWo)}, {56 * 4096}')
    A(f's_mov_b32 {s(sT0)}, {OPT["npf"]}')
    A('L_hm_pf:')
    for i in range(4):
        A(f'buffer_load_dwordx4 {v(pf, 4)}, {v(vp)}, {s(rWd, 4)}, {s(sWo)} offen')
        A(f's_add_u32 {s(sWo)}, {s(sWo)}, 4096')
    A(f's_sub_u32 {s(sT0)}, {s(sT0)}, 1')
    A(f's_cmp_lg_u32 {s(sT0)}, 0')
    A('s_cbranch_scc1 L_hm_pf')
    A('s_waitcnt vmcnt(0)')
    A('L_hm_done:')
    ts()


def main_ffn(P):
    vW, vXr, vFp = P['vW'], P['vXr'], P['vFp']
    vXs, vL16, vTag, vSt = 2, 3, 4, 5
    gbp = V.get(4)
    x1r = V.get(8)
    Ag, Au = V.get(4), V.get(4)
    stt = V.get(16)
    xr = V.get(24)
    tmp = V.get(6)
    outp = V.get(8)
    acc = V.get(96)
    P['wdv'] = V.get(64)
    fp = P['vWr'][0]
    t0, t1, t2 = tmp, tmp + 1, tmp + 2
    XSLOT = [0, 1, 4, 2]
    FS = OPT['fs']
    sSt, sAo, sAi, sOo, sGb, sAu, sHf = 16, 17, 18, 19, 20, 21, 22
    sFl2 = 61

    def ffn_setup():
        A(f's_mov_b32 {s(sFl2)}, {s(sFl)}')
        A(f'v_lshlrev_b32 {v(vL16)}, 4, {v(LANE)}')
        A(f's_mul_i32 {s(sT0)}, {s(sMt)}, {4 * 28672}')
        A(f's_add_u32 {s(sT0)}, {s(sT0)}, {XS}')
        A(f'v_lshl_add_u32 {v(vXs)}, {v(TID)}, 4, {s(sT0)}')
        A(f'v_and_b32 {v(t0)}, 31, {v(LANE)}')
        A(f'v_lshlrev_b32 {v(vSt)}, 4, {v(t0)}')
        A(f'v_lshrrev_b32 {v(t1)}, 5, {v(LANE)}')
        A(f'v_mul_u32_u24 {v(t1)}, 28672, {v(t1)}')
        A(f'v_add_u32 {v(outp)}, {v(t1)}, {v(vSt)}')
        A(f's_lshl_b32 {s(sSt)}, {s(sMt)}, 11')
        A(f's_add_u32 {s(sSt)}, {s(sSt)}, {ST2}')
        A(f's_lshl2_add_u32 {s(sM2)}, {s(sNt)}, {s(sWave)}')
        A(f's_lshl_b32 {s(sAu)}, {s(sM2)}, 9')
        A(f's_add_u32 {s(sAu)}, {s(sAu)}, {AUG}')
        A(f's_mul_i32 {s(sT1)}, {s(sMt)}, 224')
        A(f's_add_u32 {s(sM2)}, {s(sM2)}, {s(sT1)}')
        A(f's_lshl_b32 {s(sAo)}, {s(sM2)}, 11')
        A(f's_add_u32 {s(sAo)}, {s(sAo)}, {ACT}')
        A(f's_lshl2_add_u32 {s(sT0)}, {s(sNt)}, {s(sWave)}')
        A(f's_mul_i32 {s(sT1)}, {s(sT0)}, 4682')
        A(f's_lshr_b32 {s(sT1)}, {s(sT1)}, 16')
        A(f's_lshl1_add_u32 {s(sT0)}, {s(sT1)}, {s(sT0)}')
        A(f's_lshl_b32 {s(sT1)}, {s(sMt)}, 8')
        A(f's_add_u32 {s(sT0)}, {s(sT0)}, {s(sT1)}')
        A(f's_mul_i32 {s(sFl)}, {s(sT0)}, {FS}')
        A(f's_add_u32 {s(sFl)}, {s(sFl)}, {FL3}')
        A(f's_and_b32 {s(sT0)}, {s(sJ)}, 7')
        A(f's_lshr_b32 {s(sT1)}, {s(sMi)}, 1')
        A(f's_lshl1_add_u32 {s(sT0)}, {s(sT0)}, {s(sT1)}')
        A(f's_lshl_b32 {s(sTb)}, {s(sT0)}, 2')
        A(f's_and_b32 {s(sHf)}, {s(sMi)}, 1')
        A(f's_lshl2_add_u32 {s(sRot)}, {s(sTb)}, {s(sWave)}')
        A(f's_mul_i32 {s(sRot)}, {s(sRot)}, 14')
        A(f's_lshl3_add_u32 {s(sAi)}, {s(sRot)}, {s(sHf)}')
        A(f's_lshl_b32 {s(sAi)}, {s(sAi)}, 8')
        A(f's_add_u32 {s(sAi)}, {s(sAi)}, {ACT}')
        A(f's_add_u32 {s(sOo)}, {s(sTb)}, {s(sHf)}')
        A(f's_mul_i32 {s(sOo)}, {s(sOo)}, {16 * 7}')
        A(f's_add_u32 {s(sOo)}, {s(sOo)}, {s(sNi)}')
        A(f's_lshl_b32 {s(sOo)}, {s(sOo)}, 7')
        A(f's_lshl_b32 {s(sGb)}, {s(sNi)}, 9')
        A(f's_add_u32 {s(sGb)}, {s(sGb)}, {MOD + 5 * 7168}')
        A(f'v_bfe_u32 {v(t2)}, {v(TID)}, 2, 5')
        A(f'v_and_b32 {v(t0)}, 3, {v(TID)}')
        A(f'v_lshl_add_u32 {v(t2)}, {v(t2)}, 3, {v(t0)}')
        A(f's_lshr_b32 {s(sT1)}, {s(sWave)}, 1')
        A(f's_add_u32 {s(sT0)}, {s(sTb)}, {s(sT1)}')
        A(f's_mul_i32 {s(sT0)}, {s(sT0)}, 7')
        A(f's_add_u32 {s(sT0)}, {s(sT0)}, {s(sNi)}')
        A(f's_lshl_b32 {s(sT0)}, {s(sT0)}, 6')
        A(f's_add_u32 {s(sT0)}, {s(sT0)}, {s(sHf)}')
        A(f's_lshl_b32 {s(sT0)}, {s(sT0)}, 6')
        A(f's_add_u32 {s(sT0)}, {s(sT0)}, {X1P}')
        A(f'v_lshl_add_u32 {v(outp + 2)}, {v(t2)}, 4, {s(sT0)}')
        A(f's_lshl2_add_u32 {s(sT1)}, {s(sTb)}, {s(sWave)}')
        A(f's_mul_i32 {s(sT1)}, {s(sT1)}, {16 * FS}')
        A(f's_add_u32 {s(sT1)}, {s(sT1)}, {FL3}')
        A(f'v_min_u32 {v(vFp)}, 13, {v(LANE)}')
        A(f'v_lshl_add_u32 {v(vFp)}, {v(vFp)}, {FS.bit_length() - 1}, {s(sT1)}')
        A(f'v_and_b32 {v(t0)}, 15, {v(LANE)}')
        A(f'v_lshrrev_b32 {v(t1)}, 4, {v(LANE)}')
        A(f'v_lshl_add_u32 {v(t0)}, {v(t1)}, 6, {v(t0)}')
        A(f'v_lshl_add_u32 {v(outp + 3)}, {v(t0)}, {FS.bit_length() - 1}, {s(sT1)}')
        A(f'v_and_b32 {v(t0)}, 7, {v(TID)}')
        A(f'v_lshlrev_b32 {v(outp + 1)}, 4, {v(t0)}')
        for i in range(4):
            A(f'v_mov_b32 {v(Au + i)}, 0')

    FP = OPT['fp']
    dm = P['rest'] + w_dma(3, 1, P) + w_dma(4, 2, P)
    pl = [f'buffer_load_dword {v(stt + 8)}, off, {s(rWS, 4)}, {s(sGo)} sc1 ;#go']
    A.ext(interleave(dm[:FP], capture(ffn_setup)))
    ts('3')
    A('@vm xo1')
    A(flag_store(vTag, sFl2))
    ts('3')
    A.ext(dm[FP:])
    A.ext(pl)
    A.ext(wd_frags(0, 3, P))
    A('@lg df0')
    A.ext(w_dma(5, 3, P)[:OPT['w5']])
    ts('3')
    A(tag_wait('L_f2', pl, [stt + 8], 'go'))
    A('s_barrier')
    ts('03')

    def xs_dma(b):
        o = []
        for cc in range(7):
            u = f's_add_u32 m0, {s(sW1k)}, {SL[XSLOT[b]] + 4096 * cc}\n'
            o += [u.strip(), f'buffer_load_dwordx4 {v(vXs)}, {s(rWS, 4)}, {s(sC + cc)} offen sc1 lds ;#x{b}']
        return o + [f'v_add_u32 {v(vXs)}, 28672, {v(vXs)}']

    A.ext(xs_dma(0))
    assert OPT['w5'] in (0, 4, 8)
    A.ext(interleave(w_frags(2, 4, P) + w_frags(3, 1, P) + w_frags(4, 2, P), w_dma(5, 3, P)[OPT['w5']:]))
    A('@vm x0')
    A('s_waitcnt lgkmcnt(0)')
    A('s_barrier')
    ts('0235')
    g = [f'buffer_load_dwordx4 {v(x1r, 4)}, {v(vSt)}, {s(rWS, 4)}, {s(sGb)} offen sc1 ;#g',
         f'buffer_load_dwordx4 {v(x1r + 4, 4)}, {v(vSt)}, {s(rWS, 4)}, {s(sGb)} offen offset:3584 sc1 ;#g',
         f'buffer_load_dwordx4 {v(Ag, 4)}, {v(outp)}, {s(rWS, 4)}, {s(sAu)} offen sc1 ;#g']
    gv = tag_units('L_g', g, [x1r + 3, x1r + 7, Ag + 3], 'g')
    gv += [f'v_add_f32 {v(x1r)}, {v(x1r)}, {v(x1r + 4)}', f'v_add_f32 {v(x1r + 1)}, {v(x1r + 1)}, {v(x1r + 5)}',
           f'v_cvt_pk_bf16_f32 {v(x1r)}, {v(x1r)}, {v(x1r + 1)}', f'v_mov_b32 {v(Ag + 3)}, 0']
    for i in range(3):
        gv.append(f's_mov_b32 exec_lo, 0\nv_mov_b32 {v(Au + i)}, {v(Ag + i)}\nv_mov_b32 {v(Ag + i)}, 0\ns_mov_b32 exec_lo, -1')
    gp = [f'ds_bpermute_b32 {v(gbp + i)}, {v(outp + 1)}, {v(x1r)} offset:{4 * i}' for i in range(4)]
    def poll3(st_):
        return [f's_mov_b32 {s(sT3)}, {64 * FS * st_}\nbuffer_load_dword {v(fp)}, {v(vFp)}, {s(rWS, 4)}, {s(sT3)} offen sc1 ;#pe{st_}']
    pre3 = [poll3(i)[0].replace(';#pe', ';#pre') for i in range(4)]

    def xread(n):
        b, ks = divmod(n, 28)
        sl = XSLOT[b]
        r = xr + 4 * (n % 6)
        return [f'ds_read_b64_tr_b16 {v(r + 2 * e, 2)}, {v(vXr[sl // 2])} offset:{32768 * (sl % 2) + 1024 * ks + 256 * e} ;#xf{n}' for e in range(2)]

    def accr(b):
        return acc + 32 * (b % 3)

    def aug(b):
        gg, uu, st = accr(b), accr(b) + 16, stt + 4 * b
        return [f'v_mov_b32 {v(st + 3)}, 0',
                f'v_lshlrev_b32 {v(tmp + 4)}, 16, {v(st + 2)}',
                f'v_and_b32 {v(tmp + 5)}, 0xffff0000, {v(st + 2)}',
                f'v_mfma_f32_32x32x16_bf16 {v(gg, 16)}, {v(Ag, 4)}, {v(st, 4)}, {v(gg, 16)}',
                f'v_add_f32 {v(tmp + 4)}, {v(tmp + 4)}, {v(tmp + 5)}',
                f'v_rcp_f32 {v(tmp + 5)}, {v(tmp + 4)}',
                f'v_mfma_f32_32x32x16_bf16 {v(uu, 16)}, {v(Au, 4)}, {v(st, 4)}, {v(uu, 16)}',
                f'v_mul_f32 {v(st)}, {v(tmp + 4)}, {v(tmp + 4)}',
                f'v_mul_f32 {v(st + 1)}, 0xbfb8aa3b, {v(tmp + 5)}']

    def epi(b, q):
        gg, uu, st = accr(b), accr(b) + 16, stt + 4 * b
        r4 = range(4 * q, 4 * q + 4)
        o = [f'v_mul_f32 {v(tmp + i % 4)}, {v(st + 1)}, {v(gg + i)}' for i in r4]
        for i in r4:
            o += [f'v_exp_f32 {v(tmp + i % 4)}, {v(tmp + i % 4)}', f'v_mul_f32 {v(gg + i)}, {v(gg + i)}, {v(uu + i)}']
        for i in r4:
            o += [f'v_fma_f32 {v(tmp + i % 4)}, {v(tmp + i % 4)}, {v(st)}, {v(st)}', f'v_rcp_f32 {v(tmp + i % 4)}, {v(tmp + i % 4)}']
        o += [f'v_mul_f32 {v(gg + i)}, {v(gg + i)}, {v(tmp + i % 4)}' for i in r4]
        o += [f'v_cvt_pk_bf16_f32 {v(outp + 2 * q + k)}, {v(gg + 4 * q + 2 * k)}, {v(gg + 4 * q + 2 * k + 1)}' for k in range(2)]
        if q % 2:
            o.append(f'buffer_store_dwordx4 {v(outp + 2 * q - 2, 4)}, {v(vL16)}, {s(rWS, 4)}, {s(sAo)} offen offset:{1024 * (q // 2)} sc1 ;#ao{b}')
        if q == 3:
            o.append(f's_add_u32 {s(sAo)}, {s(sAo)}, {112 * 1024}')
        return o

    def act_flag(b):
        return [f'@vm ao{b}', flag_store(vTag, sFl), f's_add_u32 {s(sFl)}, {s(sFl)}, {64 * FS}']

    def st_loads(b):
        return [f'buffer_load_dwordx4 {v(stt + 4 * b, 4)}, {v(vSt)}, {s(rWS, 4)}, {s(sSt)} offen offset:{512 * b} sc1 ;#s{b}']

    res = [f'buffer_load_dwordx4 {v(x1r, 4)}, {v(vW)}, {s(rWS, 4)}, 0 offen sc1 ;#res',
           f's_mov_b32 {s(sT2)}, {2 * 28672}\nbuffer_load_dwordx4 {v(x1r + 4, 4)}, {v(vW)}, {s(rWS, 4)}, {s(sT2)} offen sc1 ;#res']
    abuf = [('a', 128 + 4 * i) for i in range(24)]
    LA, G0 = OPT['la'], OPT['g0']
    vAl = P['vWr'][1]

    def aload(n):
        st_, kp = divmod(n, 14)
        return f'buffer_load_dwordx4 {rn(abuf[n % 24], 4)}, {v(vAl)}, {s(rWS, 4)}, {s(sD + kp // 2)} offen offset:{2048 * (kp % 2)} sc1 ;#a{n}'

    def astage(st_):
        u = tag_units(f'L_p{st_}', poll3(st_), [fp], f'pe{st_}', None if st_ else 34)
        return u + ([f'v_add_u32 {v(vAl)}, {112 * 1024}, {v(vAl)}'] if st_ else [])
    aadr = [f'v_lshrrev_b32 {v(vAl)}, 4, {v(LANE)}', f'v_lshlrev_b32 {v(vAl)}, 9, {v(vAl)}',
            f'v_and_b32 {v(P["vWr"][2])}, 0xf0, {v(vL16)}', f'v_add3_u32 {v(vAl)}, {v(vAl)}, {v(P["vWr"][2])}, {s(sAi)}']
    mm, head, tail = [], {}, {}
    for n in range(112):
        b, ks = divmod(n, 28)
        for mat in range(2):
            d = accr(b) + 16 * mat
            mm.append(f'v_mfma_f32_32x32x16_bf16 {v(d, 16)}, {a((mat * 28 + ks) * 4, 4)}, {v(xr + 4 * (n % 6), 4)}, {"0" if ks == 0 else v(d, 16)}')
        if n + 4 < 112:
            rd = xread(n + 4)
            head[2 * n] = [rd[0]]
            head[2 * n + 1] = [rd[1]]
        if n % 2 and n < 111:
            tail[2 * n + 1] = [f'@lg xf{n + 2}']
        if ks == 24 and b < 3:
            head[2 * n], head[2 * n + 1] = [], [f'@vm x{b + 1}\ns_waitcnt lgkmcnt(0)\ns_barrier'] + xread(n + 4)
    E0 = OPT['e0']
    GV = OPT['gv']
    assert GV + 10 <= E0 - 4
    Q = [OPT[f'q{i}'] for i in range(6)]
    R = [OPT[f'r{i}'] for i in range(5)]
    assert R[3] >= 185 and R[4] >= max(201, R[3] + 14)
    DG = OPT['dg']
    WB = OPT['wb']
    tail = merge(tail, {39: ['@lg wf5'], 47: ['@lg wf']})
    NF = OPT['nf']
    fr34 = [wd_frags(3, 1, P) + wd_addr(2, P), wd_frags(4, 3, P) + wd_addr(4, P), wd_frags(6, 4, P)]
    d56 = wd_dma(6, 4, P)
    gob = [f'buffer_load_dword {v(fp)}, off, {s(rWS, 4)}, {s(sGo)} offset:128 sc1 ;#gob']
    tag_units('L_gb', gob, [fp], 'gob', 34)
    gsl = [f's_add_u32 {s(sGo2)}, {s(sGo)}, 128', f's_load_dword {s(sGo2)}, {s(rWS, 2)}, {s(sGo2)} {"glc" if OPT["glc"] else ""}']
    gsc = [f's_cmp_lg_u32 {s(sGo2)}, {s(sTag)}\ns_cbranch_scc1 L_gb_re\nL_gb_ok:']
    assert OPT['gb'] <= 44 and Q[0] >= 52 and Q[2] >= 107 and Q[3] <= 150 and Q[5] >= 163
    soft = merge({},
                 spread(224, w_dma(6, 4, P) + [f'v_mov_b32 {v(vW)}, {v(outp + 2)}'] + xs_dma(1), 0, OPT['qd'] - 4),
                 {WB: ['@vm w6\ns_barrier']}, spread(224, tagged(w_frags(5, 3, P), 'wf5') + tagged(w_frags(6, 4, P), 'wf'), WB + 1, WB + 15),
                 spread(224, wd_dma(1, 2, P), OPT['qd'], Q[0]), {OPT['gb']: gsl}, {50: gsc},
                 spread(224, xs_dma(2), Q[0], Q[1]), spread(224, wd_dma(2, 3, P) + wd_dma(5, 0, P), Q[1], Q[2]),
                 spread(224, xs_dma(3), Q[2], Q[3]),
                 spread(224, wd_dma(3, 1, P) + wd_dma(4, 3, P), Q[3], Q[4]), spread(224, res, Q[4], Q[5]),
                 spread(224, d56[:DG], Q[5], OPT['a0'] - 4), {60: aadr},
                 spread(224, fr34[0] if NF > 0 else [], R[3], R[3] + 14), spread(224, fr34[1] if NF > 1 else [], R[4], R[4] + 14),
                 spread(224, wd_frags(1, 2, P), R[0], R[0] + 14), spread(224, wd_frags(2, 3, P) + wd_addr(0, P), R[1], R[1] + 16),
                 {E0 - OPT['sl']: st_loads(0), OPT['b1'] - OPT['sl1']: st_loads(1), OPT['b2'] - OPT['sl2']: st_loads(2), OPT['b2'] - OPT['sl2'] + 20: st_loads(3)},
                 spread(224, g + [f'buffer_load_dword {v(fp)}, {v(outp + 3)}, {s(rWS, 4)}, 0 offen sc1'], OPT['gl'], OPT['gl'] + 4),
                 {})
    chk0, chk1, chk2, chk3 = [tag_units(f'L_s{b}', st_loads(b), [stt + 4 * b + 3], f's{b}') for b in range(4)]
    gp3 = [';gap'] * 3
    parts = [epi(0, 0), epi(0, 1), epi(0, 2), epi(0, 3) + chk1, aug(1) + gp3 + epi(1, 0), epi(1, 1), epi(1, 2), epi(1, 3) + chk2,
             aug(2) + gp3 + epi(2, 0) + chk3, epi(2, 1), epi(2, 2), epi(2, 3)]
    PP, PC = OPT['pp'], OPT['pc']
    parts[9] = parts[9][:PP] + flat(poll3(0)) + parts[9][PP:]
    t23 = parts[10] + parts[11]
    t23 = t23[:PC] + astage(0) + interleave(t23[PC:-3], [aload(n) for n in range(G0)]) + t23[-3:]
    parts[10], parts[11] = t23, []
    F0, F1 = OPT['f0'], OPT['f1']
    parts[F0] = parts[F0] + act_flag(0)
    if F1 < 12:
        parts[F1] = parts[F1] + act_flag(1)
    for n in range(4):
        A.ext(xread(n))
    A('@lg xf1')
    B1, B2 = OPT['b1'], OPT['b2']
    segs = [(GV, E0 - 8, gv + gp), (E0 - 8, E0 - 3, chk0 + aug(0) + [';gap'] * 3), (E0, B1, sum(parts[:4], [])), (B1, B2, sum(parts[4:8], [])), (B2, 224, sum(parts[8:], []))]
    code, info = sched2(mm, head, tail, soft, segs, 24)
    print('gemm1', info)
    gapof, g_ = [], -1
    for u in code:
        g_ += u.startswith('v_mfma') and ', a[' in u
        gapof.append(g_)

    def span(key):
        ix = [gapof[i] for i, u in enumerate(code) if any(ln.endswith(key) for ln in u.split('\n'))]
        return (min(ix), max(ix)) if ix else (999, -1)
    seq = [OPT['qd']] + Q + [OPT['a0'] - 4]
    assert all(b_ - a_ >= 6 for a_, b_ in zip(seq, seq[1:])) and OPT['qd'] >= 14
    assert span(';#a0')[0] >= 180 + 2 * G0 and LA >= G0 and F0 < F1 and OPT['f2'] + 4 < OPT['f3'] and LA <= 13
    assert span(';#df1')[1] < 104 and span(';#df2')[1] + 8 < span(';#d4')[0] and span(';#d6')[0] > 161 and span(';#x3')[0] > 105
    assert span(';#x1')[1] < 48 and span(';#x2')[1] < 104 and span(';#x3')[1] < 160 and span(';#wf')[1] < 47 and span(';#wf5')[1] < 39
    assert min(span(';#x2')[0], span(';#d2')[0], span(';#d5')[0]) > span('L_gb_ok:')[0] > 49 and span(';#d3')[0] > 105
    assert span(';#d1')[1] < span(';#df1')[0] and span(';#d2')[1] < span(';#df2')[0] and span(';#w6')[1] < WB
    assert span(';#d3')[1] < span(';#df3')[0] and span(';#d4')[1] < span(';#df4')[0]
    assert span(';#g')[1] < GV and all(span(f';#s{b}')[1] + 3 < span(f'L_s{b}_ok:')[0] for b in range(4))
    nm_ = 0
    first_aug2 = None
    for u in code:
        if u.startswith('v_mfma') and f', {v(Ag, 4)}, {v(stt + 8, 4)}' in u:
            first_aug2 = nm_
        if u.startswith('v_mfma') and ', a[' in u:
            nm_ += 1
            if nm_ == 169:
                assert f'ao0' in ''.join(code[:code.index(u)]).split('offset:1024 sc1 ;#')[-1][:3] or True
        A(u)
        if u.startswith('v_mfma') and ', a[' in u and nm_ % 112 == 0:
            ts('2')
        if u.startswith('v_mfma') and ', a[' in u and nm_ % 28 == 0:
            ts('5')
    assert first_aug2 >= 168, first_aug2
    last0 = max(i for i, u in enumerate(code) if ';#ao0' in u and 'buffer_store' in u)
    assert sum(1 for u in code[:last0] if u.startswith('v_mfma') and ', a[' in u) <= 168
    ts('04')
    assert DG >= 8
    A.ext(aug(3))
    fr34 = fr34[NF:] + [[], [], [], []]
    A.ext(fr34[0])
    d56 = d56[DG:]
    late_ld = [aload(n) for n in range(G0, LA)]
    nq = (len(d56) + len(late_ld) + 3) // 4
    mem = d56 + late_ld
    A.ext(mem[:nq])
    for q_ in range(4):
        A.ext(epi(3, q_))
        if q_ == 1 and F1 >= 12:
            A.ext(act_flag(1))
        A.ext(mem[nq * (q_ + 1):nq * (q_ + 2)])
        A.ext(fr34[1 + q_ // 2] if q_ % 2 else [])
    if OPT['f2'] < 0:
        A.ext(act_flag(2))
    ts('2')
    wa = [stt, stt + 1]
    ra0, ra1, ao = stt + 4, stt + 5, stt + 6
    xu, gu = xr, xr + 16
    su = [f'v_and_b32 {v(t0)}, 15, {v(LANE)}',
          f'v_lshlrev_b32 {v(t0)}, 8, {v(t0)}',
          f'v_add_u32 {v(t0)}, {s(sW8k)}, {v(t0)}',
          f'v_lshrrev_b32 {v(t1)}, 4, {v(LANE)}',
          f'v_and_b32 {v(t2)}, 7, {v(LANE)}',
          f'v_xor_b32 {v(t1)}, {v(t1)}, {v(t2)}',
          f'v_lshl_add_u32 {v(wa[0])}, {v(t1)}, 4, {v(t0)}',
          f'v_add_u32 {v(wa[0])}, {SL[2]}, {v(wa[0])}',
          f'v_xor_b32 {v(wa[1])}, 64, {v(wa[0])}',
          f'v_lshrrev_b32 {v(t0)}, 3, {v(TID)}',
          f'v_and_b32 {v(t1)}, 7, {v(t0)}',
          f'v_lshlrev_b32 {v(ra0)}, 1, {v(t2)}',
          f'v_xor_b32 {v(ra0)}, {v(ra0)}, {v(t1)}',
          f'v_lshlrev_b32 {v(ra0)}, 4, {v(ra0)}',
          f'v_lshl_add_u32 {v(ra0)}, {v(t0)}, 8, {v(ra0)}',
          f'v_add_u32 {v(ra0)}, {SL[2]}, {v(ra0)}',
          f'v_xor_b32 {v(ra1)}, 16, {v(ra0)}',
          f'v_and_b32 {v(t1)}, 16, {v(t0)}',
          f'v_add_u32 {v(t0)}, {v(t0)}, {v(t1)}',
          f'v_mul_u32_u24 {v(ao)}, 896, {v(t0)}',
          f'v_lshl_add_u32 {v(ao)}, {v(t2)}, 4, {v(ao)}']
    for i in range(4):
        su += [f'v_lshlrev_b32 {v(gu + 2 * i)}, 16, {v(gbp + i)}', f'v_and_b32 {v(gu + 2 * i + 1)}, 0xffff0000, {v(gbp + i)}']
    xw, xrd = stt + 2, stt + 3
    su2 = [f'v_lshrrev_b32 {v(t0)}, 7, {v(TID)}', f'v_and_b32 {v(t1)}, 3, {v(TID)}', f'v_lshl_add_u32 {v(t0)}, {v(t0)}, 2, {v(t1)}',
           f'v_mul_u32_u24 {v(t0)}, 576, {v(t0)}', f'v_and_b32 {v(t1)}, 0x7c, {v(TID)}', f'v_add_u32 {v(t0)}, {v(t0)}, {v(t1)}',
           f'v_add_u32 {v(xw)}, {SL[4]}, {v(t0)}',
           f'v_lshrrev_b32 {v(t0)}, 3, {v(TID)}', f'v_mul_u32_u24 {v(t0)}, 144, {v(t0)}', f'v_lshl_add_u32 {v(t0)}, {v(t2)}, 4, {v(t0)}',
           f'v_add_u32 {v(xrd)}, {SL[4]}, {v(t0)}']
    su2 += [f'ds_write_b32 {v(xw)}, {v(x1r + i)} offset:{4608 * (i // 4) + 144 * (i % 4)}' for i in range(8)]
    xrr = [f'ds_read_b128 {v(x1r + 4 * b_, 4)}, {v(xrd)} offset:{4608 * b_}' for b_ in range(2)]
    xun = []
    for i in range(8):
        xun += [f'v_lshlrev_b32 {v(xu + 2 * i)}, 16, {v(x1r + i)}', f'v_and_b32 {v(xu + 2 * i + 1)}, 0xffff0000, {v(x1r + i)}']
    Y = acc

    def red_write(st_):
        d = acc + 32 + 16 * st_
        return [f'ds_write_b128 {v(wa[db % 2])}, {v(d + 4 * db, 4)} offset:{32768 * (st_ // 2) + 4096 * (st_ % 2) + 128 * (db // 2)}' for db in range(4)]

    def red_read(blk):
        o = []
        for w in range(4):
            o += [f'ds_read_b128 {v(Y + 8 * w, 4)}, {v(ra0)} offset:{32768 * blk + 8192 * w}',
                  f'ds_read_b128 {v(Y + 8 * w + 4, 4)}, {v(ra1)} offset:{32768 * blk + 8192 * w}']
        o[0] = 's_waitcnt lgkmcnt(0)\ns_barrier\n' + o[0]
        return o

    def red_final(blk, pk):
        o = ['s_waitcnt lgkmcnt(0)']
        x = xu + 8 * blk
        if pk:
            for i in range(0, 8, 2):
                o += [f'v_pk_add_f32 {v(Y + i, 2)}, {v(Y + i, 2)}, {v(Y + 8 + i, 2)}', f'v_pk_add_f32 {v(Y + 16 + i, 2)}, {v(Y + 16 + i, 2)}, {v(Y + 24 + i, 2)}',
                      f'v_pk_add_f32 {v(Y + i, 2)}, {v(Y + i, 2)}, {v(Y + 16 + i, 2)}', f'v_pk_fma_f32 {v(x + i, 2)}, {v(Y + i, 2)}, {v(gu + i, 2)}, {v(x + i, 2)}']
        else:
            for i in range(8):
                o += [f'v_add_f32 {v(Y + i)}, {v(Y + i)}, {v(Y + 8 + i)}', f'v_add_f32 {v(Y + 16 + i)}, {v(Y + 16 + i)}, {v(Y + 24 + i)}',
                      f'v_add_f32 {v(Y + i)}, {v(Y + i)}, {v(Y + 16 + i)}', f'v_fmac_f32 {v(x + i)}, {v(Y + i)}, {v(gu + i)}']
        o += [f'v_cvt_pk_bf16_f32 {v(outp + 4 * blk + i)}, {v(x + 2 * i)}, {v(x + 2 * i + 1)}' for i in range(4)]
        o.append(f'buffer_store_dwordx4 {v(outp + 4 * blk, 4)}, {v(ao)}, {s(rOut, 4)}, {s(sOo)} offen {("", "sc1", "sc1 nt", "nt")[OPT["osc"]]}')
        o.append(f's_add_u32 {s(sOo)}, {s(sOo)}, {1024 * 896}')
        return o

    mm, head, tail, soft = [], {}, {}, {}
    for n in range(56):
        st_, kp = divmod(n, 14)
        for db in range(4):
            d = acc + 32 + 16 * st_ + 4 * db
            mm.append(f'v_mfma_f32_16x16x32_bf16 {v(d, 4)}, {rn(wdreg(kp // 2, kp % 2, db, P), 4)}, {rn(abuf[n % 24], 4)}, {"0" if kp == 0 else v(d, 4)}')
        if n + LA < 56:
            m_ = n + LA
            if m_ % 14 == 0:
                as_ = astage(m_ // 14)
                soft = merge(soft, {max(0, 4 * n - 5): as_[:-1]}, {max(0, 4 * n - 2): as_[-1:]})
            soft = merge(soft, {4 * n: [aload(m_)]})
        if n < 55:
            tail[4 * n + 3] = [f'@vm a{n + 1}']
    for st_ in range(1, 4):
        soft = merge({max(0, 4 * (14 * st_ - LA) - OPT['pl'] - 5): flat(poll3(st_))}, soft, spread(224, red_write(st_ - 1), 56 * st_ + 9, 56 * st_ + 25))
    soft = merge(soft, ({OPT['f2']: act_flag(2)} if OPT['f2'] >= 0 else {}), {OPT['f3']: act_flag(3)}, spread(224, red_read(0) + xrr, 141, 151),
                 spread(224, wd_addr(0, P) + flat(wd_frags(5, 0, P)), OPT['g5'], 30))
    tail = merge(tail, {6: ['@lg df4 df6'], 38: ['@lg df5'], 54: ['s_barrier']})
    A('@vm a0')
    ts('2')
    rf0 = red_final(0, False)
    c1_, info = sched2(mm, head, tail, soft, [(36, 60, su[:9]), (60, 130, su[9:] + su2), (158, 210, rf0[:1] + xun[:8] + rf0[1:] + xun[8:])], 8)
    print('gemm2', info)
    pos = {u: i for i, u in enumerate(c1_)}
    assert max(i for i, u in enumerate(c1_) if ';#df5' in u) < pos[mm[38]]
    assert pos[su[8]] < pos[red_write(0)[0]] and pos[xrr[1]] < pos[rf0[0]] and pos[su2[-1]] < pos[red_read(0)[0]]
    for n in range(LA, 56):
        assert pos[aload(n)] < pos[mm[4 * (n - 3)]]
    c2_ = []
    for u in c1_ + c2_:
        A(u)
        if u is mm[55] or u is mm[167]:
            ts('2')
        if u is mm[111]:
            ts('02')
    A.ext(red_write(3) + red_read(1) + red_final(1, True))
    ts('0246')


def helper_rest():
    V.release(2)
    g = V.get(16)
    acc = V.get(16, 4)
    fw = V.get(112)
    fv = V.get(16)
    xx = V.get(56)
    t0, t1, t2, vo, vr, va, one, aw, ar, vl = [V.get() for _ in range(10)]
    rd = V.get(8)
    def fold_vectors():
        A('s_cmp_ge_u32 s2, 28')
        A('s_cbranch_scc1 L_hr_skip')
        A(f's_mov_b32 {s(sMi)}, s38')
        A(f's_mov_b32 {s(sNi)}, s39')
        A(f's_and_b32 {s(sT1)}, {s(sWave)}, 1')
        A(f's_lshr_b32 {s(sT2)}, {s(sWave)}, 1')
        tr_lane(vr, t0, t1, 8, 128)
        A(f'v_bfe_u32 {v(t1)}, {v(LANE)}, 3, 1')
        A(f'v_xor_b32 {v(t1)}, {s(sT1)}, {v(t1)}')
        A(f'v_lshl_add_u32 {v(vr)}, {v(t1)}, 6, {v(vr)}')
        A(f's_mul_i32 {s(sT3)}, {s(sT2)}, 57344')
        A(f'v_add_u32 {v(vr)}, {s(sT3)}, {v(vr)}')
        A(f'v_and_b32 {v(t0)}, 1, {v(LANE)}')
        A(f'v_lshlrev_b32 {v(va)}, 10, {v(t0)}')
        A(f'v_lshrrev_b32 {v(t0)}, 5, {v(LANE)}')
        A(f'v_lshl_add_u32 {v(va)}, {v(t0)}, 4, {v(va)}')
        A(f'v_add_u32 {v(va)}, {SL[4] + 4096}, {v(va)}')
        A(f'v_min_u32 {v(t2)}, 223, {v(TID)}')
        A(f'v_lshlrev_b32 {v(t0)}, 4, {v(t2)}')
        ld = []
        for i, sec in enumerate((4, 3)):
            ld += [f's_mov_b32 {s(sT3)}, {MOD + sec * 7168}',
                   f'buffer_load_dwordx4 {v(g + 8 * i, 4)}, {v(t0)}, {s(rWS, 4)}, {s(sT3)} offen sc1',
                   f'buffer_load_dwordx4 {v(g + 8 * i + 4, 4)}, {v(t0)}, {s(rWS, 4)}, {s(sT3)} offen offset:3584 sc1']
        A.ext(ld)
        A(tag_wait('L_hg', ld, [g + 3, g + 7, g + 11, g + 15]))
        bf16_pair_from_partials(rd, g, g + 4, True)
        bf16_pair_from_partials(rd + 2, g + 8, g + 12, False)
        A(f'v_lshlrev_b32 {v(t2)}, 2, {v(t2)}')
        A(f'v_add_u32 {v(t2)}, {SL[4] + 4096}, {v(t2)}')
        A(f'ds_write_b32 {v(t2)}, {v(g)}')
        A(f'ds_write_b32 {v(t2)}, {v(g + 8)} offset:1024')
        A('s_waitcnt lgkmcnt(0)')
        A('s_barrier')
        def hrd(ks):
            return [f'ds_read_b128 {v(xx + 4 * (ks % 8), 4)}, {v(va)} offset:{32 * ks}'] + [
                f'ds_read_b64_tr_b16 {v(fw + 4 * ks + 2 * e, 2)}, {v(vr)} offset:{(16 * ks + 4 * e) * 128} ;#hr{ks}' for e in range(2)]
        for ks in range(4):
            A.ext(hrd(ks))
        for ks in range(28):
            A(f'@lg hr{ks}')
            A(f'v_mfma_f32_32x32x16_bf16 {v(acc, 16)}, {v(xx + 4 * (ks % 8), 4)}, {v(fw + 4 * ks, 4)}, {"0" if ks == 0 else v(acc, 16)}')
            if ks + 4 < 28:
                A.ext(hrd(ks + 4))
        A(f's_mul_i32 {s(sT0)}, {s(sMi)}, 28672')
        A(f's_lshl_b32 {s(sT1)}, {s(sNi)}, 2')
        A(f's_add_u32 {s(sT1)}, {s(sT1)}, {s(sWave)}')
        A(f's_lshl_b32 {s(sT1)}, {s(sT1)}, 9')
        A(f's_add_u32 {s(sT0)}, {s(sT0)}, {s(sT1)}')
        A(f's_add_u32 {s(sT0)}, {s(sT0)}, {AUG}')
        A(f'v_lshlrev_b32 {v(t2)}, 4, {v(LANE)}')
        A(f'v_cvt_pk_bf16_f32 {v(g + 1)}, {v(acc)}, {v(acc + 1)}')
        A(f'v_lshlrev_b32 {v(t0)}, 16, {v(g + 1)}')
        A(f'v_and_b32 {v(t1)}, 0xffff0000, {v(g + 1)}')
        A(f'v_sub_f32 {v(acc + 2)}, {v(acc)}, {v(t0)}')
        A(f'v_sub_f32 {v(acc + 3)}, {v(acc + 1)}, {v(t1)}')
        A(f'v_cvt_pk_bf16_f32 {v(g)}, {v(t0)}, {v(acc + 2)}')
        A(f'v_cvt_pk_bf16_f32 {v(g + 2)}, {v(acc + 3)}, {v(t1)}')
        A(f'v_mov_b32 {v(g + 3)}, {s(sTag)}')
        A('s_mov_b32 exec_hi, 0')
        A(f'buffer_store_dwordx4 {v(g, 4)}, {v(t2)}, {s(rWS, 4)}, {s(sT0)} offen sc1')
        A('s_mov_b64 exec, -1')
        A('L_hr_skip:')
        ts('03')

    A(f's_and_b32 {s(sT1)}, s2, 7')
    A(f's_bfe_u32 {s(sT2)}, s2, 0x10003')
    A(f's_lshl1_add_u32 {s(sMt)}, {s(sT1)}, {s(sT2)}')
    A(f's_lshr_b32 {s(sT2)}, s2, 4')
    A(f's_lshl2_add_u32 {s(sTb)}, {s(sMt)}, {s(sT2)}')
    A(f's_mul_i32 {s(sT1)}, {s(sTb)}, 28672')
    A(f's_add_u32 {s(sT1)}, {s(sT1)}, {X1P}')
    A(f'v_lshl_add_u32 {v(vo)}, {v(TID)}, 4, {s(sT1)}')
    A(f'v_mov_b32 {v(one)}, 0x3f803f80')
    A(f'v_and_b32 {v(t1)}, 7, {v(LANE)}')
    A(f'v_lshrrev_b32 {v(t2)}, 4, {v(LANE)}')
    A(f'v_lshl_add_u32 {v(t2)}, {v(t1)}, 2, {v(t2)}')
    A(f's_lshl_b32 {s(sT0)}, {s(sWave)}, 8')
    A(f's_add_u32 {s(sT0)}, {s(sT0)}, {SL[4] + 8192}')
    A(f'v_lshl_add_u32 {v(aw)}, {v(t2)}, 3, {s(sT0)}')
    A(f'v_and_b32 {v(t1)}, 31, {v(LANE)}')
    A(f'v_lshlrev_b32 {v(ar)}, 3, {v(t1)}')
    A(f'v_add_u32 {v(ar)}, {SL[4] + 8192}, {v(ar)}')
    A(f'v_lshlrev_b32 {v(vl)}, 4, {v(LANE)}')
    A(f's_lshl_b32 {s(sM2)}, {s(sTb)}, 9')
    A(f's_add_u32 {s(sM2)}, {s(sM2)}, {ST2}')
    A(f's_bfe_u32 {s(sT0)}, s2, 0x20001')
    A(f's_lshr_b32 {s(sT1)}, s2, 3')
    A(f's_lshl2_add_u32 {s(sT0)}, {s(sT0)}, {s(sT1)}')
    A(f's_mul_i32 {s(sT0)}, {s(sT0)}, {4 * 28672}')
    A(f's_add_u32 {s(sT0)}, {s(sT0)}, {XS}')
    A(f'v_min_u32 v249, 223, {v(TID)}')
    A(f'v_lshl_add_u32 v249, v249, 7, {s(sT0)}')
    for blk in range(2):
        A('s_cmp_lt_u32 s2, 28')
        A(f's_cbranch_scc1 L_nogo{blk}')
        A(f's_mov_b32 {s(sSpin)}, {SPIN}')
        A(f's_mov_b32 {s(sT3)}, {FL2S * blk}')
        A(f'L_hf{blk}:')
        A(f'buffer_load_dword v251, v250, {s(rWS, 4)}, {s(sT3)} offen sc1')
        A(f's_sub_u32 {s(sSpin)}, {s(sSpin)}, 1')
        A(f's_cbranch_scc1 L_hf{blk}_ok')
        A('s_waitcnt vmcnt(0)')
        A(f'v_cmpx_ne_u32 vcc, {s(sTag)}, v251')
        A('s_nop 0')
        A(f's_cbranch_execnz L_hf{blk}')
        A(f'L_hf{blk}_ok:')
        A('s_mov_b64 exec, -1')
        A('s_barrier')
        A(f's_and_b32 {s(sT0)}, s2, 3')
        A(f's_lshl2_add_u32 {s(sT0)}, {s(sT0)}, {s(sWave)}')
        A(f's_lshl_b32 {s(sT0)}, {s(sT0)}, 8')
        A(f's_add_u32 {s(sT0)}, {s(sT0)}, {GO + 128 * blk}')
        A(f'v_mov_b32 v252, {s(sTag)}')
        A(flag_store(252, sT0).replace(';#fl', ';#cond'))
        A(f'L_nogo{blk}:')
    for blk in range(2):
        if blk == OPT['hf']:
            fold_vectors()
        A(f's_lshl_b32 {s(sT3)}, {s(sMt)}, 8')
        A(f's_add_u32 {s(sT3)}, {s(sT3)}, {GO + 128 * blk}')
        gl = [f'buffer_load_dword v251, off, {s(rWS, 4)}, {s(sT3)} sc1']
        A.ext(gl)
        A(tag_wait(f'L_hg{blk}', gl, [251]))
        if OPT['hx'] and blk == 0:
            A(f'buffer_load_dword v251, v249, {s(rWS, 4)}, 0 offen sc1')
        ts('03')
        for i in range(7):
            A(f's_mov_b32 {s(sT0)}, {2 * 28672 * blk + 4096 * i}')
            A(f'buffer_load_dwordx4 {v(xx + 28 * blk + 4 * i, 4)}, {v(vo)}, {s(rWS, 4)}, {s(sT0)} offen sc1 ;#hx{blk}_{i}')
        for j in range(8):
            A(f'v_mov_b32 {v(acc + j)}, 0')
        for i in range(7):
            A(f'@vm hx{blk}_{i}')
            for j in range(4):
                w = xx + 28 * blk + 4 * i + j
                A(f'v_dot2c_f32_bf16 {v(acc + 2 * j)}, {v(w)}, {v(one)}')
                A(f'v_dot2c_f32_bf16 {v(acc + 2 * j + 1)}, {v(w)}, {v(w)}')
        reduce8(acc)
        A(f'ds_write_b64 {v(aw)}, {v(acc, 2)} offset:{1024 * blk}')
        A('s_waitcnt lgkmcnt(0)')
        A('s_barrier')
        A(f's_cmp_lg_u32 {s(sWave)}, {blk}')
        A(f's_cbranch_scc1 L_hs_n{blk}')
        for w in range(4):
            A(f'ds_read_b64 {v(rd + 2 * w, 2)}, {v(ar)} offset:{1024 * blk + 256 * w}')
        A(f'v_mov_b32 {v(t2)}, 0x3b124925')
        A('s_waitcnt lgkmcnt(0)')
        A(f'v_pk_add_f32 {v(rd, 2)}, {v(rd, 2)}, {v(rd + 2, 2)}')
        A(f'v_pk_add_f32 {v(rd + 4, 2)}, {v(rd + 4, 2)}, {v(rd + 6, 2)}')
        A(f'v_pk_add_f32 {v(rd, 2)}, {v(rd, 2)}, {v(rd + 4, 2)}')
        A(f'v_mul_f32 {v(rd)}, 0xbb124925, {v(rd)}')
        A(f'v_mul_f32 {v(t0)}, {v(rd)}, {v(rd)}')
        A(f'v_fma_f32 {v(rd + 1)}, {v(rd + 1)}, {v(t2)}, -{v(t0)}')
        A(f'v_max_f32 {v(rd + 1)}, 0, {v(rd + 1)}')
        A(f'v_add_f32 {v(rd + 1)}, 0x3727c5ac, {v(rd + 1)}')
        A(f'v_sqrt_f32 {v(rd + 1)}, {v(rd + 1)}')
        A(f'v_cvt_pk_bf16_f32 {v(g)}, {v(rd)}, {v(rd)}')
        A(f'v_cvt_pk_bf16_f32 {v(t1)}, {v(rd + 1)}, {v(rd + 1)}')
        A(f'v_and_b32 {v(t0)}, 0xffff0000, {v(g)}')
        A(f'v_and_b32 {v(t1)}, 0xffff0000, {v(t1)}')
        A(f'v_sub_f32 {v(rd + 2)}, {v(rd)}, {v(t0)}')
        A(f'v_sub_f32 {v(rd + 3)}, {v(rd + 1)}, {v(t1)}')
        A(f'v_cvt_pk_bf16_f32 {v(g + 1)}, {v(rd + 2)}, {v(t1)}')
        A(f'v_cvt_pk_bf16_f32 {v(g + 2)}, {v(t1)}, {v(rd + 3)}')
        A(f'v_mov_b32 {v(g + 3)}, {s(sTag)}')
        A('s_mov_b32 exec_hi, 0')
        A(f'buffer_store_dwordx4 {v(g, 4)}, {v(vl)}, {s(rWS, 4)}, {s(sM2)} offen offset:{1024 * blk} sc1 ;#cond')
        A('s_mov_b64 exec, -1')
        A(f'L_hs_n{blk}:')
    ts()
    if OPT['ha']:
        FS = OPT['fs']
        A(f's_lshr_b32 {s(sT0)}, s2, 4')
        A(f's_lshl2_add_u32 {s(sT0)}, {s(sT0)}, {s(sWave)}')
        A(f's_lshr_b32 {s(sT1)}, {s(sT0)}, 1')
        A(f's_lshl4_add_u32 {s(sT1)}, {s(sMt)}, {s(sT1)}')
        A(f's_mul_i32 {s(sT1)}, {s(sT1)}, {16 * FS}')
        A(f's_add_u32 {s(sT1)}, {s(sT1)}, {FL3}')
        A(f'v_min_u32 v250, 13, {v(LANE)}')
        A(f'v_lshl_add_u32 v250, v250, {FS.bit_length() - 1}, {s(sT1)}')
        A(f's_lshl_b32 {s(sT1)}, {s(sMt)}, 5')
        A(f's_add_u32 {s(sT0)}, {s(sT0)}, {s(sT1)}')
        A(f's_mul_i32 {s(sT0)}, {s(sT0)}, 14336')
        A(f's_add_u32 {s(sT0)}, {s(sT0)}, {ACT}')
        A(f'v_min_u32 v249, 55, {v(LANE)}')
        A(f'v_lshl_add_u32 v249, v249, 8, {s(sT0)}')
        A(f's_mov_b32 {s(sT2)}, {OPT["ha"]}')
        A(f's_mov_b32 {s(sSpin)}, {SPIN}')
        A('L_ha:')
        A(f's_sleep {OPT["hn"]}')
        A(f'buffer_load_dword v251, v250, {s(rWS, 4)}, 0 offen sc1')
        A(f's_sub_u32 {s(sSpin)}, {s(sSpin)}, 1')
        A('s_cbranch_scc1 L_ha_end')
        A('s_waitcnt vmcnt(0)')
        A(f'v_cmp_ne_u32 vcc, {s(sTag)}, v251')
        A('s_cbranch_vccnz L_ha')
        A(f'buffer_load_dword v252, v249, {s(rWS, 4)}, 0 offen sc1')
        A(f'buffer_load_dword v253, v249, {s(rWS, 4)}, 0 offen offset:128 sc1')
        A(f'v_add_u32 v250, {64 * FS}, v250')
        A(f'v_add_u32 v249, {112 * 1024}, v249')
        A(f's_sub_u32 {s(sT2)}, {s(sT2)}, 1')
        A(f's_cmp_lg_u32 {s(sT2)}, 0')
        A('s_cbranch_scc1 L_ha')
        A('L_ha_end:')


def epoch_update():
    A('s_cmp_lg_u32 s2, 32')
    A('s_cbranch_scc1 L_noep')
    A(f'v_mov_b32 v2, {s(sTag)}')
    A(f'v_mov_b32 v3, {EP}')
    A(f'buffer_store_dword v2, v3, {s(rWS, 4)}, 0 offen sc1')
    A('L_noep:')


def build():
    prologue()
    n0 = nts[0]
    m = V.mark()
    main_ffn(main_ssm())
    epoch_update()
    ts_flush('m')
    A('s_endpgm')
    A('L_helper:')
    nts[0] = n0
    V.release(m)
    helper_mod()
    helper_rest()
    ts_flush('h')
    A('L_end:')
    A('s_endpgm')
    A.ext(COLD)
    A('L_code_end:')
    if OPT['nodma']:
        keys = [s(rW, 4)] * (OPT['nodma'] & 1) + [s(rWd, 4)] * (OPT['nodma'] >> 1)
        A.lines = ['    s_nop 0' if ('buffer_load' in ln and any(k in ln for k in keys)) else ln for ln in A.lines]
    if OPT['skip']:
        tg = [f';#w{i}' for i in range(7) if OPT['skip'] >> i & 1] + [f';#d{i}' for i in range(7) if OPT['skip'] >> (8 + i) & 1]
        A.lines = ['    s_nop 0' if ('buffer_load' in ln and any(ln.endswith(k) for k in tg)) else ln for ln in A.lines]
    X = OPT['exp']
    def drop(ln):
        if X & 1 and 'buffer_load_dword ' in ln and s(rX, 4) in ln and s(sM2) in ln:
            return True
        if X & 2 and ln.endswith(';#res'):
            return True
        if X & 4 and ';#xo' in ln and s(sT3) in ln:
            return True
        if X & 8 and ';#ao' in ln:
            return True
        if X & 16 and ';#a' in ln and 'buffer_load' in ln and int(ln.split(';#a')[1]) % 2:
            return True
        if X & 32 and ';#x' in ln and ' lds' in ln and not ln.endswith('x0'):
            return True
        return False
    A.lines = ['    s_nop 0' if drop(ln) else ln for ln in A.lines]
    body = pad_hazards(resolve_waits(A.lines))
    hdr = open('adaLN_cond__ssm_conv_s4__swiglu_ffn__prompt.s.ref').read().split('; Override launch')[0]
    text = hdr + '; @launch grid=(256,1,1) block=(256,1,1) lds=163840\n'
    text += f'.amdgcn_target "amdgcn-amd-amdhsa--gfx950"\n.text\n.globl {NAME}\n.p2align 8\n.type {NAME},@function\n{NAME}:\n'
    text += '\n'.join(body) + '\n'
    text += f'''.section .rodata,"a"
.p2align 6
.amdhsa_kernel {NAME}
  .amdhsa_next_free_vgpr 512
  .amdhsa_next_free_sgpr 102
  .amdhsa_accum_offset 256
  .amdhsa_group_segment_fixed_size 0
  .amdhsa_kernarg_size 144
  .amdhsa_user_sgpr_count 2
  .amdhsa_user_sgpr_kernarg_segment_ptr 1
  .amdhsa_system_sgpr_workgroup_id_x 1
  .amdhsa_float_denorm_mode_32 3
.end_amdhsa_kernel
'''
    open(sys.argv[1], 'w').write(text)
    print('vgpr high water', V.hi, 'lines', len(body))


build()
```

```python
import re

REG = re.compile(r'^(-|\|)?(abs\()?([vas])(\d+|\[(\d+):(\d+)\])\)?\|?$')
TRANS = ('v_exp_f32', 'v_log_f32', 'v_rcp_f32', 'v_rsq_f32', 'v_sqrt_f32', 'v_sin_f32', 'v_cos_f32')


def regs_of(tok):
    tok = tok.strip()
    if tok in ('vcc', 'vcc_lo', 'vcc_hi'):
        return {('s', 'vcc')}
    if tok in ('exec', 'exec_lo', 'exec_hi'):
        return {('s', 'exec')}
    if tok == 'm0':
        return {('s', 'm0')}
    m = REG.match(tok)
    if not m:
        return set()
    k = m.group(3)
    if m.group(5) is not None:
        return {(k, i) for i in range(int(m.group(5)), int(m.group(6)) + 1)}
    return {(k, int(m.group(4)))}


class Ins:
    def __init__(self, text):
        self.text = text
        body = text.split(';')[0].strip()
        parts = body.split(None, 1)
        self.op = parts[0]
        rest = parts[1] if len(parts) > 1 else ''
        ops, depth, cur = [], 0, ''
        for ch in rest:
            if ch == '[':
                depth += 1
            if ch == ']':
                depth -= 1
            if ch == ',' and depth == 0:
                ops.append(cur.strip())
                cur = ''
            else:
                cur += ch
        mods = ''
        if cur.strip():
            last = cur.strip().split(None, 1)
            ops.append(last[0])
            mods = last[1] if len(last) > 1 else ''
        self.ops, self.mods = ops, mods
        op = self.op
        R = [regs_of(o) for o in ops]
        allr = set().union(*R) if R else set()
        self.mfma = op.startswith('v_mfma')
        self.valu = op.startswith('v_') and not self.mfma
        self.trans = any(op.startswith(t) for t in TRANS)
        self.dot = op.startswith('v_dot')
        self.dpp = '_dpp' in op
        self.perm = op.startswith('v_permlane')
        self.lane = op.startswith('v_readlane') or op.startswith('v_readfirstlane') or op.startswith('v_writelane')
        self.ds = op.startswith('ds_')
        self.vmem = op.startswith('buffer_') or op.startswith('global_')
        self.salu = op.startswith('s_')
        self.ldsdma = self.vmem and (' lds' in ' ' + mods or '_lds_' in op)
        self.usem0 = self.ldsdma or 'addtid' in op
        self.wr, self.rd = set(), set()
        self.states = 1
        if op == 's_nop':
            self.states = int(ops[0], 0) + 1
        if self.mfma:
            self.wr = R[0]
            self.srcA, self.srcB, self.srcC = R[1], R[2], R[3]
            self.rd = R[1] | R[2] | R[3]
            self.passes = 8 if '32x32' in op else 4
        elif self.valu:
            nd = 2 if ('_co_' in op and not op.startswith('v_cmp')) else 1
            self.wr = set().union(*R[:nd])
            self.rd = set().union(*R[nd:]) if len(R) > nd else set()
            if self.perm:
                self.wr = allr
                self.rd = allr
            if op.startswith('v_fmac') or op.startswith('v_dot2c') or self.dpp or op.startswith('v_writelane'):
                self.rd |= R[0]
            if op.startswith('v_cmpx'):
                self.wr = self.wr | {('s', 'exec')}
            if op.startswith('v_cndmask') and len(ops) == 3:
                self.rd |= {('s', 'vcc')}
        elif self.ds:
            if op.startswith('ds_read') or op.startswith('ds_bpermute') or op.startswith('ds_swizzle'):
                self.wr = R[0]
                self.rd = set().union(*R[1:]) if len(R) > 1 else set()
            else:
                self.rd = allr
        elif self.vmem:
            if '_load' in op and not self.ldsdma:
                self.wr = R[0]
                self.rd = set().union(*R[1:])
            else:
                self.rd = allr
            self.widestore = ('store_dwordx4' in op or 'store_dwordx3' in op)
            if self.widestore:
                self.stdata = R[0] if op.startswith('buffer_') else R[1]
        elif self.salu:
            nodst = ('s_cmp', 's_waitcnt', 's_nop', 's_barrier', 's_branch', 's_cbranch', 's_endpgm', 's_sleep', 's_setprio', 's_bitcmp')
            if not op.startswith(nodst) and R:
                self.wr = R[0]
                self.rd = set().union(*R[1:]) if len(R) > 1 else set()
                if 'saveexec' in op:
                    self.wr = self.wr | {('s', 'exec')}
            else:
                self.rd = allr


def need(p, c):
    n = 0
    vw = {r for r in p.wr if r[0] in 'va'}
    sw = {r for r in p.wr if r[0] == 's'}
    if p.mfma:
        big = 12 if p.passes == 8 else 8
        if c.mfma:
            if vw & (c.srcA | c.srcB):
                n = max(n, big)
            if vw & c.srcC and not (vw == c.srcC and p.passes == c.passes):
                n = max(n, 10 if p.passes == 8 else 6)
            if vw & c.wr and not (vw & c.srcC):
                n = max(n, big)
        elif vw & (c.rd | c.wr):
            n = max(n, big)
        if c.valu and p.srcC & c.wr:
            n = max(n, 7 if p.passes == 8 else 3)
    if p.valu:
        if c.mfma and vw & c.rd:
            n = max(n, 2)
        if p.trans and c.valu and vw & c.rd:
            n = max(n, 1)
        if (c.dpp or c.perm) and vw & c.rd:
            n = max(n, 2)
        if c.lane and vw & c.rd:
            n = max(n, 1)
        if p.dot and vw & (c.rd | c.wr):
            same = c.op == p.op and not (vw & set().union(*[regs_of(o) for o in c.ops[1:3]]))
            if not same:
                n = max(n, 3)
        if ('s', 'exec') in sw and (c.dpp or c.perm or c.lane or c.mfma):
            n = max(n, 5)
        if sw:
            if c.valu and sw & c.rd:
                n = max(n, 4 if c.lane else 2)
            if c.vmem and sw & c.rd:
                n = max(n, 5)
            if c.salu and sw & c.rd:
                n = max(n, 1)
            if c.op.startswith('s_cbranch_vcc') and ('s', 'vcc') in sw:
                n = max(n, 1)
    if p.salu and ('s', 'm0') in p.wr and c.usem0:
        n = max(n, 1)
    if p.salu and ('s', 'exec') in p.wr and (c.dpp or c.perm or c.lane):
        n = max(n, 1)
    if p.vmem and getattr(p, 'widestore', False) and p.stdata & c.wr:
        n = max(n, 2)
    return n


def pad_hazards(lines):
    back = {}
    for _ in range(3):
        out, hists, fwd, seen, newback = [], [[]], {}, set(), {}
        for ln in lines:
            s = ln.strip()
            if not s or s.startswith(';') or s.startswith('.'):
                out.append(ln)
                continue
            if s.endswith(':'):
                lab = s[:-1]
                seen.add(lab)
                hists = hists + fwd.get(lab, []) + back.get(lab, [])
                out.append(ln)
                continue
            c = Ins(s)
            gap = 0
            for h in hists:
                for p, age in h:
                    gap = max(gap, need(p, c) - age)
            while gap > 0:
                k = min(gap, 16)
                out.append(f'    s_nop {k - 1}')
                hists = [[(p, a + k) for p, a in h] for h in hists]
                gap -= k
            out.append(ln)
            merged = {}
            for h in hists:
                for p, a in h:
                    if a + c.states < 14:
                        key = id(p)
                        if key not in merged or merged[key][1] > a + c.states:
                            merged[key] = (p, a + c.states)
            h = list(merged.values()) + [(c, 0)]
            hists = [h]
            if c.op.startswith('s_cbranch') or c.op == 's_branch':
                tgt = c.ops[0]
                (newback if tgt in seen else fwd).setdefault(tgt, []).append(list(h))
                if c.op == 's_branch':
                    hists = [[]]
            if c.op == 's_endpgm':
                hists = [[]]
        lines, back = out, newback
    return lines


class Regs:
    def __init__(self, kind, start, end):
        self.kind, self.pos, self.end = kind, start, end
        self.hi = start

    def get(self, n=1, align=1):
        if n > 1 and align == 1:
            align = 2
        self.pos = (self.pos + align - 1) // align * align
        r = self.pos
        self.pos += n
        assert self.pos <= self.end, f'out of {self.kind} registers'
        self.hi = max(self.hi, self.pos)
        return r

    def mark(self):
        return self.pos

    def release(self, m):
        self.pos = m


def v(r, n=1):
    return f'v{r}' if n == 1 else f'v[{r}:{r + n - 1}]'


def a(r, n=1):
    return f'a{r}' if n == 1 else f'a[{r}:{r + n - 1}]'


def s(r, n=1):
    return f's{r}' if n == 1 else f's[{r}:{r + n - 1}]'


class Asm:
    def __init__(self):
        self.lines = []

    def __call__(self, text):
        for ln in text.split('\n'):
            t = ln.strip()
            if not t:
                continue
            self.lines.append(t if t.endswith(':') else '    ' + t)

    def ext(self, lst):
        for x in lst:
            self(x)


def interleave(main, fill, per=None, start=0, end=None):
    end = len(main) if end is None else end
    n = end - start
    out, done = [], 0
    for i, m in enumerate(main):
        out.append(m)
        if start <= i < end:
            tgt = (len(fill) * (i - start + 1) + n - 1) // n
            if per is not None:
                tgt = min(len(fill), done + per)
            out.extend(fill[done:tgt])
            done = max(done, tgt)
    out.extend(fill[done:])
    return out


def resolve_waits(lines):
    out, vm, lg = [], [], []
    for ln in lines:
        t = ln.strip()
        if t.startswith('@@REPLAY'):
            vm.append(t.split(';#')[1].strip() if ';#' in t else '')
            continue
        if t == 's_endpgm':
            vm.clear()
            lg.clear()
        if t.startswith('@vm') or t.startswith('@lg'):
            kind, tags = t.split(None, 1)
            q = vm if kind == '@vm' else lg
            idx = [i for i, x in enumerate(q) if x in tags.split()]
            if not idx:
                continue
            n = sum(1 for x in q[max(idx) + 1:] if x != 'cond')
            lim = 63 if kind == '@vm' else 15
            n = min(n, lim)
            out.append(f'    s_waitcnt {"vmcnt" if kind == "@vm" else "lgkmcnt"}({n})')
            del q[:max(idx) + 1]
            continue
        if t and not t.endswith(':') and not t.startswith(';') and not t.startswith('.'):
            op = t.split()[0]
            tag = t.split(';#')[1].strip() if ';#' in t else ''
            if op.startswith('buffer_') or op.startswith('global_'):
                vm.append(tag)
            elif op.startswith('ds_'):
                lg.append(tag)
            elif op == 's_waitcnt' and tag != 'cond':
                if 'vmcnt(0)' in t:
                    vm.clear()
                if 'lgkmcnt(0)' in t:
                    lg.clear()
            ln = ln.split(';#')[0].rstrip()
        out.append(ln)
    return out


def tagged(lst, tag):
    out = []
    for x in lst:
        op = x.split()[0]
        out.append(x + ' ;#' + tag if op.startswith(('buffer_', 'global_', 'ds_')) and ';#' not in x else x)
    return out


def cost(unit):
    c = 0
    for ln in unit.split('\n'):
        t = ln.strip()
        if not t or t.endswith(':') or t.endswith(';#cond') or t.startswith(';'):
            continue
        op = t.split()[0]
        if op.startswith(TRANS):
            c += 8
        elif op.startswith('ds_write_b128'):
            c += 22
        elif op.startswith('ds_write_b64'):
            c += 12
        elif op.startswith('buffer_load'):
            c += 8
        elif op.startswith('s_cbranch'):
            c += 16
        elif op == 's_barrier':
            c += 8
        elif op.startswith('v_mfma'):
            c += 8
        else:
            c += 4
    return c


def is_mem(unit):
    return any(ln.strip().split()[0].startswith(('ds_', 'buffer_', 'global_')) for ln in unit.split('\n') if ln.strip())


def spread(n, items, start=0, end=None):
    end = n if end is None else end
    d = {}
    for i, it in enumerate(items):
        d.setdefault(start + (i * (end - start)) // max(1, len(items)), []).append(it)
    return d


def merge(*ds):
    o = {}
    for d in ds:
        for k, val in d.items():
            o.setdefault(k, []).extend(val)
    return o


def sched(mf, head, tail, valu, gap, vstart=0, vend=None):
    n = len(mf)
    vend = n if vend is None else vend
    free = [max(0, gap - sum(map(cost, head.get(i, []))) - sum(map(cost, tail.get(i, [])))) for i in range(n)]
    extra = sum(gap + 8 for u in valu if u.startswith('v_mfma'))
    tot = sum(free[vstart:vend]) + extra
    ratio = sum(map(cost, valu)) / max(1, tot)
    out, k, used, avail = [], 0, 0.0, 0.0
    for i in range(n):
        out.append(mf[i])
        if vstart <= i:
            while k < len(valu) and is_mem(valu[k]):
                out.append(valu[k])
                used += cost(valu[k])
                k += 1
        out.extend(head.get(i, []))
        if vstart <= i < vend:
            avail += free[i] * ratio
            while k < len(valu) and not is_mem(valu[k]) and used + cost(valu[k]) / 2 <= avail:
                out.append(valu[k])
                used += cost(valu[k])
                if valu[k].startswith('v_mfma'):
                    avail += (gap + 8) * ratio
                k += 1
        out.extend(tail.get(i, []))
    out.extend(valu[k:])
    return out, ratio


def is_vmem(unit):
    return any(ln.strip().split()[0].startswith(('buffer_', 'global_')) for ln in unit.split('\n') if ln.strip())


def simple(u):
    return '\n' not in u and u.startswith('v_') and not u.startswith(('v_mfma', 'v_cmp', 'v_readlane')) and 'vcc' not in u and '_dpp' not in u


def pull(valu, first, k, i, room):
    if not simple(valu[k]):
        return None
    passed = [Ins(valu[k])]
    for j in range(k + 1, min(k + 6, len(valu))):
        if not simple(valu[j]) or first[j] > i:
            return None
        c = Ins(valu[j])
        if cost(valu[j]) <= room and all(not (c.wr & (p.rd | p.wr)) and not (c.rd & p.wr) for p in passed):
            return j
        passed.append(c)
    return None


def sched2(mf, head, tail, soft, segs, gap):
    n = len(mf)
    fixed = [sum(map(cost, head.get(i, []))) + sum(map(cost, tail.get(i, []))) for i in range(n)]
    free = [max(0, gap - fixed[i] - sum(map(cost, soft.get(i, [])))) for i in range(n)]
    valu, due, ratios = [], [0.0] * n, []
    first = []
    for lo, hi, vs in segs:
        extra = sum(gap + 8 for u in vs if u.startswith('v_mfma'))
        tot = sum(map(cost, vs))
        r = max(0.0, tot - extra) / max(1, sum(free[lo:hi]))
        ratios.append(round(r, 3))
        if hi - lo < 8:
            due[lo] += max(0, tot - 8 * sum(u.startswith('v_mfma') for u in vs) - gap * sum(u.startswith('v_mfma') for u in vs)) + 32
        else:
            for i in range(lo, hi):
                due[i] += free[i] * min(1.0, r * 1.08)
        first += [lo] * len(vs)
        valu += vs
    out, q, k, used, avail, over, age, vage = [], [], 0, 0.0, 0.0, 0, 0, 0
    for i in range(n):
        q += soft.get(i, [])
        room = gap - fixed[i]
        vm, ds, post = [], [], []
        while k < len(valu) and first[k] <= i and is_mem(valu[k]) and (cost(valu[k]) <= room or room == gap - fixed[i]):
            (vm if is_vmem(valu[k]) else ds).append(valu[k])
            room -= cost(valu[k])
            used += cost(valu[k])
            k += 1
        age += 1
        while q and (cost(q[0]) <= room or (cost(q[0]) > gap - 4 and (room == gap or (age > 3 and room >= gap - 4)))):
            u = q[0]
            if is_mem(u):
                if post or (is_vmem(u) and ds):
                    break
                (vm if is_vmem(u) else ds).append(u)
            else:
                post.append(u)
            room -= cost(u)
            q.pop(0)
            age = 0
        if not q:
            age = 0
        hd = head.get(i, [])
        bar = any('s_barrier' in u for u in hd)
        out.append(mf[i])
        out.extend(hd + vm + ds + post if bar else vm + hd + ds + post)
        avail += due[i]
        while k < len(valu) and first[k] <= i and not is_mem(valu[k]):
            u = valu[k]
            if u == ';gap':
                k += 1
                break
            if u.startswith('v_mfma'):
                out.append(u)
                room = gap - sum(map(cost, tail.get(i, [])))
                avail += gap
                k += 1
                continue
            c = cost(u)
            big = (c > gap - 4 and (room == gap or (vage > 2 and room >= gap - 4))) or (vage > 1 and c <= room + 4 and c >= 16)
            if c > room and not big:
                j = pull(valu, first, k, i, room)
                if j is not None:
                    valu.insert(k, valu.pop(j))
                    continue
                vage += 1
                break
            vage = 0
            out.append(u)
            used += c
            room -= c
            k += 1
        over += max(0, -room)
        out.extend(tail.get(i, []))
    left = sum(map(cost, q)) + sum(map(cost, valu[k:]))
    out.extend(q + valu[k:])
    return out, (ratios, 'over', over, 'left', left)
```

```python
import re
import sys
from asmgen import *

NAME = 'adaLN_cond__ssm_conv_s4__swiglu_ffn__prompt_kernel'
OPT = dict(ts=0, probe=-1, hprobe=-1, grp=0, nap=1, B_ord=6, B_k0=2, B_n0=3, B_n1=4, B_n2=2, B_cb1=2, B_cda=60, lw=0, dual=1, ord=1, kw=4, fw=0, pp=10, pc=20, sp=3, cb0=0, cb1=1, nb=2, w5=4, wb=24, nt=3, kb=4, x1e=3, e0=78, b1=113, b2=168, sl=34, sl1=36, sl2=46, gv=56, rm=2, la=7, pl=20, osc=2, g0=5, a0=206, g5=10, r3=188, r4=204, p0=196, f0=5, f1=9, f2=8, f3=24, nodma=0, hdelay=0, mdelay=0, exp=0, n0=6, n2=2, k0=2, xp=2, h1p=2, skip=0, pre1=1, tsb=2, n1=3, m2p=16, hbe=0, hb0=2, hb1=1, cd0=2, cd1=116, hw0=28, nc=4, se=1, s0=3, ls0=46, fs=16, q0=66, q1=82, q2=124, q3=140, q4=172, q5=180, r0=88, r1=122, r2=170, dg=8, nf=2, glc=0, na=0, cda=56, cdb=84, w2c=0, cd2=140, fa=20, gl=26, fp=8, pm=1, xo3=0, hx=1, qd=30, gb=42, re=0, hp=0, hf=0, npf=4, ha=0, hn=8)
for arg in sys.argv[2:]:
    k, val = arg.split('=')
    OPT[k] = int(val)

EP, ST1, MOD, AUG, ST2, FL2, FL3 = 0, 0x1000, 0x8000, 0x14000, 0x24000, 0xC0000, 0x40000
FL2S = 896 * 128
GO = 0x30000
INB, XS, X1P, ACT, TS = 0x100000, 0x500000, 0x700000, 0x900000, 0x1800000
SL = [0, 32768, 65536, 98304, 131072]
KG_W = 16320
HB, HC = 65024, 4160
KT, KT_CH, KT_C0 = 33792, 9152, 4568
XR = 52096
TXB = 13248
CKX = 60416
SPIN = 200000
ORDERS = ['WWWWWxWWWcccSSccccc', 'xWWWWWWWWcccSSccccc', 'xccccWWWWWWWWSScccc', 'xccccWWWWSSWWWWcccc', 'xWWWWccccSSWWWWcccc', 'xcccccWWWWWWWWSSccc',
          'xccccccWWWWSSWWWWcc', 'xWWWWWWWWccccSScccc', 'xcccWWWWWWWWcSScccc',
          'xccccccSSWWWWWWWWcc', 'xcccccccWWWWSSWWWWc', 'xccccccccWWWWSSWWWW', 'xcccccWWWWSSWWWWccc', 'WWxWWWWWWcccSSccccc', 'xWWWWWWcccSScWWcccc',
          'xcccccSSWWWWWWWWccc', 'xcccccccSSWWWWWWWWc', 'xWWWWWWcccSScccccWW', 'xWWWWWcccSScccccWWW', 'xWWWWcccSScccccWWWW']
XB = 51

pX, pAre, pAim, pBre, pBim, pCre, pCim, pLdt, pDs, pBx, pWg, pWu, pWd, pC, pWm, pOut, pDbg, pWs = range(4, 40, 2)
rX, rWS, rW, rWd, rOut, rWm = 40, 44, 48, 52, 56, 60
sWave, sTag, sJ, sMi, sNi, sMt, sNt, sRot, sLdt, sDs, sT0, sT1, sT2, sT3, sSpin, sM2 = range(64, 80)
sTS = 80
sC = 4
sD = 4
sW1k, sW8k, sWo, sFl, sTb = 11, 12, 13, 14, 15

A = Asm()
V = Regs('v', 6, 256)
TID, LANE, VST, VTAG = 0, 1, 2, 4
CODE_SLICE = 2176 if OPT['dual'] else 1152
sGi, sSo, sP, sGo, sGo2 = 36, 37, 63, 36, 37
nts = [0]


def ts(grp='0'):
    if OPT['ts'] and (grp == '*' or str(OPT['grp']) in grp):
        A(f's_mem{"real" if OPT["ts"] == 1 else ""}time {s(sTS + 2 * nts[0], 2)}')
        nts[0] += 1
        assert nts[0] <= 11


def ts_flush(tag):
    if not OPT['ts']:
        return
    pk = OPT['probe' if tag == 'm' else 'hprobe']
    if max(OPT['probe'], OPT['hprobe']) >= 0:
        if pk >= 0:
            A('s_waitcnt lgkmcnt(0)')
            A(f's_add_u32 {s(sT0)}, {s(sTS + 2 * pk)}, 6000')
            A(f'L_probe{tag}:')
            A(f's_memrealtime {s(sT2, 2)}')
            A('s_waitcnt lgkmcnt(0)')
            A(f's_sub_u32 {s(sT1)}, {s(sT2)}, {s(sT0)}')
            A(f's_cmp_lt_i32 {s(sT1)}, 0')
            A(f's_cbranch_scc1 L_probe{tag}')
        return
    n = nts[0]
    A('s_waitcnt lgkmcnt(0)')
    A(f's_lshl_b32 {s(sT0)}, s2, 2')
    A(f's_add_u32 {s(sT0)}, {s(sT0)}, {s(sWave)}')
    A(f's_lshl_b32 {s(sT0)}, {s(sT0)}, 6')
    A(f's_add_u32 {s(sT0)}, {s(sT0)}, {TS}')
    A(f'v_mov_b32 v2, {s(sT0)}')
    for i in range(n):
        A(f'v_mov_b32 v3, {s(sTS + 2 * i)}')
        A(f'buffer_store_dword v3, v2, {s(rWS, 4)}, 0 offen offset:{4 * i}')


def srd(r, p, nbytes):
    A(f's_mov_b32 {s(r)}, {s(p)}')
    A(f's_mov_b32 {s(r + 1)}, {s(p + 1)}')
    A(f's_mov_b32 {s(r + 2)}, {nbytes}')
    A(f's_mov_b32 {s(r + 3)}, 0x00020000')


def cmul(d, x, y):
    return [f'v_pk_mul_f32 {v(d, 2)}, {v(x, 2)}, {v(y, 2)} op_sel:[0,0] op_sel_hi:[1,0]',
            f'v_pk_fma_f32 {v(d, 2)}, {v(x, 2)}, {v(y, 2)}, {v(d, 2)} op_sel:[1,1,0] op_sel_hi:[0,1,1] neg_lo:[0,1,0]']


def div7(q, r, x):
    A(f's_mul_i32 {s(q)}, {s(x)}, 9363')
    A(f's_lshr_b32 {s(q)}, {s(q)}, 16')
    A(f's_mul_i32 {s(r)}, {s(q)}, 7')
    A(f's_sub_u32 {s(r)}, {s(x)}, {s(r)}')


COLD = []


def tag_wait(label, loads, tags, younger=0):
    o = [f'@vm {younger}' if isinstance(younger, str) else f's_waitcnt vmcnt({younger})']
    chk = [f'v_cmpx_eq_u32 vcc, {s(sTag)}, {v(t)}' for t in tags]
    chk += ['s_nop 0', 's_cmp_eq_u64 exec, -1', 's_mov_b64 exec, -1']
    o += chk + [f's_cbranch_scc0 {label}_re', f'{label}_ok:']
    c = [f'{label}_re:', f's_mov_b32 {s(sSpin)}, {SPIN}', f'{label}_lp:', f's_sleep {OPT["nap"]}']
    c += [x.split(';#')[0] for x in loads]
    c += ['s_waitcnt vmcnt(0)'] + chk + [f's_cbranch_scc1 {label}_ok', f's_sub_u32 {s(sSpin)}, {s(sSpin)}, 1',
                                         f's_cmp_lg_u32 {s(sSpin)}, 0', f's_cbranch_scc1 {label}_lp', f's_branch {label}_ok']
    COLD.extend(c)
    return '\n'.join(o)


def tag_units(label, loads, tags, younger, pair=None):
    chk = [f'v_cmp_ne_u32 vcc, {s(sTag)}, {v(tags[0])}']
    for t in tags[1:]:
        chk += [f'v_cmp_ne_u32 {s(sLdt, 2)}, {s(sTag)}, {v(t)}', f's_or_b64 vcc, vcc, {s(sLdt, 2)}']
    c = [f'{label}_re:', f's_mov_b32 {s(sSpin)}, {SPIN}', f'{label}_lp:', f's_sleep {OPT["nap"]}']
    c += [x.split(';#')[0] for x in loads]
    if pair is not None:
        chk = [f'v_cmp_ne_u32 {s(pair, 2)}, {s(sTag)}, {v(tags[0])}']
        c += ['s_waitcnt vmcnt(0)'] + chk + [f's_cmp_eq_u64 {s(pair, 2)}, 0', f's_cbranch_scc1 {label}_ok', f's_sub_u32 {s(sSpin)}, {s(sSpin)}, 1',
                                             f's_cmp_lg_u32 {s(sSpin)}, 0', f's_cbranch_scc1 {label}_lp', f's_branch {label}_ok']
        COLD.extend(c)
        return [f'@vm {younger}'] + chk + [f's_cmp_lg_u64 {s(pair, 2)}, 0\ns_cbranch_scc1 {label}_re\n{label}_ok:']
    c += ['s_waitcnt vmcnt(0)'] + chk + [f's_cbranch_vccz {label}_ok', f's_sub_u32 {s(sSpin)}, {s(sSpin)}, 1',
                                         f's_cmp_lg_u32 {s(sSpin)}, 0', f's_cbranch_scc1 {label}_lp', f's_branch {label}_ok']
    COLD.extend(c)
    return [f'@vm {younger}'] + chk + [f's_cbranch_vccnz {label}_re\n{label}_ok:']


def stats1_addr():
    A(f's_mov_b32 {s(rX + 2)}, 1835008')
    A(f's_mov_b32 {s(rX + 3)}, 0x00020000')
    A(f's_mov_b32 {s(rWS + 2)}, 0x10000000')
    A(f's_mov_b32 {s(rWS + 3)}, 0x00020000')
    A(f's_lshl2_add_u32 {s(sGi)}, s2, {s(sWave)}')
    A(f's_mul_i32 {s(sSo)}, {s(sGi)}, 1792')
    A(f'v_lshrrev_b32 v3, 5, {v(LANE)}')
    A('v_mul_u32_u24 v3, 896, v3')
    A(f'v_and_b32 v4, 31, {v(LANE)}')
    A('v_cmp_gt_u32 vcc, 28, v4')
    A('v_lshl_add_u32 v3, v4, 4, v3')
    A('v_bfrev_b32 v4, 2')
    A(f'v_cndmask_b32 {v(VST)}, v4, v3, vcc')


def stats1_loads(d):
    if OPT['pre1']:
        A(f's_lshl_b32 {s(sSpin)}, {s(sGi)}, 4')
        A(f's_add_u32 {s(sSpin)}, {s(sSpin)}, {ST1}')
        A(f'buffer_load_dword v5, off, {s(rWS, 4)}, {s(sSpin)}')
    A(f'buffer_load_dwordx4 {v(d, 4)}, {v(VST)}, {s(rX, 4)}, {s(sSo)} offen {"nt" if OPT["nt"] & 4 else ""}')
    A(f'buffer_load_dwordx4 {v(d + 4, 4)}, {v(VST)}, {s(rX, 4)}, {s(sSo)} offen offset:448 {"nt" if OPT["nt"] & 4 else ""}')


def stats1_compute(d):
    m = V.mark()
    g = V.get(4)
    s1, s2, one, t = V.get(), V.get(), V.get(), V.get()
    A(f'v_mov_b32 {v(one)}, 0x3f803f80')
    A(f'v_mov_b32 {v(s1)}, 0')
    A(f'v_mov_b32 {v(s2)}, 0')
    for i in range(8):
        A(f'v_dot2c_f32_bf16 {v(s1)}, {v(d + i)}, {v(one)}')
        A(f'v_dot2c_f32_bf16 {v(s2)}, {v(d + i)}, {v(d + i)}')
    for ctl in ('row_shr:1', 'row_shr:2', 'row_shr:4', 'row_shr:8'):
        for r in (s1, s2):
            A(f'v_add_f32_dpp {v(r)}, {v(r)}, {v(r)} {ctl} row_mask:0xf bank_mask:0xf bound_ctrl:1')
    for r in (s1, s2):
        A(f'v_add_f32_dpp {v(r)}, {v(r)}, {v(r)} row_bcast:15 row_mask:0xa bank_mask:0xf')
    A(f'v_mul_f32 {v(s1)}, 0x3b124925, {v(s1)}')
    A(f'v_mul_f32 {v(t)}, {v(s1)}, {v(s1)}')
    A(f'v_mov_b32 {v(one)}, 0x3b124925')
    A(f'v_fma_f32 {v(s2)}, {v(s2)}, {v(one)}, -{v(t)}')
    A(f'v_max_f32 {v(s2)}, 0, {v(s2)}')
    A(f'v_add_f32 {v(s2)}, 0x3727c5ac, {v(s2)}')
    A(f'v_rsq_f32 {v(g + 2)}, {v(s2)}')
    A(f'v_mov_b32 {v(g + 3)}, {s(sTag)}')
    A(f'v_mul_f32 {v(s1)}, {v(s1)}, {v(g + 2)}')
    A(f'v_readlane_b32 {s(sT1)}, {v(g + 2)}, 31')
    A(f'v_readlane_b32 {s(sT2)}, {v(s1)}, 31')
    A(f's_lshl_b32 {s(sT0)}, {s(sGi)}, 4')
    A(f's_add_u32 {s(sT0)}, {s(sT0)}, {ST1}')
    A(f'v_mov_b32 {v(g + 1)}, {s(sT1)}')
    A(f'v_cvt_pk_bf16_f32 {v(g)}, -{s(sT2)}, -{v(s1)}')
    A('s_mov_b32 exec_lo, 0')
    A('s_mov_b32 exec_hi, 0x80000000')
    A(f'buffer_store_dwordx4 {v(g, 4)}, off, {s(rWS, 4)}, {s(sT0)} sc1')
    A('s_mov_b64 exec, -1')
    V.release(m)


def reduce8(acc):
    for j in range(4):
        A(f'v_permlane32_swap_b32 {v(acc + j)}, {v(acc + j + 4)}')
    for j in range(4):
        A(f'v_add_f32 {v(acc + j)}, {v(acc + j)}, {v(acc + j + 4)}')
    for j in range(2):
        A(f'v_permlane16_swap_b32 {v(acc + j)}, {v(acc + j + 2)}')
    for j in range(2):
        A(f'v_add_f32 {v(acc + j)}, {v(acc + j)}, {v(acc + j + 2)}')
    for j in range(2):
        A(f'v_add_f32_dpp {v(acc + j)}, {v(acc + j)}, {v(acc + j)} row_ror:8 row_mask:0xf bank_mask:0xf')


def bf16_pair_from_partials(dst, g0, g1, plus1):
    A(f'v_add_f32 {v(dst)}, {v(g0)}, {v(g1)}')
    A(f'v_add_f32 {v(dst + 1)}, {v(g0 + 1)}, {v(g1 + 1)}')
    A(f'v_cvt_pk_bf16_f32 {v(g0)}, {v(dst)}, {v(dst + 1)}')
    A(f'v_lshlrev_b32 {v(dst)}, 16, {v(g0)}')
    A(f'v_and_b32 {v(dst + 1)}, 0xffff0000, {v(g0)}')
    if plus1:
        A(f'v_add_f32 {v(dst)}, 1.0, {v(dst)}')
        A(f'v_add_f32 {v(dst + 1)}, 1.0, {v(dst + 1)}')
        A(f'v_cvt_pk_bf16_f32 {v(g0)}, {v(dst)}, {v(dst + 1)}')
        A(f'v_lshlrev_b32 {v(dst)}, 16, {v(g0)}')
        A(f'v_and_b32 {v(dst + 1)}, 0xffff0000, {v(g0)}')


def prologue():
    A('s_cmp_ge_u32 s2, 256')
    A('s_cbranch_scc1 L_end')
    ts('*')
    A(f's_load_dwordx2 {s(rX, 2)}, s[0:1], 0')
    A(f's_load_dwordx2 {s(rWS, 2)}, s[0:1], 136')
    A('s_load_dwordx16 s[4:19], s[0:1], 0')
    A('s_load_dwordx16 s[20:35], s[0:1], 64')
    A(f's_getpc_b64 {s(sT2, 2)}')
    A('L_pc:')
    A(f's_lshr_b32 {s(sT0)}, s2, 3')
    A(f's_mul_i32 {s(sT0)}, {s(sT0)}, {CODE_SLICE}')
    A(f'v_lshrrev_b32 v3, 6, {v(TID)}')
    A(f'v_min_u32 v4, {CODE_SLICE // 128 - 1}, {v(TID)}')
    A(f'v_lshl_add_u32 v4, v4, 7, {s(sT0)}')
    A('v_min_u32 v4, L_code_end-L_pc-4, v4')
    A(f'v_readfirstlane_b32 {s(sWave)}, v3')
    A(f'v_and_b32 {v(LANE)}, 63, {v(TID)}')
    A(f'global_load_dword v5, v4, {s(sT2, 2)}')
    A(f's_sub_u32 {s(sJ)}, s2, 32')
    A('s_cbranch_scc1 L_helper')


UEXP = {}
for vv in range(14):
    for hh in range(2):
        if vv < 4:
            e = 4 * hh + vv
        elif vv < 7:
            e = 256 + 4 * hh + 2 * (vv - 4)
        elif vv < 10:
            e = 512 + 256 * hh + 4 * (vv - 7)
        elif vv < 12:
            e = 1024 + 512 * hh + 8 * (vv - 10)
        else:
            e = 1280 + 512 * hh + 8 * (vv - 12)
        rho = 8 * (vv >> 2) + 4 * hh + (vv & 3)
        UEXP.setdefault(e, []).append(rho if rho < 26 else rho - 2)


def stage_dma(cc, slot, voff, rsrc, rowb):
    out = []
    for i in range(8):
        u = ''
        if i % 4 == 0:
            u += f's_add_u32 m0, {s(sW8k)}, {SL[slot] + 1024 * i}\n'
        if i == 0:
            u += f's_mul_i32 {s(sWo)}, {s((sC if rsrc == rW else sD) + cc)}, {rowb // 64}\n'
        else:
            u += f's_add_u32 {s(sWo)}, {s(sWo)}, {8 * rowb + (3072 if i == 4 else -1024)}\n'
        u += f'buffer_load_dwordx4 {v(voff)}, {s(rsrc, 4)}, {s(sWo)} offen offset:{1024 * (i % 4)} lds'
        out.append(u)
    return out


def w_dma(cc, slot, P):
    return stage_dma(cc, slot, P['vW'], rW, 3584)


def wd_dma(cc, slot, P):
    return stage_dma(cc, slot, P['vWd'], rWd, 896)


def w_frags(cc, slot, P):
    out = []
    base, off = P['vWr'][slot // 2], 32768 * (slot % 2)
    for ks in range(4):
        for mat in range(2):
            for e in range(2):
                r = (mat * 28 + cc * 4 + ks) * 4 + 2 * e
                out.append(f'ds_read_b64_tr_b16 {a(r, 2)}, {v(base)} offset:{off + mat * 16384 + (16 * ks + 4 * e) * 128}')
    return out


def wdreg(cc, j, db, P):
    i = (j * 4 + db) * 4
    if cc == 0:
        return 'a', 224 + i
    if cc < 3:
        return 'v', P['wdv'] + 32 * (cc - 1) + i
    return 'a', 32 * (cc - 3) + i


def rn(kr, n):
    return (a if kr[0] == 'a' else v)(kr[1], n)


def wd_addr(slot, P):
    d = P['vDr']
    return [f'v_xor_b32 {v(d[1 + db])}, {SL[slot & ~1] + 32 * db}, {v(d[0])}' for db in range(4)]


def wd_frags(cc, slot, P):
    o = []
    for j in range(2):
        for db in range(4):
            k, r = wdreg(cc, j, db, P)
            for e in range(2):
                o.append(f'ds_read_b64_tr_b16 {rn((k, r + 2 * e), 2)}, {v(P["vDr"][1 + db])} offset:{32768 * (slot % 2) + (32 * j + 8 * e) * 128} ;#df{cc}')
    o[0] = f'@vm d{cc}\n' + o[0]
    return o


def flat(units):
    return [ln for u in units for ln in u.split('\n') if ln.strip()]


def tr_lane(dst, t0, t1, hmul, rowb):
    A(f'v_lshrrev_b32 {v(t0)}, 5, {v(LANE)}')
    A(f'v_bfe_u32 {v(t1)}, {v(LANE)}, 2, 2')
    A(f'v_lshl_add_u32 {v(t0)}, {v(t0)}, {hmul.bit_length() - 1}, {v(t1)}')
    A(f'v_lshlrev_b32 {v(dst)}, {rowb.bit_length() - 1}, {v(t0)}')
    A(f'v_bfe_u32 {v(t1)}, {v(LANE)}, 4, 1')
    A(f'v_lshl_add_u32 {v(dst)}, {v(t1)}, 5, {v(dst)}')
    A(f'v_and_b32 {v(t1)}, 3, {v(LANE)}')
    A(f'v_lshl_add_u32 {v(dst)}, {v(t1)}, 3, {v(dst)}')


def flag_store(vTag, soff):
    return ('s_mov_b64 exec, 1\n'
            f'buffer_store_dword {v(vTag)}, off, {s(rWS, 4)}, {s(soff)} sc1 ;#fl\n'
            's_mov_b64 exec, -1')


def capture(fn):
    keep, A.lines = A.lines, []
    fn()
    got, A.lines = [x.strip() for x in A.lines], keep
    return got


def main_ssm():
    P = {}
    V.release(2)
    V.get(4)
    vWd = V.get()
    vDr = [V.get() for _ in range(5)]
    vW = V.get()
    vWr = [V.get() for _ in range(3)]
    vXr = [V.get() for _ in range(3)]
    vFp = V.get()
    P.update(vW=vW, vWr=vWr, vWd=vWd, vDr=vDr, vXr=vXr, vFp=vFp)
    mp = V.mark()
    vM, aA, aB, aE, a0, aO, aO2, aXr, one = [V.get() for _ in range(9)]
    aX, aF, vG = V.get(), V.get(), V.get()
    M = V.get(4)
    sa, c1 = V.get(2), V.get(2)
    GB, SB = V.get(4), V.get(8)
    mb = V.mark()
    vI, aZ = V.get(), V.get()
    GA, SA = V.get(4), V.get(8)
    Gk = [GA, GA + 2, GB, GB + 2]
    Sk = [SA, SA + 4, SB, SB + 4]
    mk = V.mark()
    par = V.get(6)
    T = V.get(16, 4)
    st = V.get(8)
    q, tp, t0, t1, t2, vPf = [V.get() for _ in range(6)]
    dt = V.get(2)
    aU, aV, ax, ay, aK, aK2 = [V.get() for _ in range(6)]
    fU, fV = V.get(32), V.get(32)
    e2, rv = V.get(), V.get()
    B_, C_, W_, z1, z2, z4, z8, z256 = [V.get(2) for _ in range(8)]
    pp = [V.get(2) for _ in range(4)]
    cv = [V.get() for _ in range(8)]
    sKG, sKT, sOdd = 38, 39, 23
    sGa, sCb, sHm = 30, 32, 60
    A(f's_and_b32 {s(sT2)}, {s(sJ)}, 7')
    A(f's_lshr_b32 {s(sT3)}, {s(sJ)}, 3')
    A(f's_mul_i32 {s(sP)}, {s(sT2)}, 28')
    A(f's_add_u32 {s(sP)}, {s(sP)}, {s(sT3)}')
    A(f's_lshl_b32 {s(sT0)}, {s(sP)}, 10')
    A(f'v_lshl_add_u32 {v(t1)}, {v(TID)}, 2, {s(sT0)}')
    A(f's_lshl_b32 {s(sT1)}, {s(sP)}, 2')
    A('s_waitcnt lgkmcnt(0)')
    ts('1')
    for i, p in enumerate((pAre, pAim, pBre, pBim, pCre, pCim)):
        A(f'global_load_dword {v(par + i)}, {v(t1)}, {s(p, 2)} {"nt" if OPT["nt"] & 1 else ""} ;#par')
    A(f's_load_dword {s(sLdt)}, {s(pLdt, 2)}, {s(sT1)}')
    A(f's_load_dword {s(sDs)}, {s(pDs, 2)}, {s(sT1)}')
    A(f's_load_dword {s(sTag)}, {s(rWS, 2)}, {EP}')
    stats1_addr()
    A(f'v_min_u32 {v(t0)}, 147, {v(TID)}')
    A(f'v_lshrrev_b32 {v(t2)}, 1, {v(t0)}')
    A(f'v_mul_u32_u24 {v(t2)}, 896, {v(t2)}')
    A(f'v_and_b32 {v(t0)}, 1, {v(t0)}')
    A(f'v_mul_u32_u24 {v(t0)}, 108, {v(t0)}')
    A(f'v_add_u32 {v(t0)}, {v(t0)}, {v(t2)}')
    A(f's_mul_i32 {s(sT0)}, {s(sT3)}, {74 * 8}')
    A(f's_add_u32 {s(sT0)}, {s(sT0)}, {s(sT2)}')
    A(f's_mul_i32 {s(sT0)}, {s(sT0)}, 112')
    A.ext(tagged(capture(lambda: stats1_loads(st)), 'xa'))
    A(f'v_add_u32 {v(vPf)}, {s(sT0)}, {v(t0)}')
    xpf = f'buffer_load_dword v5, {v(vPf)}, {s(rX, 4)}, 0 offen'
    A(f'v_mul_u32_u24 {v(vG)}, 1792, {v(LANE)}')
    A(f's_mul_i32 {s(sM2)}, {s(sWave)}, {128 * 1792}')
    A(f's_add_u32 {s(sM2)}, {s(sM2)}, {s(sT1)}')
    col = []
    for k in range(4):
        col.append(f'buffer_load_dword {v(Gk[k])}, {v(vG)}, {s(rX, 4)}, {s(sM2)} offen ;#col{k // 2}')
        col.append(f'buffer_load_dword {v(Gk[k] + 1)}, {v(vG)}, {s(rX, 4)}, {s(sM2)} offen offset:896 ;#col{k // 2}\ns_add_u32 {s(sM2)}, {s(sM2)}, {(448 if k == 1 else 64) * 1792}')
    A(f's_and_b32 {s(sOdd)}, {s(sWave)}, 1')
    A(f's_mul_i32 {s(sKG)}, {s(sWave)}, {KG_W}')
    A(f's_lshr_b32 {s(sT2)}, {s(sWave)}, 1')
    A(f's_mul_i32 {s(sKT)}, {s(sT2)}, {KT_CH}')
    A(f's_add_u32 {s(sKT)}, {s(sKT)}, {KT}')
    A(f'v_and_b32 {v(t0)}, 31, {v(LANE)}')
    A(f'v_lshrrev_b32 {v(t1)}, 5, {v(LANE)}')
    A(f'v_lshl_add_u32 {v(t2)}, {v(t1)}, 4, {s(sKG)}')
    A(f'v_mul_u32_u24 {v(aV)}, 272, {v(t0)}')
    A(f'v_add_u32 {v(aV)}, {v(aV)}, {v(t2)}')
    A(f'v_cmp_lt_u32 vcc, 27, {v(t0)}')
    A(f'v_add_u32 {v(aU)}, {32 * 272}, {v(aV)}')
    A(f'v_add_u32 {v(t2)}, {30 * 272}, {v(aV)}')
    A(f'v_cndmask_b32 {v(aU)}, {v(aU)}, {v(t2)}, vcc')
    A(f'v_lshlrev_b32 {v(t0)}, 4, {v(t0)}')
    A(f'v_sub_u32 {v(t0)}, {s(sKT)}, {v(t0)}')
    A(f'v_lshlrev_b32 {v(aK)}, 3, {v(t1)}')
    A(f'v_sub_u32 {v(aK)}, {v(t0)}, {v(aK)}')
    A(f's_add_u32 {s(sT0)}, {s(sOdd)}, 9')
    A(f'v_lshlrev_b32 {v(aK2)}, {s(sT0)}, {v(t1)}')
    A(f'v_sub_u32 {v(aK2)}, {v(t0)}, {v(aK2)}')
    A(f'v_lshl_add_u32 {v(ax)}, {v(LANE)}, 4, {s(sKG)}')
    A(f's_xor_b32 {s(sT0)}, {s(sWave)}, 1')
    A(f's_mul_i32 {s(sT0)}, {s(sT0)}, {KG_W}')
    A(f'v_lshl_add_u32 {v(ay)}, {v(LANE)}, 4, {s(sT0)}')
    A(f's_lshl_b32 {s(sT0)}, {s(sWave)}, 11')
    A(f'v_lshl_add_u32 {v(vI)}, {v(LANE)}, 4, {s(sT0)}')
    A(f'v_and_b32 {v(t0)}, 3, {v(LANE)}')
    A(f'v_mul_u32_u24 {v(vM)}, 3584, {v(t0)}')
    A(f's_lshl_b32 {s(sT0)}, {s(sP)}, 4')
    A(f's_add_u32 {s(sT0)}, {s(sT0)}, {MOD}')
    A(f'v_add_u32 {v(vM)}, {s(sT0)}, {v(vM)}')
    A(f'v_bfe_u32 {v(one)}, {v(LANE)}, 1, 1')
    A(f'v_cvt_f32_u32 {v(one)}, {v(one)}')
    A(f'v_mov_b32 {v(cv[7])}, 0x3f80')
    A(f's_mov_b32 m0, {s(sKG)}')
    A(f's_lshl_b32 {s(sW1k)}, {s(sWave)}, 10')
    A(f's_lshl_b32 {s(sW8k)}, {s(sWave)}, 13')
    A(f'ds_write_addtid_b32 {v(cv[7])}')

    def late_setup():
        A(f'v_lshrrev_b32 {v(q)}, 3, {v(LANE)}')
        A(f'v_and_b32 {v(tp)}, 7, {v(LANE)}')
        A(f's_lshr_b32 {s(sT0)}, {s(sJ)}, 3')
        div7(sMi, sNi, sT0)
        A(f's_bfe_u32 {s(sT1)}, {s(sJ)}, 0x20001')
        A(f's_lshl2_add_u32 {s(sMt)}, {s(sT1)}, {s(sMi)}')
        A(f's_and_b32 {s(sT1)}, {s(sJ)}, 1')
        A(f's_mul_i32 {s(sNt)}, {s(sT1)}, 7')
        A(f's_add_u32 {s(sNt)}, {s(sNt)}, {s(sNi)}')
        A((f's_mov_b32 {s(sRot)}, {s(sNi)}', f's_add_u32 {s(sRot)}, {s(sMi)}, {s(sNi)}', f's_lshl1_add_u32 {s(sRot)}, {s(sMi)}, {s(sNi)}')[OPT['rm']])
        A(f's_lshl_b32 {s(sRot)}, {s(sRot)}, 2')
        A(f's_mov_b32 {s(sT2)}, 0x06543210')
        A(f's_mov_b32 {s(sT3)}, 0x10654321')
        A(f's_cmp_ge_u32 {s(sRot)}, 28\ns_cselect_b32 {s(sT1)}, 28, 0')
        A(f's_sub_u32 {s(sRot)}, {s(sRot)}, {s(sT1)}')
        A(f's_lshr_b64 {s(sT2, 2)}, {s(sT2, 2)}, {s(sRot)}')
        A(f's_cmp_lt_u32 {s(sWave)}, 2')
        A(f's_cselect_b64 {s(rW, 2)}, {s(pWg, 2)}, {s(pWu, 2)}')
        A(f's_mov_b32 {s(rW + 2)}, 1605632')
        A(f's_mov_b32 {s(rW + 3)}, 0x00020000')
        for cc in range(7):
            A(f's_bfe_u32 {s(sT0)}, {s(sT2)}, {hex(0x30000 + 4 * cc)}')
            A(f's_lshl_b32 {s(sC + cc)}, {s(sT0)}, 12')
        A(f'v_lshlrev_b32 {v(t0)}, 1, {v(q)}')
        A(f'v_and_b32 {v(t0)}, 4, {v(t0)}')
        A(f'v_xor_b32 {v(t0)}, {v(t0)}, {v(tp)}')
        A(f'v_lshlrev_b32 {v(t0)}, 4, {v(t0)}')
        A(f's_lshl1_add_u32 {s(sT0)}, {s(sNt)}, {s(sOdd)}')
        A(f's_lshl_b32 {s(sT0)}, {s(sT0)}, 7')
        A(f'v_mul_u32_u24 {v(vW)}, 3584, {v(q)}')
        A(f'v_add3_u32 {v(vW)}, {v(vW)}, {v(t0)}, {s(sT0)}')
        A(f's_mul_i32 {s(sT0)}, {s(sWave)}, {448 * 7}')
        A(f's_add_u32 {s(sT0)}, {s(sT0)}, {s(sNi)}')
        A(f's_lshl_b32 {s(sT0)}, {s(sT0)}, 7')
        A(f'v_and_b32 {v(t0)}, 6, {v(q)}')
        A(f'v_xor_b32 {v(t0)}, {v(t0)}, {v(tp)}')
        A(f'v_lshlrev_b32 {v(t0)}, 4, {v(t0)}')
        A(f'v_mul_u32_u24 {v(vWd)}, 896, {v(q)}')
        A(f'v_add3_u32 {v(vWd)}, {v(vWd)}, {v(t0)}, {s(sT0)}')
        A(f's_lshr_b32 {s(sT2)}, {s(sWave)}, 1')
        A(f's_lshl_b32 {s(sT1)}, {s(sOdd)}, 8')
        A(f's_mul_i32 {s(sT0)}, {s(sT2)}, {4 * HC}')
        A(f's_add_u32 {s(sT0)}, {s(sT0)}, {s(sT1)}')
        A(f's_add_u32 {s(sT0)}, {s(sT0)}, {HB}')
        A(f's_add_u32 {s(sT1)}, {s(sT1)}, {s(sKT)}')
        A(f's_add_u32 {s(sT1)}, {s(sT1)}, {KT_C0 + 4040 - 3584}')
        A(f'v_lshrrev_b32 {v(t0)}, 4, {v(LANE)}')
        A(f'v_bfe_u32 {v(t1)}, {v(LANE)}, 2, 2')
        A(f'v_add_u32 {v(t1)}, {v(t1)}, {v(t0)}')
        A(f'v_and_b32 {v(t2)}, 3, {v(LANE)}')
        A(f'v_mul_u32_u24 {v(e2)}, {HC}, {v(t2)}')
        A(f'v_lshl_add_u32 {v(aA)}, {v(t1)}, 4, {v(e2)}')
        A(f'v_add_u32 {v(aA)}, {s(sT0)}, {v(aA)}')
        A(f'v_lshl_add_u32 {v(aB)}, {v(t0)}, 4, {s(sT1)}')
        A(f'v_lshlrev_b32 {v(t1)}, 6, {v(tp)}')
        A(f'v_sub_u32 {v(aB)}, {v(aB)}, {v(t1)}')
        A(f'v_and_b32 {v(t1)}, 1, {v(q)}')
        A(f'v_mul_u32_u24 {v(t1)}, {KT_C0 + 8}, {v(t1)}')
        A(f'v_sub_u32 {v(aB)}, {v(aB)}, {v(t1)}')
        A(f'v_lshrrev_b32 {v(t0)}, 4, {v(TID)}')
        A(f'v_and_b32 {v(t1)}, 1, {v(q)}')
        A(f'v_lshl_add_u32 {v(t0)}, {v(t0)}, 2, {v(t1)}')
        A(f'v_mul_u32_u24 {v(t0)}, 28672, {v(t0)}')
        A(f'v_lshl_add_u32 {v(aO2)}, {v(tp)}, 4, {v(t0)}')
        A(f'v_lshrrev_b32 {v(t1)}, 1, {v(tp)}')
        A(f'v_lshl_add_u32 {v(t0)}, {v(t1)}, 4, {v(t0)}')
        A(f'v_and_b32 {v(t1)}, 1, {v(tp)}')
        A(f'v_lshl_add_u32 {v(aO)}, {v(t1)}, 6, {v(t0)}')
        A(f'v_xor_b32 {v(t1)}, {v(tp)}, {v(q)}')
        A(f'v_lshl_add_u32 {v(t1)}, {v(tp)}, 3, {v(t1)}')
        A(f's_lshl_b32 {s(sT0)}, {s(sWave)}, 12')
        A(f'v_lshl_add_u32 {v(aE)}, {v(t1)}, 4, {s(sT0)}')
        A(f'v_mul_u32_u24 {v(aZ)}, {HC}, {v(q)}')
        A(f'v_lshl_add_u32 {v(aZ)}, {v(tp)}, 3, {v(aZ)}')
        A(f'v_add_u32 {v(aZ)}, {HB}, {v(aZ)}')
        A(f'v_lshrrev_b32 {v(aX)}, 1, {v(vI)}')
        A(f'v_add_u32 {v(aX)}, {XR}, {v(aX)}')
        A(f's_lshl_b32 {s(sHm)}, {s(sWave)}, 9')
        A(f's_add_u32 {s(sHm)}, {s(sHm)}, {HB}')
        A(f's_add_u32 {s(sT1)}, {s(sHm)}, 512')
        A(f's_add_u32 {s(sT0)}, {s(sHm)}, 2')
        A(f'v_mov_b32 {v(aF)}, {s(sT1)}')
        A(f'v_writelane_b32 {v(aF)}, {s(sT0)}, 0')
        A(f'v_lshlrev_b32 {v(aXr)}, 4, {v(TID)}')
        A(f'v_xor_b32 {v(t0)}, {v(TID)}, {v(q)}')
        A(f'v_lshlrev_b32 {v(a0)}, 4, {v(t0)}')
        A(f's_lshl_b32 {s(sGo)}, {s(sMt)}, 8')
        A(f's_add_u32 {s(sGo)}, {s(sGo)}, {GO}')
        A(f'v_mov_b32 {v(VTAG)}, {s(sTag)}')
        A(f's_mul_i32 {s(sFl)}, {s(sWave)}, 224')
        A(f's_add_u32 {s(sFl)}, {s(sFl)}, {s(sJ)}')
        A(f's_lshl_b32 {s(sFl)}, {s(sFl)}, 7')
        A(f's_add_u32 {s(sFl)}, {s(sFl)}, {FL2}')

    def window_setup(t0, t1, t2, t3, t4):
        srd(rWd, pWd, 1605632)
        srd(rOut, pOut, 1835008)
        A(f'v_lshrrev_b32 {v(t1)}, 5, {v(LANE)}')
        A(f'v_bfe_u32 {v(t0)}, {v(LANE)}, 4, 1')
        A(f'v_and_b32 {v(t2)}, 3, {v(LANE)}')
        A(f'v_lshlrev_b32 {v(t2)}, 3, {v(t2)}')
        A(f'v_lshl_add_u32 {v(t2)}, {v(t0)}, 5, {v(t2)}')
        A(f'v_bfe_u32 {v(t0)}, {v(LANE)}, 2, 2')
        A(f'v_lshl_add_u32 {v(t3)}, {v(t1)}, 3, {v(t0)}')
        A(f'v_lshl_add_u32 {v(vXr[0])}, {v(t3)}, 6, {v(t2)}')
        A(f'v_and_b32 {v(t0)}, 8, {v(LANE)}')
        A(f'v_lshl_add_u32 {v(t2)}, {v(t0)}, 3, {v(t2)}')
        A(f'v_bfe_u32 {v(t4)}, {v(LANE)}, 2, 3')
        A(f'v_lshl_add_u32 {v(t1)}, {v(t1)}, 4, {v(t4)}')
        A(f'v_lshrrev_b32 {v(t4)}, 1, {v(t4)}')
        A(f'v_lshlrev_b32 {v(t4)}, 5, {v(t4)}')
        A(f'v_lshl_add_u32 {v(t4)}, {v(t1)}, 7, {v(t4)}')
        A(f'v_and_b32 {v(t1)}, 3, {v(LANE)}')
        A(f'v_lshl_add_u32 {v(t4)}, {v(t1)}, 3, {v(t4)}')
        A(f'v_add_u32 {v(vDr[0])}, {s(sW8k)}, {v(t4)}')
        A.ext(wd_addr(2, P))
        A(f's_lshr_b32 {s(sT0)}, {s(sWave)}, 1')
        A(f's_lshl_b32 {s(sT0)}, {s(sT0)}, 7')
        A(f's_add_u32 {s(sT0)}, {s(sT0)}, {s(sOdd)}')
        A(f's_lshl_b32 {s(sT0)}, {s(sT0)}, 6')
        A(f'v_lshl_add_u32 {v(vWr[0])}, {v(t3)}, 7, {v(t2)}')
        A(f'v_xor_b32 {v(vWr[0])}, {s(sT0)}, {v(vWr[0])}')
        for i in range(1, 3):
            A(f'v_add_u32 {v(vXr[i])}, 65536, {v(vXr[i - 1])}')
            A(f'v_add_u32 {v(vWr[i])}, 65536, {v(vWr[i - 1])}')
    P['window_setup'] = window_setup
    def mkpairs(cc, slot, vo_, rs, rowb, tg):
        o = []
        for i in range(4):
            u = [f's_add_u32 m0, {s(sW8k)}, {SL[slot] + 2048 * i}']
            u.append(f's_mul_i32 {s(sWo)}, {s(sC + cc)}, {rowb // 64}' if i == 0 else f's_add_u32 {s(sWo)}, {s(sWo)}, {8 * rowb + 1024}')
            u.append(f'buffer_load_dwordx4 {v(vo_)}, {s(rs, 4)}, {s(sWo)} offen {"nt" if OPT["nt"] & 8 else ""} lds ;#{tg}{cc}')
            u.append(f's_add_u32 {s(sWo)}, {s(sWo)}, {8 * rowb - 1024}')
            u.append(f'buffer_load_dwordx4 {v(vo_)}, {s(rs, 4)}, {s(sWo)} offen offset:1024 {"nt" if OPT["nt"] & 8 else ""} lds ;#{tg}{cc}')
            o.append('\n'.join(u))
        return o
    early = [u + f'\ns_mov_b32 m0, {s(sKG)}' for u in mkpairs(0, 3, vW, rW, 3584, 'w') + mkpairs(1, 4, vW, rW, 3584, 'w')]
    ls = capture(late_setup)
    A.ext(ls[:OPT['ls0']])
    A('@@SPLIT')
    mld = [f'buffer_load_dwordx4 {v(M, 4)}, {v(vM)}, {s(rWS, 4)}, 0 offen sc1 ;#m']
    h1 = []
    for k in range(4):
        if k % 2 == 0:
            h1.append(f's_mov_b32 {s(sSo)}, {ST1 + 4096 * k}')
        h1.append(f'buffer_load_dwordx4 {v(Sk[k], 4)}, {v(vI)}, {s(rWS, 4)}, {s(sSo)} offen offset:{1024 * (k % 2)} sc1 ;#h1')
    src = {'W': list(early), 'c': list(col), 'x': [xpf], 'S': [mld[0] + '\n' + '\n'.join(h1[:3]), '\n'.join(h1[3:])]}
    order = ORDERS[OPT['ord']]
    allv = [src[ch].pop(0) for ch in order]
    assert not any(src.values())
    need = max(order.rindex('S'), [i for i, ch in enumerate(order) if ch == 'c'][3], 0 if OPT['lw'] else [i for i, ch in enumerate(order) if ch == 'W'][3]) + 1
    K0 = OPT['k0']
    A.ext(allv[:K0])
    ts('1')
    A('s_waitcnt lgkmcnt(0)')
    A(f's_add_u32 {s(sTag)}, {s(sTag)}, 1')
    A(f's_lshl_b32 {s(sT0)}, {s(sLdt)}, 16')
    A(f's_and_b32 {s(sT1)}, {s(sLdt)}, 0xffff0000')
    A(f's_lshl_b32 {s(sT2)}, {s(sDs)}, 16')
    A(f's_and_b32 {s(sT3)}, {s(sDs)}, 0xffff0000')
    A(f's_cmp_lt_u32 {s(sWave)}, 2')
    A(f's_cselect_b32 {s(sLdt)}, {s(sT0)}, {s(sT1)}')
    A(f's_cselect_b32 {s(sDs)}, {s(sT2)}, {s(sT3)}')
    A(f'v_mov_b32 {v(t0)}, 0x3fb8aa3b')
    A(f'v_mul_f32 {v(dt)}, {s(sLdt)}, {v(t0)}')
    A(f'v_exp_f32 {v(dt)}, {v(dt)}')
    A(f'v_cvt_pk_bf16_f32 {v(dt)}, {v(dt)}, {v(dt)}')
    A(f'v_lshlrev_b32 {v(dt)}, 16, {v(dt)}')
    A('@vm par')
    ts('016')

    def setup(it):
        o = []
        un = (lambda d, x: f'v_lshlrev_b32 {v(d)}, 16, {v(x)}') if it == 0 else (lambda d, x: f'v_and_b32 {v(d)}, 0xffff0000, {v(x)}')
        o += [un(e2, par), un(rv, par + 1), un(B_, par + 2), un(B_ + 1, par + 3), un(C_, par + 4), un(C_ + 1, par + 5)]
        o += [f'v_mul_f32 {v(e2)}, {v(dt)}, {v(e2)}', f'v_mul_f32 {v(rv)}, {v(dt)}, {v(rv)}',
              f'v_mul_f32 {v(e2)}, 0x3fb8aa3b, {v(e2)}', f'v_mul_f32 {v(rv)}, 0.15915494, {v(rv)}',
              f'v_mul_f32 {v(B_)}, {v(dt)}, {v(B_)}', f'v_mul_f32 {v(B_ + 1)}, {v(dt)}, {v(B_ + 1)}']
        for z, p in ((z8, 0x41000000), (z1, None), (z256, 0x43800000)):
            if p is None:
                o += [f'v_exp_f32 {v(t0)}, {v(e2)}', f'v_fract_f32 {v(t1)}, {v(rv)}']
            else:
                o += [f'v_mul_f32 {v(t0)}, {hex(p)}, {v(e2)}', f'v_mul_f32 {v(t1)}, {hex(p)}, {v(rv)}',
                      f'v_exp_f32 {v(t0)}, {v(t0)}', f'v_fract_f32 {v(t1)}, {v(t1)}']
            o += [f'v_cos_f32 {v(z)}, {v(t1)}', f'v_sin_f32 {v(z + 1)}, {v(t1)}',
                  f'v_mul_f32 {v(z)}, {v(z)}, {v(t0)}', f'v_mul_f32 {v(z + 1)}, {v(z + 1)}, {v(t0)}']
        return o

    vals = []

    def put(pre, x, rows, neg):
        c = cv[len(vals) % 8]
        vals.append((pre + [f'v_cvt_pk_bf16_f32 {v(c)}, {v(x)}, {"-" if neg else ""}{v(x + 1)}'],
                     [f'ds_write_addtid_b32 {v(c)} offset:{272 * r}' for r in rows]))

    def putU(pre, x, e):
        put(pre, x, [32 + r for r in UEXP[e]], True)

    put(cmul(z2, z1, z1), z8, [1], False)
    putU(cmul(W_, C_, B_) + cmul(z4, z2, z2), W_, 0)
    cur = z8
    for j in range(2, 32):
        put(cmul(pp[j % 2], cur, z8), pp[j % 2], [j], False)
        cur = pp[j % 2]
    cur = W_
    for e in range(1, 8):
        putU(cmul(pp[e % 2], cur, z1), pp[e % 2], e)
        cur = pp[e % 2]
    qc = W_
    for k in range(1, 8):
        qn = pp[2 + k % 2]
        putU(cmul(qn, qc, z256), qn, 256 * k)
        qc = qn
        step, zz, n = (2, z2, 4) if k == 1 else ((4, z4, 2) if k < 4 else (8, z8, 1))
        cur = qn
        for i in range(1, n + 1):
            putU(cmul(pp[i % 2], cur, zz), pp[i % 2], 256 * k + step * i)
            cur = pp[i % 2]

    rb = [f'v_cvt_pk_bf16_f32 {v(M + 2)}, {v(M)}, {v(M + 1)}', f'v_lshlrev_b32 {v(M)}, 16, {v(M + 2)}', f'v_and_b32 {v(M + 1)}, 0xffff0000, {v(M + 2)}']
    mprep = [f'v_add_f32_dpp {v(M + ch)}, {v(M + ch)}, {v(M + ch)} quad_perm:[1,0,3,2] row_mask:0xf bank_mask:0xf' for ch in range(2)]
    mprep += rb + [f'v_add_f32 {v(M + ch)}, {v(M + ch)}, {v(one)}' for ch in range(2)] + rb

    rest = mkpairs(0, 3, vWd, rWd, 896, 'd') + mkpairs(2, 4, vW, rW, 3584, 'w')
    NB = OPT['kb']
    nbat = (len(vals) + NB - 1) // NB
    vdone = (32 + NB - 1) // NB

    def chains(dm, extra={}):
        dd = spread(nbat, dm, 0, nbat - 1)
        vr = spread(nbat, [f'ds_read_b128 {v(fV + 4 * ks, 4)}, {v(aV)} offset:{32 * ks}' for ks in range(8)], vdone, nbat - 1)
        for bi in range(nbat):
            grp = vals[NB * bi:NB * bi + NB]
            A('.p2align 3')
            for x in grp:
                A.ext(x[0])
            A.ext(extra.get(bi, []))
            A.ext(dd.get(bi, []))
            A.ext(vr.get(bi, []))
            for x in grp:
                A.ext(x[1])
        for ks in range(8):
            A(f'ds_read_b128 {v(fU + 4 * ks, 4)}, {v(aU)} offset:{32 * ks}')

    def kmm(first):
        return [f'v_mfma_f32_32x32x16_bf16 {v(T, 16)}, {v(fU + 4 * ks, 4)}, {v(fV + 4 * ks, 4)}, {"0" if first and ks == 0 else v(T, 16)}' for ks in range(8)]
    tail = {ks: [f's_waitcnt lgkmcnt({6 - ks})'] for ks in range(0, 7)}
    pub = ['@vm xa'] + capture(lambda: stats1_compute(st)) + capture(lambda: ts('1'))
    stream = allv[K0:]
    N0, N1, N2 = OPT['n0'], OPT['n0'] + OPT['n1'], OPT['n0'] + OPT['n1'] + OPT['n2']
    A.ext(setup(0))
    chains(stream[:N0], {OPT['tsb']: pub})
    su = setup(1)
    A.ext(su[:10])
    A('s_waitcnt lgkmcnt(7)')
    A.ext(sched(kmm(True), {}, tail, su[10:], 24)[0])
    ts('1')
    strip = lambda l: [u[:-len(m0r)] if u.endswith(m0r) else u for u in l]
    m0r = f'\ns_mov_b32 m0, {s(sKG)}'
    N3 = max(N2, need - K0)
    chains(stream[N0:N1])
    ts('1')
    R, K_ = B_, pp[0]
    HP = OPT['h1p']
    A(f'v_mov_b32 {v(cv[0])}, 0')
    A(f'v_mov_b32 {v(cv[1])}, 0')
    LS = ls[OPT['ls0']:] + capture(lambda: window_setup(t0, t1, t2, e2, rv))
    A.ext(LS[:18])
    A('s_waitcnt lgkmcnt(7)')
    A.ext(sched2(kmm(False), {}, tail, spread(8, flat(strip(stream[N1:N2])), 1, 7), [(0, 8, LS[18:66])], 24)[0])
    A(f's_cmp_lg_u32 {s(sOdd)}, 0')
    A('s_cbranch_scc1 L_expB')
    A(f'ds_write_b128 {v(ax)}, {v(T + 10, 4)}')
    A('s_mov_b64 exec, 1')
    A(f'v_add_f32 {v(T)}, {s(sDs)}, {v(T)}')
    A('s_mov_b64 exec, -1')
    A.ext(LS[66:82])
    A('s_waitcnt lgkmcnt(0)')
    A('s_barrier')
    for i in range(3):
        A(f'ds_read_b128 {v(R + 4 * i, 4)}, {v(ay)} offset:{TXB + 1024 * i}')
    mid = LS[82:]
    A.ext(mid)
    A('s_waitcnt lgkmcnt(0)')
    for i in range(0, 10, 2):
        A(f'v_pk_add_f32 {v(T + i, 2)}, {v(T + i, 2)}, {v(R + i, 2)}')
    for d, (x, y) in enumerate(((3, 2), (1, 0), (6, 5), (4, 4), (9, 9), (8, 8), (8, 7), (7, 7))):
        A(f'v_cvt_pk_bf16_f32 {v(K_ + d)}, {v(T + x)}, {v(T + y)}')
    for cp in (0, KT_C0):
        A(f'ds_write_b64 {v(aK)}, {v(K_, 2)} offset:{cp + 2 * 2044}')
        A(f'ds_write_b64 {v(aK)}, {v(K_ + 2, 2)} offset:{cp + 2 * 1788}')
        A(f'ds_write_b64 {v(aK2)}, {v(K_ + 4, 2)} offset:{cp + 2 * 1528}')
        A(f'ds_write_b64 {v(aK2)}, {v(K_ + 6, 2)} offset:{cp + 2 * 1528 + 8}')
    A('s_branch L_expD')
    A('L_expB:')
    for i in range(3):
        A(f'ds_write_b128 {v(ax)}, {v(T + 4 * i, 4)} offset:{TXB + 1024 * i}')
    A('s_mov_b32 vcc_lo, 0xaaaaaaaa')
    A('s_mov_b32 vcc_hi, 0xaaaaaaaa')
    A.ext(LS[66:82])
    A('s_waitcnt lgkmcnt(0)')
    A('s_barrier')
    A(f'ds_read_b128 {v(R, 4)}, {v(ay)}')
    A.ext(mid)
    A('s_waitcnt lgkmcnt(0)')
    for i in range(0, 4, 2):
        A(f'v_pk_add_f32 {v(T + 10 + i, 2)}, {v(T + 10 + i, 2)}, {v(R + i, 2)}')
    for wdw in range(2):
        v0_, v8_ = T + 10 + 2 * wdw, T + 11 + 2 * wdw
        A(f'v_cndmask_b32 {v(cv[2])}, {v(v0_)}, {v(v8_)}, vcc')
        A(f'v_cvt_pk_bf16_f32 {v(K_ + 4 * wdw)}, {v(v8_)}, {v(v8_)}')
        A(f'v_cvt_pk_bf16_f32 {v(K_ + 4 * wdw + 1)}, {v(v8_)}, {v(cv[2])}')
        A(f'v_cvt_pk_bf16_f32 {v(K_ + 4 * wdw + 2)}, {v(v0_)}, {v(v0_)}')
        A(f'v_cvt_pk_bf16_f32 {v(K_ + 4 * wdw + 3)}, {v(v0_)}, {v(v0_)}')
    for cp in (0, KT_C0):
        for wdw in range(2):
            base = cp + 2 * (2040 - 1024 - 256 * wdw)
            A(f'ds_write_b64 {v(aK2)}, {v(K_ + 4 * wdw, 2)} offset:{base}')
            A(f'ds_write_b64 {v(aK2)}, {v(K_ + 4 * wdw + 2, 2)} offset:{base + 8}')
    A('L_expD:')
    A(f's_mul_i32 {s(sT0)}, {s(sOdd)}, {KT_C0}')
    A(f's_add_u32 m0, {s(sT0)}, {s(sKT)}')
    A(f'ds_write_addtid_b32 {v(cv[0])} offset:4096')
    A(f'ds_write_addtid_b32 {v(cv[0])} offset:4304')
    ts('1')
    A.ext(strip(stream[N2:N3]))
    if not OPT['lw']:
        A('@vm w0')
    A(f's_cmp_eq_u32 {s(sWave)}, 0')
    A('s_barrier')
    A('s_cbranch_scc0 L_nozero')
    A(f'ds_write_b64 {v(aZ)}, {v(cv[0], 2)}')
    A('L_nozero:')
    colB = strip(stream[N3:])
    CB0 = OPT['cb0']
    A.ext(colB[:CB0])
    FW = OPT['fw']
    A.ext(w_frags(0, 3, P)[:FW])
    V.release(mk)
    HT = V.get(16)
    ts('1')
    A(tag_wait('L_m1', mld, [M + 3], 'm'))
    A.ext(mprep)
    A(f'v_and_b32 {v(HT)}, 2, {v(LANE)}')
    A(f'v_mul_u32_u24 {v(HT)}, 3584, {v(HT)}')
    for ch in range(2):
        A(f'v_mov_b32_dpp {v(sa + ch)}, {v(M + ch)} quad_perm:[0,0,0,0] row_mask:0xf bank_mask:0xf')
        A(f'v_mov_b32_dpp {v(c1 + ch)}, {v(M + ch)} quad_perm:[2,2,2,2] row_mask:0xf bank_mask:0xf')
    A(f'v_add_u32 {v(vM)}, {v(vM)}, {v(HT)}')
    A(f'v_add_u32 {v(vM)}, {2 * 7168}, {v(vM)}')

    def hbuild(hf, T_):
        E, F, xa, xb, nn, O = T_, T_ + 4, T_ + 8, T_ + 10, T_ + 12, T_ + 14
        for k in range(2):
            A(f'ds_write_b64 {v(aX)}, {v(Gk[2 * hf + k], 2)} offset:{4096 * hf + 512 * k}')
        A(f's_mov_b32 m0, {s(sHm)}')
        for k in range(2):
            g, sg, off = Gk[2 * hf + k], Sk[2 * hf + k], 2048 * hf + 256 * k
            A(f'v_lshlrev_b32 {v(xa)}, 16, {v(g)}')
            A(f'v_and_b32 {v(xa + 1)}, 0xffff0000, {v(g)}')
            A(f'v_lshlrev_b32 {v(xb)}, 16, {v(g + 1)}')
            A(f'v_and_b32 {v(xb + 1)}, 0xffff0000, {v(g + 1)}')
            A(f'v_lshlrev_b32 {v(nn)}, 16, {v(sg)}')
            A(f'v_and_b32 {v(nn + 1)}, 0xffff0000, {v(sg)}')
            A(f'v_pk_fma_f32 {v(xa, 2)}, {v(xa, 2)}, {v(sg, 2)}, {v(nn, 2)} op_sel:[0,1,0] op_sel_hi:[1,1,0]')
            A(f'v_pk_fma_f32 {v(xb, 2)}, {v(xb, 2)}, {v(sg + 2, 2)}, {v(nn, 2)} op_sel:[0,0,1] op_sel_hi:[1,0,1]')
            A(f'v_pk_fma_f32 {v(xa, 2)}, {v(xa, 2)}, {v(c1, 2)}, {v(sa, 2)}')
            A(f'v_pk_fma_f32 {v(xb, 2)}, {v(xb, 2)}, {v(c1, 2)}, {v(sa, 2)}')
            if k:
                for ch in range(2):
                    A(f'v_mov_b32_dpp {v(O + ch)}, {v(E + ch)} wave_ror:1 row_mask:0xf bank_mask:0xf')
            for ch in range(2):
                A(f'v_cvt_pk_bf16_f32 {v(E + 2 * k + ch)}, {v(xa + ch)}, {v(xb + ch)}')
            if k:
                A('s_mov_b64 exec, -2')
                for ch in range(2):
                    A(f'ds_write_addtid_b32 {v(F + ch)} offset:{(4 * ch + 0) * HC + off - 256 + 52}')
                    A(f'ds_write_addtid_b32 {v(F + ch)} offset:{(4 * ch + 2) * HC + off - 256 + 48}')
                A('s_mov_b64 exec, -1')
            for ch in range(2):
                A(f'ds_write_addtid_b32 {v(E + 2 * k + ch)} offset:{(4 * ch + 1) * HC + off + 52}')
                A(f'ds_write_addtid_b32 {v(E + 2 * k + ch)} offset:{(4 * ch + 3) * HC + off + 48}')
            for ch in range(2):
                A(f'v_mov_b32_dpp {v(O + ch)}, {v(E + 2 * k + ch)} wave_shr:1 row_mask:0xf bank_mask:0xf')
            for ch in range(2):
                A(f'v_alignbit_b32 {v(F + 2 * k + ch)}, {v(E + 2 * k + ch)}, {v(O + ch)}, 16')
        for ch in range(2):
            A(f'v_lshrrev_b32 {v(O + ch)}, 16, {v(E + 2 + ch)}')
        A('s_mov_b64 exec, 1')
        for ch in range(2):
            A(f'v_mov_b32 {v(O + ch)}, {v(E + ch)}')
        A('s_mov_b64 exec, -1')
        for ch in range(2):
            A(f'ds_write_addtid_b32 {v(F + 2 + ch)} offset:{(4 * ch + 0) * HC + 2048 * hf + 256 + 52}')
            A(f'ds_write_addtid_b32 {v(F + 2 + ch)} offset:{(4 * ch + 2) * HC + 2048 * hf + 256 + 48}')
        A('s_mov_b32 exec_lo, 1')
        A('s_mov_b32 exec_hi, 0x80000000')
        for ch in range(2):
            A(f'ds_write_b16 {v(aF)}, {v(O + ch)} offset:{(4 * ch + 0) * HC + 2048 * hf + 52}')
            A(f'ds_write_b16 {v(aF)}, {v(O + ch)} offset:{(4 * ch + 2) * HC + 2048 * hf + 48}')
        A('s_mov_b64 exec, -1')

    A(tag_wait('L_h1', h1, [Sk[k] + 3 for k in range(4)], 'h1 col0'))
    ts('017')
    A.ext(mld)
    hbuild(0, HT)
    CB1 = CB0 + OPT['cb1']
    A.ext(colB[CB0:CB1])
    A('s_waitcnt lgkmcnt(0)')
    A('s_barrier')
    ts('7')
    V.release(mb)
    RAW = V.get(4)
    X_ = V.get(8)
    Y = V.get(16)
    o1, o2, pk = V.get(4), V.get(4), V.get(4)
    t1 = V.get()
    acc = V.get(32, 4)
    fa = [V.get(32), V.get(32)]
    fb = [V.get(32), V.get(32)]

    def ra(ul, i, tag):
        return f'ds_read_b128 {v(fa[ul % 2] + 16 * (ul // 2) + 4 * (i % 4), 4)}, {v(aA)} offset:{512 * i + 64 * ul} ;#{tag}'

    def rb_(ul, i, pos, tag):
        return f'ds_read_b128 {v(fb[ul % 2] + 4 * pos, 4)}, {v(aB)} offset:{512 * (7 - i) + 64 * ul} ;#{tag}'

    def half(ul, tag):
        o = [ra(ul, 0, tag + 'x')] + [rb_(ul, i, i + 4 * (ul // 2), f'{tag}b{i}') for i in range(4)]
        return o + [ra(ul, i, tag) for i in range(1, 4)]

    def cmf(ul, uh, d, bsh, first):
        g = uh + d
        return (f'v_mfma_f32_16x16x32_bf16 {v(acc + 4 * g, 4)}, {v(fa[ul % 2] + 16 * (ul // 2) + 4 * (uh % 4), 4)}, '
                f'{v(fb[ul % 2] + 4 * (d + bsh), 4)}, {"0" if first else v(acc + 4 * g, 4)}')

    mm, wpos = [], {}
    for ul in (2, 3, 0):
        mm += [cmf(ul, uh, d, 4 * (ul // 2), ul == 2 and uh == 0) for uh in range(4) for d in range(4 - uh)]
    for g in range(3, -1, -1):
        mm += [cmf(1, uh, g - uh, 0, False) for uh in range(g + 1)]
        wpos[g] = len(mm) - 1
    for ul in range(4):
        mm += [cmf(ul, uh, d, 0, ul == 0 and uh == 0) for uh in range(4) for d in range(4 - uh, 8 - uh)]
    m2 = []
    for ul in (2, 3, 0):
        m2 += [cmf(ul, uh, d, 4 - 4 * (ul // 2), False) for uh in range(4, 8) for d in range(8 - uh)]
    for g in range(7, 3, -1):
        m2 += [cmf(1, uh, g - uh, 4, False) for uh in range(4, g + 1)]
        wpos[g] = len(m2) - 1
    assert len(mm) == 104 and len(m2) == 40
    tail = {0: ['@lg A2b1'], 1: ['@lg A2b2'], 2: ['@lg A2b3'], 3: ['@lg A2'], 9: ['@lg A3'], 19: ['@lg A0'], 29: ['@lg A1'], 39: ['@lg B0'],
            XB: ['s_waitcnt lgkmcnt(0)\ns_barrier'], 71: ['@lg B2'], 87: ['@lg B3']}
    LW = OPT['lw']
    if LW:
        assert FW == 0 and OPT['na'] == 0 and OPT['nb'] == 0
        tail[87] = ['@lg B3', '@vm w0\ns_barrier']
    head = merge(spread(104, half(0, 'A0'), 0, 9), spread(104, half(1, 'A1'), 10, 19),
                 spread(104, [rb_(0, i, i, 'B0') for i in range(4, 8)], 20, 27), spread(104, [rb_(1, i, i, 'B1') for i in range(4, 8)], 30, 38),
                 {28: [f'ds_read_b128 {v(RAW, 4)}, {v(aXr)} offset:{XR} ;#xr']},
                 spread(104, [rb_(2, i, i, 'B2') for i in range(8)], 56, 66), spread(104, [rb_(3, i, i, 'B3') for i in range(8)], 72, 83),
                 spread(104, [rb_(0, i, i + 4, 'C') for i in range(4)], 90, 98),
                 {XB + 1 + w: [f'ds_read_b128 {v(Y + 4 * w, 4)}, {v(a0)} offset:{4096 * w} ;#y'] for w in range(4)})
    wr = [f'ds_write_b128 {v(aE)}, {v(acc + 4 * g, 4)} offset:{16384 * (g // 4) + 1024 * (g % 4)}' for g in range(8)]
    for g in range(4):
        head = merge(head, {max(wpos[g] + 6, 40 + 2 * (3 - g)): [wr[g]]})

    def epil(st_, pkd):
        x = X_
        o = []
        for ch in range(2):
            y = Y + 8 * ch
            if pkd:
                sel = f'op_sel:[0,{ch},0] op_sel_hi:[1,{ch},1]'
                o.append(f's_waitcnt lgkmcnt({2 - 2 * ch})')
                for i in (0, 2):
                    o += [f'v_pk_add_f32 {v(y + i, 2)}, {v(y + i, 2)}, {v(y + 4 + i, 2)}',
                          f'v_pk_fma_f32 {v(x + 4 * ch + i, 2)}, {v(y + i, 2)}, {s(sGa, 2)}, {v(x + 4 * ch + i, 2)} {sel}',
                          f'v_pk_mul_f32 {v(y + i, 2)}, {v(x + 4 * ch + i, 2)}, {s(sCb, 2)} op_sel:[0,{ch}] op_sel_hi:[1,{ch}]']
            else:
                for i in range(4):
                    o += [f'v_add_f32 {v(y + i)}, {v(y + i)}, {v(y + 4 + i)}', f'v_fmac_f32 {v(x + 4 * ch + i)}, {s(sGa + ch)}, {v(y + i)}',
                          f'v_mul_f32 {v(y + i)}, {s(sCb + ch)}, {v(x + 4 * ch + i)}']
            o += [f'v_cvt_pk_bf16_f32 {v(pk + 2 * ch + i)}, {v(y + 2 * i)}, {v(y + 2 * i + 1)}' for i in range(2)]
        o += [f'v_cvt_pk_bf16_f32 {v(o2 + i)}, {v(x + i)}, {v(x + 4 + i)}' for i in range(4)]
        dp = 'quad_perm:[1,0,3,2] row_mask:0xf bank_mask:0xf'
        o += [f'v_cndmask_b32_dpp {v(o1 + i)}, {v(pk + 2 + i)}, {v(pk + i)}, vcc {dp}' for i in range(2)]
        o.append('s_not_b64 vcc, vcc')
        o += [f'v_cndmask_b32_dpp {v(o1 + 2 + i)}, {v(pk + i)}, {v(pk + 2 + i)}, vcc {dp}' for i in range(2)]
        o.append('s_not_b64 vcc, vcc')
        o.append(f'buffer_store_dwordx4 {v(o1, 4)}, {v(aO)}, {s(rWS, 4)}, {s(sT2)} offen sc1 ;#xo{st_}')
        o.append(f'buffer_store_dwordx4 {v(o2, 4)}, {v(aO2)}, {s(rWS, 4)}, {s(sT3)} offen sc1 ;#xo{st_}')
        return o

    unp = ['@lg xr']
    for i in range(4):
        unp += [f'v_lshlrev_b32 {v(X_ + i)}, 16, {v(RAW + i)}', f'v_and_b32 {v(X_ + 4 + i)}, 0xffff0000, {v(RAW + i)}']
    v1 = tag_units('L_m2', mld, [M + 3], 'm') + mprep
    v1 += [f'v_readlane_b32 {s(sGa + ch)}, {v(M + ch)}, 0' for ch in range(2)] + [f'v_readlane_b32 {s(sCb + ch)}, {v(M + ch)}, 2' for ch in range(2)]
    v1 += [f's_lshl_b32 {s(sT0)}, {s(sP)}, 7', f's_add_u32 {s(sT2)}, {s(sT0)}, {XS}', f's_add_u32 {s(sT3)}, {s(sT0)}, {X1P}',
           's_mov_b32 vcc_lo, 0x55555555', 's_mov_b32 vcc_hi, 0x55555555']
    v3 = ['@lg y'] + epil(0, False) + [f's_add_u32 {s(sT2)}, {s(sT2)}, {2 * 28672}', f's_add_u32 {s(sT3)}, {s(sT3)}, {2 * 28672}']
    fla = ['@vm xo0', flag_store(VTAG, sFl), f's_add_u32 {s(sFl)}, {s(sFl)}, {FL2S}']
    NA, NB_ = OPT['na'], OPT['na'] + OPT['nb']
    soft = merge(spread(104, flat(colB[CB1:]), OPT['cd0'], OPT['cda']),
                 {OPT['cda']: [f'buffer_load_dword {v(t1)}, off, {s(rWS, 4)}, {s(sGo)} sc1', f'buffer_load_dword {v(t1)}, off, {s(rWS, 4)}, {s(sGo)} offset:128 sc1']},
                 spread(104, flat(rest[:NA]), OPT['cdb'], 100), spread(104, tagged(w_frags(0, 3, P)[FW:], 'f0'), *((88, 101) if LW else (30, 46))))
    A.ext(half(2, 'A2') + half(3, 'A3'))
    A('@lg A2b0')
    code, info = sched2(mm, head, tail, soft, [(OPT['m2p'], 40, v1), (36, XB + 4, unp), (XB + 8, XB + 12, v3)], 8)
    print('conv', info)
    assert LW or max([0] + [i for i, u in enumerate(code) if u.endswith(';#f0')]) < code.index(tail[XB][0])
    assert max([0] + [i for i, u in enumerate(code) if u.endswith(';#w0')]) < code.index(tail[87][0])
    A.ext(code)
    A.ext([rb_(1, i, i + 4, 'C') for i in range(4)])
    ts('7')
    A('@vm col1 w1')
    ts('07')
    hbuild(1, Y)
    A.ext(rest[NA:NB_])
    A('s_waitcnt lgkmcnt(0)')
    A('s_barrier')
    ts('7')
    first = [ra(ul, i, f'D{ul}_{i}') for ul in (2, 3) for i in range(4, 8)]
    A.ext(first)
    A('@lg D2_4')
    tail = {3: ['@lg D2_5'], 6: ['@lg D2_7'], 9: ['@lg D3_7'], 19: ['@lg D0_7'], 29: ['@lg D1_7']}
    head = merge(spread(40, [ra(ul, i, f'D{ul}_{i}') for ul in (0, 1) for i in range(4, 8)], 0, 12),
                 {13: [f'ds_read_b128 {v(RAW, 4)}, {v(aXr)} offset:{XR + 4096} ;#xr']})
    assert OPT['nc'] <= 4
    soft = merge(spread(40, flat(rest[NB_:OPT['nc']]), 2, 34), {OPT['fa']: fla} if OPT['fa'] < 40 else {}, spread(40, w_frags(1, 4, P), 12, 36))
    code, info = sched2(m2, head, tail, soft, [(22, 38, unp)], 8)
    print('conv2', info)
    A.ext(code)
    A.ext([wr[g] for g in range(7, 3, -1)])
    ts('37')
    A('s_waitcnt lgkmcnt(0)')
    A('s_barrier')
    for w in range(4):
        A(f'ds_read_b128 {v(Y + 4 * w, 4)}, {v(a0)} offset:{16384 + 4096 * w}')
    if OPT['fa'] >= 40:
        A.ext(fla)
    A.ext(epil(1, True))
    ts('037')
    P['rest'] = rest[max(NB_, OPT['nc']):]
    V.release(mp)
    return P


def helper_flag_touch():
    A(f's_and_b32 {s(sT0)}, s2, 3')
    A(f's_lshl2_add_u32 {s(sT0)}, {s(sT0)}, {s(sWave)}')
    A(f's_mul_i32 {s(sT0)}, {s(sT0)}, 56')
    A(f'v_min_u32 v250, 55, {v(LANE)}')
    A(f'v_add_u32 v250, {s(sT0)}, v250')
    A('v_lshlrev_b32 v250, 7, v250')
    A(f'v_add_u32 v250, {FL2}, v250')
    A(f'buffer_load_dword v251, v250, {s(rWS, 4)}, 0 offen sc1')
    A(f's_mov_b32 {s(sT0)}, {FL2S}')
    A(f'buffer_load_dword v251, v250, {s(rWS, 4)}, {s(sT0)} offen sc1')


def helper_mod():
    st = V.get(8)
    wm = V.get(84)
    cc = V.get(7)
    ch = V.get(7)
    acc = V.get(8)
    t0, t1, t2, vo, aw, ar, vs, vw, vp = [V.get() for _ in range(9)]
    g = V.get(4)
    rd = V.get(8)
    pf = V.get(4)
    sHm, sHn = 38, 39
    stats1_addr()
    A('v_mov_b32 v250, 0')
    A(f'v_lshrrev_b32 {v(t0)}, 3, {v(LANE)}')
    A(f'v_lshlrev_b32 {v(t2)}, 1, {v(t0)}')
    A(f'v_and_b32 {v(t2)}, 4, {v(t2)}')
    A(f'v_and_b32 {v(t1)}, 7, {v(LANE)}')
    A(f'v_xor_b32 {v(t2)}, {v(t2)}, {v(t1)}')
    A(f'v_mul_u32_u24 {v(vw)}, 3584, {v(t0)}')
    A(f'v_lshl_add_u32 {v(vw)}, {v(t2)}, 4, {v(vw)}')
    A(f'v_lshlrev_b32 {v(vp)}, 4, {v(TID)}')
    A(f's_lshr_b32 {s(sT0)}, s2, 1')
    div7(sHm, sHn, sT0)
    A(f's_and_b32 {s(sT0)}, s2, 1')
    A(f's_mul_i32 {s(sT0)}, {s(sT0)}, 7')
    A(f's_add_u32 {s(sHn)}, {s(sHn)}, {s(sT0)}')
    A(f's_and_b32 {s(sT1)}, {s(sWave)}, 1')
    A(f's_lshr_b32 {s(sT2)}, {s(sWave)}, 1')
    A(f's_lshl1_add_u32 {s(sT0)}, {s(sHn)}, {s(sT1)}')
    A(f's_lshl_b32 {s(sT0)}, {s(sT0)}, 7')
    A(f's_mul_i32 {s(sT3)}, {s(sT2)}, {224 * 3584}')
    A(f's_add_u32 {s(sM2)}, {s(sT0)}, {s(sT3)}')
    A(f's_lshl1_add_u32 {s(sT3)}, {s(sT1)}, {s(sT2)}')
    A(f's_mul_i32 m0, {s(sT3)}, 28672')
    A('s_waitcnt lgkmcnt(0)')
    ts('1')
    A.ext(tagged(capture(lambda: stats1_loads(st)), 'hs'))
    A(f's_load_dword {s(sTag)}, {s(rWS, 2)}, {EP}')
    srd(rWd, pWd, 1605632)
    A('s_cmp_ge_u32 s2, 28')
    A('s_cbranch_scc1 L_hm_skip')
    A(f's_cmp_eq_u32 {s(sHm)}, 0')
    A(f's_cselect_b64 {s(rW, 2)}, {s(pWg, 2)}, {s(pWu, 2)}')
    A(f's_mov_b32 {s(rW + 2)}, 1605632')
    A(f's_mov_b32 {s(rW + 3)}, 0x00020000')
    wsl = [f'buffer_load_dwordx4 {v(vw)}, {s(rW, 4)}, {s(sM2)} offen lds\ns_add_u32 m0, m0, 1024\ns_add_u32 {s(sM2)}, {s(sM2)}, {8 * 3584}' for i in range(28)]
    srd(rWm, pWm, 2408448)
    A('s_cmp_ge_u32 s2, 14')
    A(f's_cselect_b32 {s(sMi)}, 1, 0')
    A(f's_mul_i32 {s(sT0)}, {s(sMi)}, 14')
    A(f's_sub_u32 {s(sNi)}, s2, {s(sT0)}')
    A(f's_lshl2_add_u32 {s(sT0)}, {s(sMi)}, {s(sWave)}')
    A(f's_mul_i32 {s(sT0)}, {s(sT0)}, 56')
    A(f'v_add_u32 {v(t0)}, {s(sT0)}, {v(t0)}')
    A(f'v_lshlrev_b32 {v(t2)}, 1, {v(t0)}')
    A(f'v_mul_u32_u24 {v(vo)}, 5376, {v(t0)}')
    A(f'v_lshl_add_u32 {v(vo)}, {v(t1)}, 4, {v(vo)}')

    def wload(task, i):
        u = f's_lshl_b32 {s(sWo)}, {s(sNi if task == 0 else sNt)}, 7\n' if i == 0 else f's_add_u32 {s(sWo)}, {s(sWo)}, {8 * 5376}\n'
        return u + f'buffer_load_dwordx4 {v(wm + 28 * task + 4 * i, 4)}, {v(vo)}, {s(rWm, 4)}, {s(sWo)} offen offset:{(0, 1792, 2688)[task]} {"nt" if OPT["nt"] & 2 else ""} ;#hw{task}_{i}'

    def pload(i):
        u = f's_mul_i32 {s(sWo)}, s2, {6 * 4096}\n' if i == 0 else f's_add_u32 {s(sWo)}, {s(sWo)}, 4096\n'
        return u + f'buffer_load_dwordx4 {v(pf, 4)}, {v(vp)}, {s(rWd, 4)}, {s(sWo)} offen'

    for i in range(7):
        A(f'global_load_ushort {v(cc + i)}, {v(t2)}, {s(pC, 2)} offset:{16 * i} ;#hc')
    for i in range(7):
        A(wload(0, i))
    A(f'v_lshrrev_b32 {v(t0)}, 4, {v(LANE)}')
    A(f'v_lshl_add_u32 {v(t0)}, {v(t1)}, 2, {v(t0)}')
    A(f's_lshl_b32 {s(sT0)}, {s(sWave)}, 8')
    A(f's_add_u32 {s(sT0)}, {s(sT0)}, {SL[4]}')
    A(f'v_lshl_add_u32 {v(aw)}, {v(t0)}, 3, {s(sT0)}')
    A(f'v_and_b32 {v(t0)}, 31, {v(LANE)}')
    A(f'v_lshlrev_b32 {v(ar)}, 3, {v(t0)}')
    A(f'v_add_u32 {v(ar)}, {SL[4]}, {v(ar)}')
    div7(sT2, sT3, sNi)
    A(f's_mul_i32 {s(sMt)}, {s(sT2)}, 7168')
    A(f's_mul_i32 {s(sNt)}, {s(sT2)}, 7')
    A(f's_add_u32 {s(sNt)}, {s(sNt)}, {s(sNi)}')
    A(f's_lshl1_add_u32 {s(sT2)}, {s(sT2)}, {s(sMi)}')
    A(f's_mul_i32 {s(sT2)}, {s(sT2)}, 7')
    A(f's_add_u32 {s(sT2)}, {s(sT2)}, {s(sT3)}')
    A(f's_lshl_b32 {s(sT2)}, {s(sT2)}, 9')
    A(f's_add_u32 {s(sT2)}, {s(sT2)}, {MOD}')
    A(f'v_lshl_add_u32 {v(vs)}, {v(t0)}, 4, {s(sT2)}')
    A('s_waitcnt lgkmcnt(0)')
    A(f's_add_u32 {s(sTag)}, {s(sTag)}, 1')
    ts('1')
    A('@vm hs')
    ts('1')
    stats1_compute(st)
    A('@vm hc')
    ts('1')
    for i in range(7):
        A(f'v_lshlrev_b32 {v(cc + i)}, 16, {v(cc + i)}')
        A(f'v_mul_f32 {v(ch + i)}, 0xbfb8aa3b, {v(cc + i)}')
        A(f'v_exp_f32 {v(ch + i)}, {v(ch + i)}')
    for i in range(7):
        A(f'v_add_f32 {v(ch + i)}, 1.0, {v(ch + i)}')
        A(f'v_rcp_f32 {v(ch + i)}, {v(ch + i)}')
    for i in range(7):
        A(f'v_mul_f32 {v(cc + i)}, {v(cc + i)}, {v(ch + i)}')
        A(f'v_cvt_pk_bf16_f32 {v(cc + i)}, {v(cc + i)}, 0')
        A(f'v_lshlrev_b32 {v(ch + i)}, 16, {v(cc + i)}')
    A(f'v_mov_b32 {v(g + 2)}, 0')
    A(f'v_mov_b32 {v(g + 3)}, {s(sTag)}')
    for task in range(3):
        for j in range(8):
            A(f'v_mov_b32 {v(acc + j)}, 0')
        for i in range(7):
            A(f'@vm hw{task}_{i}')
            if task < 2:
                A(wload(task + 1, i))
            else:
                A(wsl[i])
            for j in range(4):
                w = wm + 28 * task + 4 * i + j
                A(f'v_dot2c_f32_bf16 {v(acc + 2 * j)}, {v(w)}, {v(cc + i)}')
                A(f'v_dot2c_f32_bf16 {v(acc + 2 * j + 1)}, {v(w)}, {v(ch + i)}')
        ts('1')
        reduce8(acc)
        A(f'ds_write_b64 {v(aw)}, {v(acc, 2)} offset:{1024 * task}')
        A('s_waitcnt lgkmcnt(0)')
        A('s_barrier')
        A(f's_cmp_lg_u32 {s(sWave)}, {task}')
        A(f's_cbranch_scc1 L_hm_n{task}')
        for w in range(4):
            A(f'ds_read_b64 {v(rd + 2 * w, 2)}, {v(ar)} offset:{1024 * task + 256 * w}')
        A(f's_mov_b32 {s(sT0)}, 0' if task == 0 else f's_add_u32 {s(sT0)}, {s(sMt)}, {7168 * (task + 1)}')
        A('s_waitcnt lgkmcnt(0)')
        A(f'v_pk_add_f32 {v(rd, 2)}, {v(rd, 2)}, {v(rd + 2, 2)}')
        A(f'v_pk_add_f32 {v(rd + 4, 2)}, {v(rd + 4, 2)}, {v(rd + 6, 2)}')
        A(f'v_pk_add_f32 {v(g, 2)}, {v(rd, 2)}, {v(rd + 4, 2)}')
        A('s_mov_b32 exec_hi, 0')
        A(f'buffer_store_dwordx4 {v(g, 4)}, {v(vs)}, {s(rWS, 4)}, {s(sT0)} offen sc1 ;#cond')
        A('s_mov_b64 exec, -1')
        A(f'L_hm_n{task}:')
        if task == 0:
            ts()
    A.ext(wsl[7:])
    if OPT['hp']:
        A.ext([pload(i).replace(v(pf, 4), 'v[244:247]') for i in range(6)])
    A('s_branch L_hm_done')
    A('L_hm_skip:')
    A('s_waitcnt lgkmcnt(0)')
    A(f's_add_u32 {s(sTag)}, {s(sTag)}, 1')
    A('s_waitcnt vmcnt(0)')
    stats1_compute(st)
    helper_flag_touch()
    A(f's_sub_u32 {s(sWo)}, s2, 25')
    A(f's_mul_i32 {s(sWo)}, {s(sWo)}, {56 * 4096}')
    A(f's_mov_b32 {s(sT0)}, {OPT["npf"]}')
    A('L_hm_pf:')
    for i in range(4):
        A(f'buffer_load_dwordx4 {v(pf, 4)}, {v(vp)}, {s(rWd, 4)}, {s(sWo)} offen')
        A(f's_add_u32 {s(sWo)}, {s(sWo)}, 4096')
    A(f's_sub_u32 {s(sT0)}, {s(sT0)}, 1')
    A(f's_cmp_lg_u32 {s(sT0)}, 0')
    A('s_cbranch_scc1 L_hm_pf')
    A('s_waitcnt vmcnt(0)')
    A('L_hm_done:')
    ts()


def main_ffn(P):
    vW, vXr, vFp = P['vW'], P['vXr'], P['vFp']
    vXs, vL16, vTag, vSt = 2, 3, 4, 5
    gbp = V.get(4)
    x1r = V.get(8)
    Ag, Au = V.get(4), V.get(4)
    stt = V.get(16)
    xr = V.get(24)
    tmp = V.get(6)
    outp = V.get(8)
    acc = V.get(96)
    P['wdv'] = V.get(64)
    fp = P['vWr'][0]
    t0, t1, t2 = tmp, tmp + 1, tmp + 2
    XSLOT = [0, 1, 4, 2]
    FS = OPT['fs']
    sSt, sAo, sAi, sOo, sGb, sAu, sHf = 16, 17, 18, 19, 20, 21, 22
    sFl2 = 61

    def ffn_setup():
        A(f's_mov_b32 {s(sFl2)}, {s(sFl)}')
        A(f'v_lshlrev_b32 {v(vL16)}, 4, {v(LANE)}')
        A(f's_mul_i32 {s(sT0)}, {s(sMt)}, {4 * 28672}')
        A(f's_add_u32 {s(sT0)}, {s(sT0)}, {XS}')
        A(f'v_lshl_add_u32 {v(vXs)}, {v(TID)}, 4, {s(sT0)}')
        A(f'v_and_b32 {v(t0)}, 31, {v(LANE)}')
        A(f'v_lshlrev_b32 {v(vSt)}, 4, {v(t0)}')
        A(f'v_lshrrev_b32 {v(t1)}, 5, {v(LANE)}')
        A(f'v_mul_u32_u24 {v(t1)}, 28672, {v(t1)}')
        A(f'v_add_u32 {v(outp)}, {v(t1)}, {v(vSt)}')
        A(f's_lshl_b32 {s(sSt)}, {s(sMt)}, 11')
        A(f's_add_u32 {s(sSt)}, {s(sSt)}, {ST2}')
        A(f's_lshl2_add_u32 {s(sM2)}, {s(sNt)}, {s(sWave)}')
        A(f's_lshl_b32 {s(sAu)}, {s(sM2)}, 9')
        A(f's_add_u32 {s(sAu)}, {s(sAu)}, {AUG}')
        A(f's_mul_i32 {s(sT1)}, {s(sMt)}, 224')
        A(f's_add_u32 {s(sM2)}, {s(sM2)}, {s(sT1)}')
        A(f's_lshl_b32 {s(sAo)}, {s(sM2)}, 11')
        A(f's_add_u32 {s(sAo)}, {s(sAo)}, {ACT}')
        A(f's_lshl2_add_u32 {s(sT0)}, {s(sNt)}, {s(sWave)}')
        A(f's_mul_i32 {s(sT1)}, {s(sT0)}, 4682')
        A(f's_lshr_b32 {s(sT1)}, {s(sT1)}, 16')
        A(f's_lshl1_add_u32 {s(sT0)}, {s(sT1)}, {s(sT0)}')
        A(f's_lshl_b32 {s(sT1)}, {s(sMt)}, 8')
        A(f's_add_u32 {s(sT0)}, {s(sT0)}, {s(sT1)}')
        A(f's_mul_i32 {s(sFl)}, {s(sT0)}, {FS}')
        A(f's_add_u32 {s(sFl)}, {s(sFl)}, {FL3}')
        A(f's_and_b32 {s(sT0)}, {s(sJ)}, 7')
        A(f's_lshr_b32 {s(sT1)}, {s(sMi)}, 1')
        A(f's_lshl1_add_u32 {s(sT0)}, {s(sT0)}, {s(sT1)}')
        A(f's_lshl_b32 {s(sTb)}, {s(sT0)}, 2')
        A(f's_and_b32 {s(sHf)}, {s(sMi)}, 1')
        A(f's_lshl2_add_u32 {s(sRot)}, {s(sTb)}, {s(sWave)}')
        A(f's_mul_i32 {s(sRot)}, {s(sRot)}, 14')
        A(f's_lshl3_add_u32 {s(sAi)}, {s(sRot)}, {s(sHf)}')
        A(f's_lshl_b32 {s(sAi)}, {s(sAi)}, 8')
        A(f's_add_u32 {s(sAi)}, {s(sAi)}, {ACT}')
        A(f's_add_u32 {s(sOo)}, {s(sTb)}, {s(sHf)}')
        A(f's_mul_i32 {s(sOo)}, {s(sOo)}, {16 * 7}')
        A(f's_add_u32 {s(sOo)}, {s(sOo)}, {s(sNi)}')
        A(f's_lshl_b32 {s(sOo)}, {s(sOo)}, 7')
        A(f's_lshl_b32 {s(sGb)}, {s(sNi)}, 9')
        A(f's_add_u32 {s(sGb)}, {s(sGb)}, {MOD + 5 * 7168}')
        A(f'v_bfe_u32 {v(t2)}, {v(TID)}, 2, 5')
        A(f'v_and_b32 {v(t0)}, 3, {v(TID)}')
        A(f'v_lshl_add_u32 {v(t2)}, {v(t2)}, 3, {v(t0)}')
        A(f's_lshr_b32 {s(sT1)}, {s(sWave)}, 1')
        A(f's_add_u32 {s(sT0)}, {s(sTb)}, {s(sT1)}')
        A(f's_mul_i32 {s(sT0)}, {s(sT0)}, 7')
        A(f's_add_u32 {s(sT0)}, {s(sT0)}, {s(sNi)}')
        A(f's_lshl_b32 {s(sT0)}, {s(sT0)}, 6')
        A(f's_add_u32 {s(sT0)}, {s(sT0)}, {s(sHf)}')
        A(f's_lshl_b32 {s(sT0)}, {s(sT0)}, 6')
        A(f's_add_u32 {s(sT0)}, {s(sT0)}, {X1P}')
        A(f'v_lshl_add_u32 {v(outp + 2)}, {v(t2)}, 4, {s(sT0)}')
        A(f's_lshl2_add_u32 {s(sT1)}, {s(sTb)}, {s(sWave)}')
        A(f's_mul_i32 {s(sT1)}, {s(sT1)}, {16 * FS}')
        A(f's_add_u32 {s(sT1)}, {s(sT1)}, {FL3}')
        A(f'v_min_u32 {v(vFp)}, 13, {v(LANE)}')
        A(f'v_lshl_add_u32 {v(vFp)}, {v(vFp)}, {FS.bit_length() - 1}, {s(sT1)}')
        A(f'v_and_b32 {v(t0)}, 15, {v(LANE)}')
        A(f'v_lshrrev_b32 {v(t1)}, 4, {v(LANE)}')
        A(f'v_lshl_add_u32 {v(t0)}, {v(t1)}, 6, {v(t0)}')
        A(f'v_lshl_add_u32 {v(outp + 3)}, {v(t0)}, {FS.bit_length() - 1}, {s(sT1)}')
        A(f'v_and_b32 {v(t0)}, 7, {v(TID)}')
        A(f'v_lshlrev_b32 {v(outp + 1)}, 4, {v(t0)}')
        for i in range(4):
            A(f'v_mov_b32 {v(Au + i)}, 0')

    FP = OPT['fp']
    dm = P['rest'] + w_dma(3, 1, P) + w_dma(4, 2, P)
    pl = [f'buffer_load_dword {v(stt + 8)}, off, {s(rWS, 4)}, {s(sGo)} sc1 ;#go']
    A.ext(interleave(dm[:FP], capture(ffn_setup)))
    ts('3')
    A('@vm xo1')
    A(flag_store(vTag, sFl2))
    ts('3')
    A.ext(dm[FP:])
    A.ext(pl)
    A.ext(wd_frags(0, 3, P))
    A('@lg df0')
    A.ext(w_dma(5, 3, P)[:OPT['w5']])
    ts('3')
    A(tag_wait('L_f2', pl, [stt + 8], 'go'))
    A('s_barrier')
    ts('03')

    def xs_dma(b):
        o = []
        for cc in range(7):
            u = f's_add_u32 m0, {s(sW1k)}, {SL[XSLOT[b]] + 4096 * cc}\n'
            o += [u.strip(), f'buffer_load_dwordx4 {v(vXs)}, {s(rWS, 4)}, {s(sC + cc)} offen sc1 lds ;#x{b}']
        return o + [f'v_add_u32 {v(vXs)}, 28672, {v(vXs)}']

    A.ext(xs_dma(0))
    assert OPT['w5'] in (0, 4, 8)
    A.ext(interleave(w_frags(2, 4, P) + w_frags(3, 1, P) + w_frags(4, 2, P), w_dma(5, 3, P)[OPT['w5']:]))
    A('@vm x0')
    A('s_waitcnt lgkmcnt(0)')
    A('s_barrier')
    ts('0235')
    g = [f'buffer_load_dwordx4 {v(x1r, 4)}, {v(vSt)}, {s(rWS, 4)}, {s(sGb)} offen sc1 ;#g',
         f'buffer_load_dwordx4 {v(x1r + 4, 4)}, {v(vSt)}, {s(rWS, 4)}, {s(sGb)} offen offset:3584 sc1 ;#g',
         f'buffer_load_dwordx4 {v(Ag, 4)}, {v(outp)}, {s(rWS, 4)}, {s(sAu)} offen sc1 ;#g']
    gv = tag_units('L_g', g, [x1r + 3, x1r + 7, Ag + 3], 'g')
    gv += [f'v_add_f32 {v(x1r)}, {v(x1r)}, {v(x1r + 4)}', f'v_add_f32 {v(x1r + 1)}, {v(x1r + 1)}, {v(x1r + 5)}',
           f'v_cvt_pk_bf16_f32 {v(x1r)}, {v(x1r)}, {v(x1r + 1)}', f'v_mov_b32 {v(Ag + 3)}, 0']
    for i in range(3):
        gv.append(f's_mov_b32 exec_lo, 0\nv_mov_b32 {v(Au + i)}, {v(Ag + i)}\nv_mov_b32 {v(Ag + i)}, 0\ns_mov_b32 exec_lo, -1')
    gp = [f'ds_bpermute_b32 {v(gbp + i)}, {v(outp + 1)}, {v(x1r)} offset:{4 * i}' for i in range(4)]
    def poll3(st_):
        return [f's_mov_b32 {s(sT3)}, {64 * FS * st_}\nbuffer_load_dword {v(fp)}, {v(vFp)}, {s(rWS, 4)}, {s(sT3)} offen sc1 ;#pe{st_}']
    pre3 = [poll3(i)[0].replace(';#pe', ';#pre') for i in range(4)]

    def xread(n):
        b, ks = divmod(n, 28)
        sl = XSLOT[b]
        r = xr + 4 * (n % 6)
        return [f'ds_read_b64_tr_b16 {v(r + 2 * e, 2)}, {v(vXr[sl // 2])} offset:{32768 * (sl % 2) + 1024 * ks + 256 * e} ;#xf{n}' for e in range(2)]

    def accr(b):
        return acc + 32 * (b % 3)

    def aug(b):
        gg, uu, st = accr(b), accr(b) + 16, stt + 4 * b
        return [f'v_mov_b32 {v(st + 3)}, 0',
                f'v_lshlrev_b32 {v(tmp + 4)}, 16, {v(st + 2)}',
                f'v_and_b32 {v(tmp + 5)}, 0xffff0000, {v(st + 2)}',
                f'v_mfma_f32_32x32x16_bf16 {v(gg, 16)}, {v(Ag, 4)}, {v(st, 4)}, {v(gg, 16)}',
                f'v_add_f32 {v(tmp + 4)}, {v(tmp + 4)}, {v(tmp + 5)}',
                f'v_rcp_f32 {v(tmp + 5)}, {v(tmp + 4)}',
                f'v_mfma_f32_32x32x16_bf16 {v(uu, 16)}, {v(Au, 4)}, {v(st, 4)}, {v(uu, 16)}',
                f'v_mul_f32 {v(st)}, {v(tmp + 4)}, {v(tmp + 4)}',
                f'v_mul_f32 {v(st + 1)}, 0xbfb8aa3b, {v(tmp + 5)}']

    def epi(b, q):
        gg, uu, st = accr(b), accr(b) + 16, stt + 4 * b
        r4 = range(4 * q, 4 * q + 4)
        o = [f'v_mul_f32 {v(tmp + i % 4)}, {v(st + 1)}, {v(gg + i)}' for i in r4]
        for i in r4:
            o += [f'v_exp_f32 {v(tmp + i % 4)}, {v(tmp + i % 4)}', f'v_mul_f32 {v(gg + i)}, {v(gg + i)}, {v(uu + i)}']
        for i in r4:
            o += [f'v_fma_f32 {v(tmp + i % 4)}, {v(tmp + i % 4)}, {v(st)}, {v(st)}', f'v_rcp_f32 {v(tmp + i % 4)}, {v(tmp + i % 4)}']
        o += [f'v_mul_f32 {v(gg + i)}, {v(gg + i)}, {v(tmp + i % 4)}' for i in r4]
        o += [f'v_cvt_pk_bf16_f32 {v(outp + 2 * q + k)}, {v(gg + 4 * q + 2 * k)}, {v(gg + 4 * q + 2 * k + 1)}' for k in range(2)]
        if q % 2:
            o.append(f'buffer_store_dwordx4 {v(outp + 2 * q - 2, 4)}, {v(vL16)}, {s(rWS, 4)}, {s(sAo)} offen offset:{1024 * (q // 2)} sc1 ;#ao{b}')
        if q == 3:
            o.append(f's_add_u32 {s(sAo)}, {s(sAo)}, {112 * 1024}')
        return o

    def act_flag(b):
        return [f'@vm ao{b}', flag_store(vTag, sFl), f's_add_u32 {s(sFl)}, {s(sFl)}, {64 * FS}']

    def st_loads(b):
        return [f'buffer_load_dwordx4 {v(stt + 4 * b, 4)}, {v(vSt)}, {s(rWS, 4)}, {s(sSt)} offen offset:{512 * b} sc1 ;#s{b}']

    res = [f'buffer_load_dwordx4 {v(x1r, 4)}, {v(vW)}, {s(rWS, 4)}, 0 offen sc1 ;#res',
           f's_mov_b32 {s(sT2)}, {2 * 28672}\nbuffer_load_dwordx4 {v(x1r + 4, 4)}, {v(vW)}, {s(rWS, 4)}, {s(sT2)} offen sc1 ;#res']
    abuf = [('a', 128 + 4 * i) for i in range(24)]
    LA, G0 = OPT['la'], OPT['g0']
    vAl = P['vWr'][1]

    def aload(n):
        st_, kp = divmod(n, 14)
        return f'buffer_load_dwordx4 {rn(abuf[n % 24], 4)}, {v(vAl)}, {s(rWS, 4)}, {s(sD + kp // 2)} offen offset:{2048 * (kp % 2)} sc1 ;#a{n}'

    def astage(st_):
        u = tag_units(f'L_p{st_}', poll3(st_), [fp], f'pe{st_}', None if st_ else 34)
        return u + ([f'v_add_u32 {v(vAl)}, {112 * 1024}, {v(vAl)}'] if st_ else [])
    aadr = [f'v_lshrrev_b32 {v(vAl)}, 4, {v(LANE)}', f'v_lshlrev_b32 {v(vAl)}, 9, {v(vAl)}',
            f'v_and_b32 {v(P["vWr"][2])}, 0xf0, {v(vL16)}', f'v_add3_u32 {v(vAl)}, {v(vAl)}, {v(P["vWr"][2])}, {s(sAi)}']
    mm, head, tail = [], {}, {}
    for n in range(112):
        b, ks = divmod(n, 28)
        for mat in range(2):
            d = accr(b) + 16 * mat
            mm.append(f'v_mfma_f32_32x32x16_bf16 {v(d, 16)}, {a((mat * 28 + ks) * 4, 4)}, {v(xr + 4 * (n % 6), 4)}, {"0" if ks == 0 else v(d, 16)}')
        if n + 4 < 112:
            rd = xread(n + 4)
            head[2 * n] = [rd[0]]
            head[2 * n + 1] = [rd[1]]
        if n % 2 and n < 111:
            tail[2 * n + 1] = [f'@lg xf{n + 2}']
        if ks == 24 and b < 3:
            head[2 * n], head[2 * n + 1] = [], [f'@vm x{b + 1}\ns_waitcnt lgkmcnt(0)\ns_barrier'] + xread(n + 4)
    E0 = OPT['e0']
    GV = OPT['gv']
    assert GV + 10 <= E0 - 4
    Q = [OPT[f'q{i}'] for i in range(6)]
    R = [OPT[f'r{i}'] for i in range(5)]
    assert R[3] >= 185 and R[4] >= max(201, R[3] + 14)
    DG = OPT['dg']
    WB = OPT['wb']
    tail = merge(tail, {39: ['@lg wf5'], 47: ['@lg wf']})
    NF = OPT['nf']
    fr34 = [wd_frags(3, 1, P) + wd_addr(2, P), wd_frags(4, 3, P) + wd_addr(4, P), wd_frags(6, 4, P)]
    d56 = wd_dma(6, 4, P)
    gob = [f'buffer_load_dword {v(fp)}, off, {s(rWS, 4)}, {s(sGo)} offset:128 sc1 ;#gob']
    tag_units('L_gb', gob, [fp], 'gob', 34)
    gsl = [f's_add_u32 {s(sGo2)}, {s(sGo)}, 128', f's_load_dword {s(sGo2)}, {s(rWS, 2)}, {s(sGo2)} {"glc" if OPT["glc"] else ""}']
    gsc = [f's_cmp_lg_u32 {s(sGo2)}, {s(sTag)}\ns_cbranch_scc1 L_gb_re\nL_gb_ok:']
    assert OPT['gb'] <= 44 and Q[0] >= 52 and Q[2] >= 107 and Q[3] <= 150 and Q[5] >= 163
    soft = merge({},
                 spread(224, w_dma(6, 4, P) + [f'v_mov_b32 {v(vW)}, {v(outp + 2)}'] + xs_dma(1), 0, OPT['qd'] - 4),
                 {WB: ['@vm w6\ns_barrier']}, spread(224, tagged(w_frags(5, 3, P), 'wf5') + tagged(w_frags(6, 4, P), 'wf'), WB + 1, WB + 15),
                 spread(224, wd_dma(1, 2, P), OPT['qd'], Q[0]), {OPT['gb']: gsl}, {50: gsc},
                 spread(224, xs_dma(2), Q[0], Q[1]), spread(224, wd_dma(2, 3, P) + wd_dma(5, 0, P), Q[1], Q[2]),
                 spread(224, xs_dma(3), Q[2], Q[3]),
                 spread(224, wd_dma(3, 1, P) + wd_dma(4, 3, P), Q[3], Q[4]), spread(224, res, Q[4], Q[5]),
                 spread(224, d56[:DG], Q[5], OPT['a0'] - 4), {60: aadr},
                 spread(224, fr34[0] if NF > 0 else [], R[3], R[3] + 14), spread(224, fr34[1] if NF > 1 else [], R[4], R[4] + 14),
                 spread(224, wd_frags(1, 2, P), R[0], R[0] + 14), spread(224, wd_frags(2, 3, P) + wd_addr(0, P), R[1], R[1] + 16),
                 {E0 - OPT['sl']: st_loads(0), OPT['b1'] - OPT['sl1']: st_loads(1), OPT['b2'] - OPT['sl2']: st_loads(2), OPT['b2'] - OPT['sl2'] + 20: st_loads(3)},
                 spread(224, g + [f'buffer_load_dword {v(fp)}, {v(outp + 3)}, {s(rWS, 4)}, 0 offen sc1'], OPT['gl'], OPT['gl'] + 4),
                 {})
    chk0, chk1, chk2, chk3 = [tag_units(f'L_s{b}', st_loads(b), [stt + 4 * b + 3], f's{b}') for b in range(4)]
    gp3 = [';gap'] * 3
    parts = [epi(0, 0), epi(0, 1), epi(0, 2), epi(0, 3) + chk1, aug(1) + gp3 + epi(1, 0), epi(1, 1), epi(1, 2), epi(1, 3) + chk2,
             aug(2) + gp3 + epi(2, 0) + chk3, epi(2, 1), epi(2, 2), epi(2, 3)]
    PP, PC = OPT['pp'], OPT['pc']
    parts[9] = parts[9][:PP] + flat(poll3(0)) + parts[9][PP:]
    t23 = parts[10] + parts[11]
    t23 = t23[:PC] + astage(0) + interleave(t23[PC:-3], [aload(n) for n in range(G0)]) + t23[-3:]
    parts[10], parts[11] = t23, []
    F0, F1 = OPT['f0'], OPT['f1']
    parts[F0] = parts[F0] + act_flag(0)
    if F1 < 12:
        parts[F1] = parts[F1] + act_flag(1)
    for n in range(4):
        A.ext(xread(n))
    A('@lg xf1')
    B1, B2 = OPT['b1'], OPT['b2']
    segs = [(GV, E0 - 8, gv + gp), (E0 - 8, E0 - 3, chk0 + aug(0) + [';gap'] * 3), (E0, B1, sum(parts[:4], [])), (B1, B2, sum(parts[4:8], [])), (B2, 224, sum(parts[8:], []))]
    code, info = sched2(mm, head, tail, soft, segs, 24)
    print('gemm1', info)
    gapof, g_ = [], -1
    for u in code:
        g_ += u.startswith('v_mfma') and ', a[' in u
        gapof.append(g_)

    def span(key):
        ix = [gapof[i] for i, u in enumerate(code) if any(ln.endswith(key) for ln in u.split('\n'))]
        return (min(ix), max(ix)) if ix else (999, -1)
    seq = [OPT['qd']] + Q + [OPT['a0'] - 4]
    assert all(b_ - a_ >= 6 for a_, b_ in zip(seq, seq[1:])) and OPT['qd'] >= 14
    assert span(';#a0')[0] >= 180 + 2 * G0 and LA >= G0 and F0 < F1 and OPT['f2'] + 4 < OPT['f3'] and LA <= 13
    assert span(';#df1')[1] < 104 and span(';#df2')[1] + 8 < span(';#d4')[0] and span(';#d6')[0] > 161 and span(';#x3')[0] > 105
    assert span(';#x1')[1] < 48 and span(';#x2')[1] < 104 and span(';#x3')[1] < 160 and span(';#wf')[1] < 47 and span(';#wf5')[1] < 39
    assert min(span(';#x2')[0], span(';#d2')[0], span(';#d5')[0]) > span('L_gb_ok:')[0] > 49 and span(';#d3')[0] > 105
    assert span(';#d1')[1] < span(';#df1')[0] and span(';#d2')[1] < span(';#df2')[0] and span(';#w6')[1] < WB
    assert span(';#d3')[1] < span(';#df3')[0] and span(';#d4')[1] < span(';#df4')[0]
    assert span(';#g')[1] < GV and all(span(f';#s{b}')[1] + 3 < span(f'L_s{b}_ok:')[0] for b in range(4))
    nm_ = 0
    first_aug2 = None
    for u in code:
        if u.startswith('v_mfma') and f', {v(Ag, 4)}, {v(stt + 8, 4)}' in u:
            first_aug2 = nm_
        if u.startswith('v_mfma') and ', a[' in u:
            nm_ += 1
            if nm_ == 169:
                assert f'ao0' in ''.join(code[:code.index(u)]).split('offset:1024 sc1 ;#')[-1][:3] or True
        A(u)
        if u.startswith('v_mfma') and ', a[' in u and nm_ % 112 == 0:
            ts('2')
        if u.startswith('v_mfma') and ', a[' in u and nm_ % 28 == 0:
            ts('5')
    assert first_aug2 >= 168, first_aug2
    last0 = max(i for i, u in enumerate(code) if ';#ao0' in u and 'buffer_store' in u)
    assert sum(1 for u in code[:last0] if u.startswith('v_mfma') and ', a[' in u) <= 168
    ts('04')
    assert DG >= 8
    A.ext(aug(3))
    fr34 = fr34[NF:] + [[], [], [], []]
    A.ext(fr34[0])
    d56 = d56[DG:]
    late_ld = [aload(n) for n in range(G0, LA)]
    nq = (len(d56) + len(late_ld) + 3) // 4
    mem = d56 + late_ld
    A.ext(mem[:nq])
    for q_ in range(4):
        A.ext(epi(3, q_))
        if q_ == 1 and F1 >= 12:
            A.ext(act_flag(1))
        A.ext(mem[nq * (q_ + 1):nq * (q_ + 2)])
        A.ext(fr34[1 + q_ // 2] if q_ % 2 else [])
    if OPT['f2'] < 0:
        A.ext(act_flag(2))
    ts('2')
    wa = [stt, stt + 1]
    ra0, ra1, ao = stt + 4, stt + 5, stt + 6
    xu, gu = xr, xr + 16
    su = [f'v_and_b32 {v(t0)}, 15, {v(LANE)}',
          f'v_lshlrev_b32 {v(t0)}, 8, {v(t0)}',
          f'v_add_u32 {v(t0)}, {s(sW8k)}, {v(t0)}',
          f'v_lshrrev_b32 {v(t1)}, 4, {v(LANE)}',
          f'v_and_b32 {v(t2)}, 7, {v(LANE)}',
          f'v_xor_b32 {v(t1)}, {v(t1)}, {v(t2)}',
          f'v_lshl_add_u32 {v(wa[0])}, {v(t1)}, 4, {v(t0)}',
          f'v_add_u32 {v(wa[0])}, {SL[2]}, {v(wa[0])}',
          f'v_xor_b32 {v(wa[1])}, 64, {v(wa[0])}',
          f'v_lshrrev_b32 {v(t0)}, 3, {v(TID)}',
          f'v_and_b32 {v(t1)}, 7, {v(t0)}',
          f'v_lshlrev_b32 {v(ra0)}, 1, {v(t2)}',
          f'v_xor_b32 {v(ra0)}, {v(ra0)}, {v(t1)}',
          f'v_lshlrev_b32 {v(ra0)}, 4, {v(ra0)}',
          f'v_lshl_add_u32 {v(ra0)}, {v(t0)}, 8, {v(ra0)}',
          f'v_add_u32 {v(ra0)}, {SL[2]}, {v(ra0)}',
          f'v_xor_b32 {v(ra1)}, 16, {v(ra0)}',
          f'v_and_b32 {v(t1)}, 16, {v(t0)}',
          f'v_add_u32 {v(t0)}, {v(t0)}, {v(t1)}',
          f'v_mul_u32_u24 {v(ao)}, 896, {v(t0)}',
          f'v_lshl_add_u32 {v(ao)}, {v(t2)}, 4, {v(ao)}']
    for i in range(4):
        su += [f'v_lshlrev_b32 {v(gu + 2 * i)}, 16, {v(gbp + i)}', f'v_and_b32 {v(gu + 2 * i + 1)}, 0xffff0000, {v(gbp + i)}']
    xw, xrd = stt + 2, stt + 3
    su2 = [f'v_lshrrev_b32 {v(t0)}, 7, {v(TID)}', f'v_and_b32 {v(t1)}, 3, {v(TID)}', f'v_lshl_add_u32 {v(t0)}, {v(t0)}, 2, {v(t1)}',
           f'v_mul_u32_u24 {v(t0)}, 576, {v(t0)}', f'v_and_b32 {v(t1)}, 0x7c, {v(TID)}', f'v_add_u32 {v(t0)}, {v(t0)}, {v(t1)}',
           f'v_add_u32 {v(xw)}, {SL[4]}, {v(t0)}',
           f'v_lshrrev_b32 {v(t0)}, 3, {v(TID)}', f'v_mul_u32_u24 {v(t0)}, 144, {v(t0)}', f'v_lshl_add_u32 {v(t0)}, {v(t2)}, 4, {v(t0)}',
           f'v_add_u32 {v(xrd)}, {SL[4]}, {v(t0)}']
    su2 += [f'ds_write_b32 {v(xw)}, {v(x1r + i)} offset:{4608 * (i // 4) + 144 * (i % 4)}' for i in range(8)]
    xrr = [f'ds_read_b128 {v(x1r + 4 * b_, 4)}, {v(xrd)} offset:{4608 * b_}' for b_ in range(2)]
    xun = []
    for i in range(8):
        xun += [f'v_lshlrev_b32 {v(xu + 2 * i)}, 16, {v(x1r + i)}', f'v_and_b32 {v(xu + 2 * i + 1)}, 0xffff0000, {v(x1r + i)}']
    Y = acc

    def red_write(st_):
        d = acc + 32 + 16 * st_
        return [f'ds_write_b128 {v(wa[db % 2])}, {v(d + 4 * db, 4)} offset:{32768 * (st_ // 2) + 4096 * (st_ % 2) + 128 * (db // 2)}' for db in range(4)]

    def red_read(blk):
        o = []
        for w in range(4):
            o += [f'ds_read_b128 {v(Y + 8 * w, 4)}, {v(ra0)} offset:{32768 * blk + 8192 * w}',
                  f'ds_read_b128 {v(Y + 8 * w + 4, 4)}, {v(ra1)} offset:{32768 * blk + 8192 * w}']
        o[0] = 's_waitcnt lgkmcnt(0)\ns_barrier\n' + o[0]
        return o

    def red_final(blk, pk):
        o = ['s_waitcnt lgkmcnt(0)']
        x = xu + 8 * blk
        if pk:
            for i in range(0, 8, 2):
                o += [f'v_pk_add_f32 {v(Y + i, 2)}, {v(Y + i, 2)}, {v(Y + 8 + i, 2)}', f'v_pk_add_f32 {v(Y + 16 + i, 2)}, {v(Y + 16 + i, 2)}, {v(Y + 24 + i, 2)}',
                      f'v_pk_add_f32 {v(Y + i, 2)}, {v(Y + i, 2)}, {v(Y + 16 + i, 2)}', f'v_pk_fma_f32 {v(x + i, 2)}, {v(Y + i, 2)}, {v(gu + i, 2)}, {v(x + i, 2)}']
        else:
            for i in range(8):
                o += [f'v_add_f32 {v(Y + i)}, {v(Y + i)}, {v(Y + 8 + i)}', f'v_add_f32 {v(Y + 16 + i)}, {v(Y + 16 + i)}, {v(Y + 24 + i)}',
                      f'v_add_f32 {v(Y + i)}, {v(Y + i)}, {v(Y + 16 + i)}', f'v_fmac_f32 {v(x + i)}, {v(Y + i)}, {v(gu + i)}']
        o += [f'v_cvt_pk_bf16_f32 {v(outp + 4 * blk + i)}, {v(x + 2 * i)}, {v(x + 2 * i + 1)}' for i in range(4)]
        o.append(f'buffer_store_dwordx4 {v(outp + 4 * blk, 4)}, {v(ao)}, {s(rOut, 4)}, {s(sOo)} offen {("", "sc1", "sc1 nt", "nt")[OPT["osc"]]}')
        o.append(f's_add_u32 {s(sOo)}, {s(sOo)}, {1024 * 896}')
        return o

    mm, head, tail, soft = [], {}, {}, {}
    for n in range(56):
        st_, kp = divmod(n, 14)
        for db in range(4):
            d = acc + 32 + 16 * st_ + 4 * db
            mm.append(f'v_mfma_f32_16x16x32_bf16 {v(d, 4)}, {rn(wdreg(kp // 2, kp % 2, db, P), 4)}, {rn(abuf[n % 24], 4)}, {"0" if kp == 0 else v(d, 4)}')
        if n + LA < 56:
            m_ = n + LA
            if m_ % 14 == 0:
                as_ = astage(m_ // 14)
                soft = merge(soft, {max(0, 4 * n - 5): as_[:-1]}, {max(0, 4 * n - 2): as_[-1:]})
            soft = merge(soft, {4 * n: [aload(m_)]})
        if n < 55:
            tail[4 * n + 3] = [f'@vm a{n + 1}']
    for st_ in range(1, 4):
        soft = merge({max(0, 4 * (14 * st_ - LA) - OPT['pl'] - 5): flat(poll3(st_))}, soft, spread(224, red_write(st_ - 1), 56 * st_ + 9, 56 * st_ + 25))
    soft = merge(soft, ({OPT['f2']: act_flag(2)} if OPT['f2'] >= 0 else {}), {OPT['f3']: act_flag(3)}, spread(224, red_read(0) + xrr, 141, 151),
                 spread(224, wd_addr(0, P) + flat(wd_frags(5, 0, P)), OPT['g5'], 30))
    tail = merge(tail, {6: ['@lg df4 df6'], 38: ['@lg df5'], 54: ['s_barrier']})
    A('@vm a0')
    ts('2')
    rf0 = red_final(0, False)
    c1_, info = sched2(mm, head, tail, soft, [(36, 60, su[:9]), (60, 130, su[9:] + su2), (158, 210, rf0[:1] + xun[:8] + rf0[1:] + xun[8:])], 8)
    print('gemm2', info)
    pos = {u: i for i, u in enumerate(c1_)}
    assert max(i for i, u in enumerate(c1_) if ';#df5' in u) < pos[mm[38]]
    assert pos[su[8]] < pos[red_write(0)[0]] and pos[xrr[1]] < pos[rf0[0]] and pos[su2[-1]] < pos[red_read(0)[0]]
    for n in range(LA, 56):
        assert pos[aload(n)] < pos[mm[4 * (n - 3)]]
    c2_ = []
    for u in c1_ + c2_:
        A(u)
        if u is mm[55] or u is mm[167]:
            ts('2')
        if u is mm[111]:
            ts('02')
    A.ext(red_write(3) + red_read(1) + red_final(1, True))
    ts('0246')


def helper_rest():
    V.release(2)
    g = V.get(16)
    acc = V.get(16, 4)
    fw = V.get(112)
    fv = V.get(16)
    xx = V.get(56)
    t0, t1, t2, vo, vr, va, one, aw, ar, vl = [V.get() for _ in range(10)]
    rd = V.get(8)
    def fold_vectors():
        A('s_cmp_ge_u32 s2, 28')
        A('s_cbranch_scc1 L_hr_skip')
        A(f's_mov_b32 {s(sMi)}, s38')
        A(f's_mov_b32 {s(sNi)}, s39')
        A(f's_and_b32 {s(sT1)}, {s(sWave)}, 1')
        A(f's_lshr_b32 {s(sT2)}, {s(sWave)}, 1')
        tr_lane(vr, t0, t1, 8, 128)
        A(f'v_bfe_u32 {v(t1)}, {v(LANE)}, 3, 1')
        A(f'v_xor_b32 {v(t1)}, {s(sT1)}, {v(t1)}')
        A(f'v_lshl_add_u32 {v(vr)}, {v(t1)}, 6, {v(vr)}')
        A(f's_mul_i32 {s(sT3)}, {s(sT2)}, 57344')
        A(f'v_add_u32 {v(vr)}, {s(sT3)}, {v(vr)}')
        A(f'v_and_b32 {v(t0)}, 1, {v(LANE)}')
        A(f'v_lshlrev_b32 {v(va)}, 10, {v(t0)}')
        A(f'v_lshrrev_b32 {v(t0)}, 5, {v(LANE)}')
        A(f'v_lshl_add_u32 {v(va)}, {v(t0)}, 4, {v(va)}')
        A(f'v_add_u32 {v(va)}, {SL[4] + 4096}, {v(va)}')
        A(f'v_min_u32 {v(t2)}, 223, {v(TID)}')
        A(f'v_lshlrev_b32 {v(t0)}, 4, {v(t2)}')
        ld = []
        for i, sec in enumerate((4, 3)):
            ld += [f's_mov_b32 {s(sT3)}, {MOD + sec * 7168}',
                   f'buffer_load_dwordx4 {v(g + 8 * i, 4)}, {v(t0)}, {s(rWS, 4)}, {s(sT3)} offen sc1',
                   f'buffer_load_dwordx4 {v(g + 8 * i + 4, 4)}, {v(t0)}, {s(rWS, 4)}, {s(sT3)} offen offset:3584 sc1']
        A.ext(ld)
        A(tag_wait('L_hg', ld, [g + 3, g + 7, g + 11, g + 15]))
        bf16_pair_from_partials(rd, g, g + 4, True)
        bf16_pair_from_partials(rd + 2, g + 8, g + 12, False)
        A(f'v_lshlrev_b32 {v(t2)}, 2, {v(t2)}')
        A(f'v_add_u32 {v(t2)}, {SL[4] + 4096}, {v(t2)}')
        A(f'ds_write_b32 {v(t2)}, {v(g)}')
        A(f'ds_write_b32 {v(t2)}, {v(g + 8)} offset:1024')
        A('s_waitcnt lgkmcnt(0)')
        A('s_barrier')
        def hrd(ks):
            return [f'ds_read_b128 {v(xx + 4 * (ks % 8), 4)}, {v(va)} offset:{32 * ks}'] + [
                f'ds_read_b64_tr_b16 {v(fw + 4 * ks + 2 * e, 2)}, {v(vr)} offset:{(16 * ks + 4 * e) * 128} ;#hr{ks}' for e in range(2)]
        for ks in range(4):
            A.ext(hrd(ks))
        for ks in range(28):
            A(f'@lg hr{ks}')
            A(f'v_mfma_f32_32x32x16_bf16 {v(acc, 16)}, {v(xx + 4 * (ks % 8), 4)}, {v(fw + 4 * ks, 4)}, {"0" if ks == 0 else v(acc, 16)}')
            if ks + 4 < 28:
                A.ext(hrd(ks + 4))
        A(f's_mul_i32 {s(sT0)}, {s(sMi)}, 28672')
        A(f's_lshl_b32 {s(sT1)}, {s(sNi)}, 2')
        A(f's_add_u32 {s(sT1)}, {s(sT1)}, {s(sWave)}')
        A(f's_lshl_b32 {s(sT1)}, {s(sT1)}, 9')
        A(f's_add_u32 {s(sT0)}, {s(sT0)}, {s(sT1)}')
        A(f's_add_u32 {s(sT0)}, {s(sT0)}, {AUG}')
        A(f'v_lshlrev_b32 {v(t2)}, 4, {v(LANE)}')
        A(f'v_cvt_pk_bf16_f32 {v(g + 1)}, {v(acc)}, {v(acc + 1)}')
        A(f'v_lshlrev_b32 {v(t0)}, 16, {v(g + 1)}')
        A(f'v_and_b32 {v(t1)}, 0xffff0000, {v(g + 1)}')
        A(f'v_sub_f32 {v(acc + 2)}, {v(acc)}, {v(t0)}')
        A(f'v_sub_f32 {v(acc + 3)}, {v(acc + 1)}, {v(t1)}')
        A(f'v_cvt_pk_bf16_f32 {v(g)}, {v(t0)}, {v(acc + 2)}')
        A(f'v_cvt_pk_bf16_f32 {v(g + 2)}, {v(acc + 3)}, {v(t1)}')
        A(f'v_mov_b32 {v(g + 3)}, {s(sTag)}')
        A('s_mov_b32 exec_hi, 0')
        A(f'buffer_store_dwordx4 {v(g, 4)}, {v(t2)}, {s(rWS, 4)}, {s(sT0)} offen sc1')
        A('s_mov_b64 exec, -1')
        A('L_hr_skip:')
        ts('03')

    A(f's_and_b32 {s(sT1)}, s2, 7')
    A(f's_bfe_u32 {s(sT2)}, s2, 0x10003')
    A(f's_lshl1_add_u32 {s(sMt)}, {s(sT1)}, {s(sT2)}')
    A(f's_lshr_b32 {s(sT2)}, s2, 4')
    A(f's_lshl2_add_u32 {s(sTb)}, {s(sMt)}, {s(sT2)}')
    A(f's_mul_i32 {s(sT1)}, {s(sTb)}, 28672')
    A(f's_add_u32 {s(sT1)}, {s(sT1)}, {X1P}')
    A(f'v_lshl_add_u32 {v(vo)}, {v(TID)}, 4, {s(sT1)}')
    A(f'v_mov_b32 {v(one)}, 0x3f803f80')
    A(f'v_and_b32 {v(t1)}, 7, {v(LANE)}')
    A(f'v_lshrrev_b32 {v(t2)}, 4, {v(LANE)}')
    A(f'v_lshl_add_u32 {v(t2)}, {v(t1)}, 2, {v(t2)}')
    A(f's_lshl_b32 {s(sT0)}, {s(sWave)}, 8')
    A(f's_add_u32 {s(sT0)}, {s(sT0)}, {SL[4] + 8192}')
    A(f'v_lshl_add_u32 {v(aw)}, {v(t2)}, 3, {s(sT0)}')
    A(f'v_and_b32 {v(t1)}, 31, {v(LANE)}')
    A(f'v_lshlrev_b32 {v(ar)}, 3, {v(t1)}')
    A(f'v_add_u32 {v(ar)}, {SL[4] + 8192}, {v(ar)}')
    A(f'v_lshlrev_b32 {v(vl)}, 4, {v(LANE)}')
    A(f's_lshl_b32 {s(sM2)}, {s(sTb)}, 9')
    A(f's_add_u32 {s(sM2)}, {s(sM2)}, {ST2}')
    A(f's_bfe_u32 {s(sT0)}, s2, 0x20001')
    A(f's_lshr_b32 {s(sT1)}, s2, 3')
    A(f's_lshl2_add_u32 {s(sT0)}, {s(sT0)}, {s(sT1)}')
    A(f's_mul_i32 {s(sT0)}, {s(sT0)}, {4 * 28672}')
    A(f's_add_u32 {s(sT0)}, {s(sT0)}, {XS}')
    A(f'v_min_u32 v249, 223, {v(TID)}')
    A(f'v_lshl_add_u32 v249, v249, 7, {s(sT0)}')
    for blk in range(2):
        A('s_cmp_lt_u32 s2, 28')
        A(f's_cbranch_scc1 L_nogo{blk}')
        A(f's_mov_b32 {s(sSpin)}, {SPIN}')
        A(f's_mov_b32 {s(sT3)}, {FL2S * blk}')
        A(f'L_hf{blk}:')
        A(f'buffer_load_dword v251, v250, {s(rWS, 4)}, {s(sT3)} offen sc1')
        A(f's_sub_u32 {s(sSpin)}, {s(sSpin)}, 1')
        A(f's_cbranch_scc1 L_hf{blk}_ok')
        A('s_waitcnt vmcnt(0)')
        A(f'v_cmpx_ne_u32 vcc, {s(sTag)}, v251')
        A('s_nop 0')
        A(f's_cbranch_execnz L_hf{blk}')
        A(f'L_hf{blk}_ok:')
        A('s_mov_b64 exec, -1')
        A('s_barrier')
        A(f's_and_b32 {s(sT0)}, s2, 3')
        A(f's_lshl2_add_u32 {s(sT0)}, {s(sT0)}, {s(sWave)}')
        A(f's_lshl_b32 {s(sT0)}, {s(sT0)}, 8')
        A(f's_add_u32 {s(sT0)}, {s(sT0)}, {GO + 128 * blk}')
        A(f'v_mov_b32 v252, {s(sTag)}')
        A(flag_store(252, sT0).replace(';#fl', ';#cond'))
        A(f'L_nogo{blk}:')
    for blk in range(2):
        if blk == OPT['hf']:
            fold_vectors()
        A(f's_lshl_b32 {s(sT3)}, {s(sMt)}, 8')
        A(f's_add_u32 {s(sT3)}, {s(sT3)}, {GO + 128 * blk}')
        gl = [f'buffer_load_dword v251, off, {s(rWS, 4)}, {s(sT3)} sc1']
        A.ext(gl)
        A(tag_wait(f'L_hg{blk}', gl, [251]))
        if OPT['hx'] and blk == 0:
            A(f'buffer_load_dword v251, v249, {s(rWS, 4)}, 0 offen sc1')
        ts('03')
        for i in range(7):
            A(f's_mov_b32 {s(sT0)}, {2 * 28672 * blk + 4096 * i}')
            A(f'buffer_load_dwordx4 {v(xx + 28 * blk + 4 * i, 4)}, {v(vo)}, {s(rWS, 4)}, {s(sT0)} offen sc1 ;#hx{blk}_{i}')
        for j in range(8):
            A(f'v_mov_b32 {v(acc + j)}, 0')
        for i in range(7):
            A(f'@vm hx{blk}_{i}')
            for j in range(4):
                w = xx + 28 * blk + 4 * i + j
                A(f'v_dot2c_f32_bf16 {v(acc + 2 * j)}, {v(w)}, {v(one)}')
                A(f'v_dot2c_f32_bf16 {v(acc + 2 * j + 1)}, {v(w)}, {v(w)}')
        reduce8(acc)
        A(f'ds_write_b64 {v(aw)}, {v(acc, 2)} offset:{1024 * blk}')
        A('s_waitcnt lgkmcnt(0)')
        A('s_barrier')
        A(f's_cmp_lg_u32 {s(sWave)}, {blk}')
        A(f's_cbranch_scc1 L_hs_n{blk}')
        for w in range(4):
            A(f'ds_read_b64 {v(rd + 2 * w, 2)}, {v(ar)} offset:{1024 * blk + 256 * w}')
        A(f'v_mov_b32 {v(t2)}, 0x3b124925')
        A('s_waitcnt lgkmcnt(0)')
        A(f'v_pk_add_f32 {v(rd, 2)}, {v(rd, 2)}, {v(rd + 2, 2)}')
        A(f'v_pk_add_f32 {v(rd + 4, 2)}, {v(rd + 4, 2)}, {v(rd + 6, 2)}')
        A(f'v_pk_add_f32 {v(rd, 2)}, {v(rd, 2)}, {v(rd + 4, 2)}')
        A(f'v_mul_f32 {v(rd)}, 0xbb124925, {v(rd)}')
        A(f'v_mul_f32 {v(t0)}, {v(rd)}, {v(rd)}')
        A(f'v_fma_f32 {v(rd + 1)}, {v(rd + 1)}, {v(t2)}, -{v(t0)}')
        A(f'v_max_f32 {v(rd + 1)}, 0, {v(rd + 1)}')
        A(f'v_add_f32 {v(rd + 1)}, 0x3727c5ac, {v(rd + 1)}')
        A(f'v_sqrt_f32 {v(rd + 1)}, {v(rd + 1)}')
        A(f'v_cvt_pk_bf16_f32 {v(g)}, {v(rd)}, {v(rd)}')
        A(f'v_cvt_pk_bf16_f32 {v(t1)}, {v(rd + 1)}, {v(rd + 1)}')
        A(f'v_and_b32 {v(t0)}, 0xffff0000, {v(g)}')
        A(f'v_and_b32 {v(t1)}, 0xffff0000, {v(t1)}')
        A(f'v_sub_f32 {v(rd + 2)}, {v(rd)}, {v(t0)}')
        A(f'v_sub_f32 {v(rd + 3)}, {v(rd + 1)}, {v(t1)}')
        A(f'v_cvt_pk_bf16_f32 {v(g + 1)}, {v(rd + 2)}, {v(t1)}')
        A(f'v_cvt_pk_bf16_f32 {v(g + 2)}, {v(t1)}, {v(rd + 3)}')
        A(f'v_mov_b32 {v(g + 3)}, {s(sTag)}')
        A('s_mov_b32 exec_hi, 0')
        A(f'buffer_store_dwordx4 {v(g, 4)}, {v(vl)}, {s(rWS, 4)}, {s(sM2)} offen offset:{1024 * blk} sc1 ;#cond')
        A('s_mov_b64 exec, -1')
        A(f'L_hs_n{blk}:')
    ts()
    if OPT['ha']:
        FS = OPT['fs']
        A(f's_lshr_b32 {s(sT0)}, s2, 4')
        A(f's_lshl2_add_u32 {s(sT0)}, {s(sT0)}, {s(sWave)}')
        A(f's_lshr_b32 {s(sT1)}, {s(sT0)}, 1')
        A(f's_lshl4_add_u32 {s(sT1)}, {s(sMt)}, {s(sT1)}')
        A(f's_mul_i32 {s(sT1)}, {s(sT1)}, {16 * FS}')
        A(f's_add_u32 {s(sT1)}, {s(sT1)}, {FL3}')
        A(f'v_min_u32 v250, 13, {v(LANE)}')
        A(f'v_lshl_add_u32 v250, v250, {FS.bit_length() - 1}, {s(sT1)}')
        A(f's_lshl_b32 {s(sT1)}, {s(sMt)}, 5')
        A(f's_add_u32 {s(sT0)}, {s(sT0)}, {s(sT1)}')
        A(f's_mul_i32 {s(sT0)}, {s(sT0)}, 14336')
        A(f's_add_u32 {s(sT0)}, {s(sT0)}, {ACT}')
        A(f'v_min_u32 v249, 55, {v(LANE)}')
        A(f'v_lshl_add_u32 v249, v249, 8, {s(sT0)}')
        A(f's_mov_b32 {s(sT2)}, {OPT["ha"]}')
        A(f's_mov_b32 {s(sSpin)}, {SPIN}')
        A('L_ha:')
        A(f's_sleep {OPT["hn"]}')
        A(f'buffer_load_dword v251, v250, {s(rWS, 4)}, 0 offen sc1')
        A(f's_sub_u32 {s(sSpin)}, {s(sSpin)}, 1')
        A('s_cbranch_scc1 L_ha_end')
        A('s_waitcnt vmcnt(0)')
        A(f'v_cmp_ne_u32 vcc, {s(sTag)}, v251')
        A('s_cbranch_vccnz L_ha')
        A(f'buffer_load_dword v252, v249, {s(rWS, 4)}, 0 offen sc1')
        A(f'buffer_load_dword v253, v249, {s(rWS, 4)}, 0 offen offset:128 sc1')
        A(f'v_add_u32 v250, {64 * FS}, v250')
        A(f'v_add_u32 v249, {112 * 1024}, v249')
        A(f's_sub_u32 {s(sT2)}, {s(sT2)}, 1')
        A(f's_cmp_lg_u32 {s(sT2)}, 0')
        A('s_cbranch_scc1 L_ha')
        A('L_ha_end:')


def epoch_update():
    A('s_cmp_lg_u32 s2, 32')
    A('s_cbranch_scc1 L_noep')
    A(f'v_mov_b32 v2, {s(sTag)}')
    A(f'v_mov_b32 v3, {EP}')
    A(f'buffer_store_dword v2, v3, {s(rWS, 4)}, 0 offen sc1')
    A('L_noep:')


def build():
    prologue()
    n0 = nts[0]
    m = V.mark()
    keep = dict(OPT)
    for var in range(2 if OPT['dual'] else 1):
        if var:
            OPT.update({k[2:]: val for k, val in keep.items() if k.startswith('B_')})
        nts[0] = n0
        c0 = len(COLD)
        body = capture(lambda: (main_ffn(main_ssm()), epoch_update(), ts_flush('m'), A('s_endpgm')))
        cut = body.index('@@SPLIT')
        if var == 0:
            A.ext(body[:cut])
            if OPT['dual']:
                A(f's_bitcmp1_b32 {s(sMi)}, 0')
                A('s_cbranch_scc1 L_varB')
            A.ext(body[cut + 1:])
        else:
            ren = lambda x: re.sub(r'\b(L_\w+)', r'\1_B', x)
            A('L_varB:')
            A.ext([x for x in body[:cut] if x.startswith(('buffer_', 'global_'))] and ['@@REPLAY ' + x for x in body[:cut] if x.startswith(('buffer_', 'global_'))])
            A.ext([ren(x) for x in body[cut + 1:]])
            COLD[c0:] = [ren(x) for x in COLD[c0:]]
    OPT.update(keep)
    A('L_helper:')
    nts[0] = n0
    V.release(m)
    helper_mod()
    helper_rest()
    ts_flush('h')
    A('L_end:')
    A('s_endpgm')
    A.ext(COLD)
    A('L_code_end:')
    if OPT['nodma']:
        keys = [s(rW, 4)] * (OPT['nodma'] & 1) + [s(rWd, 4)] * (OPT['nodma'] >> 1)
        A.lines = ['    s_nop 0' if ('buffer_load' in ln and any(k in ln for k in keys)) else ln for ln in A.lines]
    if OPT['skip']:
        tg = [f';#w{i}' for i in range(7) if OPT['skip'] >> i & 1] + [f';#d{i}' for i in range(7) if OPT['skip'] >> (8 + i) & 1]
        A.lines = ['    s_nop 0' if ('buffer_load' in ln and any(ln.endswith(k) for k in tg)) else ln for ln in A.lines]
    X = OPT['exp']
    def drop(ln):
        if X & 1 and 'buffer_load_dword ' in ln and s(rX, 4) in ln and s(sM2) in ln:
            return True
        if X & 2 and ln.endswith(';#res'):
            return True
        if X & 4 and ';#xo' in ln and s(sT3) in ln:
            return True
        if X & 8 and ';#ao' in ln:
            return True
        if X & 16 and ';#a' in ln and 'buffer_load' in ln and int(ln.split(';#a')[1]) % 2:
            return True
        if X & 32 and ';#x' in ln and ' lds' in ln and not ln.endswith('x0'):
            return True
        return False
    A.lines = ['    s_nop 0' if drop(ln) else ln for ln in A.lines]
    body = pad_hazards(resolve_waits(A.lines))
    hdr = open('adaLN_cond__ssm_conv_s4__swiglu_ffn__prompt.s.ref').read().split('; Override launch')[0]
    text = hdr + '; @launch grid=(256,1,1) block=(256,1,1) lds=163840\n'
    text += f'.amdgcn_target "amdgcn-amd-amdhsa--gfx950"\n.text\n.globl {NAME}\n.p2align 8\n.type {NAME},@function\n{NAME}:\n'
    text += '\n'.join(body) + '\n'
    text += f'''.section .rodata,"a"
.p2align 6
.amdhsa_kernel {NAME}
  .amdhsa_next_free_vgpr 512
  .amdhsa_next_free_sgpr 102
  .amdhsa_accum_offset 256
  .amdhsa_group_segment_fixed_size 0
  .amdhsa_kernarg_size 144
  .amdhsa_user_sgpr_count 2
  .amdhsa_user_sgpr_kernarg_segment_ptr 1
  .amdhsa_system_sgpr_workgroup_id_x 1
  .amdhsa_float_denorm_mode_32 3
.end_amdhsa_kernel
'''
    open(sys.argv[1], 'w').write(text)
    print('vgpr high water', V.hi, 'lines', len(body))


build()
```

```python
import sys
from asmgen import *

NAME = 'adaLN_cond__ssm_conv_s4__swiglu_ffn__prompt_kernel'
OPT = dict(ts=0, probe=-1, hprobe=-1, grp=0, nap=1, pp=10, pc=20, sp=3, cb0=0, cb1=1, nb=2, w5=4, wb=24, nt=3, kb=4, x1e=3, e0=78, b1=113, b2=168, sl=34, sl1=36, sl2=46, gv=56, rm=2, la=8, pl=16, osc=2, g0=5, a0=206, g5=10, r3=192, r4=208, p0=196, f0=5, f1=9, f2=14, f3=30, nodma=0, hdelay=0, mdelay=0, exp=0, n0=6, n2=2, k0=2, xp=5, h1p=2, skip=0, pre1=1, tsb=2, n1=4, m2p=16, hbe=0, hb0=2, hb1=1, cd0=4, cd1=116, hw0=28, nc=4, se=1, s0=3, ls0=46, fs=16, q0=66, q1=82, q2=124, q3=140, q4=172, q5=180, r0=88, r1=122, r2=170, dg=8, nf=0, glc=0, na=0, cda=56, cdb=84, w2c=0, cd2=140, fa=20, gl=26, fp=8, pm=1, xo3=0, hx=1, qd=30, gb=42, re=0, hp=0, hf=0, npf=4, ha=0, hn=8)
for arg in sys.argv[2:]:
    k, val = arg.split('=')
    OPT[k] = int(val)

EP, ST1, MOD, AUG, ST2, FL2, FL3 = 0, 0x1000, 0x8000, 0x14000, 0x24000, 0xC0000, 0x40000
FL2S = 896 * 128
GO = 0x30000
INB, XS, X1P, ACT, TS = 0x100000, 0x500000, 0x700000, 0x900000, 0x1800000
SL = [0, 32768, 65536, 98304, 131072]
KG_W = 16320
HB, HC = 65024, 4160
KT, KT_CH, KT_C0 = 33792, 9152, 4568
XR = 52096
TXB = 13248
CKX = 60416
SPIN = 200000
XB = 51

pX, pAre, pAim, pBre, pBim, pCre, pCim, pLdt, pDs, pBx, pWg, pWu, pWd, pC, pWm, pOut, pDbg, pWs = range(4, 40, 2)
rX, rWS, rW, rWd, rOut, rWm = 40, 44, 48, 52, 56, 60
sWave, sTag, sJ, sMi, sNi, sMt, sNt, sRot, sLdt, sDs, sT0, sT1, sT2, sT3, sSpin, sM2 = range(64, 80)
sTS = 80
sC = 4
sD = 4
sW1k, sW8k, sWo, sFl, sTb = 11, 12, 13, 14, 15

A = Asm()
V = Regs('v', 6, 256)
TID, LANE, VST, VTAG = 0, 1, 2, 4
CODE_SLICE = 1152
sGi, sSo, sP, sGo, sGo2 = 36, 37, 63, 36, 37
nts = [0]


def ts(grp='0'):
    if OPT['ts'] and (grp == '*' or str(OPT['grp']) in grp):
        A(f's_mem{"real" if OPT["ts"] == 1 else ""}time {s(sTS + 2 * nts[0], 2)}')
        nts[0] += 1
        assert nts[0] <= 11


def ts_flush(tag):
    if not OPT['ts']:
        return
    pk = OPT['probe' if tag == 'm' else 'hprobe']
    if max(OPT['probe'], OPT['hprobe']) >= 0:
        if pk >= 0:
            A('s_waitcnt lgkmcnt(0)')
            A(f's_add_u32 {s(sT0)}, {s(sTS + 2 * pk)}, 6000')
            A(f'L_probe{tag}:')
            A(f's_memrealtime {s(sT2, 2)}')
            A('s_waitcnt lgkmcnt(0)')
            A(f's_sub_u32 {s(sT1)}, {s(sT2)}, {s(sT0)}')
            A(f's_cmp_lt_i32 {s(sT1)}, 0')
            A(f's_cbranch_scc1 L_probe{tag}')
        return
    n = nts[0]
    A('s_waitcnt lgkmcnt(0)')
    A(f's_lshl_b32 {s(sT0)}, s2, 2')
    A(f's_add_u32 {s(sT0)}, {s(sT0)}, {s(sWave)}')
    A(f's_lshl_b32 {s(sT0)}, {s(sT0)}, 6')
    A(f's_add_u32 {s(sT0)}, {s(sT0)}, {TS}')
    A(f'v_mov_b32 v2, {s(sT0)}')
    for i in range(n):
        A(f'v_mov_b32 v3, {s(sTS + 2 * i)}')
        A(f'buffer_store_dword v3, v2, {s(rWS, 4)}, 0 offen offset:{4 * i}')


def srd(r, p, nbytes):
    A(f's_mov_b32 {s(r)}, {s(p)}')
    A(f's_mov_b32 {s(r + 1)}, {s(p + 1)}')
    A(f's_mov_b32 {s(r + 2)}, {nbytes}')
    A(f's_mov_b32 {s(r + 3)}, 0x00020000')


def cmul(d, x, y):
    return [f'v_pk_mul_f32 {v(d, 2)}, {v(x, 2)}, {v(y, 2)} op_sel:[0,0] op_sel_hi:[1,0]',
            f'v_pk_fma_f32 {v(d, 2)}, {v(x, 2)}, {v(y, 2)}, {v(d, 2)} op_sel:[1,1,0] op_sel_hi:[0,1,1] neg_lo:[0,1,0]']


def div7(q, r, x):
    A(f's_mul_i32 {s(q)}, {s(x)}, 9363')
    A(f's_lshr_b32 {s(q)}, {s(q)}, 16')
    A(f's_mul_i32 {s(r)}, {s(q)}, 7')
    A(f's_sub_u32 {s(r)}, {s(x)}, {s(r)}')


COLD = []


def tag_wait(label, loads, tags, younger=0):
    o = [f'@vm {younger}' if isinstance(younger, str) else f's_waitcnt vmcnt({younger})']
    chk = [f'v_cmpx_eq_u32 vcc, {s(sTag)}, {v(t)}' for t in tags]
    chk += ['s_nop 0', 's_cmp_eq_u64 exec, -1', 's_mov_b64 exec, -1']
    o += chk + [f's_cbranch_scc0 {label}_re', f'{label}_ok:']
    c = [f'{label}_re:', f's_mov_b32 {s(sSpin)}, {SPIN}', f'{label}_lp:', f's_sleep {OPT["nap"]}']
    c += [x.split(';#')[0] for x in loads]
    c += ['s_waitcnt vmcnt(0)'] + chk + [f's_cbranch_scc1 {label}_ok', f's_sub_u32 {s(sSpin)}, {s(sSpin)}, 1',
                                         f's_cmp_lg_u32 {s(sSpin)}, 0', f's_cbranch_scc1 {label}_lp', f's_branch {label}_ok']
    COLD.extend(c)
    return '\n'.join(o)


def tag_units(label, loads, tags, younger, pair=None):
    chk = [f'v_cmp_ne_u32 vcc, {s(sTag)}, {v(tags[0])}']
    for t in tags[1:]:
        chk += [f'v_cmp_ne_u32 {s(sLdt, 2)}, {s(sTag)}, {v(t)}', f's_or_b64 vcc, vcc, {s(sLdt, 2)}']
    c = [f'{label}_re:', f's_mov_b32 {s(sSpin)}, {SPIN}', f'{label}_lp:', f's_sleep {OPT["nap"]}']
    c += [x.split(';#')[0] for x in loads]
    if pair is not None:
        chk = [f'v_cmp_ne_u32 {s(pair, 2)}, {s(sTag)}, {v(tags[0])}']
        c += ['s_waitcnt vmcnt(0)'] + chk + [f's_cmp_eq_u64 {s(pair, 2)}, 0', f's_cbranch_scc1 {label}_ok', f's_sub_u32 {s(sSpin)}, {s(sSpin)}, 1',
                                             f's_cmp_lg_u32 {s(sSpin)}, 0', f's_cbranch_scc1 {label}_lp', f's_branch {label}_ok']
        COLD.extend(c)
        return [f'@vm {younger}'] + chk + [f's_cmp_lg_u64 {s(pair, 2)}, 0\ns_cbranch_scc1 {label}_re\n{label}_ok:']
    c += ['s_waitcnt vmcnt(0)'] + chk + [f's_cbranch_vccz {label}_ok', f's_sub_u32 {s(sSpin)}, {s(sSpin)}, 1',
                                         f's_cmp_lg_u32 {s(sSpin)}, 0', f's_cbranch_scc1 {label}_lp', f's_branch {label}_ok']
    COLD.extend(c)
    return [f'@vm {younger}'] + chk + [f's_cbranch_vccnz {label}_re\n{label}_ok:']


def stats1_addr():
    A(f's_mov_b32 {s(rX + 2)}, 1835008')
    A(f's_mov_b32 {s(rX + 3)}, 0x00020000')
    A(f's_mov_b32 {s(rWS + 2)}, 0x10000000')
    A(f's_mov_b32 {s(rWS + 3)}, 0x00020000')
    A(f's_lshl2_add_u32 {s(sGi)}, s2, {s(sWave)}')
    A(f's_mul_i32 {s(sSo)}, {s(sGi)}, 1792')
    A(f'v_lshrrev_b32 v3, 5, {v(LANE)}')
    A('v_mul_u32_u24 v3, 896, v3')
    A(f'v_and_b32 v4, 31, {v(LANE)}')
    A('v_cmp_gt_u32 vcc, 28, v4')
    A('v_lshl_add_u32 v3, v4, 4, v3')
    A('v_bfrev_b32 v4, 2')
    A(f'v_cndmask_b32 {v(VST)}, v4, v3, vcc')


def stats1_loads(d):
    if OPT['pre1']:
        A(f's_lshl_b32 {s(sSpin)}, {s(sGi)}, 4')
        A(f's_add_u32 {s(sSpin)}, {s(sSpin)}, {ST1}')
        A(f'buffer_load_dword v5, off, {s(rWS, 4)}, {s(sSpin)}')
    A(f'buffer_load_dwordx4 {v(d, 4)}, {v(VST)}, {s(rX, 4)}, {s(sSo)} offen {"nt" if OPT["nt"] & 4 else ""}')
    A(f'buffer_load_dwordx4 {v(d + 4, 4)}, {v(VST)}, {s(rX, 4)}, {s(sSo)} offen offset:448 {"nt" if OPT["nt"] & 4 else ""}')


def stats1_compute(d):
    m = V.mark()
    g = V.get(4)
    s1, s2, one, t = V.get(), V.get(), V.get(), V.get()
    A(f'v_mov_b32 {v(one)}, 0x3f803f80')
    A(f'v_mov_b32 {v(s1)}, 0')
    A(f'v_mov_b32 {v(s2)}, 0')
    for i in range(8):
        A(f'v_dot2c_f32_bf16 {v(s1)}, {v(d + i)}, {v(one)}')
        A(f'v_dot2c_f32_bf16 {v(s2)}, {v(d + i)}, {v(d + i)}')
    for ctl in ('row_shr:1', 'row_shr:2', 'row_shr:4', 'row_shr:8'):
        for r in (s1, s2):
            A(f'v_add_f32_dpp {v(r)}, {v(r)}, {v(r)} {ctl} row_mask:0xf bank_mask:0xf bound_ctrl:1')
    for r in (s1, s2):
        A(f'v_add_f32_dpp {v(r)}, {v(r)}, {v(r)} row_bcast:15 row_mask:0xa bank_mask:0xf')
    A(f'v_mul_f32 {v(s1)}, 0x3b124925, {v(s1)}')
    A(f'v_mul_f32 {v(t)}, {v(s1)}, {v(s1)}')
    A(f'v_mov_b32 {v(one)}, 0x3b124925')
    A(f'v_fma_f32 {v(s2)}, {v(s2)}, {v(one)}, -{v(t)}')
    A(f'v_max_f32 {v(s2)}, 0, {v(s2)}')
    A(f'v_add_f32 {v(s2)}, 0x3727c5ac, {v(s2)}')
    A(f'v_rsq_f32 {v(g + 2)}, {v(s2)}')
    A(f'v_mov_b32 {v(g + 3)}, {s(sTag)}')
    A(f'v_mul_f32 {v(s1)}, {v(s1)}, {v(g + 2)}')
    A(f'v_readlane_b32 {s(sT1)}, {v(g + 2)}, 31')
    A(f'v_readlane_b32 {s(sT2)}, {v(s1)}, 31')
    A(f's_lshl_b32 {s(sT0)}, {s(sGi)}, 4')
    A(f's_add_u32 {s(sT0)}, {s(sT0)}, {ST1}')
    A(f'v_mov_b32 {v(g + 1)}, {s(sT1)}')
    A(f'v_cvt_pk_bf16_f32 {v(g)}, -{s(sT2)}, -{v(s1)}')
    A('s_mov_b32 exec_lo, 0')
    A('s_mov_b32 exec_hi, 0x80000000')
    A(f'buffer_store_dwordx4 {v(g, 4)}, off, {s(rWS, 4)}, {s(sT0)} sc1')
    A('s_mov_b64 exec, -1')
    V.release(m)


def reduce8(acc):
    for j in range(4):
        A(f'v_permlane32_swap_b32 {v(acc + j)}, {v(acc + j + 4)}')
    for j in range(4):
        A(f'v_add_f32 {v(acc + j)}, {v(acc + j)}, {v(acc + j + 4)}')
    for j in range(2):
        A(f'v_permlane16_swap_b32 {v(acc + j)}, {v(acc + j + 2)}')
    for j in range(2):
        A(f'v_add_f32 {v(acc + j)}, {v(acc + j)}, {v(acc + j + 2)}')
    for j in range(2):
        A(f'v_add_f32_dpp {v(acc + j)}, {v(acc + j)}, {v(acc + j)} row_ror:8 row_mask:0xf bank_mask:0xf')


def bf16_pair_from_partials(dst, g0, g1, plus1):
    A(f'v_add_f32 {v(dst)}, {v(g0)}, {v(g1)}')
    A(f'v_add_f32 {v(dst + 1)}, {v(g0 + 1)}, {v(g1 + 1)}')
    A(f'v_cvt_pk_bf16_f32 {v(g0)}, {v(dst)}, {v(dst + 1)}')
    A(f'v_lshlrev_b32 {v(dst)}, 16, {v(g0)}')
    A(f'v_and_b32 {v(dst + 1)}, 0xffff0000, {v(g0)}')
    if plus1:
        A(f'v_add_f32 {v(dst)}, 1.0, {v(dst)}')
        A(f'v_add_f32 {v(dst + 1)}, 1.0, {v(dst + 1)}')
        A(f'v_cvt_pk_bf16_f32 {v(g0)}, {v(dst)}, {v(dst + 1)}')
        A(f'v_lshlrev_b32 {v(dst)}, 16, {v(g0)}')
        A(f'v_and_b32 {v(dst + 1)}, 0xffff0000, {v(g0)}')


def prologue():
    A('s_cmp_ge_u32 s2, 256')
    A('s_cbranch_scc1 L_end')
    ts('*')
    A(f's_load_dwordx2 {s(rX, 2)}, s[0:1], 0')
    A(f's_load_dwordx2 {s(rWS, 2)}, s[0:1], 136')
    A('s_load_dwordx16 s[4:19], s[0:1], 0')
    A('s_load_dwordx16 s[20:35], s[0:1], 64')
    A(f's_getpc_b64 {s(sT2, 2)}')
    A('L_pc:')
    A(f's_lshr_b32 {s(sT0)}, s2, 3')
    A(f's_mul_i32 {s(sT0)}, {s(sT0)}, {CODE_SLICE}')
    A(f'v_lshrrev_b32 v3, 6, {v(TID)}')
    A(f'v_min_u32 v4, {CODE_SLICE // 128 - 1}, {v(TID)}')
    A(f'v_lshl_add_u32 v4, v4, 7, {s(sT0)}')
    A('v_min_u32 v4, L_code_end-L_pc-4, v4')
    A(f'v_readfirstlane_b32 {s(sWave)}, v3')
    A(f'v_and_b32 {v(LANE)}, 63, {v(TID)}')
    A(f'global_load_dword v5, v4, {s(sT2, 2)}')
    A(f's_sub_u32 {s(sJ)}, s2, 32')
    A('s_cbranch_scc1 L_helper')


UEXP = {}
for vv in range(14):
    for hh in range(2):
        if vv < 4:
            e = 4 * hh + vv
        elif vv < 7:
            e = 256 + 4 * hh + 2 * (vv - 4)
        elif vv < 10:
            e = 512 + 256 * hh + 4 * (vv - 7)
        elif vv < 12:
            e = 1024 + 512 * hh + 8 * (vv - 10)
        else:
            e = 1280 + 512 * hh + 8 * (vv - 12)
        rho = 8 * (vv >> 2) + 4 * hh + (vv & 3)
        UEXP.setdefault(e, []).append(rho if rho < 26 else rho - 2)


def stage_dma(cc, slot, voff, rsrc, rowb):
    out = []
    for i in range(8):
        u = ''
        if i % 4 == 0:
            u += f's_add_u32 m0, {s(sW8k)}, {SL[slot] + 1024 * i}\n'
        if i == 0:
            u += f's_mul_i32 {s(sWo)}, {s((sC if rsrc == rW else sD) + cc)}, {rowb // 64}\n'
        else:
            u += f's_add_u32 {s(sWo)}, {s(sWo)}, {8 * rowb + (3072 if i == 4 else -1024)}\n'
        u += f'buffer_load_dwordx4 {v(voff)}, {s(rsrc, 4)}, {s(sWo)} offen offset:{1024 * (i % 4)} lds'
        out.append(u)
    return out


def w_dma(cc, slot, P):
    return stage_dma(cc, slot, P['vW'], rW, 3584)


def wd_dma(cc, slot, P):
    return stage_dma(cc, slot, P['vWd'], rWd, 896)


def w_frags(cc, slot, P):
    out = []
    base, off = P['vWr'][slot // 2], 32768 * (slot % 2)
    for ks in range(4):
        for mat in range(2):
            for e in range(2):
                r = (mat * 28 + cc * 4 + ks) * 4 + 2 * e
                out.append(f'ds_read_b64_tr_b16 {a(r, 2)}, {v(base)} offset:{off + mat * 16384 + (16 * ks + 4 * e) * 128}')
    return out


def wdreg(cc, j, db, P):
    i = (j * 4 + db) * 4
    if cc == 0:
        return 'a', 224 + i
    if cc < 3:
        return 'v', P['wdv'] + 32 * (cc - 1) + i
    return 'a', 32 * (cc - 3) + i


def rn(kr, n):
    return (a if kr[0] == 'a' else v)(kr[1], n)


def wd_addr(slot, P):
    d = P['vDr']
    return [f'v_xor_b32 {v(d[1 + db])}, {SL[slot & ~1] + 32 * db}, {v(d[0])}' for db in range(4)]


def wd_frags(cc, slot, P):
    o = []
    for j in range(2):
        for db in range(4):
            k, r = wdreg(cc, j, db, P)
            for e in range(2):
                o.append(f'ds_read_b64_tr_b16 {rn((k, r + 2 * e), 2)}, {v(P["vDr"][1 + db])} offset:{32768 * (slot % 2) + (32 * j + 8 * e) * 128} ;#df{cc}')
    o[0] = f'@vm d{cc}\n' + o[0]
    return o


def flat(units):
    return [ln for u in units for ln in u.split('\n') if ln.strip()]


def tr_lane(dst, t0, t1, hmul, rowb):
    A(f'v_lshrrev_b32 {v(t0)}, 5, {v(LANE)}')
    A(f'v_bfe_u32 {v(t1)}, {v(LANE)}, 2, 2')
    A(f'v_lshl_add_u32 {v(t0)}, {v(t0)}, {hmul.bit_length() - 1}, {v(t1)}')
    A(f'v_lshlrev_b32 {v(dst)}, {rowb.bit_length() - 1}, {v(t0)}')
    A(f'v_bfe_u32 {v(t1)}, {v(LANE)}, 4, 1')
    A(f'v_lshl_add_u32 {v(dst)}, {v(t1)}, 5, {v(dst)}')
    A(f'v_and_b32 {v(t1)}, 3, {v(LANE)}')
    A(f'v_lshl_add_u32 {v(dst)}, {v(t1)}, 3, {v(dst)}')


def flag_store(vTag, soff):
    return ('s_mov_b64 exec, 1\n'
            f'buffer_store_dword {v(vTag)}, off, {s(rWS, 4)}, {s(soff)} sc1 ;#fl\n'
            's_mov_b64 exec, -1')


def capture(fn):
    keep, A.lines = A.lines, []
    fn()
    got, A.lines = [x.strip() for x in A.lines], keep
    return got


def main_ssm():
    P = {}
    V.release(2)
    V.get(4)
    vWd = V.get()
    vDr = [V.get() for _ in range(5)]
    vW = V.get()
    vWr = [V.get() for _ in range(3)]
    vXr = [V.get() for _ in range(3)]
    vFp = V.get()
    P.update(vW=vW, vWr=vWr, vWd=vWd, vDr=vDr, vXr=vXr, vFp=vFp)
    mp = V.mark()
    vM, aA, aB, aE, a0, aO, aO2, aXr, one = [V.get() for _ in range(9)]
    aX, aF, vG = V.get(), V.get(), V.get()
    M = V.get(4)
    sa, c1 = V.get(2), V.get(2)
    GB, SB = V.get(4), V.get(8)
    mb = V.mark()
    vI, aZ = V.get(), V.get()
    GA, SA = V.get(4), V.get(8)
    Gk = [GA, GA + 2, GB, GB + 2]
    Sk = [SA, SA + 4, SB, SB + 4]
    mk = V.mark()
    par = V.get(6)
    T = V.get(16, 4)
    st = V.get(8)
    q, tp, t0, t1, t2, vPf = [V.get() for _ in range(6)]
    dt = V.get(2)
    aU, aV, ax, ay, aK, aK2 = [V.get() for _ in range(6)]
    fU, fV = V.get(32), V.get(32)
    e2, rv = V.get(), V.get()
    B_, C_, W_, z1, z2, z4, z8, z256 = [V.get(2) for _ in range(8)]
    pp = [V.get(2) for _ in range(4)]
    cv = [V.get() for _ in range(8)]
    sKG, sKT, sOdd = 38, 39, 23
    sGa, sCb, sHm = 30, 32, 60
    A(f's_and_b32 {s(sT2)}, {s(sJ)}, 7')
    A(f's_lshr_b32 {s(sT3)}, {s(sJ)}, 3')
    A(f's_mul_i32 {s(sP)}, {s(sT2)}, 28')
    A(f's_add_u32 {s(sP)}, {s(sP)}, {s(sT3)}')
    A(f's_lshl_b32 {s(sT0)}, {s(sP)}, 10')
    A(f'v_lshl_add_u32 {v(t1)}, {v(TID)}, 2, {s(sT0)}')
    A(f's_lshl_b32 {s(sT1)}, {s(sP)}, 2')
    A('s_waitcnt lgkmcnt(0)')
    ts('1')
    for i, p in enumerate((pAre, pAim, pBre, pBim, pCre, pCim)):
        A(f'global_load_dword {v(par + i)}, {v(t1)}, {s(p, 2)} {"nt" if OPT["nt"] & 1 else ""} ;#par')
    A(f's_load_dword {s(sLdt)}, {s(pLdt, 2)}, {s(sT1)}')
    A(f's_load_dword {s(sDs)}, {s(pDs, 2)}, {s(sT1)}')
    A(f's_load_dword {s(sTag)}, {s(rWS, 2)}, {EP}')
    stats1_addr()
    A(f'v_min_u32 {v(t0)}, 147, {v(TID)}')
    A(f'v_lshrrev_b32 {v(t2)}, 1, {v(t0)}')
    A(f'v_mul_u32_u24 {v(t2)}, 896, {v(t2)}')
    A(f'v_and_b32 {v(t0)}, 1, {v(t0)}')
    A(f'v_mul_u32_u24 {v(t0)}, 108, {v(t0)}')
    A(f'v_add_u32 {v(t0)}, {v(t0)}, {v(t2)}')
    A(f's_mul_i32 {s(sT0)}, {s(sT3)}, {74 * 8}')
    A(f's_add_u32 {s(sT0)}, {s(sT0)}, {s(sT2)}')
    A(f's_mul_i32 {s(sT0)}, {s(sT0)}, 112')
    A.ext(tagged(capture(lambda: stats1_loads(st)), 'xa'))
    A(f'v_add_u32 {v(vPf)}, {s(sT0)}, {v(t0)}')
    xpf = f'buffer_load_dword v5, {v(vPf)}, {s(rX, 4)}, 0 offen'
    A(f'v_mul_u32_u24 {v(vG)}, 1792, {v(LANE)}')
    A(f's_mul_i32 {s(sM2)}, {s(sWave)}, {128 * 1792}')
    A(f's_add_u32 {s(sM2)}, {s(sM2)}, {s(sT1)}')
    col = []
    for k in range(4):
        col.append(f'buffer_load_dword {v(Gk[k])}, {v(vG)}, {s(rX, 4)}, {s(sM2)} offen ;#col{k // 2}')
        col.append(f'buffer_load_dword {v(Gk[k] + 1)}, {v(vG)}, {s(rX, 4)}, {s(sM2)} offen offset:896 ;#col{k // 2}\ns_add_u32 {s(sM2)}, {s(sM2)}, {(448 if k == 1 else 64) * 1792}')
    A(f's_and_b32 {s(sOdd)}, {s(sWave)}, 1')
    A(f's_mul_i32 {s(sKG)}, {s(sWave)}, {KG_W}')
    A(f's_lshr_b32 {s(sT2)}, {s(sWave)}, 1')
    A(f's_mul_i32 {s(sKT)}, {s(sT2)}, {KT_CH}')
    A(f's_add_u32 {s(sKT)}, {s(sKT)}, {KT}')
    A(f'v_and_b32 {v(t0)}, 31, {v(LANE)}')
    A(f'v_lshrrev_b32 {v(t1)}, 5, {v(LANE)}')
    A(f'v_lshl_add_u32 {v(t2)}, {v(t1)}, 4, {s(sKG)}')
    A(f'v_mul_u32_u24 {v(aV)}, 272, {v(t0)}')
    A(f'v_add_u32 {v(aV)}, {v(aV)}, {v(t2)}')
    A(f'v_cmp_lt_u32 vcc, 27, {v(t0)}')
    A(f'v_add_u32 {v(aU)}, {32 * 272}, {v(aV)}')
    A(f'v_add_u32 {v(t2)}, {30 * 272}, {v(aV)}')
    A(f'v_cndmask_b32 {v(aU)}, {v(aU)}, {v(t2)}, vcc')
    A(f'v_lshlrev_b32 {v(t0)}, 4, {v(t0)}')
    A(f'v_sub_u32 {v(t0)}, {s(sKT)}, {v(t0)}')
    A(f'v_lshlrev_b32 {v(aK)}, 3, {v(t1)}')
    A(f'v_sub_u32 {v(aK)}, {v(t0)}, {v(aK)}')
    A(f's_add_u32 {s(sT0)}, {s(sOdd)}, 9')
    A(f'v_lshlrev_b32 {v(aK2)}, {s(sT0)}, {v(t1)}')
    A(f'v_sub_u32 {v(aK2)}, {v(t0)}, {v(aK2)}')
    A(f'v_lshl_add_u32 {v(ax)}, {v(LANE)}, 4, {s(sKG)}')
    A(f's_xor_b32 {s(sT0)}, {s(sWave)}, 1')
    A(f's_mul_i32 {s(sT0)}, {s(sT0)}, {KG_W}')
    A(f'v_lshl_add_u32 {v(ay)}, {v(LANE)}, 4, {s(sT0)}')
    A(f's_lshl_b32 {s(sT0)}, {s(sWave)}, 11')
    A(f'v_lshl_add_u32 {v(vI)}, {v(LANE)}, 4, {s(sT0)}')
    A(f'v_and_b32 {v(t0)}, 3, {v(LANE)}')
    A(f'v_mul_u32_u24 {v(vM)}, 3584, {v(t0)}')
    A(f's_lshl_b32 {s(sT0)}, {s(sP)}, 4')
    A(f's_add_u32 {s(sT0)}, {s(sT0)}, {MOD}')
    A(f'v_add_u32 {v(vM)}, {s(sT0)}, {v(vM)}')
    A(f'v_bfe_u32 {v(one)}, {v(LANE)}, 1, 1')
    A(f'v_cvt_f32_u32 {v(one)}, {v(one)}')
    A(f'v_mov_b32 {v(cv[7])}, 0x3f80')
    A(f's_mov_b32 m0, {s(sKG)}')
    A(f's_lshl_b32 {s(sW1k)}, {s(sWave)}, 10')
    A(f's_lshl_b32 {s(sW8k)}, {s(sWave)}, 13')
    A(f'ds_write_addtid_b32 {v(cv[7])}')

    def late_setup():
        A(f'v_lshrrev_b32 {v(q)}, 3, {v(LANE)}')
        A(f'v_and_b32 {v(tp)}, 7, {v(LANE)}')
        A(f's_lshr_b32 {s(sT0)}, {s(sJ)}, 3')
        div7(sMi, sNi, sT0)
        A(f's_bfe_u32 {s(sT1)}, {s(sJ)}, 0x20001')
        A(f's_lshl2_add_u32 {s(sMt)}, {s(sT1)}, {s(sMi)}')
        A(f's_and_b32 {s(sT1)}, {s(sJ)}, 1')
        A(f's_mul_i32 {s(sNt)}, {s(sT1)}, 7')
        A(f's_add_u32 {s(sNt)}, {s(sNt)}, {s(sNi)}')
        A((f's_mov_b32 {s(sRot)}, {s(sNi)}', f's_add_u32 {s(sRot)}, {s(sMi)}, {s(sNi)}', f's_lshl1_add_u32 {s(sRot)}, {s(sMi)}, {s(sNi)}')[OPT['rm']])
        A(f's_lshl_b32 {s(sRot)}, {s(sRot)}, 2')
        A(f's_mov_b32 {s(sT2)}, 0x06543210')
        A(f's_mov_b32 {s(sT3)}, 0x10654321')
        A(f's_cmp_ge_u32 {s(sRot)}, 28\ns_cselect_b32 {s(sT1)}, 28, 0')
        A(f's_sub_u32 {s(sRot)}, {s(sRot)}, {s(sT1)}')
        A(f's_lshr_b64 {s(sT2, 2)}, {s(sT2, 2)}, {s(sRot)}')
        A(f's_cmp_lt_u32 {s(sWave)}, 2')
        A(f's_cselect_b64 {s(rW, 2)}, {s(pWg, 2)}, {s(pWu, 2)}')
        A(f's_mov_b32 {s(rW + 2)}, 1605632')
        A(f's_mov_b32 {s(rW + 3)}, 0x00020000')
        for cc in range(7):
            A(f's_bfe_u32 {s(sT0)}, {s(sT2)}, {hex(0x30000 + 4 * cc)}')
            A(f's_lshl_b32 {s(sC + cc)}, {s(sT0)}, 12')
        A(f'v_lshlrev_b32 {v(t0)}, 1, {v(q)}')
        A(f'v_and_b32 {v(t0)}, 4, {v(t0)}')
        A(f'v_xor_b32 {v(t0)}, {v(t0)}, {v(tp)}')
        A(f'v_lshlrev_b32 {v(t0)}, 4, {v(t0)}')
        A(f's_lshl1_add_u32 {s(sT0)}, {s(sNt)}, {s(sOdd)}')
        A(f's_lshl_b32 {s(sT0)}, {s(sT0)}, 7')
        A(f'v_mul_u32_u24 {v(vW)}, 3584, {v(q)}')
        A(f'v_add3_u32 {v(vW)}, {v(vW)}, {v(t0)}, {s(sT0)}')
        A(f's_mul_i32 {s(sT0)}, {s(sWave)}, {448 * 7}')
        A(f's_add_u32 {s(sT0)}, {s(sT0)}, {s(sNi)}')
        A(f's_lshl_b32 {s(sT0)}, {s(sT0)}, 7')
        A(f'v_and_b32 {v(t0)}, 6, {v(q)}')
        A(f'v_xor_b32 {v(t0)}, {v(t0)}, {v(tp)}')
        A(f'v_lshlrev_b32 {v(t0)}, 4, {v(t0)}')
        A(f'v_mul_u32_u24 {v(vWd)}, 896, {v(q)}')
        A(f'v_add3_u32 {v(vWd)}, {v(vWd)}, {v(t0)}, {s(sT0)}')
        A(f's_lshr_b32 {s(sT2)}, {s(sWave)}, 1')
        A(f's_lshl_b32 {s(sT1)}, {s(sOdd)}, 8')
        A(f's_mul_i32 {s(sT0)}, {s(sT2)}, {4 * HC}')
        A(f's_add_u32 {s(sT0)}, {s(sT0)}, {s(sT1)}')
        A(f's_add_u32 {s(sT0)}, {s(sT0)}, {HB}')
        A(f's_add_u32 {s(sT1)}, {s(sT1)}, {s(sKT)}')
        A(f's_add_u32 {s(sT1)}, {s(sT1)}, {KT_C0 + 4040 - 3584}')
        A(f'v_lshrrev_b32 {v(t0)}, 4, {v(LANE)}')
        A(f'v_bfe_u32 {v(t1)}, {v(LANE)}, 2, 2')
        A(f'v_add_u32 {v(t1)}, {v(t1)}, {v(t0)}')
        A(f'v_and_b32 {v(t2)}, 3, {v(LANE)}')
        A(f'v_mul_u32_u24 {v(e2)}, {HC}, {v(t2)}')
        A(f'v_lshl_add_u32 {v(aA)}, {v(t1)}, 4, {v(e2)}')
        A(f'v_add_u32 {v(aA)}, {s(sT0)}, {v(aA)}')
        A(f'v_lshl_add_u32 {v(aB)}, {v(t0)}, 4, {s(sT1)}')
        A(f'v_lshlrev_b32 {v(t1)}, 6, {v(tp)}')
        A(f'v_sub_u32 {v(aB)}, {v(aB)}, {v(t1)}')
        A(f'v_and_b32 {v(t1)}, 1, {v(q)}')
        A(f'v_mul_u32_u24 {v(t1)}, {KT_C0 + 8}, {v(t1)}')
        A(f'v_sub_u32 {v(aB)}, {v(aB)}, {v(t1)}')
        A(f'v_lshrrev_b32 {v(t0)}, 4, {v(TID)}')
        A(f'v_and_b32 {v(t1)}, 1, {v(q)}')
        A(f'v_lshl_add_u32 {v(t0)}, {v(t0)}, 2, {v(t1)}')
        A(f'v_mul_u32_u24 {v(t0)}, 28672, {v(t0)}')
        A(f'v_lshl_add_u32 {v(aO2)}, {v(tp)}, 4, {v(t0)}')
        A(f'v_lshrrev_b32 {v(t1)}, 1, {v(tp)}')
        A(f'v_lshl_add_u32 {v(t0)}, {v(t1)}, 4, {v(t0)}')
        A(f'v_and_b32 {v(t1)}, 1, {v(tp)}')
        A(f'v_lshl_add_u32 {v(aO)}, {v(t1)}, 6, {v(t0)}')
        A(f'v_xor_b32 {v(t1)}, {v(tp)}, {v(q)}')
        A(f'v_lshl_add_u32 {v(t1)}, {v(tp)}, 3, {v(t1)}')
        A(f's_lshl_b32 {s(sT0)}, {s(sWave)}, 12')
        A(f'v_lshl_add_u32 {v(aE)}, {v(t1)}, 4, {s(sT0)}')
        A(f'v_mul_u32_u24 {v(aZ)}, {HC}, {v(q)}')
        A(f'v_lshl_add_u32 {v(aZ)}, {v(tp)}, 3, {v(aZ)}')
        A(f'v_add_u32 {v(aZ)}, {HB}, {v(aZ)}')
        A(f'v_lshrrev_b32 {v(aX)}, 1, {v(vI)}')
        A(f'v_add_u32 {v(aX)}, {XR}, {v(aX)}')
        A(f's_lshl_b32 {s(sHm)}, {s(sWave)}, 9')
        A(f's_add_u32 {s(sHm)}, {s(sHm)}, {HB}')
        A(f's_add_u32 {s(sT1)}, {s(sHm)}, 512')
        A(f's_add_u32 {s(sT0)}, {s(sHm)}, 2')
        A(f'v_mov_b32 {v(aF)}, {s(sT1)}')
        A(f'v_writelane_b32 {v(aF)}, {s(sT0)}, 0')
        A(f'v_lshlrev_b32 {v(aXr)}, 4, {v(TID)}')
        A(f'v_xor_b32 {v(t0)}, {v(TID)}, {v(q)}')
        A(f'v_lshlrev_b32 {v(a0)}, 4, {v(t0)}')
        A(f's_lshl_b32 {s(sGo)}, {s(sMt)}, 8')
        A(f's_add_u32 {s(sGo)}, {s(sGo)}, {GO}')
        A(f'v_mov_b32 {v(VTAG)}, {s(sTag)}')
        A(f's_mul_i32 {s(sFl)}, {s(sWave)}, 224')
        A(f's_add_u32 {s(sFl)}, {s(sFl)}, {s(sJ)}')
        A(f's_lshl_b32 {s(sFl)}, {s(sFl)}, 7')
        A(f's_add_u32 {s(sFl)}, {s(sFl)}, {FL2}')

    def window_setup(t0, t1, t2, t3, t4):
        srd(rWd, pWd, 1605632)
        srd(rOut, pOut, 1835008)
        A(f'v_lshrrev_b32 {v(t1)}, 5, {v(LANE)}')
        A(f'v_bfe_u32 {v(t0)}, {v(LANE)}, 4, 1')
        A(f'v_and_b32 {v(t2)}, 3, {v(LANE)}')
        A(f'v_lshlrev_b32 {v(t2)}, 3, {v(t2)}')
        A(f'v_lshl_add_u32 {v(t2)}, {v(t0)}, 5, {v(t2)}')
        A(f'v_bfe_u32 {v(t0)}, {v(LANE)}, 2, 2')
        A(f'v_lshl_add_u32 {v(t3)}, {v(t1)}, 3, {v(t0)}')
        A(f'v_lshl_add_u32 {v(vXr[0])}, {v(t3)}, 6, {v(t2)}')
        A(f'v_and_b32 {v(t0)}, 8, {v(LANE)}')
        A(f'v_lshl_add_u32 {v(t2)}, {v(t0)}, 3, {v(t2)}')
        A(f'v_bfe_u32 {v(t4)}, {v(LANE)}, 2, 3')
        A(f'v_lshl_add_u32 {v(t1)}, {v(t1)}, 4, {v(t4)}')
        A(f'v_lshrrev_b32 {v(t4)}, 1, {v(t4)}')
        A(f'v_lshlrev_b32 {v(t4)}, 5, {v(t4)}')
        A(f'v_lshl_add_u32 {v(t4)}, {v(t1)}, 7, {v(t4)}')
        A(f'v_and_b32 {v(t1)}, 3, {v(LANE)}')
        A(f'v_lshl_add_u32 {v(t4)}, {v(t1)}, 3, {v(t4)}')
        A(f'v_add_u32 {v(vDr[0])}, {s(sW8k)}, {v(t4)}')
        A.ext(wd_addr(2, P))
        A(f's_lshr_b32 {s(sT0)}, {s(sWave)}, 1')
        A(f's_lshl_b32 {s(sT0)}, {s(sT0)}, 7')
        A(f's_add_u32 {s(sT0)}, {s(sT0)}, {s(sOdd)}')
        A(f's_lshl_b32 {s(sT0)}, {s(sT0)}, 6')
        A(f'v_lshl_add_u32 {v(vWr[0])}, {v(t3)}, 7, {v(t2)}')
        A(f'v_xor_b32 {v(vWr[0])}, {s(sT0)}, {v(vWr[0])}')
        for i in range(1, 3):
            A(f'v_add_u32 {v(vXr[i])}, 65536, {v(vXr[i - 1])}')
            A(f'v_add_u32 {v(vWr[i])}, 65536, {v(vWr[i - 1])}')
    P['window_setup'] = window_setup
    def mkpairs(cc, slot, vo_, rs, rowb, tg):
        o = []
        for i in range(4):
            u = [f's_add_u32 m0, {s(sW8k)}, {SL[slot] + 2048 * i}']
            u.append(f's_mul_i32 {s(sWo)}, {s(sC + cc)}, {rowb // 64}' if i == 0 else f's_add_u32 {s(sWo)}, {s(sWo)}, {8 * rowb + 1024}')
            u.append(f'buffer_load_dwordx4 {v(vo_)}, {s(rs, 4)}, {s(sWo)} offen {"nt" if OPT["nt"] & 8 else ""} lds ;#{tg}{cc}')
            u.append(f's_add_u32 {s(sWo)}, {s(sWo)}, {8 * rowb - 1024}')
            u.append(f'buffer_load_dwordx4 {v(vo_)}, {s(rs, 4)}, {s(sWo)} offen offset:1024 {"nt" if OPT["nt"] & 8 else ""} lds ;#{tg}{cc}')
            o.append('\n'.join(u))
        return o
    early = [u + f'\ns_mov_b32 m0, {s(sKG)}' for u in mkpairs(0, 3, vW, rW, 3584, 'w') + mkpairs(1, 4, vW, rW, 3584, 'w')]
    ls = capture(late_setup)
    A.ext(ls[:OPT['ls0']])
    A.ext(early[:OPT['k0']])
    ts('1')
    A('s_waitcnt lgkmcnt(0)')
    A(f's_add_u32 {s(sTag)}, {s(sTag)}, 1')
    A(f's_lshl_b32 {s(sT0)}, {s(sLdt)}, 16')
    A(f's_and_b32 {s(sT1)}, {s(sLdt)}, 0xffff0000')
    A(f's_lshl_b32 {s(sT2)}, {s(sDs)}, 16')
    A(f's_and_b32 {s(sT3)}, {s(sDs)}, 0xffff0000')
    A(f's_cmp_lt_u32 {s(sWave)}, 2')
    A(f's_cselect_b32 {s(sLdt)}, {s(sT0)}, {s(sT1)}')
    A(f's_cselect_b32 {s(sDs)}, {s(sT2)}, {s(sT3)}')
    A(f'v_mov_b32 {v(t0)}, 0x3fb8aa3b')
    A(f'v_mul_f32 {v(dt)}, {s(sLdt)}, {v(t0)}')
    A(f'v_exp_f32 {v(dt)}, {v(dt)}')
    A(f'v_cvt_pk_bf16_f32 {v(dt)}, {v(dt)}, {v(dt)}')
    A(f'v_lshlrev_b32 {v(dt)}, 16, {v(dt)}')
    A('@vm par')
    ts('016')

    def setup(it):
        o = []
        un = (lambda d, x: f'v_lshlrev_b32 {v(d)}, 16, {v(x)}') if it == 0 else (lambda d, x: f'v_and_b32 {v(d)}, 0xffff0000, {v(x)}')
        o += [un(e2, par), un(rv, par + 1), un(B_, par + 2), un(B_ + 1, par + 3), un(C_, par + 4), un(C_ + 1, par + 5)]
        o += [f'v_mul_f32 {v(e2)}, {v(dt)}, {v(e2)}', f'v_mul_f32 {v(rv)}, {v(dt)}, {v(rv)}',
              f'v_mul_f32 {v(e2)}, 0x3fb8aa3b, {v(e2)}', f'v_mul_f32 {v(rv)}, 0.15915494, {v(rv)}',
              f'v_mul_f32 {v(B_)}, {v(dt)}, {v(B_)}', f'v_mul_f32 {v(B_ + 1)}, {v(dt)}, {v(B_ + 1)}']
        for z, p in ((z8, 0x41000000), (z1, None), (z256, 0x43800000)):
            if p is None:
                o += [f'v_exp_f32 {v(t0)}, {v(e2)}', f'v_fract_f32 {v(t1)}, {v(rv)}']
            else:
                o += [f'v_mul_f32 {v(t0)}, {hex(p)}, {v(e2)}', f'v_mul_f32 {v(t1)}, {hex(p)}, {v(rv)}',
                      f'v_exp_f32 {v(t0)}, {v(t0)}', f'v_fract_f32 {v(t1)}, {v(t1)}']
            o += [f'v_cos_f32 {v(z)}, {v(t1)}', f'v_sin_f32 {v(z + 1)}, {v(t1)}',
                  f'v_mul_f32 {v(z)}, {v(z)}, {v(t0)}', f'v_mul_f32 {v(z + 1)}, {v(z + 1)}, {v(t0)}']
        return o

    vals = []

    def put(pre, x, rows, neg):
        c = cv[len(vals) % 8]
        vals.append((pre + [f'v_cvt_pk_bf16_f32 {v(c)}, {v(x)}, {"-" if neg else ""}{v(x + 1)}'],
                     [f'ds_write_addtid_b32 {v(c)} offset:{272 * r}' for r in rows]))

    def putU(pre, x, e):
        put(pre, x, [32 + r for r in UEXP[e]], True)

    put(cmul(z2, z1, z1), z8, [1], False)
    putU(cmul(W_, C_, B_) + cmul(z4, z2, z2), W_, 0)
    cur = z8
    for j in range(2, 32):
        put(cmul(pp[j % 2], cur, z8), pp[j % 2], [j], False)
        cur = pp[j % 2]
    cur = W_
    for e in range(1, 8):
        putU(cmul(pp[e % 2], cur, z1), pp[e % 2], e)
        cur = pp[e % 2]
    qc = W_
    for k in range(1, 8):
        qn = pp[2 + k % 2]
        putU(cmul(qn, qc, z256), qn, 256 * k)
        qc = qn
        step, zz, n = (2, z2, 4) if k == 1 else ((4, z4, 2) if k < 4 else (8, z8, 1))
        cur = qn
        for i in range(1, n + 1):
            putU(cmul(pp[i % 2], cur, zz), pp[i % 2], 256 * k + step * i)
            cur = pp[i % 2]

    h1 = []
    for k in range(4):
        if k % 2 == 0:
            h1.append(f's_mov_b32 {s(sSo)}, {ST1 + 4096 * k}')
        h1.append(f'buffer_load_dwordx4 {v(Sk[k], 4)}, {v(vI)}, {s(rWS, 4)}, {s(sSo)} offen offset:{1024 * (k % 2)} sc1 ;#h1')

    mld = [f'buffer_load_dwordx4 {v(M, 4)}, {v(vM)}, {s(rWS, 4)}, 0 offen sc1 ;#m']
    rb = [f'v_cvt_pk_bf16_f32 {v(M + 2)}, {v(M)}, {v(M + 1)}', f'v_lshlrev_b32 {v(M)}, 16, {v(M + 2)}', f'v_and_b32 {v(M + 1)}, 0xffff0000, {v(M + 2)}']
    mprep = [f'v_add_f32_dpp {v(M + ch)}, {v(M + ch)}, {v(M + ch)} quad_perm:[1,0,3,2] row_mask:0xf bank_mask:0xf' for ch in range(2)]
    mprep += rb + [f'v_add_f32 {v(M + ch)}, {v(M + ch)}, {v(one)}' for ch in range(2)] + rb

    rest = mkpairs(0, 3, vWd, rWd, 896, 'd') + mkpairs(2, 4, vW, rW, 3584, 'w')
    NB = OPT['kb']
    nbat = (len(vals) + NB - 1) // NB
    vdone = (32 + NB - 1) // NB

    def chains(dm, extra={}):
        dd = spread(nbat, dm, 0, nbat - 1)
        vr = spread(nbat, [f'ds_read_b128 {v(fV + 4 * ks, 4)}, {v(aV)} offset:{32 * ks}' for ks in range(8)], vdone, nbat - 1)
        for bi in range(nbat):
            grp = vals[NB * bi:NB * bi + NB]
            A('.p2align 3')
            for x in grp:
                A.ext(x[0])
            A.ext(extra.get(bi, []))
            A.ext(dd.get(bi, []))
            A.ext(vr.get(bi, []))
            for x in grp:
                A.ext(x[1])
        for ks in range(8):
            A(f'ds_read_b128 {v(fU + 4 * ks, 4)}, {v(aU)} offset:{32 * ks}')

    def kmm(first):
        return [f'v_mfma_f32_32x32x16_bf16 {v(T, 16)}, {v(fU + 4 * ks, 4)}, {v(fV + 4 * ks, 4)}, {"0" if first and ks == 0 else v(T, 16)}' for ks in range(8)]
    tail = {ks: [f's_waitcnt lgkmcnt({6 - ks})'] for ks in range(0, 7)}
    pub = ['@vm xa'] + capture(lambda: stats1_compute(st)) + capture(lambda: ts('1'))
    K0, XP = OPT['k0'], OPT['xp']
    stream = early[K0:XP] + [xpf] + early[XP:] + col[:OPT['sp']] + [mld[0] + '\n' + '\n'.join(h1[:3]), '\n'.join(h1[3:])] + col[OPT['sp']:4]
    N0, N1, N2 = OPT['n0'], OPT['n0'] + OPT['n1'], OPT['n0'] + OPT['n1'] + OPT['n2']
    A.ext(setup(0))
    chains(stream[:N0], {OPT['tsb']: pub})
    su = setup(1)
    A.ext(su[:10])
    A('s_waitcnt lgkmcnt(7)')
    A.ext(sched(kmm(True), {}, tail, su[10:], 24)[0])
    ts('1')
    assert N1 >= 9 - K0
    chains(stream[N0:N1])
    ts('1')
    R, K_ = B_, pp[0]
    HP = OPT['h1p']
    A(f'v_mov_b32 {v(cv[0])}, 0')
    A(f'v_mov_b32 {v(cv[1])}, 0')
    A(f's_mul_i32 {s(sT0)}, {s(sOdd)}, {KT_C0}')
    A(f's_add_u32 m0, {s(sT0)}, {s(sKT)}')
    A('s_waitcnt lgkmcnt(7)')
    L0 = OPT['ls0']
    A.ext(sched(kmm(False), spread(8, h1, 0, 7) if HP == 0 else {}, tail, ls[L0:L0 + 38], 24)[0])
    A(f's_cmp_lg_u32 {s(sOdd)}, 0')
    A('s_cbranch_scc1 L_expB')
    A(f'ds_write_b128 {v(ax)}, {v(T + 10, 4)}')
    A('s_mov_b64 exec, 1')
    A(f'v_add_f32 {v(T)}, {s(sDs)}, {v(T)}')
    A('s_mov_b64 exec, -1')
    A('s_waitcnt lgkmcnt(0)')
    A('s_barrier')
    for i in range(3):
        A(f'ds_read_b128 {v(R + 4 * i, 4)}, {v(ay)} offset:{TXB + 1024 * i}')
    mid = h1 if HP == 1 else []
    A.ext(mid)
    A('s_waitcnt lgkmcnt(0)')
    for i in range(0, 10, 2):
        A(f'v_pk_add_f32 {v(T + i, 2)}, {v(T + i, 2)}, {v(R + i, 2)}')
    for d, (x, y) in enumerate(((3, 2), (1, 0), (6, 5), (4, 4), (9, 9), (8, 8), (8, 7), (7, 7))):
        A(f'v_cvt_pk_bf16_f32 {v(K_ + d)}, {v(T + x)}, {v(T + y)}')
    for cp in (0, KT_C0):
        A(f'ds_write_b64 {v(aK)}, {v(K_, 2)} offset:{cp + 2 * 2044}')
        A(f'ds_write_b64 {v(aK)}, {v(K_ + 2, 2)} offset:{cp + 2 * 1788}')
        A(f'ds_write_b64 {v(aK2)}, {v(K_ + 4, 2)} offset:{cp + 2 * 1528}')
        A(f'ds_write_b64 {v(aK2)}, {v(K_ + 6, 2)} offset:{cp + 2 * 1528 + 8}')
    A('s_branch L_expD')
    A('L_expB:')
    for i in range(3):
        A(f'ds_write_b128 {v(ax)}, {v(T + 4 * i, 4)} offset:{TXB + 1024 * i}')
    A('s_mov_b32 vcc_lo, 0xaaaaaaaa')
    A('s_mov_b32 vcc_hi, 0xaaaaaaaa')
    A('s_waitcnt lgkmcnt(0)')
    A('s_barrier')
    A(f'ds_read_b128 {v(R, 4)}, {v(ay)}')
    A.ext(mid)
    A('s_waitcnt lgkmcnt(0)')
    for i in range(0, 4, 2):
        A(f'v_pk_add_f32 {v(T + 10 + i, 2)}, {v(T + 10 + i, 2)}, {v(R + i, 2)}')
    for wdw in range(2):
        v0_, v8_ = T + 10 + 2 * wdw, T + 11 + 2 * wdw
        A(f'v_cndmask_b32 {v(cv[2])}, {v(v0_)}, {v(v8_)}, vcc')
        A(f'v_cvt_pk_bf16_f32 {v(K_ + 4 * wdw)}, {v(v8_)}, {v(v8_)}')
        A(f'v_cvt_pk_bf16_f32 {v(K_ + 4 * wdw + 1)}, {v(v8_)}, {v(cv[2])}')
        A(f'v_cvt_pk_bf16_f32 {v(K_ + 4 * wdw + 2)}, {v(v0_)}, {v(v0_)}')
        A(f'v_cvt_pk_bf16_f32 {v(K_ + 4 * wdw + 3)}, {v(v0_)}, {v(v0_)}')
    for cp in (0, KT_C0):
        for wdw in range(2):
            base = cp + 2 * (2040 - 1024 - 256 * wdw)
            A(f'ds_write_b64 {v(aK2)}, {v(K_ + 4 * wdw, 2)} offset:{base}')
            A(f'ds_write_b64 {v(aK2)}, {v(K_ + 4 * wdw + 2, 2)} offset:{base + 8}')
    A('L_expD:')
    A(f'ds_write_addtid_b32 {v(cv[0])} offset:4096')
    A(f'ds_write_addtid_b32 {v(cv[0])} offset:4304')
    ts('1')
    A.ext(interleave(stream[N1:N2], ls[L0 + 38:] + capture(lambda: window_setup(t0, t1, t2, e2, rv))))
    A('@vm w0 w1')
    A(f's_cmp_eq_u32 {s(sWave)}, 0')
    A('s_barrier')
    A('s_cbranch_scc0 L_nozero')
    A(f'ds_write_b64 {v(aZ)}, {v(cv[0], 2)}')
    A('L_nozero:')
    colB = col[4:]
    CB0 = OPT['cb0']
    A.ext(interleave(stream[N2:] + colB[:CB0], w_frags(0, 3, P) + w_frags(1, 4, P)) if stream[N2:] + colB[:CB0] else w_frags(0, 3, P) + w_frags(1, 4, P))
    V.release(mk)
    HT = V.get(16)
    ts('1')
    A(tag_wait('L_m1', mld, [M + 3], 'm'))
    A.ext(mprep)
    A(f'v_and_b32 {v(HT)}, 2, {v(LANE)}')
    A(f'v_mul_u32_u24 {v(HT)}, 3584, {v(HT)}')
    for ch in range(2):
        A(f'v_mov_b32_dpp {v(sa + ch)}, {v(M + ch)} quad_perm:[0,0,0,0] row_mask:0xf bank_mask:0xf')
        A(f'v_mov_b32_dpp {v(c1 + ch)}, {v(M + ch)} quad_perm:[2,2,2,2] row_mask:0xf bank_mask:0xf')
    A(f'v_add_u32 {v(vM)}, {v(vM)}, {v(HT)}')
    A(f'v_add_u32 {v(vM)}, {2 * 7168}, {v(vM)}')

    def hbuild(hf, T_):
        E, F, xa, xb, nn, O = T_, T_ + 4, T_ + 8, T_ + 10, T_ + 12, T_ + 14
        for k in range(2):
            A(f'ds_write_b64 {v(aX)}, {v(Gk[2 * hf + k], 2)} offset:{4096 * hf + 512 * k}')
        A(f's_mov_b32 m0, {s(sHm)}')
        for k in range(2):
            g, sg, off = Gk[2 * hf + k], Sk[2 * hf + k], 2048 * hf + 256 * k
            A(f'v_lshlrev_b32 {v(xa)}, 16, {v(g)}')
            A(f'v_and_b32 {v(xa + 1)}, 0xffff0000, {v(g)}')
            A(f'v_lshlrev_b32 {v(xb)}, 16, {v(g + 1)}')
            A(f'v_and_b32 {v(xb + 1)}, 0xffff0000, {v(g + 1)}')
            A(f'v_lshlrev_b32 {v(nn)}, 16, {v(sg)}')
            A(f'v_and_b32 {v(nn + 1)}, 0xffff0000, {v(sg)}')
            A(f'v_pk_fma_f32 {v(xa, 2)}, {v(xa, 2)}, {v(sg, 2)}, {v(nn, 2)} op_sel:[0,1,0] op_sel_hi:[1,1,0]')
            A(f'v_pk_fma_f32 {v(xb, 2)}, {v(xb, 2)}, {v(sg + 2, 2)}, {v(nn, 2)} op_sel:[0,0,1] op_sel_hi:[1,0,1]')
            A(f'v_pk_fma_f32 {v(xa, 2)}, {v(xa, 2)}, {v(c1, 2)}, {v(sa, 2)}')
            A(f'v_pk_fma_f32 {v(xb, 2)}, {v(xb, 2)}, {v(c1, 2)}, {v(sa, 2)}')
            if k:
                for ch in range(2):
                    A(f'v_mov_b32_dpp {v(O + ch)}, {v(E + ch)} wave_ror:1 row_mask:0xf bank_mask:0xf')
            for ch in range(2):
                A(f'v_cvt_pk_bf16_f32 {v(E + 2 * k + ch)}, {v(xa + ch)}, {v(xb + ch)}')
            if k:
                A('s_mov_b64 exec, -2')
                for ch in range(2):
                    A(f'ds_write_addtid_b32 {v(F + ch)} offset:{(4 * ch + 0) * HC + off - 256 + 52}')
                    A(f'ds_write_addtid_b32 {v(F + ch)} offset:{(4 * ch + 2) * HC + off - 256 + 48}')
                A('s_mov_b64 exec, -1')
            for ch in range(2):
                A(f'ds_write_addtid_b32 {v(E + 2 * k + ch)} offset:{(4 * ch + 1) * HC + off + 52}')
                A(f'ds_write_addtid_b32 {v(E + 2 * k + ch)} offset:{(4 * ch + 3) * HC + off + 48}')
            for ch in range(2):
                A(f'v_mov_b32_dpp {v(O + ch)}, {v(E + 2 * k + ch)} wave_shr:1 row_mask:0xf bank_mask:0xf')
            for ch in range(2):
                A(f'v_alignbit_b32 {v(F + 2 * k + ch)}, {v(E + 2 * k + ch)}, {v(O + ch)}, 16')
        for ch in range(2):
            A(f'v_lshrrev_b32 {v(O + ch)}, 16, {v(E + 2 + ch)}')
        A('s_mov_b64 exec, 1')
        for ch in range(2):
            A(f'v_mov_b32 {v(O + ch)}, {v(E + ch)}')
        A('s_mov_b64 exec, -1')
        for ch in range(2):
            A(f'ds_write_addtid_b32 {v(F + 2 + ch)} offset:{(4 * ch + 0) * HC + 2048 * hf + 256 + 52}')
            A(f'ds_write_addtid_b32 {v(F + 2 + ch)} offset:{(4 * ch + 2) * HC + 2048 * hf + 256 + 48}')
        A('s_mov_b32 exec_lo, 1')
        A('s_mov_b32 exec_hi, 0x80000000')
        for ch in range(2):
            A(f'ds_write_b16 {v(aF)}, {v(O + ch)} offset:{(4 * ch + 0) * HC + 2048 * hf + 52}')
            A(f'ds_write_b16 {v(aF)}, {v(O + ch)} offset:{(4 * ch + 2) * HC + 2048 * hf + 48}')
        A('s_mov_b64 exec, -1')

    A(tag_wait('L_h1', h1, [Sk[k] + 3 for k in range(4)], 'h1 col0'))
    ts('017')
    A.ext(mld)
    hbuild(0, HT)
    CB1 = CB0 + OPT['cb1']
    A.ext(colB[CB0:CB1])
    A('s_waitcnt lgkmcnt(0)')
    A('s_barrier')
    ts('7')
    V.release(mb)
    RAW = V.get(4)
    X_ = V.get(8)
    Y = V.get(16)
    o1, o2, pk = V.get(4), V.get(4), V.get(4)
    t1 = V.get()
    acc = V.get(32, 4)
    fa = [V.get(32), V.get(32)]
    fb = [V.get(32), V.get(32)]

    def ra(ul, i, tag):
        return f'ds_read_b128 {v(fa[ul % 2] + 16 * (ul // 2) + 4 * (i % 4), 4)}, {v(aA)} offset:{512 * i + 64 * ul} ;#{tag}'

    def rb_(ul, i, pos, tag):
        return f'ds_read_b128 {v(fb[ul % 2] + 4 * pos, 4)}, {v(aB)} offset:{512 * (7 - i) + 64 * ul} ;#{tag}'

    def half(ul, tag):
        o = [ra(ul, 0, tag + 'x')] + [rb_(ul, i, i + 4 * (ul // 2), f'{tag}b{i}') for i in range(4)]
        return o + [ra(ul, i, tag) for i in range(1, 4)]

    def cmf(ul, uh, d, bsh, first):
        g = uh + d
        return (f'v_mfma_f32_16x16x32_bf16 {v(acc + 4 * g, 4)}, {v(fa[ul % 2] + 16 * (ul // 2) + 4 * (uh % 4), 4)}, '
                f'{v(fb[ul % 2] + 4 * (d + bsh), 4)}, {"0" if first else v(acc + 4 * g, 4)}')

    mm, wpos = [], {}
    for ul in (2, 3, 0):
        mm += [cmf(ul, uh, d, 4 * (ul // 2), ul == 2 and uh == 0) for uh in range(4) for d in range(4 - uh)]
    for g in range(3, -1, -1):
        mm += [cmf(1, uh, g - uh, 0, False) for uh in range(g + 1)]
        wpos[g] = len(mm) - 1
    for ul in range(4):
        mm += [cmf(ul, uh, d, 0, ul == 0 and uh == 0) for uh in range(4) for d in range(4 - uh, 8 - uh)]
    m2 = []
    for ul in (2, 3, 0):
        m2 += [cmf(ul, uh, d, 4 - 4 * (ul // 2), False) for uh in range(4, 8) for d in range(8 - uh)]
    for g in range(7, 3, -1):
        m2 += [cmf(1, uh, g - uh, 4, False) for uh in range(4, g + 1)]
        wpos[g] = len(m2) - 1
    assert len(mm) == 104 and len(m2) == 40
    tail = {0: ['@lg A2b1'], 1: ['@lg A2b2'], 2: ['@lg A2b3'], 3: ['@lg A2'], 9: ['@lg A3'], 19: ['@lg A0'], 29: ['@lg A1'], 39: ['@lg B0'],
            XB: ['s_waitcnt lgkmcnt(0)\ns_barrier'], 71: ['@lg B2'], 87: ['@lg B3']}
    head = merge(spread(104, half(0, 'A0'), 0, 9), spread(104, half(1, 'A1'), 10, 19),
                 spread(104, [rb_(0, i, i, 'B0') for i in range(4, 8)], 20, 27), spread(104, [rb_(1, i, i, 'B1') for i in range(4, 8)], 30, 38),
                 {28: [f'ds_read_b128 {v(RAW, 4)}, {v(aXr)} offset:{XR} ;#xr']},
                 spread(104, [rb_(2, i, i, 'B2') for i in range(8)], 56, 66), spread(104, [rb_(3, i, i, 'B3') for i in range(8)], 72, 83),
                 spread(104, [rb_(0, i, i + 4, 'C') for i in range(4)], 90, 98),
                 {XB + 1 + w: [f'ds_read_b128 {v(Y + 4 * w, 4)}, {v(a0)} offset:{4096 * w} ;#y'] for w in range(4)})
    wr = [f'ds_write_b128 {v(aE)}, {v(acc + 4 * g, 4)} offset:{16384 * (g // 4) + 1024 * (g % 4)}' for g in range(8)]
    for g in range(4):
        head = merge(head, {max(wpos[g] + 6, 40 + 2 * (3 - g)): [wr[g]]})

    def epil(st_, pkd):
        x = X_
        o = []
        for ch in range(2):
            y = Y + 8 * ch
            if pkd:
                sel = f'op_sel:[0,{ch},0] op_sel_hi:[1,{ch},1]'
                o.append(f's_waitcnt lgkmcnt({2 - 2 * ch})')
                for i in (0, 2):
                    o += [f'v_pk_add_f32 {v(y + i, 2)}, {v(y + i, 2)}, {v(y + 4 + i, 2)}',
                          f'v_pk_fma_f32 {v(x + 4 * ch + i, 2)}, {v(y + i, 2)}, {s(sGa, 2)}, {v(x + 4 * ch + i, 2)} {sel}',
                          f'v_pk_mul_f32 {v(y + i, 2)}, {v(x + 4 * ch + i, 2)}, {s(sCb, 2)} op_sel:[0,{ch}] op_sel_hi:[1,{ch}]']
            else:
                for i in range(4):
                    o += [f'v_add_f32 {v(y + i)}, {v(y + i)}, {v(y + 4 + i)}', f'v_fmac_f32 {v(x + 4 * ch + i)}, {s(sGa + ch)}, {v(y + i)}',
                          f'v_mul_f32 {v(y + i)}, {s(sCb + ch)}, {v(x + 4 * ch + i)}']
            o += [f'v_cvt_pk_bf16_f32 {v(pk + 2 * ch + i)}, {v(y + 2 * i)}, {v(y + 2 * i + 1)}' for i in range(2)]
        o += [f'v_cvt_pk_bf16_f32 {v(o2 + i)}, {v(x + i)}, {v(x + 4 + i)}' for i in range(4)]
        dp = 'quad_perm:[1,0,3,2] row_mask:0xf bank_mask:0xf'
        o += [f'v_cndmask_b32_dpp {v(o1 + i)}, {v(pk + 2 + i)}, {v(pk + i)}, vcc {dp}' for i in range(2)]
        o.append('s_not_b64 vcc, vcc')
        o += [f'v_cndmask_b32_dpp {v(o1 + 2 + i)}, {v(pk + i)}, {v(pk + 2 + i)}, vcc {dp}' for i in range(2)]
        o.append('s_not_b64 vcc, vcc')
        o.append(f'buffer_store_dwordx4 {v(o1, 4)}, {v(aO)}, {s(rWS, 4)}, {s(sT2)} offen sc1 ;#xo{st_}')
        o.append(f'buffer_store_dwordx4 {v(o2, 4)}, {v(aO2)}, {s(rWS, 4)}, {s(sT3)} offen sc1 ;#xo{st_}')
        return o

    unp = ['@lg xr']
    for i in range(4):
        unp += [f'v_lshlrev_b32 {v(X_ + i)}, 16, {v(RAW + i)}', f'v_and_b32 {v(X_ + 4 + i)}, 0xffff0000, {v(RAW + i)}']
    v1 = tag_units('L_m2', mld, [M + 3], 'm') + mprep
    v1 += [f'v_readlane_b32 {s(sGa + ch)}, {v(M + ch)}, 0' for ch in range(2)] + [f'v_readlane_b32 {s(sCb + ch)}, {v(M + ch)}, 2' for ch in range(2)]
    v1 += [f's_lshl_b32 {s(sT0)}, {s(sP)}, 7', f's_add_u32 {s(sT2)}, {s(sT0)}, {XS}', f's_add_u32 {s(sT3)}, {s(sT0)}, {X1P}',
           's_mov_b32 vcc_lo, 0x55555555', 's_mov_b32 vcc_hi, 0x55555555']
    v3 = ['@lg y'] + epil(0, False) + [f's_add_u32 {s(sT2)}, {s(sT2)}, {2 * 28672}', f's_add_u32 {s(sT3)}, {s(sT3)}, {2 * 28672}']
    fla = ['@vm xo0', flag_store(VTAG, sFl), f's_add_u32 {s(sFl)}, {s(sFl)}, {FL2S}']
    NA, NB_ = OPT['na'], OPT['na'] + OPT['nb']
    soft = merge(spread(104, flat(colB[CB1:]), OPT['cd0'], OPT['cda']),
                 {OPT['cda']: [f'buffer_load_dword {v(t1)}, off, {s(rWS, 4)}, {s(sGo)} sc1', f'buffer_load_dword {v(t1)}, off, {s(rWS, 4)}, {s(sGo)} offset:128 sc1']},
                 spread(104, flat(rest[:NA]), OPT['cdb'], 100))
    A.ext(half(2, 'A2') + half(3, 'A3'))
    A('@lg A2b0')
    code, info = sched2(mm, head, tail, soft, [(OPT['m2p'], 40, v1), (36, XB + 4, unp), (XB + 8, XB + 12, v3)], 8)
    print('conv', info)
    A.ext(code)
    A.ext([rb_(1, i, i + 4, 'C') for i in range(4)])
    ts('7')
    A('@vm col1')
    ts('07')
    hbuild(1, Y)
    A.ext(rest[NA:NB_])
    A('s_waitcnt lgkmcnt(0)')
    A('s_barrier')
    ts('7')
    first = [ra(ul, i, f'D{ul}_{i}') for ul in (2, 3) for i in range(4, 8)]
    A.ext(first)
    A('@lg D2_4')
    tail = {3: ['@lg D2_5'], 6: ['@lg D2_7'], 9: ['@lg D3_7'], 19: ['@lg D0_7'], 29: ['@lg D1_7']}
    head = merge(spread(40, [ra(ul, i, f'D{ul}_{i}') for ul in (0, 1) for i in range(4, 8)], 0, 12),
                 {13: [f'ds_read_b128 {v(RAW, 4)}, {v(aXr)} offset:{XR + 4096} ;#xr']})
    soft = merge(spread(40, flat(rest[NB_:OPT['nc']]), 2, 34), {OPT['fa']: fla} if OPT['fa'] < 40 else {})
    code, info = sched2(m2, head, tail, soft, [(22, 38, unp)], 8)
    print('conv2', info)
    A.ext(code)
    A.ext([wr[g] for g in range(7, 3, -1)])
    ts('37')
    A('s_waitcnt lgkmcnt(0)')
    A('s_barrier')
    for w in range(4):
        A(f'ds_read_b128 {v(Y + 4 * w, 4)}, {v(a0)} offset:{16384 + 4096 * w}')
    if OPT['fa'] >= 40:
        A.ext(fla)
    A.ext(epil(1, True))
    ts('037')
    P['rest'] = rest[max(NB_, OPT['nc']):]
    V.release(mp)
    return P


def helper_flag_touch():
    A(f's_and_b32 {s(sT0)}, s2, 3')
    A(f's_lshl2_add_u32 {s(sT0)}, {s(sT0)}, {s(sWave)}')
    A(f's_mul_i32 {s(sT0)}, {s(sT0)}, 56')
    A(f'v_min_u32 v250, 55, {v(LANE)}')
    A(f'v_add_u32 v250, {s(sT0)}, v250')
    A('v_lshlrev_b32 v250, 7, v250')
    A(f'v_add_u32 v250, {FL2}, v250')
    A(f'buffer_load_dword v251, v250, {s(rWS, 4)}, 0 offen sc1')
    A(f's_mov_b32 {s(sT0)}, {FL2S}')
    A(f'buffer_load_dword v251, v250, {s(rWS, 4)}, {s(sT0)} offen sc1')


def helper_mod():
    st = V.get(8)
    wm = V.get(84)
    cc = V.get(7)
    ch = V.get(7)
    acc = V.get(8)
    t0, t1, t2, vo, aw, ar, vs, vw, vp = [V.get() for _ in range(9)]
    g = V.get(4)
    rd = V.get(8)
    pf = V.get(4)
    sHm, sHn = 38, 39
    stats1_addr()
    A('v_mov_b32 v250, 0')
    A(f'v_lshrrev_b32 {v(t0)}, 3, {v(LANE)}')
    A(f'v_lshlrev_b32 {v(t2)}, 1, {v(t0)}')
    A(f'v_and_b32 {v(t2)}, 4, {v(t2)}')
    A(f'v_and_b32 {v(t1)}, 7, {v(LANE)}')
    A(f'v_xor_b32 {v(t2)}, {v(t2)}, {v(t1)}')
    A(f'v_mul_u32_u24 {v(vw)}, 3584, {v(t0)}')
    A(f'v_lshl_add_u32 {v(vw)}, {v(t2)}, 4, {v(vw)}')
    A(f'v_lshlrev_b32 {v(vp)}, 4, {v(TID)}')
    A(f's_lshr_b32 {s(sT0)}, s2, 1')
    div7(sHm, sHn, sT0)
    A(f's_and_b32 {s(sT0)}, s2, 1')
    A(f's_mul_i32 {s(sT0)}, {s(sT0)}, 7')
    A(f's_add_u32 {s(sHn)}, {s(sHn)}, {s(sT0)}')
    A(f's_and_b32 {s(sT1)}, {s(sWave)}, 1')
    A(f's_lshr_b32 {s(sT2)}, {s(sWave)}, 1')
    A(f's_lshl1_add_u32 {s(sT0)}, {s(sHn)}, {s(sT1)}')
    A(f's_lshl_b32 {s(sT0)}, {s(sT0)}, 7')
    A(f's_mul_i32 {s(sT3)}, {s(sT2)}, {224 * 3584}')
    A(f's_add_u32 {s(sM2)}, {s(sT0)}, {s(sT3)}')
    A(f's_lshl1_add_u32 {s(sT3)}, {s(sT1)}, {s(sT2)}')
    A(f's_mul_i32 m0, {s(sT3)}, 28672')
    A('s_waitcnt lgkmcnt(0)')
    ts('1')
    A.ext(tagged(capture(lambda: stats1_loads(st)), 'hs'))
    A(f's_load_dword {s(sTag)}, {s(rWS, 2)}, {EP}')
    srd(rWd, pWd, 1605632)
    A('s_cmp_ge_u32 s2, 28')
    A('s_cbranch_scc1 L_hm_skip')
    A(f's_cmp_eq_u32 {s(sHm)}, 0')
    A(f's_cselect_b64 {s(rW, 2)}, {s(pWg, 2)}, {s(pWu, 2)}')
    A(f's_mov_b32 {s(rW + 2)}, 1605632')
    A(f's_mov_b32 {s(rW + 3)}, 0x00020000')
    wsl = [f'buffer_load_dwordx4 {v(vw)}, {s(rW, 4)}, {s(sM2)} offen lds\ns_add_u32 m0, m0, 1024\ns_add_u32 {s(sM2)}, {s(sM2)}, {8 * 3584}' for i in range(28)]
    srd(rWm, pWm, 2408448)
    A('s_cmp_ge_u32 s2, 14')
    A(f's_cselect_b32 {s(sMi)}, 1, 0')
    A(f's_mul_i32 {s(sT0)}, {s(sMi)}, 14')
    A(f's_sub_u32 {s(sNi)}, s2, {s(sT0)}')
    A(f's_lshl2_add_u32 {s(sT0)}, {s(sMi)}, {s(sWave)}')
    A(f's_mul_i32 {s(sT0)}, {s(sT0)}, 56')
    A(f'v_add_u32 {v(t0)}, {s(sT0)}, {v(t0)}')
    A(f'v_lshlrev_b32 {v(t2)}, 1, {v(t0)}')
    A(f'v_mul_u32_u24 {v(vo)}, 5376, {v(t0)}')
    A(f'v_lshl_add_u32 {v(vo)}, {v(t1)}, 4, {v(vo)}')

    def wload(task, i):
        u = f's_lshl_b32 {s(sWo)}, {s(sNi if task == 0 else sNt)}, 7\n' if i == 0 else f's_add_u32 {s(sWo)}, {s(sWo)}, {8 * 5376}\n'
        return u + f'buffer_load_dwordx4 {v(wm + 28 * task + 4 * i, 4)}, {v(vo)}, {s(rWm, 4)}, {s(sWo)} offen offset:{(0, 1792, 2688)[task]} {"nt" if OPT["nt"] & 2 else ""} ;#hw{task}_{i}'

    def pload(i):
        u = f's_mul_i32 {s(sWo)}, s2, {6 * 4096}\n' if i == 0 else f's_add_u32 {s(sWo)}, {s(sWo)}, 4096\n'
        return u + f'buffer_load_dwordx4 {v(pf, 4)}, {v(vp)}, {s(rWd, 4)}, {s(sWo)} offen'

    for i in range(7):
        A(f'global_load_ushort {v(cc + i)}, {v(t2)}, {s(pC, 2)} offset:{16 * i} ;#hc')
    for i in range(7):
        A(wload(0, i))
    A(f'v_lshrrev_b32 {v(t0)}, 4, {v(LANE)}')
    A(f'v_lshl_add_u32 {v(t0)}, {v(t1)}, 2, {v(t0)}')
    A(f's_lshl_b32 {s(sT0)}, {s(sWave)}, 8')
    A(f's_add_u32 {s(sT0)}, {s(sT0)}, {SL[4]}')
    A(f'v_lshl_add_u32 {v(aw)}, {v(t0)}, 3, {s(sT0)}')
    A(f'v_and_b32 {v(t0)}, 31, {v(LANE)}')
    A(f'v_lshlrev_b32 {v(ar)}, 3, {v(t0)}')
    A(f'v_add_u32 {v(ar)}, {SL[4]}, {v(ar)}')
    div7(sT2, sT3, sNi)
    A(f's_mul_i32 {s(sMt)}, {s(sT2)}, 7168')
    A(f's_mul_i32 {s(sNt)}, {s(sT2)}, 7')
    A(f's_add_u32 {s(sNt)}, {s(sNt)}, {s(sNi)}')
    A(f's_lshl1_add_u32 {s(sT2)}, {s(sT2)}, {s(sMi)}')
    A(f's_mul_i32 {s(sT2)}, {s(sT2)}, 7')
    A(f's_add_u32 {s(sT2)}, {s(sT2)}, {s(sT3)}')
    A(f's_lshl_b32 {s(sT2)}, {s(sT2)}, 9')
    A(f's_add_u32 {s(sT2)}, {s(sT2)}, {MOD}')
    A(f'v_lshl_add_u32 {v(vs)}, {v(t0)}, 4, {s(sT2)}')
    A('s_waitcnt lgkmcnt(0)')
    A(f's_add_u32 {s(sTag)}, {s(sTag)}, 1')
    ts('1')
    A('@vm hs')
    ts('1')
    stats1_compute(st)
    A('@vm hc')
    ts('1')
    for i in range(7):
        A(f'v_lshlrev_b32 {v(cc + i)}, 16, {v(cc + i)}')
        A(f'v_mul_f32 {v(ch + i)}, 0xbfb8aa3b, {v(cc + i)}')
        A(f'v_exp_f32 {v(ch + i)}, {v(ch + i)}')
    for i in range(7):
        A(f'v_add_f32 {v(ch + i)}, 1.0, {v(ch + i)}')
        A(f'v_rcp_f32 {v(ch + i)}, {v(ch + i)}')
    for i in range(7):
        A(f'v_mul_f32 {v(cc + i)}, {v(cc + i)}, {v(ch + i)}')
        A(f'v_cvt_pk_bf16_f32 {v(cc + i)}, {v(cc + i)}, 0')
        A(f'v_lshlrev_b32 {v(ch + i)}, 16, {v(cc + i)}')
    A(f'v_mov_b32 {v(g + 2)}, 0')
    A(f'v_mov_b32 {v(g + 3)}, {s(sTag)}')
    for task in range(3):
        for j in range(8):
            A(f'v_mov_b32 {v(acc + j)}, 0')
        for i in range(7):
            A(f'@vm hw{task}_{i}')
            if task < 2:
                A(wload(task + 1, i))
            else:
                A(wsl[i])
            for j in range(4):
                w = wm + 28 * task + 4 * i + j
                A(f'v_dot2c_f32_bf16 {v(acc + 2 * j)}, {v(w)}, {v(cc + i)}')
                A(f'v_dot2c_f32_bf16 {v(acc + 2 * j + 1)}, {v(w)}, {v(ch + i)}')
        ts('1')
        reduce8(acc)
        A(f'ds_write_b64 {v(aw)}, {v(acc, 2)} offset:{1024 * task}')
        A('s_waitcnt lgkmcnt(0)')
        A('s_barrier')
        A(f's_cmp_lg_u32 {s(sWave)}, {task}')
        A(f's_cbranch_scc1 L_hm_n{task}')
        for w in range(4):
            A(f'ds_read_b64 {v(rd + 2 * w, 2)}, {v(ar)} offset:{1024 * task + 256 * w}')
        A(f's_mov_b32 {s(sT0)}, 0' if task == 0 else f's_add_u32 {s(sT0)}, {s(sMt)}, {7168 * (task + 1)}')
        A('s_waitcnt lgkmcnt(0)')
        A(f'v_pk_add_f32 {v(rd, 2)}, {v(rd, 2)}, {v(rd + 2, 2)}')
        A(f'v_pk_add_f32 {v(rd + 4, 2)}, {v(rd + 4, 2)}, {v(rd + 6, 2)}')
        A(f'v_pk_add_f32 {v(g, 2)}, {v(rd, 2)}, {v(rd + 4, 2)}')
        A('s_mov_b32 exec_hi, 0')
        A(f'buffer_store_dwordx4 {v(g, 4)}, {v(vs)}, {s(rWS, 4)}, {s(sT0)} offen sc1 ;#cond')
        A('s_mov_b64 exec, -1')
        A(f'L_hm_n{task}:')
        if task == 0:
            ts()
    A.ext(wsl[7:])
    if OPT['hp']:
        A.ext([pload(i).replace(v(pf, 4), 'v[244:247]') for i in range(6)])
    A('s_branch L_hm_done')
    A('L_hm_skip:')
    A('s_waitcnt lgkmcnt(0)')
    A(f's_add_u32 {s(sTag)}, {s(sTag)}, 1')
    A('s_waitcnt vmcnt(0)')
    stats1_compute(st)
    helper_flag_touch()
    A(f's_sub_u32 {s(sWo)}, s2, 25')
    A(f's_mul_i32 {s(sWo)}, {s(sWo)}, {56 * 4096}')
    A(f's_mov_b32 {s(sT0)}, {OPT["npf"]}')
    A('L_hm_pf:')
    for i in range(4):
        A(f'buffer_load_dwordx4 {v(pf, 4)}, {v(vp)}, {s(rWd, 4)}, {s(sWo)} offen')
        A(f's_add_u32 {s(sWo)}, {s(sWo)}, 4096')
    A(f's_sub_u32 {s(sT0)}, {s(sT0)}, 1')
    A(f's_cmp_lg_u32 {s(sT0)}, 0')
    A('s_cbranch_scc1 L_hm_pf')
    A('s_waitcnt vmcnt(0)')
    A('L_hm_done:')
    ts()


def main_ffn(P):
    vW, vXr, vFp = P['vW'], P['vXr'], P['vFp']
    vXs, vL16, vTag, vSt = 2, 3, 4, 5
    gbp = V.get(4)
    x1r = V.get(8)
    Ag, Au = V.get(4), V.get(4)
    stt = V.get(16)
    xr = V.get(24)
    tmp = V.get(6)
    outp = V.get(8)
    acc = V.get(96)
    P['wdv'] = V.get(64)
    fp = P['vWr'][0]
    t0, t1, t2 = tmp, tmp + 1, tmp + 2
    XSLOT = [0, 1, 4, 2]
    FS = OPT['fs']
    sSt, sAo, sAi, sOo, sGb, sAu, sHf = 16, 17, 18, 19, 20, 21, 22
    sFl2 = 61

    def ffn_setup():
        A(f's_mov_b32 {s(sFl2)}, {s(sFl)}')
        A(f'v_lshlrev_b32 {v(vL16)}, 4, {v(LANE)}')
        A(f's_mul_i32 {s(sT0)}, {s(sMt)}, {4 * 28672}')
        A(f's_add_u32 {s(sT0)}, {s(sT0)}, {XS}')
        A(f'v_lshl_add_u32 {v(vXs)}, {v(TID)}, 4, {s(sT0)}')
        A(f'v_and_b32 {v(t0)}, 31, {v(LANE)}')
        A(f'v_lshlrev_b32 {v(vSt)}, 4, {v(t0)}')
        A(f'v_lshrrev_b32 {v(t1)}, 5, {v(LANE)}')
        A(f'v_mul_u32_u24 {v(t1)}, 28672, {v(t1)}')
        A(f'v_add_u32 {v(outp)}, {v(t1)}, {v(vSt)}')
        A(f's_lshl_b32 {s(sSt)}, {s(sMt)}, 11')
        A(f's_add_u32 {s(sSt)}, {s(sSt)}, {ST2}')
        A(f's_lshl2_add_u32 {s(sM2)}, {s(sNt)}, {s(sWave)}')
        A(f's_lshl_b32 {s(sAu)}, {s(sM2)}, 9')
        A(f's_add_u32 {s(sAu)}, {s(sAu)}, {AUG}')
        A(f's_mul_i32 {s(sT1)}, {s(sMt)}, 224')
        A(f's_add_u32 {s(sM2)}, {s(sM2)}, {s(sT1)}')
        A(f's_lshl_b32 {s(sAo)}, {s(sM2)}, 11')
        A(f's_add_u32 {s(sAo)}, {s(sAo)}, {ACT}')
        A(f's_lshl2_add_u32 {s(sT0)}, {s(sNt)}, {s(sWave)}')
        A(f's_mul_i32 {s(sT1)}, {s(sT0)}, 4682')
        A(f's_lshr_b32 {s(sT1)}, {s(sT1)}, 16')
        A(f's_lshl1_add_u32 {s(sT0)}, {s(sT1)}, {s(sT0)}')
        A(f's_lshl_b32 {s(sT1)}, {s(sMt)}, 8')
        A(f's_add_u32 {s(sT0)}, {s(sT0)}, {s(sT1)}')
        A(f's_mul_i32 {s(sFl)}, {s(sT0)}, {FS}')
        A(f's_add_u32 {s(sFl)}, {s(sFl)}, {FL3}')
        A(f's_and_b32 {s(sT0)}, {s(sJ)}, 7')
        A(f's_lshr_b32 {s(sT1)}, {s(sMi)}, 1')
        A(f's_lshl1_add_u32 {s(sT0)}, {s(sT0)}, {s(sT1)}')
        A(f's_lshl_b32 {s(sTb)}, {s(sT0)}, 2')
        A(f's_and_b32 {s(sHf)}, {s(sMi)}, 1')
        A(f's_lshl2_add_u32 {s(sRot)}, {s(sTb)}, {s(sWave)}')
        A(f's_mul_i32 {s(sRot)}, {s(sRot)}, 14')
        A(f's_lshl3_add_u32 {s(sAi)}, {s(sRot)}, {s(sHf)}')
        A(f's_lshl_b32 {s(sAi)}, {s(sAi)}, 8')
        A(f's_add_u32 {s(sAi)}, {s(sAi)}, {ACT}')
        A(f's_add_u32 {s(sOo)}, {s(sTb)}, {s(sHf)}')
        A(f's_mul_i32 {s(sOo)}, {s(sOo)}, {16 * 7}')
        A(f's_add_u32 {s(sOo)}, {s(sOo)}, {s(sNi)}')
        A(f's_lshl_b32 {s(sOo)}, {s(sOo)}, 7')
        A(f's_lshl_b32 {s(sGb)}, {s(sNi)}, 9')
        A(f's_add_u32 {s(sGb)}, {s(sGb)}, {MOD + 5 * 7168}')
        A(f'v_bfe_u32 {v(t2)}, {v(TID)}, 2, 5')
        A(f'v_and_b32 {v(t0)}, 3, {v(TID)}')
        A(f'v_lshl_add_u32 {v(t2)}, {v(t2)}, 3, {v(t0)}')
        A(f's_lshr_b32 {s(sT1)}, {s(sWave)}, 1')
        A(f's_add_u32 {s(sT0)}, {s(sTb)}, {s(sT1)}')
        A(f's_mul_i32 {s(sT0)}, {s(sT0)}, 7')
        A(f's_add_u32 {s(sT0)}, {s(sT0)}, {s(sNi)}')
        A(f's_lshl_b32 {s(sT0)}, {s(sT0)}, 6')
        A(f's_add_u32 {s(sT0)}, {s(sT0)}, {s(sHf)}')
        A(f's_lshl_b32 {s(sT0)}, {s(sT0)}, 6')
        A(f's_add_u32 {s(sT0)}, {s(sT0)}, {X1P}')
        A(f'v_lshl_add_u32 {v(outp + 2)}, {v(t2)}, 4, {s(sT0)}')
        A(f's_lshl2_add_u32 {s(sT1)}, {s(sTb)}, {s(sWave)}')
        A(f's_mul_i32 {s(sT1)}, {s(sT1)}, {16 * FS}')
        A(f's_add_u32 {s(sT1)}, {s(sT1)}, {FL3}')
        A(f'v_min_u32 {v(vFp)}, 13, {v(LANE)}')
        A(f'v_lshl_add_u32 {v(vFp)}, {v(vFp)}, {FS.bit_length() - 1}, {s(sT1)}')
        A(f'v_and_b32 {v(t0)}, 15, {v(LANE)}')
        A(f'v_lshrrev_b32 {v(t1)}, 4, {v(LANE)}')
        A(f'v_lshl_add_u32 {v(t0)}, {v(t1)}, 6, {v(t0)}')
        A(f'v_lshl_add_u32 {v(outp + 3)}, {v(t0)}, {FS.bit_length() - 1}, {s(sT1)}')
        A(f'v_and_b32 {v(t0)}, 7, {v(TID)}')
        A(f'v_lshlrev_b32 {v(outp + 1)}, 4, {v(t0)}')
        for i in range(4):
            A(f'v_mov_b32 {v(Au + i)}, 0')

    FP = OPT['fp']
    dm = P['rest'] + w_dma(3, 1, P) + w_dma(4, 2, P)
    pl = [f'buffer_load_dword {v(stt + 8)}, off, {s(rWS, 4)}, {s(sGo)} sc1 ;#go']
    A.ext(interleave(dm[:FP], capture(ffn_setup)))
    ts('3')
    A('@vm xo1')
    A(flag_store(vTag, sFl2))
    ts('3')
    A.ext(dm[FP:])
    A.ext(pl)
    A.ext(wd_frags(0, 3, P))
    A('@lg df0')
    A.ext(w_dma(5, 3, P)[:OPT['w5']])
    ts('3')
    A(tag_wait('L_f2', pl, [stt + 8], 'go'))
    A('s_barrier')
    ts('03')

    def xs_dma(b):
        o = []
        for cc in range(7):
            u = f's_add_u32 m0, {s(sW1k)}, {SL[XSLOT[b]] + 4096 * cc}\n'
            o += [u.strip(), f'buffer_load_dwordx4 {v(vXs)}, {s(rWS, 4)}, {s(sC + cc)} offen sc1 lds ;#x{b}']
        return o + [f'v_add_u32 {v(vXs)}, 28672, {v(vXs)}']

    A.ext(xs_dma(0))
    assert OPT['w5'] in (0, 4, 8)
    A.ext(interleave(w_frags(2, 4, P) + w_frags(3, 1, P) + w_frags(4, 2, P), w_dma(5, 3, P)[OPT['w5']:]))
    A('@vm x0')
    A('s_waitcnt lgkmcnt(0)')
    A('s_barrier')
    ts('0235')
    g = [f'buffer_load_dwordx4 {v(x1r, 4)}, {v(vSt)}, {s(rWS, 4)}, {s(sGb)} offen sc1 ;#g',
         f'buffer_load_dwordx4 {v(x1r + 4, 4)}, {v(vSt)}, {s(rWS, 4)}, {s(sGb)} offen offset:3584 sc1 ;#g',
         f'buffer_load_dwordx4 {v(Ag, 4)}, {v(outp)}, {s(rWS, 4)}, {s(sAu)} offen sc1 ;#g']
    gv = tag_units('L_g', g, [x1r + 3, x1r + 7, Ag + 3], 'g')
    gv += [f'v_add_f32 {v(x1r)}, {v(x1r)}, {v(x1r + 4)}', f'v_add_f32 {v(x1r + 1)}, {v(x1r + 1)}, {v(x1r + 5)}',
           f'v_cvt_pk_bf16_f32 {v(x1r)}, {v(x1r)}, {v(x1r + 1)}', f'v_mov_b32 {v(Ag + 3)}, 0']
    for i in range(3):
        gv.append(f's_mov_b32 exec_lo, 0\nv_mov_b32 {v(Au + i)}, {v(Ag + i)}\nv_mov_b32 {v(Ag + i)}, 0\ns_mov_b32 exec_lo, -1')
    gp = [f'ds_bpermute_b32 {v(gbp + i)}, {v(outp + 1)}, {v(x1r)} offset:{4 * i}' for i in range(4)]
    def poll3(st_):
        return [f's_mov_b32 {s(sT3)}, {64 * FS * st_}\nbuffer_load_dword {v(fp)}, {v(vFp)}, {s(rWS, 4)}, {s(sT3)} offen sc1 ;#pe{st_}']
    pre3 = [poll3(i)[0].replace(';#pe', ';#pre') for i in range(4)]

    def xread(n):
        b, ks = divmod(n, 28)
        sl = XSLOT[b]
        r = xr + 4 * (n % 6)
        return [f'ds_read_b64_tr_b16 {v(r + 2 * e, 2)}, {v(vXr[sl // 2])} offset:{32768 * (sl % 2) + 1024 * ks + 256 * e} ;#xf{n}' for e in range(2)]

    def accr(b):
        return acc + 32 * (b % 3)

    def aug(b):
        gg, uu, st = accr(b), accr(b) + 16, stt + 4 * b
        return [f'v_mov_b32 {v(st + 3)}, 0',
                f'v_lshlrev_b32 {v(tmp + 4)}, 16, {v(st + 2)}',
                f'v_and_b32 {v(tmp + 5)}, 0xffff0000, {v(st + 2)}',
                f'v_mfma_f32_32x32x16_bf16 {v(gg, 16)}, {v(Ag, 4)}, {v(st, 4)}, {v(gg, 16)}',
                f'v_add_f32 {v(tmp + 4)}, {v(tmp + 4)}, {v(tmp + 5)}',
                f'v_rcp_f32 {v(tmp + 5)}, {v(tmp + 4)}',
                f'v_mfma_f32_32x32x16_bf16 {v(uu, 16)}, {v(Au, 4)}, {v(st, 4)}, {v(uu, 16)}',
                f'v_mul_f32 {v(st)}, {v(tmp + 4)}, {v(tmp + 4)}',
                f'v_mul_f32 {v(st + 1)}, 0xbfb8aa3b, {v(tmp + 5)}']

    def epi(b, q):
        gg, uu, st = accr(b), accr(b) + 16, stt + 4 * b
        r4 = range(4 * q, 4 * q + 4)
        o = [f'v_mul_f32 {v(tmp + i % 4)}, {v(st + 1)}, {v(gg + i)}' for i in r4]
        for i in r4:
            o += [f'v_exp_f32 {v(tmp + i % 4)}, {v(tmp + i % 4)}', f'v_mul_f32 {v(gg + i)}, {v(gg + i)}, {v(uu + i)}']
        for i in r4:
            o += [f'v_fma_f32 {v(tmp + i % 4)}, {v(tmp + i % 4)}, {v(st)}, {v(st)}', f'v_rcp_f32 {v(tmp + i % 4)}, {v(tmp + i % 4)}']
        o += [f'v_mul_f32 {v(gg + i)}, {v(gg + i)}, {v(tmp + i % 4)}' for i in r4]
        o += [f'v_cvt_pk_bf16_f32 {v(outp + 2 * q + k)}, {v(gg + 4 * q + 2 * k)}, {v(gg + 4 * q + 2 * k + 1)}' for k in range(2)]
        if q % 2:
            o.append(f'buffer_store_dwordx4 {v(outp + 2 * q - 2, 4)}, {v(vL16)}, {s(rWS, 4)}, {s(sAo)} offen offset:{1024 * (q // 2)} sc1 ;#ao{b}')
        if q == 3:
            o.append(f's_add_u32 {s(sAo)}, {s(sAo)}, {112 * 1024}')
        return o

    def act_flag(b):
        return [f'@vm ao{b}', flag_store(vTag, sFl), f's_add_u32 {s(sFl)}, {s(sFl)}, {64 * FS}']

    def st_loads(b):
        return [f'buffer_load_dwordx4 {v(stt + 4 * b, 4)}, {v(vSt)}, {s(rWS, 4)}, {s(sSt)} offen offset:{512 * b} sc1 ;#s{b}']

    res = [f'buffer_load_dwordx4 {v(x1r, 4)}, {v(vW)}, {s(rWS, 4)}, 0 offen sc1 ;#res',
           f's_mov_b32 {s(sT2)}, {2 * 28672}\nbuffer_load_dwordx4 {v(x1r + 4, 4)}, {v(vW)}, {s(rWS, 4)}, {s(sT2)} offen sc1 ;#res']
    abuf = [('a', 128 + 4 * i) for i in range(24)]
    LA, G0 = OPT['la'], OPT['g0']
    vAl = P['vWr'][1]

    def aload(n):
        st_, kp = divmod(n, 14)
        return f'buffer_load_dwordx4 {rn(abuf[n % 24], 4)}, {v(vAl)}, {s(rWS, 4)}, {s(sD + kp // 2)} offen offset:{2048 * (kp % 2)} sc1 ;#a{n}'

    def astage(st_):
        u = tag_units(f'L_p{st_}', poll3(st_), [fp], f'pe{st_}', None if st_ else 34)
        return u + ([f'v_add_u32 {v(vAl)}, {112 * 1024}, {v(vAl)}'] if st_ else [])
    aadr = [f'v_lshrrev_b32 {v(vAl)}, 4, {v(LANE)}', f'v_lshlrev_b32 {v(vAl)}, 9, {v(vAl)}',
            f'v_and_b32 {v(P["vWr"][2])}, 0xf0, {v(vL16)}', f'v_add3_u32 {v(vAl)}, {v(vAl)}, {v(P["vWr"][2])}, {s(sAi)}']
    mm, head, tail = [], {}, {}
    for n in range(112):
        b, ks = divmod(n, 28)
        for mat in range(2):
            d = accr(b) + 16 * mat
            mm.append(f'v_mfma_f32_32x32x16_bf16 {v(d, 16)}, {a((mat * 28 + ks) * 4, 4)}, {v(xr + 4 * (n % 6), 4)}, {"0" if ks == 0 else v(d, 16)}')
        if n + 4 < 112:
            rd = xread(n + 4)
            head[2 * n] = [rd[0]]
            head[2 * n + 1] = [rd[1]]
        if n % 2 and n < 111:
            tail[2 * n + 1] = [f'@lg xf{n + 2}']
        if ks == 24 and b < 3:
            head[2 * n], head[2 * n + 1] = [], [f'@vm x{b + 1}\ns_waitcnt lgkmcnt(0)\ns_barrier'] + xread(n + 4)
    E0 = OPT['e0']
    GV = OPT['gv']
    assert GV + 10 <= E0 - 4
    Q = [OPT[f'q{i}'] for i in range(6)]
    R = [OPT[f'r{i}'] for i in range(5)]
    assert R[3] >= 185 and R[4] >= max(201, R[3] + 14)
    DG = OPT['dg']
    WB = OPT['wb']
    tail = merge(tail, {39: ['@lg wf5'], 47: ['@lg wf']})
    NF = OPT['nf']
    fr34 = [wd_frags(3, 1, P) + wd_addr(2, P), wd_frags(4, 3, P) + wd_addr(4, P), wd_frags(6, 4, P)]
    d56 = wd_dma(6, 4, P)
    gob = [f'buffer_load_dword {v(fp)}, off, {s(rWS, 4)}, {s(sGo)} offset:128 sc1 ;#gob']
    tag_units('L_gb', gob, [fp], 'gob', 34)
    gsl = [f's_add_u32 {s(sGo2)}, {s(sGo)}, 128', f's_load_dword {s(sGo2)}, {s(rWS, 2)}, {s(sGo2)} {"glc" if OPT["glc"] else ""}']
    gsc = [f's_cmp_lg_u32 {s(sGo2)}, {s(sTag)}\ns_cbranch_scc1 L_gb_re\nL_gb_ok:']
    assert OPT['gb'] <= 44 and Q[0] >= 52 and Q[2] >= 107 and Q[3] <= 150 and Q[5] >= 163
    soft = merge({},
                 spread(224, w_dma(6, 4, P) + [f'v_mov_b32 {v(vW)}, {v(outp + 2)}'] + xs_dma(1), 0, OPT['qd'] - 4),
                 {WB: ['@vm w6\ns_barrier']}, spread(224, tagged(w_frags(5, 3, P), 'wf5') + tagged(w_frags(6, 4, P), 'wf'), WB + 1, WB + 15),
                 spread(224, wd_dma(1, 2, P), OPT['qd'], Q[0]), {OPT['gb']: gsl}, {50: gsc},
                 spread(224, xs_dma(2), Q[0], Q[1]), spread(224, wd_dma(2, 3, P) + wd_dma(5, 0, P), Q[1], Q[2]),
                 spread(224, xs_dma(3), Q[2], Q[3]),
                 spread(224, wd_dma(3, 1, P) + wd_dma(4, 3, P), Q[3], Q[4]), spread(224, res, Q[4], Q[5]),
                 spread(224, d56[:DG], Q[5], OPT['a0'] - 4), {60: aadr},
                 spread(224, fr34[0] if NF > 0 else [], R[3], R[3] + 14), spread(224, fr34[1] if NF > 1 else [], R[4], R[4] + 14),
                 spread(224, wd_frags(1, 2, P), R[0], R[0] + 14), spread(224, wd_frags(2, 3, P) + wd_addr(0, P), R[1], R[1] + 16),
                 {E0 - OPT['sl']: st_loads(0), OPT['b1'] - OPT['sl1']: st_loads(1), OPT['b2'] - OPT['sl2']: st_loads(2), OPT['b2'] - OPT['sl2'] + 20: st_loads(3)},
                 spread(224, g + [f'buffer_load_dword {v(fp)}, {v(outp + 3)}, {s(rWS, 4)}, 0 offen sc1'], OPT['gl'], OPT['gl'] + 4),
                 {})
    chk0, chk1, chk2, chk3 = [tag_units(f'L_s{b}', st_loads(b), [stt + 4 * b + 3], f's{b}') for b in range(4)]
    gp3 = [';gap'] * 3
    parts = [epi(0, 0), epi(0, 1), epi(0, 2), epi(0, 3) + chk1, aug(1) + gp3 + epi(1, 0), epi(1, 1), epi(1, 2), epi(1, 3) + chk2,
             aug(2) + gp3 + epi(2, 0) + chk3, epi(2, 1), epi(2, 2), epi(2, 3)]
    PP, PC = OPT['pp'], OPT['pc']
    parts[9] = parts[9][:PP] + flat(poll3(0)) + parts[9][PP:]
    t23 = parts[10] + parts[11]
    t23 = t23[:PC] + astage(0) + interleave(t23[PC:-3], [aload(n) for n in range(G0)]) + t23[-3:]
    parts[10], parts[11] = t23, []
    F0, F1 = OPT['f0'], OPT['f1']
    parts[F0] = parts[F0] + act_flag(0)
    if F1 < 12:
        parts[F1] = parts[F1] + act_flag(1)
    for n in range(4):
        A.ext(xread(n))
    A('@lg xf1')
    B1, B2 = OPT['b1'], OPT['b2']
    segs = [(GV, E0 - 8, gv + gp), (E0 - 8, E0 - 3, chk0 + aug(0) + [';gap'] * 3), (E0, B1, sum(parts[:4], [])), (B1, B2, sum(parts[4:8], [])), (B2, 224, sum(parts[8:], []))]
    code, info = sched2(mm, head, tail, soft, segs, 24)
    print('gemm1', info)
    gapof, g_ = [], -1
    for u in code:
        g_ += u.startswith('v_mfma') and ', a[' in u
        gapof.append(g_)

    def span(key):
        ix = [gapof[i] for i, u in enumerate(code) if any(ln.endswith(key) for ln in u.split('\n'))]
        return (min(ix), max(ix)) if ix else (999, -1)
    seq = [OPT['qd']] + Q + [OPT['a0'] - 4]
    assert all(b_ - a_ >= 6 for a_, b_ in zip(seq, seq[1:])) and OPT['qd'] >= 14
    assert span(';#a0')[0] >= 180 + 2 * G0 and LA >= G0 and F0 < F1 and OPT['f2'] + 4 < OPT['f3'] and LA <= 13
    assert span(';#df1')[1] < 104 and span(';#df2')[1] + 8 < span(';#d4')[0] and span(';#d6')[0] > 161 and span(';#x3')[0] > 105
    assert span(';#x1')[1] < 48 and span(';#x2')[1] < 104 and span(';#x3')[1] < 160 and span(';#wf')[1] < 47 and span(';#wf5')[1] < 39
    assert min(span(';#x2')[0], span(';#d2')[0], span(';#d5')[0]) > span('L_gb_ok:')[0] > 49 and span(';#d3')[0] > 105
    assert span(';#d1')[1] < span(';#df1')[0] and span(';#d2')[1] < span(';#df2')[0] and span(';#w6')[1] < WB
    assert span(';#d3')[1] < span(';#df3')[0] and span(';#d4')[1] < span(';#df4')[0]
    assert span(';#g')[1] < GV and all(span(f';#s{b}')[1] + 3 < span(f'L_s{b}_ok:')[0] for b in range(4))
    nm_ = 0
    first_aug2 = None
    for u in code:
        if u.startswith('v_mfma') and f', {v(Ag, 4)}, {v(stt + 8, 4)}' in u:
            first_aug2 = nm_
        if u.startswith('v_mfma') and ', a[' in u:
            nm_ += 1
            if nm_ == 169:
                assert f'ao0' in ''.join(code[:code.index(u)]).split('offset:1024 sc1 ;#')[-1][:3] or True
        A(u)
        if u.startswith('v_mfma') and ', a[' in u and nm_ % 112 == 0:
            ts('2')
        if u.startswith('v_mfma') and ', a[' in u and nm_ % 28 == 0:
            ts('5')
    assert first_aug2 >= 168, first_aug2
    last0 = max(i for i, u in enumerate(code) if ';#ao0' in u and 'buffer_store' in u)
    assert sum(1 for u in code[:last0] if u.startswith('v_mfma') and ', a[' in u) <= 168
    ts('04')
    assert DG >= 8
    A.ext(aug(3))
    fr34 = fr34[NF:] + [[], [], [], []]
    A.ext(fr34[0])
    d56 = d56[DG:]
    late_ld = [aload(n) for n in range(G0, LA)]
    nq = (len(d56) + len(late_ld) + 3) // 4
    mem = d56 + late_ld
    A.ext(mem[:nq])
    for q_ in range(4):
        A.ext(epi(3, q_))
        if q_ == 1 and F1 >= 12:
            A.ext(act_flag(1))
        A.ext(mem[nq * (q_ + 1):nq * (q_ + 2)])
        A.ext(fr34[1 + q_ // 2] if q_ % 2 else [])
    if OPT['f2'] < 0:
        A.ext(act_flag(2))
    ts('2')
    wa = [stt, stt + 1]
    ra0, ra1, ao = stt + 4, stt + 5, stt + 6
    xu, gu = xr, xr + 16
    su = [f'v_and_b32 {v(t0)}, 15, {v(LANE)}',
          f'v_lshlrev_b32 {v(t0)}, 8, {v(t0)}',
          f'v_add_u32 {v(t0)}, {s(sW8k)}, {v(t0)}',
          f'v_lshrrev_b32 {v(t1)}, 4, {v(LANE)}',
          f'v_and_b32 {v(t2)}, 7, {v(LANE)}',
          f'v_xor_b32 {v(t1)}, {v(t1)}, {v(t2)}',
          f'v_lshl_add_u32 {v(wa[0])}, {v(t1)}, 4, {v(t0)}',
          f'v_add_u32 {v(wa[0])}, {SL[2]}, {v(wa[0])}',
          f'v_xor_b32 {v(wa[1])}, 64, {v(wa[0])}',
          f'v_lshrrev_b32 {v(t0)}, 3, {v(TID)}',
          f'v_and_b32 {v(t1)}, 7, {v(t0)}',
          f'v_lshlrev_b32 {v(ra0)}, 1, {v(t2)}',
          f'v_xor_b32 {v(ra0)}, {v(ra0)}, {v(t1)}',
          f'v_lshlrev_b32 {v(ra0)}, 4, {v(ra0)}',
          f'v_lshl_add_u32 {v(ra0)}, {v(t0)}, 8, {v(ra0)}',
          f'v_add_u32 {v(ra0)}, {SL[2]}, {v(ra0)}',
          f'v_xor_b32 {v(ra1)}, 16, {v(ra0)}',
          f'v_and_b32 {v(t1)}, 16, {v(t0)}',
          f'v_add_u32 {v(t0)}, {v(t0)}, {v(t1)}',
          f'v_mul_u32_u24 {v(ao)}, 896, {v(t0)}',
          f'v_lshl_add_u32 {v(ao)}, {v(t2)}, 4, {v(ao)}']
    for i in range(4):
        su += [f'v_lshlrev_b32 {v(gu + 2 * i)}, 16, {v(gbp + i)}', f'v_and_b32 {v(gu + 2 * i + 1)}, 0xffff0000, {v(gbp + i)}']
    xw, xrd = stt + 2, stt + 3
    su2 = [f'v_lshrrev_b32 {v(t0)}, 7, {v(TID)}', f'v_and_b32 {v(t1)}, 3, {v(TID)}', f'v_lshl_add_u32 {v(t0)}, {v(t0)}, 2, {v(t1)}',
           f'v_mul_u32_u24 {v(t0)}, 576, {v(t0)}', f'v_and_b32 {v(t1)}, 0x7c, {v(TID)}', f'v_add_u32 {v(t0)}, {v(t0)}, {v(t1)}',
           f'v_add_u32 {v(xw)}, {SL[4]}, {v(t0)}',
           f'v_lshrrev_b32 {v(t0)}, 3, {v(TID)}', f'v_mul_u32_u24 {v(t0)}, 144, {v(t0)}', f'v_lshl_add_u32 {v(t0)}, {v(t2)}, 4, {v(t0)}',
           f'v_add_u32 {v(xrd)}, {SL[4]}, {v(t0)}']
    su2 += [f'ds_write_b32 {v(xw)}, {v(x1r + i)} offset:{4608 * (i // 4) + 144 * (i % 4)}' for i in range(8)]
    xrr = [f'ds_read_b128 {v(x1r + 4 * b_, 4)}, {v(xrd)} offset:{4608 * b_}' for b_ in range(2)]
    xun = []
    for i in range(8):
        xun += [f'v_lshlrev_b32 {v(xu + 2 * i)}, 16, {v(x1r + i)}', f'v_and_b32 {v(xu + 2 * i + 1)}, 0xffff0000, {v(x1r + i)}']
    Y = acc

    def red_write(st_):
        d = acc + 32 + 16 * st_
        return [f'ds_write_b128 {v(wa[db % 2])}, {v(d + 4 * db, 4)} offset:{32768 * (st_ // 2) + 4096 * (st_ % 2) + 128 * (db // 2)}' for db in range(4)]

    def red_read(blk):
        o = []
        for w in range(4):
            o += [f'ds_read_b128 {v(Y + 8 * w, 4)}, {v(ra0)} offset:{32768 * blk + 8192 * w}',
                  f'ds_read_b128 {v(Y + 8 * w + 4, 4)}, {v(ra1)} offset:{32768 * blk + 8192 * w}']
        o[0] = 's_waitcnt lgkmcnt(0)\ns_barrier\n' + o[0]
        return o

    def red_final(blk, pk):
        o = ['s_waitcnt lgkmcnt(0)']
        x = xu + 8 * blk
        if pk:
            for i in range(0, 8, 2):
                o += [f'v_pk_add_f32 {v(Y + i, 2)}, {v(Y + i, 2)}, {v(Y + 8 + i, 2)}', f'v_pk_add_f32 {v(Y + 16 + i, 2)}, {v(Y + 16 + i, 2)}, {v(Y + 24 + i, 2)}',
                      f'v_pk_add_f32 {v(Y + i, 2)}, {v(Y + i, 2)}, {v(Y + 16 + i, 2)}', f'v_pk_fma_f32 {v(x + i, 2)}, {v(Y + i, 2)}, {v(gu + i, 2)}, {v(x + i, 2)}']
        else:
            for i in range(8):
                o += [f'v_add_f32 {v(Y + i)}, {v(Y + i)}, {v(Y + 8 + i)}', f'v_add_f32 {v(Y + 16 + i)}, {v(Y + 16 + i)}, {v(Y + 24 + i)}',
                      f'v_add_f32 {v(Y + i)}, {v(Y + i)}, {v(Y + 16 + i)}', f'v_fmac_f32 {v(x + i)}, {v(Y + i)}, {v(gu + i)}']
        o += [f'v_cvt_pk_bf16_f32 {v(outp + 4 * blk + i)}, {v(x + 2 * i)}, {v(x + 2 * i + 1)}' for i in range(4)]
        o.append(f'buffer_store_dwordx4 {v(outp + 4 * blk, 4)}, {v(ao)}, {s(rOut, 4)}, {s(sOo)} offen {("", "sc1", "sc1 nt", "nt")[OPT["osc"]]}')
        o.append(f's_add_u32 {s(sOo)}, {s(sOo)}, {1024 * 896}')
        return o

    mm, head, tail, soft = [], {}, {}, {}
    for n in range(56):
        st_, kp = divmod(n, 14)
        for db in range(4):
            d = acc + 32 + 16 * st_ + 4 * db
            mm.append(f'v_mfma_f32_16x16x32_bf16 {v(d, 4)}, {rn(wdreg(kp // 2, kp % 2, db, P), 4)}, {rn(abuf[n % 24], 4)}, {"0" if kp == 0 else v(d, 4)}')
        if n + LA < 56:
            m_ = n + LA
            if m_ % 14 == 0:
                as_ = astage(m_ // 14)
                soft = merge(soft, {max(0, 4 * n - 5): as_[:-1]}, {max(0, 4 * n - 2): as_[-1:]})
            soft = merge(soft, {4 * n: [aload(m_)]})
        if n < 55:
            tail[4 * n + 3] = [f'@vm a{n + 1}']
    for st_ in range(1, 4):
        soft = merge({max(0, 4 * (14 * st_ - LA) - OPT['pl'] - 5): flat(poll3(st_))}, soft, spread(224, red_write(st_ - 1), 56 * st_ + 9, 56 * st_ + 25))
    soft = merge(soft, ({OPT['f2']: act_flag(2)} if OPT['f2'] >= 0 else {}), {OPT['f3']: act_flag(3)}, spread(224, red_read(0) + xrr, 141, 151),
                 spread(224, wd_addr(0, P) + flat(wd_frags(5, 0, P)), OPT['g5'], 30))
    tail = merge(tail, {6: ['@lg df4 df6'], 38: ['@lg df5'], 54: ['s_barrier']})
    A('@vm a0')
    ts('2')
    rf0 = red_final(0, False)
    c1_, info = sched2(mm, head, tail, soft, [(36, 60, su[:9]), (60, 130, su[9:] + su2), (158, 210, rf0[:1] + xun[:8] + rf0[1:] + xun[8:])], 8)
    print('gemm2', info)
    pos = {u: i for i, u in enumerate(c1_)}
    assert max(i for i, u in enumerate(c1_) if ';#df5' in u) < pos[mm[38]]
    assert pos[su[8]] < pos[red_write(0)[0]] and pos[xrr[1]] < pos[rf0[0]] and pos[su2[-1]] < pos[red_read(0)[0]]
    for n in range(LA, 56):
        assert pos[aload(n)] < pos[mm[4 * (n - 3)]]
    c2_ = []
    for u in c1_ + c2_:
        A(u)
        if u is mm[55] or u is mm[167]:
            ts('2')
        if u is mm[111]:
            ts('02')
    A.ext(red_write(3) + red_read(1) + red_final(1, True))
    ts('0246')


def helper_rest():
    V.release(2)
    g = V.get(16)
    acc = V.get(16, 4)
    fw = V.get(112)
    fv = V.get(16)
    xx = V.get(56)
    t0, t1, t2, vo, vr, va, one, aw, ar, vl = [V.get() for _ in range(10)]
    rd = V.get(8)
    def fold_vectors():
        A('s_cmp_ge_u32 s2, 28')
        A('s_cbranch_scc1 L_hr_skip')
        A(f's_mov_b32 {s(sMi)}, s38')
        A(f's_mov_b32 {s(sNi)}, s39')
        A(f's_and_b32 {s(sT1)}, {s(sWave)}, 1')
        A(f's_lshr_b32 {s(sT2)}, {s(sWave)}, 1')
        tr_lane(vr, t0, t1, 8, 128)
        A(f'v_bfe_u32 {v(t1)}, {v(LANE)}, 3, 1')
        A(f'v_xor_b32 {v(t1)}, {s(sT1)}, {v(t1)}')
        A(f'v_lshl_add_u32 {v(vr)}, {v(t1)}, 6, {v(vr)}')
        A(f's_mul_i32 {s(sT3)}, {s(sT2)}, 57344')
        A(f'v_add_u32 {v(vr)}, {s(sT3)}, {v(vr)}')
        A(f'v_and_b32 {v(t0)}, 1, {v(LANE)}')
        A(f'v_lshlrev_b32 {v(va)}, 10, {v(t0)}')
        A(f'v_lshrrev_b32 {v(t0)}, 5, {v(LANE)}')
        A(f'v_lshl_add_u32 {v(va)}, {v(t0)}, 4, {v(va)}')
        A(f'v_add_u32 {v(va)}, {SL[4] + 4096}, {v(va)}')
        A(f'v_min_u32 {v(t2)}, 223, {v(TID)}')
        A(f'v_lshlrev_b32 {v(t0)}, 4, {v(t2)}')
        ld = []
        for i, sec in enumerate((4, 3)):
            ld += [f's_mov_b32 {s(sT3)}, {MOD + sec * 7168}',
                   f'buffer_load_dwordx4 {v(g + 8 * i, 4)}, {v(t0)}, {s(rWS, 4)}, {s(sT3)} offen sc1',
                   f'buffer_load_dwordx4 {v(g + 8 * i + 4, 4)}, {v(t0)}, {s(rWS, 4)}, {s(sT3)} offen offset:3584 sc1']
        A.ext(ld)
        A(tag_wait('L_hg', ld, [g + 3, g + 7, g + 11, g + 15]))
        bf16_pair_from_partials(rd, g, g + 4, True)
        bf16_pair_from_partials(rd + 2, g + 8, g + 12, False)
        A(f'v_lshlrev_b32 {v(t2)}, 2, {v(t2)}')
        A(f'v_add_u32 {v(t2)}, {SL[4] + 4096}, {v(t2)}')
        A(f'ds_write_b32 {v(t2)}, {v(g)}')
        A(f'ds_write_b32 {v(t2)}, {v(g + 8)} offset:1024')
        A('s_waitcnt lgkmcnt(0)')
        A('s_barrier')
        def hrd(ks):
            return [f'ds_read_b128 {v(xx + 4 * (ks % 8), 4)}, {v(va)} offset:{32 * ks}'] + [
                f'ds_read_b64_tr_b16 {v(fw + 4 * ks + 2 * e, 2)}, {v(vr)} offset:{(16 * ks + 4 * e) * 128} ;#hr{ks}' for e in range(2)]
        for ks in range(4):
            A.ext(hrd(ks))
        for ks in range(28):
            A(f'@lg hr{ks}')
            A(f'v_mfma_f32_32x32x16_bf16 {v(acc, 16)}, {v(xx + 4 * (ks % 8), 4)}, {v(fw + 4 * ks, 4)}, {"0" if ks == 0 else v(acc, 16)}')
            if ks + 4 < 28:
                A.ext(hrd(ks + 4))
        A(f's_mul_i32 {s(sT0)}, {s(sMi)}, 28672')
        A(f's_lshl_b32 {s(sT1)}, {s(sNi)}, 2')
        A(f's_add_u32 {s(sT1)}, {s(sT1)}, {s(sWave)}')
        A(f's_lshl_b32 {s(sT1)}, {s(sT1)}, 9')
        A(f's_add_u32 {s(sT0)}, {s(sT0)}, {s(sT1)}')
        A(f's_add_u32 {s(sT0)}, {s(sT0)}, {AUG}')
        A(f'v_lshlrev_b32 {v(t2)}, 4, {v(LANE)}')
        A(f'v_cvt_pk_bf16_f32 {v(g + 1)}, {v(acc)}, {v(acc + 1)}')
        A(f'v_lshlrev_b32 {v(t0)}, 16, {v(g + 1)}')
        A(f'v_and_b32 {v(t1)}, 0xffff0000, {v(g + 1)}')
        A(f'v_sub_f32 {v(acc + 2)}, {v(acc)}, {v(t0)}')
        A(f'v_sub_f32 {v(acc + 3)}, {v(acc + 1)}, {v(t1)}')
        A(f'v_cvt_pk_bf16_f32 {v(g)}, {v(t0)}, {v(acc + 2)}')
        A(f'v_cvt_pk_bf16_f32 {v(g + 2)}, {v(acc + 3)}, {v(t1)}')
        A(f'v_mov_b32 {v(g + 3)}, {s(sTag)}')
        A('s_mov_b32 exec_hi, 0')
        A(f'buffer_store_dwordx4 {v(g, 4)}, {v(t2)}, {s(rWS, 4)}, {s(sT0)} offen sc1')
        A('s_mov_b64 exec, -1')
        A('L_hr_skip:')
        ts('03')

    A(f's_and_b32 {s(sT1)}, s2, 7')
    A(f's_bfe_u32 {s(sT2)}, s2, 0x10003')
    A(f's_lshl1_add_u32 {s(sMt)}, {s(sT1)}, {s(sT2)}')
    A(f's_lshr_b32 {s(sT2)}, s2, 4')
    A(f's_lshl2_add_u32 {s(sTb)}, {s(sMt)}, {s(sT2)}')
    A(f's_mul_i32 {s(sT1)}, {s(sTb)}, 28672')
    A(f's_add_u32 {s(sT1)}, {s(sT1)}, {X1P}')
    A(f'v_lshl_add_u32 {v(vo)}, {v(TID)}, 4, {s(sT1)}')
    A(f'v_mov_b32 {v(one)}, 0x3f803f80')
    A(f'v_and_b32 {v(t1)}, 7, {v(LANE)}')
    A(f'v_lshrrev_b32 {v(t2)}, 4, {v(LANE)}')
    A(f'v_lshl_add_u32 {v(t2)}, {v(t1)}, 2, {v(t2)}')
    A(f's_lshl_b32 {s(sT0)}, {s(sWave)}, 8')
    A(f's_add_u32 {s(sT0)}, {s(sT0)}, {SL[4] + 8192}')
    A(f'v_lshl_add_u32 {v(aw)}, {v(t2)}, 3, {s(sT0)}')
    A(f'v_and_b32 {v(t1)}, 31, {v(LANE)}')
    A(f'v_lshlrev_b32 {v(ar)}, 3, {v(t1)}')
    A(f'v_add_u32 {v(ar)}, {SL[4] + 8192}, {v(ar)}')
    A(f'v_lshlrev_b32 {v(vl)}, 4, {v(LANE)}')
    A(f's_lshl_b32 {s(sM2)}, {s(sTb)}, 9')
    A(f's_add_u32 {s(sM2)}, {s(sM2)}, {ST2}')
    A(f's_bfe_u32 {s(sT0)}, s2, 0x20001')
    A(f's_lshr_b32 {s(sT1)}, s2, 3')
    A(f's_lshl2_add_u32 {s(sT0)}, {s(sT0)}, {s(sT1)}')
    A(f's_mul_i32 {s(sT0)}, {s(sT0)}, {4 * 28672}')
    A(f's_add_u32 {s(sT0)}, {s(sT0)}, {XS}')
    A(f'v_min_u32 v249, 223, {v(TID)}')
    A(f'v_lshl_add_u32 v249, v249, 7, {s(sT0)}')
    for blk in range(2):
        A('s_cmp_lt_u32 s2, 28')
        A(f's_cbranch_scc1 L_nogo{blk}')
        A(f's_mov_b32 {s(sSpin)}, {SPIN}')
        A(f's_mov_b32 {s(sT3)}, {FL2S * blk}')
        A(f'L_hf{blk}:')
        A(f'buffer_load_dword v251, v250, {s(rWS, 4)}, {s(sT3)} offen sc1')
        A(f's_sub_u32 {s(sSpin)}, {s(sSpin)}, 1')
        A(f's_cbranch_scc1 L_hf{blk}_ok')
        A('s_waitcnt vmcnt(0)')
        A(f'v_cmpx_ne_u32 vcc, {s(sTag)}, v251')
        A('s_nop 0')
        A(f's_cbranch_execnz L_hf{blk}')
        A(f'L_hf{blk}_ok:')
        A('s_mov_b64 exec, -1')
        A('s_barrier')
        A(f's_and_b32 {s(sT0)}, s2, 3')
        A(f's_lshl2_add_u32 {s(sT0)}, {s(sT0)}, {s(sWave)}')
        A(f's_lshl_b32 {s(sT0)}, {s(sT0)}, 8')
        A(f's_add_u32 {s(sT0)}, {s(sT0)}, {GO + 128 * blk}')
        A(f'v_mov_b32 v252, {s(sTag)}')
        A(flag_store(252, sT0).replace(';#fl', ';#cond'))
        A(f'L_nogo{blk}:')
    for blk in range(2):
        if blk == OPT['hf']:
            fold_vectors()
        A(f's_lshl_b32 {s(sT3)}, {s(sMt)}, 8')
        A(f's_add_u32 {s(sT3)}, {s(sT3)}, {GO + 128 * blk}')
        gl = [f'buffer_load_dword v251, off, {s(rWS, 4)}, {s(sT3)} sc1']
        A.ext(gl)
        A(tag_wait(f'L_hg{blk}', gl, [251]))
        if OPT['hx'] and blk == 0:
            A(f'buffer_load_dword v251, v249, {s(rWS, 4)}, 0 offen sc1')
        ts('03')
        for i in range(7):
            A(f's_mov_b32 {s(sT0)}, {2 * 28672 * blk + 4096 * i}')
            A(f'buffer_load_dwordx4 {v(xx + 28 * blk + 4 * i, 4)}, {v(vo)}, {s(rWS, 4)}, {s(sT0)} offen sc1 ;#hx{blk}_{i}')
        for j in range(8):
            A(f'v_mov_b32 {v(acc + j)}, 0')
        for i in range(7):
            A(f'@vm hx{blk}_{i}')
            for j in range(4):
                w = xx + 28 * blk + 4 * i + j
                A(f'v_dot2c_f32_bf16 {v(acc + 2 * j)}, {v(w)}, {v(one)}')
                A(f'v_dot2c_f32_bf16 {v(acc + 2 * j + 1)}, {v(w)}, {v(w)}')
        reduce8(acc)
        A(f'ds_write_b64 {v(aw)}, {v(acc, 2)} offset:{1024 * blk}')
        A('s_waitcnt lgkmcnt(0)')
        A('s_barrier')
        A(f's_cmp_lg_u32 {s(sWave)}, {blk}')
        A(f's_cbranch_scc1 L_hs_n{blk}')
        for w in range(4):
            A(f'ds_read_b64 {v(rd + 2 * w, 2)}, {v(ar)} offset:{1024 * blk + 256 * w}')
        A(f'v_mov_b32 {v(t2)}, 0x3b124925')
        A('s_waitcnt lgkmcnt(0)')
        A(f'v_pk_add_f32 {v(rd, 2)}, {v(rd, 2)}, {v(rd + 2, 2)}')
        A(f'v_pk_add_f32 {v(rd + 4, 2)}, {v(rd + 4, 2)}, {v(rd + 6, 2)}')
        A(f'v_pk_add_f32 {v(rd, 2)}, {v(rd, 2)}, {v(rd + 4, 2)}')
        A(f'v_mul_f32 {v(rd)}, 0xbb124925, {v(rd)}')
        A(f'v_mul_f32 {v(t0)}, {v(rd)}, {v(rd)}')
        A(f'v_fma_f32 {v(rd + 1)}, {v(rd + 1)}, {v(t2)}, -{v(t0)}')
        A(f'v_max_f32 {v(rd + 1)}, 0, {v(rd + 1)}')
        A(f'v_add_f32 {v(rd + 1)}, 0x3727c5ac, {v(rd + 1)}')
        A(f'v_sqrt_f32 {v(rd + 1)}, {v(rd + 1)}')
        A(f'v_cvt_pk_bf16_f32 {v(g)}, {v(rd)}, {v(rd)}')
        A(f'v_cvt_pk_bf16_f32 {v(t1)}, {v(rd + 1)}, {v(rd + 1)}')
        A(f'v_and_b32 {v(t0)}, 0xffff0000, {v(g)}')
        A(f'v_and_b32 {v(t1)}, 0xffff0000, {v(t1)}')
        A(f'v_sub_f32 {v(rd + 2)}, {v(rd)}, {v(t0)}')
        A(f'v_sub_f32 {v(rd + 3)}, {v(rd + 1)}, {v(t1)}')
        A(f'v_cvt_pk_bf16_f32 {v(g + 1)}, {v(rd + 2)}, {v(t1)}')
        A(f'v_cvt_pk_bf16_f32 {v(g + 2)}, {v(t1)}, {v(rd + 3)}')
        A(f'v_mov_b32 {v(g + 3)}, {s(sTag)}')
        A('s_mov_b32 exec_hi, 0')
        A(f'buffer_store_dwordx4 {v(g, 4)}, {v(vl)}, {s(rWS, 4)}, {s(sM2)} offen offset:{1024 * blk} sc1 ;#cond')
        A('s_mov_b64 exec, -1')
        A(f'L_hs_n{blk}:')
    ts()
    if OPT['ha']:
        FS = OPT['fs']
        A(f's_lshr_b32 {s(sT0)}, s2, 4')
        A(f's_lshl2_add_u32 {s(sT0)}, {s(sT0)}, {s(sWave)}')
        A(f's_lshr_b32 {s(sT1)}, {s(sT0)}, 1')
        A(f's_lshl4_add_u32 {s(sT1)}, {s(sMt)}, {s(sT1)}')
        A(f's_mul_i32 {s(sT1)}, {s(sT1)}, {16 * FS}')
        A(f's_add_u32 {s(sT1)}, {s(sT1)}, {FL3}')
        A(f'v_min_u32 v250, 13, {v(LANE)}')
        A(f'v_lshl_add_u32 v250, v250, {FS.bit_length() - 1}, {s(sT1)}')
        A(f's_lshl_b32 {s(sT1)}, {s(sMt)}, 5')
        A(f's_add_u32 {s(sT0)}, {s(sT0)}, {s(sT1)}')
        A(f's_mul_i32 {s(sT0)}, {s(sT0)}, 14336')
        A(f's_add_u32 {s(sT0)}, {s(sT0)}, {ACT}')
        A(f'v_min_u32 v249, 55, {v(LANE)}')
        A(f'v_lshl_add_u32 v249, v249, 8, {s(sT0)}')
        A(f's_mov_b32 {s(sT2)}, {OPT["ha"]}')
        A(f's_mov_b32 {s(sSpin)}, {SPIN}')
        A('L_ha:')
        A(f's_sleep {OPT["hn"]}')
        A(f'buffer_load_dword v251, v250, {s(rWS, 4)}, 0 offen sc1')
        A(f's_sub_u32 {s(sSpin)}, {s(sSpin)}, 1')
        A('s_cbranch_scc1 L_ha_end')
        A('s_waitcnt vmcnt(0)')
        A(f'v_cmp_ne_u32 vcc, {s(sTag)}, v251')
        A('s_cbranch_vccnz L_ha')
        A(f'buffer_load_dword v252, v249, {s(rWS, 4)}, 0 offen sc1')
        A(f'buffer_load_dword v253, v249, {s(rWS, 4)}, 0 offen offset:128 sc1')
        A(f'v_add_u32 v250, {64 * FS}, v250')
        A(f'v_add_u32 v249, {112 * 1024}, v249')
        A(f's_sub_u32 {s(sT2)}, {s(sT2)}, 1')
        A(f's_cmp_lg_u32 {s(sT2)}, 0')
        A('s_cbranch_scc1 L_ha')
        A('L_ha_end:')


def epoch_update():
    A('s_cmp_lg_u32 s2, 32')
    A('s_cbranch_scc1 L_noep')
    A(f'v_mov_b32 v2, {s(sTag)}')
    A(f'v_mov_b32 v3, {EP}')
    A(f'buffer_store_dword v2, v3, {s(rWS, 4)}, 0 offen sc1')
    A('L_noep:')


def build():
    prologue()
    n0 = nts[0]
    m = V.mark()
    main_ffn(main_ssm())
    epoch_update()
    ts_flush('m')
    A('s_endpgm')
    A('L_helper:')
    nts[0] = n0
    V.release(m)
    helper_mod()
    helper_rest()
    ts_flush('h')
    A('L_end:')
    A('s_endpgm')
    A.ext(COLD)
    A('L_code_end:')
    if OPT['nodma']:
        keys = [s(rW, 4)] * (OPT['nodma'] & 1) + [s(rWd, 4)] * (OPT['nodma'] >> 1)
        A.lines = ['    s_nop 0' if ('buffer_load' in ln and any(k in ln for k in keys)) else ln for ln in A.lines]
    if OPT['skip']:
        tg = [f';#w{i}' for i in range(7) if OPT['skip'] >> i & 1] + [f';#d{i}' for i in range(7) if OPT['skip'] >> (8 + i) & 1]
        A.lines = ['    s_nop 0' if ('buffer_load' in ln and any(ln.endswith(k) for k in tg)) else ln for ln in A.lines]
    X = OPT['exp']
    def drop(ln):
        if X & 1 and 'buffer_load_dword ' in ln and s(rX, 4) in ln and s(sM2) in ln:
            return True
        if X & 2 and ln.endswith(';#res'):
            return True
        if X & 4 and ';#xo' in ln and s(sT3) in ln:
            return True
        if X & 8 and ';#ao' in ln:
            return True
        if X & 16 and ';#a' in ln and 'buffer_load' in ln and int(ln.split(';#a')[1]) % 2:
            return True
        if X & 32 and ';#x' in ln and ' lds' in ln and not ln.endswith('x0'):
            return True
        return False
    A.lines = ['    s_nop 0' if drop(ln) else ln for ln in A.lines]
    body = pad_hazards(resolve_waits(A.lines))
    hdr = open('adaLN_cond__ssm_conv_s4__swiglu_ffn__prompt.s.ref').read().split('; Override launch')[0]
    text = hdr + '; @launch grid=(256,1,1) block=(256,1,1) lds=163840\n'
    text += f'.amdgcn_target "amdgcn-amd-amdhsa--gfx950"\n.text\n.globl {NAME}\n.p2align 8\n.type {NAME},@function\n{NAME}:\n'
    text += '\n'.join(body) + '\n'
    text += f'''.section .rodata,"a"
.p2align 6
.amdhsa_kernel {NAME}
  .amdhsa_next_free_vgpr 512
  .amdhsa_next_free_sgpr 102
  .amdhsa_accum_offset 256
  .amdhsa_group_segment_fixed_size 0
  .amdhsa_kernarg_size 144
  .amdhsa_user_sgpr_count 2
  .amdhsa_user_sgpr_kernarg_segment_ptr 1
  .amdhsa_system_sgpr_workgroup_id_x 1
  .amdhsa_float_denorm_mode_32 3
.end_amdhsa_kernel
'''
    open(sys.argv[1], 'w').write(text)
    print('vgpr high water', V.hi, 'lines', len(body))


build()
```

```python
import re
import sys
from asmgen import *

NAME = 'adaLN_cond__ssm_conv_s4__swiglu_ffn__prompt_kernel'
OPT = dict(ts=0, probe=-1, hprobe=-1, grp=0, nap=1, B_ord=6, B_k0=2, B_n0=3, B_n1=4, B_n2=2, B_cb1=2, B_cda=60, B_na=0, lw=0, dual=1, ord=1, kw=4, fw=0, pp=10, pc=20, sp=3, cb0=0, cb1=1, nb=2, w5=4, wb=24, nt=3, kb=4, x1e=3, e0=78, b1=113, b2=168, sl=34, sl1=36, sl2=46, gv=56, rm=2, la=7, pl=20, osc=2, g0=5, a0=206, g5=10, r3=188, r4=204, p0=196, f0=5, f1=9, f2=8, f3=24, nodma=0, hdelay=0, mdelay=0, exp=0, n0=6, n2=2, k0=2, xp=2, h1p=2, skip=0, pre1=1, tsb=2, n1=3, m2p=16, hbe=0, hb0=2, hb1=1, cd0=2, cd1=116, hw0=28, nc=4, se=1, s0=3, ls0=46, fs=16, q0=66, q1=82, q2=124, q3=140, q4=172, q5=180, r0=88, r1=122, r2=170, dg=8, nf=2, glc=0, na=2, cda=56, cdb=70, w2c=0, cd2=140, fa=20, gl=26, fp=8, pm=1, xo3=0, hx=1, qd=30, gb=42, re=0, hp=0, hf=0, npf=4, ha=0, hn=8)
for arg in sys.argv[2:]:
    k, val = arg.split('=')
    OPT[k] = int(val)

EP, ST1, MOD, AUG, ST2, FL2, FL3 = 0, 0x1000, 0x8000, 0x14000, 0x24000, 0xC0000, 0x40000
FL2S = 896 * 128
GO = 0x30000
INB, XS, X1P, ACT, TS = 0x100000, 0x500000, 0x700000, 0x900000, 0x1800000
SL = [0, 32768, 65536, 98304, 131072]
KG_W = 16320
HB, HC = 65024, 4160
KT, KT_CH, KT_C0 = 33792, 9152, 4568
XR = 52096
TXB = 13248
CKX = 60416
SPIN = 200000
ORDERS = ['WWWWWxWWWcccSSccccc', 'xWWWWWWWWcccSSccccc', 'xccccWWWWWWWWSScccc', 'xccccWWWWSSWWWWcccc', 'xWWWWccccSSWWWWcccc', 'xcccccWWWWWWWWSSccc',
          'xccccccWWWWSSWWWWcc', 'xWWWWWWWWccccSScccc', 'xcccWWWWWWWWcSScccc',
          'xccccccSSWWWWWWWWcc', 'xcccccccWWWWSSWWWWc', 'xccccccccWWWWSSWWWW', 'xcccccWWWWSSWWWWccc', 'WWxWWWWWWcccSSccccc', 'xWWWWWWcccSScWWcccc',
          'xcccccSSWWWWWWWWccc', 'xcccccccSSWWWWWWWWc', 'xWWWWWWcccSScccccWW', 'xWWWWWcccSScccccWWW', 'xWWWWcccSScccccWWWW']
XB = 51

pX, pAre, pAim, pBre, pBim, pCre, pCim, pLdt, pDs, pBx, pWg, pWu, pWd, pC, pWm, pOut, pDbg, pWs = range(4, 40, 2)
rX, rWS, rW, rWd, rOut, rWm = 40, 44, 48, 52, 56, 60
sWave, sTag, sJ, sMi, sNi, sMt, sNt, sRot, sLdt, sDs, sT0, sT1, sT2, sT3, sSpin, sM2 = range(64, 80)
sTS = 80
sC = 4
sD = 4
sW1k, sW8k, sWo, sFl, sTb = 11, 12, 13, 14, 15

A = Asm()
V = Regs('v', 6, 256)
TID, LANE, VST, VTAG = 0, 1, 2, 4
CODE_SLICE = 2176 if OPT['dual'] else 1152
sGi, sSo, sP, sGo, sGo2 = 36, 37, 63, 36, 37
nts = [0]


def ts(grp='0'):
    if OPT['ts'] and (grp == '*' or str(OPT['grp']) in grp):
        A(f's_mem{"real" if OPT["ts"] == 1 else ""}time {s(sTS + 2 * nts[0], 2)}')
        nts[0] += 1
        assert nts[0] <= 11


def ts_flush(tag):
    if not OPT['ts']:
        return
    pk = OPT['probe' if tag == 'm' else 'hprobe']
    if max(OPT['probe'], OPT['hprobe']) >= 0:
        if pk >= 0:
            A('s_waitcnt lgkmcnt(0)')
            A(f's_add_u32 {s(sT0)}, {s(sTS + 2 * pk)}, 6000')
            A(f'L_probe{tag}:')
            A(f's_memrealtime {s(sT2, 2)}')
            A('s_waitcnt lgkmcnt(0)')
            A(f's_sub_u32 {s(sT1)}, {s(sT2)}, {s(sT0)}')
            A(f's_cmp_lt_i32 {s(sT1)}, 0')
            A(f's_cbranch_scc1 L_probe{tag}')
        return
    n = nts[0]
    A('s_waitcnt lgkmcnt(0)')
    A(f's_lshl_b32 {s(sT0)}, s2, 2')
    A(f's_add_u32 {s(sT0)}, {s(sT0)}, {s(sWave)}')
    A(f's_lshl_b32 {s(sT0)}, {s(sT0)}, 6')
    A(f's_add_u32 {s(sT0)}, {s(sT0)}, {TS}')
    A(f'v_mov_b32 v2, {s(sT0)}')
    for i in range(n):
        A(f'v_mov_b32 v3, {s(sTS + 2 * i)}')
        A(f'buffer_store_dword v3, v2, {s(rWS, 4)}, 0 offen offset:{4 * i}')


def srd(r, p, nbytes):
    A(f's_mov_b32 {s(r)}, {s(p)}')
    A(f's_mov_b32 {s(r + 1)}, {s(p + 1)}')
    A(f's_mov_b32 {s(r + 2)}, {nbytes}')
    A(f's_mov_b32 {s(r + 3)}, 0x00020000')


def cmul(d, x, y):
    return [f'v_pk_mul_f32 {v(d, 2)}, {v(x, 2)}, {v(y, 2)} op_sel:[0,0] op_sel_hi:[1,0]',
            f'v_pk_fma_f32 {v(d, 2)}, {v(x, 2)}, {v(y, 2)}, {v(d, 2)} op_sel:[1,1,0] op_sel_hi:[0,1,1] neg_lo:[0,1,0]']


def div7(q, r, x):
    A(f's_mul_i32 {s(q)}, {s(x)}, 9363')
    A(f's_lshr_b32 {s(q)}, {s(q)}, 16')
    A(f's_mul_i32 {s(r)}, {s(q)}, 7')
    A(f's_sub_u32 {s(r)}, {s(x)}, {s(r)}')


COLD = []


def tag_wait(label, loads, tags, younger=0):
    o = [f'@vm {younger}' if isinstance(younger, str) else f's_waitcnt vmcnt({younger})']
    chk = [f'v_cmpx_eq_u32 vcc, {s(sTag)}, {v(t)}' for t in tags]
    chk += ['s_nop 0', 's_cmp_eq_u64 exec, -1', 's_mov_b64 exec, -1']
    o += chk + [f's_cbranch_scc0 {label}_re', f'{label}_ok:']
    c = [f'{label}_re:', f's_mov_b32 {s(sSpin)}, {SPIN}', f'{label}_lp:', f's_sleep {OPT["nap"]}']
    c += [x.split(';#')[0] for x in loads]
    c += ['s_waitcnt vmcnt(0)'] + chk + [f's_cbranch_scc1 {label}_ok', f's_sub_u32 {s(sSpin)}, {s(sSpin)}, 1',
                                         f's_cmp_lg_u32 {s(sSpin)}, 0', f's_cbranch_scc1 {label}_lp', f's_branch {label}_ok']
    COLD.extend(c)
    return '\n'.join(o)


def tag_units(label, loads, tags, younger, pair=None):
    chk = [f'v_cmp_ne_u32 vcc, {s(sTag)}, {v(tags[0])}']
    for t in tags[1:]:
        chk += [f'v_cmp_ne_u32 {s(sLdt, 2)}, {s(sTag)}, {v(t)}', f's_or_b64 vcc, vcc, {s(sLdt, 2)}']
    c = [f'{label}_re:', f's_mov_b32 {s(sSpin)}, {SPIN}', f'{label}_lp:', f's_sleep {OPT["nap"]}']
    c += [x.split(';#')[0] for x in loads]
    if pair is not None:
        chk = [f'v_cmp_ne_u32 {s(pair, 2)}, {s(sTag)}, {v(tags[0])}']
        c += ['s_waitcnt vmcnt(0)'] + chk + [f's_cmp_eq_u64 {s(pair, 2)}, 0', f's_cbranch_scc1 {label}_ok', f's_sub_u32 {s(sSpin)}, {s(sSpin)}, 1',
                                             f's_cmp_lg_u32 {s(sSpin)}, 0', f's_cbranch_scc1 {label}_lp', f's_branch {label}_ok']
        COLD.extend(c)
        return [f'@vm {younger}'] + chk + [f's_cmp_lg_u64 {s(pair, 2)}, 0\ns_cbranch_scc1 {label}_re\n{label}_ok:']
    c += ['s_waitcnt vmcnt(0)'] + chk + [f's_cbranch_vccz {label}_ok', f's_sub_u32 {s(sSpin)}, {s(sSpin)}, 1',
                                         f's_cmp_lg_u32 {s(sSpin)}, 0', f's_cbranch_scc1 {label}_lp', f's_branch {label}_ok']
    COLD.extend(c)
    return [f'@vm {younger}'] + chk + [f's_cbranch_vccnz {label}_re\n{label}_ok:']


def stats1_addr():
    A(f's_mov_b32 {s(rX + 2)}, 1835008')
    A(f's_mov_b32 {s(rX + 3)}, 0x00020000')
    A(f's_mov_b32 {s(rWS + 2)}, 0x10000000')
    A(f's_mov_b32 {s(rWS + 3)}, 0x00020000')
    A(f's_lshl2_add_u32 {s(sGi)}, s2, {s(sWave)}')
    A(f's_mul_i32 {s(sSo)}, {s(sGi)}, 1792')
    A(f'v_lshrrev_b32 v3, 5, {v(LANE)}')
    A('v_mul_u32_u24 v3, 896, v3')
    A(f'v_and_b32 v4, 31, {v(LANE)}')
    A('v_cmp_gt_u32 vcc, 28, v4')
    A('v_lshl_add_u32 v3, v4, 4, v3')
    A('v_bfrev_b32 v4, 2')
    A(f'v_cndmask_b32 {v(VST)}, v4, v3, vcc')


def stats1_loads(d):
    if OPT['pre1']:
        A(f's_lshl_b32 {s(sSpin)}, {s(sGi)}, 4')
        A(f's_add_u32 {s(sSpin)}, {s(sSpin)}, {ST1}')
        A(f'buffer_load_dword v5, off, {s(rWS, 4)}, {s(sSpin)}')
    A(f'buffer_load_dwordx4 {v(d, 4)}, {v(VST)}, {s(rX, 4)}, {s(sSo)} offen {"nt" if OPT["nt"] & 4 else ""}')
    A(f'buffer_load_dwordx4 {v(d + 4, 4)}, {v(VST)}, {s(rX, 4)}, {s(sSo)} offen offset:448 {"nt" if OPT["nt"] & 4 else ""}')


def stats1_compute(d):
    m = V.mark()
    g = V.get(4)
    s1, s2, one, t = V.get(), V.get(), V.get(), V.get()
    A(f'v_mov_b32 {v(one)}, 0x3f803f80')
    A(f'v_mov_b32 {v(s1)}, 0')
    A(f'v_mov_b32 {v(s2)}, 0')
    for i in range(8):
        A(f'v_dot2c_f32_bf16 {v(s1)}, {v(d + i)}, {v(one)}')
        A(f'v_dot2c_f32_bf16 {v(s2)}, {v(d + i)}, {v(d + i)}')
    for ctl in ('row_shr:1', 'row_shr:2', 'row_shr:4', 'row_shr:8'):
        for r in (s1, s2):
            A(f'v_add_f32_dpp {v(r)}, {v(r)}, {v(r)} {ctl} row_mask:0xf bank_mask:0xf bound_ctrl:1')
    for r in (s1, s2):
        A(f'v_add_f32_dpp {v(r)}, {v(r)}, {v(r)} row_bcast:15 row_mask:0xa bank_mask:0xf')
    A(f'v_mul_f32 {v(s1)}, 0x3b124925, {v(s1)}')
    A(f'v_mul_f32 {v(t)}, {v(s1)}, {v(s1)}')
    A(f'v_mov_b32 {v(one)}, 0x3b124925')
    A(f'v_fma_f32 {v(s2)}, {v(s2)}, {v(one)}, -{v(t)}')
    A(f'v_max_f32 {v(s2)}, 0, {v(s2)}')
    A(f'v_add_f32 {v(s2)}, 0x3727c5ac, {v(s2)}')
    A(f'v_rsq_f32 {v(g + 2)}, {v(s2)}')
    A(f'v_mov_b32 {v(g + 3)}, {s(sTag)}')
    A(f'v_mul_f32 {v(s1)}, {v(s1)}, {v(g + 2)}')
    A(f'v_readlane_b32 {s(sT1)}, {v(g + 2)}, 31')
    A(f'v_readlane_b32 {s(sT2)}, {v(s1)}, 31')
    A(f's_lshl_b32 {s(sT0)}, {s(sGi)}, 4')
    A(f's_add_u32 {s(sT0)}, {s(sT0)}, {ST1}')
    A(f'v_mov_b32 {v(g + 1)}, {s(sT1)}')
    A(f'v_cvt_pk_bf16_f32 {v(g)}, -{s(sT2)}, -{v(s1)}')
    A('s_mov_b32 exec_lo, 0')
    A('s_mov_b32 exec_hi, 0x80000000')
    A(f'buffer_store_dwordx4 {v(g, 4)}, off, {s(rWS, 4)}, {s(sT0)} sc1')
    A('s_mov_b64 exec, -1')
    V.release(m)


def reduce8(acc):
    for j in range(4):
        A(f'v_permlane32_swap_b32 {v(acc + j)}, {v(acc + j + 4)}')
    for j in range(4):
        A(f'v_add_f32 {v(acc + j)}, {v(acc + j)}, {v(acc + j + 4)}')
    for j in range(2):
        A(f'v_permlane16_swap_b32 {v(acc + j)}, {v(acc + j + 2)}')
    for j in range(2):
        A(f'v_add_f32 {v(acc + j)}, {v(acc + j)}, {v(acc + j + 2)}')
    for j in range(2):
        A(f'v_add_f32_dpp {v(acc + j)}, {v(acc + j)}, {v(acc + j)} row_ror:8 row_mask:0xf bank_mask:0xf')


def bf16_pair_from_partials(dst, g0, g1, plus1):
    A(f'v_add_f32 {v(dst)}, {v(g0)}, {v(g1)}')
    A(f'v_add_f32 {v(dst + 1)}, {v(g0 + 1)}, {v(g1 + 1)}')
    A(f'v_cvt_pk_bf16_f32 {v(g0)}, {v(dst)}, {v(dst + 1)}')
    A(f'v_lshlrev_b32 {v(dst)}, 16, {v(g0)}')
    A(f'v_and_b32 {v(dst + 1)}, 0xffff0000, {v(g0)}')
    if plus1:
        A(f'v_add_f32 {v(dst)}, 1.0, {v(dst)}')
        A(f'v_add_f32 {v(dst + 1)}, 1.0, {v(dst + 1)}')
        A(f'v_cvt_pk_bf16_f32 {v(g0)}, {v(dst)}, {v(dst + 1)}')
        A(f'v_lshlrev_b32 {v(dst)}, 16, {v(g0)}')
        A(f'v_and_b32 {v(dst + 1)}, 0xffff0000, {v(g0)}')


def prologue():
    A('s_cmp_ge_u32 s2, 256')
    A('s_cbranch_scc1 L_end')
    ts('*')
    A(f's_load_dwordx2 {s(rX, 2)}, s[0:1], 0')
    A(f's_load_dwordx2 {s(rWS, 2)}, s[0:1], 136')
    A('s_load_dwordx16 s[4:19], s[0:1], 0')
    A('s_load_dwordx16 s[20:35], s[0:1], 64')
    A(f's_getpc_b64 {s(sT2, 2)}')
    A('L_pc:')
    A(f's_lshr_b32 {s(sT0)}, s2, 3')
    A(f's_mul_i32 {s(sT0)}, {s(sT0)}, {CODE_SLICE}')
    A(f'v_lshrrev_b32 v3, 6, {v(TID)}')
    A(f'v_min_u32 v4, {CODE_SLICE // 128 - 1}, {v(TID)}')
    A(f'v_lshl_add_u32 v4, v4, 7, {s(sT0)}')
    A('v_min_u32 v4, L_code_end-L_pc-4, v4')
    A(f'v_readfirstlane_b32 {s(sWave)}, v3')
    A(f'v_and_b32 {v(LANE)}, 63, {v(TID)}')
    A(f'global_load_dword v5, v4, {s(sT2, 2)}')
    A(f's_sub_u32 {s(sJ)}, s2, 32')
    A('s_cbranch_scc1 L_helper')


UEXP = {}
for vv in range(14):
    for hh in range(2):
        if vv < 4:
            e = 4 * hh + vv
        elif vv < 7:
            e = 256 + 4 * hh + 2 * (vv - 4)
        elif vv < 10:
            e = 512 + 256 * hh + 4 * (vv - 7)
        elif vv < 12:
            e = 1024 + 512 * hh + 8 * (vv - 10)
        else:
            e = 1280 + 512 * hh + 8 * (vv - 12)
        rho = 8 * (vv >> 2) + 4 * hh + (vv & 3)
        UEXP.setdefault(e, []).append(rho if rho < 26 else rho - 2)


def stage_dma(cc, slot, voff, rsrc, rowb):
    out = []
    for i in range(8):
        u = ''
        if i % 4 == 0:
            u += f's_add_u32 m0, {s(sW8k)}, {SL[slot] + 1024 * i}\n'
        if i == 0:
            u += f's_mul_i32 {s(sWo)}, {s((sC if rsrc == rW else sD) + cc)}, {rowb // 64}\n'
        else:
            u += f's_add_u32 {s(sWo)}, {s(sWo)}, {8 * rowb + (3072 if i == 4 else -1024)}\n'
        u += f'buffer_load_dwordx4 {v(voff)}, {s(rsrc, 4)}, {s(sWo)} offen offset:{1024 * (i % 4)} lds'
        out.append(u)
    return out


def w_dma(cc, slot, P):
    return stage_dma(cc, slot, P['vW'], rW, 3584)


def wd_dma(cc, slot, P):
    return stage_dma(cc, slot, P['vWd'], rWd, 896)


def w_frags(cc, slot, P):
    out = []
    base, off = P['vWr'][slot // 2], 32768 * (slot % 2)
    for ks in range(4):
        for mat in range(2):
            for e in range(2):
                r = (mat * 28 + cc * 4 + ks) * 4 + 2 * e
                out.append(f'ds_read_b64_tr_b16 {a(r, 2)}, {v(base)} offset:{off + mat * 16384 + (16 * ks + 4 * e) * 128}')
    return out


def wdreg(cc, j, db, P):
    i = (j * 4 + db) * 4
    if cc == 0:
        return 'a', 224 + i
    if cc < 3:
        return 'v', P['wdv'] + 32 * (cc - 1) + i
    return 'a', 32 * (cc - 3) + i


def rn(kr, n):
    return (a if kr[0] == 'a' else v)(kr[1], n)


def wd_addr(slot, P):
    d = P['vDr']
    return [f'v_xor_b32 {v(d[1 + db])}, {SL[slot & ~1] + 32 * db}, {v(d[0])}' for db in range(4)]


def wd_frags(cc, slot, P):
    o = []
    for j in range(2):
        for db in range(4):
            k, r = wdreg(cc, j, db, P)
            for e in range(2):
                o.append(f'ds_read_b64_tr_b16 {rn((k, r + 2 * e), 2)}, {v(P["vDr"][1 + db])} offset:{32768 * (slot % 2) + (32 * j + 8 * e) * 128} ;#df{cc}')
    o[0] = f'@vm d{cc}\n' + o[0]
    return o


def flat(units):
    return [ln for u in units for ln in u.split('\n') if ln.strip()]


def tr_lane(dst, t0, t1, hmul, rowb):
    A(f'v_lshrrev_b32 {v(t0)}, 5, {v(LANE)}')
    A(f'v_bfe_u32 {v(t1)}, {v(LANE)}, 2, 2')
    A(f'v_lshl_add_u32 {v(t0)}, {v(t0)}, {hmul.bit_length() - 1}, {v(t1)}')
    A(f'v_lshlrev_b32 {v(dst)}, {rowb.bit_length() - 1}, {v(t0)}')
    A(f'v_bfe_u32 {v(t1)}, {v(LANE)}, 4, 1')
    A(f'v_lshl_add_u32 {v(dst)}, {v(t1)}, 5, {v(dst)}')
    A(f'v_and_b32 {v(t1)}, 3, {v(LANE)}')
    A(f'v_lshl_add_u32 {v(dst)}, {v(t1)}, 3, {v(dst)}')


def flag_store(vTag, soff):
    return ('s_mov_b64 exec, 1\n'
            f'buffer_store_dword {v(vTag)}, off, {s(rWS, 4)}, {s(soff)} sc1 ;#fl\n'
            's_mov_b64 exec, -1')


def capture(fn):
    keep, A.lines = A.lines, []
    fn()
    got, A.lines = [x.strip() for x in A.lines], keep
    return got


def main_ssm():
    P = {}
    V.release(2)
    V.get(4)
    vWd = V.get()
    vDr = [V.get() for _ in range(5)]
    vW = V.get()
    vWr = [V.get() for _ in range(3)]
    vXr = [V.get() for _ in range(3)]
    vFp = V.get()
    P.update(vW=vW, vWr=vWr, vWd=vWd, vDr=vDr, vXr=vXr, vFp=vFp)
    mp = V.mark()
    vM, aA, aB, aE, a0, aO, aO2, aXr, one = [V.get() for _ in range(9)]
    aX, aF, vG = V.get(), V.get(), V.get()
    M = V.get(4)
    sa, c1 = V.get(2), V.get(2)
    GB, SB = V.get(4), V.get(8)
    mb = V.mark()
    vI, aZ = V.get(), V.get()
    GA, SA = V.get(4), V.get(8)
    Gk = [GA, GA + 2, GB, GB + 2]
    Sk = [SA, SA + 4, SB, SB + 4]
    mk = V.mark()
    par = V.get(6)
    T = V.get(16, 4)
    st = V.get(8)
    q, tp, t0, t1, t2, vPf = [V.get() for _ in range(6)]
    dt = V.get(2)
    aU, aV, ax, ay, aK, aK2 = [V.get() for _ in range(6)]
    fU, fV = V.get(32), V.get(32)
    e2, rv = V.get(), V.get()
    B_, C_, W_, z1, z2, z4, z8, z256 = [V.get(2) for _ in range(8)]
    pp = [V.get(2) for _ in range(4)]
    cv = [V.get() for _ in range(8)]
    sKG, sKT, sOdd = 38, 39, 23
    sGa, sCb, sHm = 30, 32, 60
    A(f's_and_b32 {s(sT2)}, {s(sJ)}, 7')
    A(f's_lshr_b32 {s(sT3)}, {s(sJ)}, 3')
    A(f's_mul_i32 {s(sP)}, {s(sT2)}, 28')
    A(f's_add_u32 {s(sP)}, {s(sP)}, {s(sT3)}')
    A(f's_lshl_b32 {s(sT0)}, {s(sP)}, 10')
    A(f'v_lshl_add_u32 {v(t1)}, {v(TID)}, 2, {s(sT0)}')
    A(f's_lshl_b32 {s(sT1)}, {s(sP)}, 2')
    A('s_waitcnt lgkmcnt(0)')
    ts('1')
    for i, p in enumerate((pAre, pAim, pBre, pBim, pCre, pCim)):
        A(f'global_load_dword {v(par + i)}, {v(t1)}, {s(p, 2)} {"nt" if OPT["nt"] & 1 else ""} ;#par')
    A(f's_load_dword {s(sLdt)}, {s(pLdt, 2)}, {s(sT1)}')
    A(f's_load_dword {s(sDs)}, {s(pDs, 2)}, {s(sT1)}')
    A(f's_load_dword {s(sTag)}, {s(rWS, 2)}, {EP}')
    stats1_addr()
    A(f'v_min_u32 {v(t0)}, 147, {v(TID)}')
    A(f'v_lshrrev_b32 {v(t2)}, 1, {v(t0)}')
    A(f'v_mul_u32_u24 {v(t2)}, 896, {v(t2)}')
    A(f'v_and_b32 {v(t0)}, 1, {v(t0)}')
    A(f'v_mul_u32_u24 {v(t0)}, 108, {v(t0)}')
    A(f'v_add_u32 {v(t0)}, {v(t0)}, {v(t2)}')
    A(f's_mul_i32 {s(sT0)}, {s(sT3)}, {74 * 8}')
    A(f's_add_u32 {s(sT0)}, {s(sT0)}, {s(sT2)}')
    A(f's_mul_i32 {s(sT0)}, {s(sT0)}, 112')
    A.ext(tagged(capture(lambda: stats1_loads(st)), 'xa'))
    A(f'v_add_u32 {v(vPf)}, {s(sT0)}, {v(t0)}')
    xpf = f'buffer_load_dword v5, {v(vPf)}, {s(rX, 4)}, 0 offen'
    A(f'v_mul_u32_u24 {v(vG)}, 1792, {v(LANE)}')
    A(f's_mul_i32 {s(sM2)}, {s(sWave)}, {128 * 1792}')
    A(f's_add_u32 {s(sM2)}, {s(sM2)}, {s(sT1)}')
    col = []
    for k in range(4):
        col.append(f'buffer_load_dword {v(Gk[k])}, {v(vG)}, {s(rX, 4)}, {s(sM2)} offen ;#col{k // 2}')
        col.append(f'buffer_load_dword {v(Gk[k] + 1)}, {v(vG)}, {s(rX, 4)}, {s(sM2)} offen offset:896 ;#col{k // 2}\ns_add_u32 {s(sM2)}, {s(sM2)}, {(448 if k == 1 else 64) * 1792}')
    A(f's_and_b32 {s(sOdd)}, {s(sWave)}, 1')
    A(f's_mul_i32 {s(sKG)}, {s(sWave)}, {KG_W}')
    A(f's_lshr_b32 {s(sT2)}, {s(sWave)}, 1')
    A(f's_mul_i32 {s(sKT)}, {s(sT2)}, {KT_CH}')
    A(f's_add_u32 {s(sKT)}, {s(sKT)}, {KT}')
    A(f'v_and_b32 {v(t0)}, 31, {v(LANE)}')
    A(f'v_lshrrev_b32 {v(t1)}, 5, {v(LANE)}')
    A(f'v_lshl_add_u32 {v(t2)}, {v(t1)}, 4, {s(sKG)}')
    A(f'v_mul_u32_u24 {v(aV)}, 272, {v(t0)}')
    A(f'v_add_u32 {v(aV)}, {v(aV)}, {v(t2)}')
    A(f'v_cmp_lt_u32 vcc, 27, {v(t0)}')
    A(f'v_add_u32 {v(aU)}, {32 * 272}, {v(aV)}')
    A(f'v_add_u32 {v(t2)}, {30 * 272}, {v(aV)}')
    A(f'v_cndmask_b32 {v(aU)}, {v(aU)}, {v(t2)}, vcc')
    A(f'v_lshlrev_b32 {v(t0)}, 4, {v(t0)}')
    A(f'v_sub_u32 {v(t0)}, {s(sKT)}, {v(t0)}')
    A(f'v_lshlrev_b32 {v(aK)}, 3, {v(t1)}')
    A(f'v_sub_u32 {v(aK)}, {v(t0)}, {v(aK)}')
    A(f's_add_u32 {s(sT0)}, {s(sOdd)}, 9')
    A(f'v_lshlrev_b32 {v(aK2)}, {s(sT0)}, {v(t1)}')
    A(f'v_sub_u32 {v(aK2)}, {v(t0)}, {v(aK2)}')
    A(f'v_lshl_add_u32 {v(ax)}, {v(LANE)}, 4, {s(sKG)}')
    A(f's_xor_b32 {s(sT0)}, {s(sWave)}, 1')
    A(f's_mul_i32 {s(sT0)}, {s(sT0)}, {KG_W}')
    A(f'v_lshl_add_u32 {v(ay)}, {v(LANE)}, 4, {s(sT0)}')
    A(f's_lshl_b32 {s(sT0)}, {s(sWave)}, 11')
    A(f'v_lshl_add_u32 {v(vI)}, {v(LANE)}, 4, {s(sT0)}')
    A(f'v_and_b32 {v(t0)}, 3, {v(LANE)}')
    A(f'v_mul_u32_u24 {v(vM)}, 3584, {v(t0)}')
    A(f's_lshl_b32 {s(sT0)}, {s(sP)}, 4')
    A(f's_add_u32 {s(sT0)}, {s(sT0)}, {MOD}')
    A(f'v_add_u32 {v(vM)}, {s(sT0)}, {v(vM)}')
    A(f'v_bfe_u32 {v(one)}, {v(LANE)}, 1, 1')
    A(f'v_cvt_f32_u32 {v(one)}, {v(one)}')
    A(f'v_mov_b32 {v(cv[7])}, 0x3f80')
    A(f's_mov_b32 m0, {s(sKG)}')
    A(f's_lshl_b32 {s(sW1k)}, {s(sWave)}, 10')
    A(f's_lshl_b32 {s(sW8k)}, {s(sWave)}, 13')
    A(f'ds_write_addtid_b32 {v(cv[7])}')

    def late_setup():
        A(f'v_lshrrev_b32 {v(q)}, 3, {v(LANE)}')
        A(f'v_and_b32 {v(tp)}, 7, {v(LANE)}')
        A(f's_lshr_b32 {s(sT0)}, {s(sJ)}, 3')
        div7(sMi, sNi, sT0)
        A(f's_bfe_u32 {s(sT1)}, {s(sJ)}, 0x20001')
        A(f's_lshl2_add_u32 {s(sMt)}, {s(sT1)}, {s(sMi)}')
        A(f's_and_b32 {s(sT1)}, {s(sJ)}, 1')
        A(f's_mul_i32 {s(sNt)}, {s(sT1)}, 7')
        A(f's_add_u32 {s(sNt)}, {s(sNt)}, {s(sNi)}')
        A((f's_mov_b32 {s(sRot)}, {s(sNi)}', f's_add_u32 {s(sRot)}, {s(sMi)}, {s(sNi)}', f's_lshl1_add_u32 {s(sRot)}, {s(sMi)}, {s(sNi)}')[OPT['rm']])
        A(f's_lshl_b32 {s(sRot)}, {s(sRot)}, 2')
        A(f's_mov_b32 {s(sT2)}, 0x06543210')
        A(f's_mov_b32 {s(sT3)}, 0x10654321')
        A(f's_cmp_ge_u32 {s(sRot)}, 28\ns_cselect_b32 {s(sT1)}, 28, 0')
        A(f's_sub_u32 {s(sRot)}, {s(sRot)}, {s(sT1)}')
        A(f's_lshr_b64 {s(sT2, 2)}, {s(sT2, 2)}, {s(sRot)}')
        A(f's_cmp_lt_u32 {s(sWave)}, 2')
        A(f's_cselect_b64 {s(rW, 2)}, {s(pWg, 2)}, {s(pWu, 2)}')
        A(f's_mov_b32 {s(rW + 2)}, 1605632')
        A(f's_mov_b32 {s(rW + 3)}, 0x00020000')
        for cc in range(7):
            A(f's_bfe_u32 {s(sT0)}, {s(sT2)}, {hex(0x30000 + 4 * cc)}')
            A(f's_lshl_b32 {s(sC + cc)}, {s(sT0)}, 12')
        A(f'v_lshlrev_b32 {v(t0)}, 1, {v(q)}')
        A(f'v_and_b32 {v(t0)}, 4, {v(t0)}')
        A(f'v_xor_b32 {v(t0)}, {v(t0)}, {v(tp)}')
        A(f'v_lshlrev_b32 {v(t0)}, 4, {v(t0)}')
        A(f's_lshl1_add_u32 {s(sT0)}, {s(sNt)}, {s(sOdd)}')
        A(f's_lshl_b32 {s(sT0)}, {s(sT0)}, 7')
        A(f'v_mul_u32_u24 {v(vW)}, 3584, {v(q)}')
        A(f'v_add3_u32 {v(vW)}, {v(vW)}, {v(t0)}, {s(sT0)}')
        A(f's_mul_i32 {s(sT0)}, {s(sWave)}, {448 * 7}')
        A(f's_add_u32 {s(sT0)}, {s(sT0)}, {s(sNi)}')
        A(f's_lshl_b32 {s(sT0)}, {s(sT0)}, 7')
        A(f'v_and_b32 {v(t0)}, 6, {v(q)}')
        A(f'v_xor_b32 {v(t0)}, {v(t0)}, {v(tp)}')
        A(f'v_lshlrev_b32 {v(t0)}, 4, {v(t0)}')
        A(f'v_mul_u32_u24 {v(vWd)}, 896, {v(q)}')
        A(f'v_add3_u32 {v(vWd)}, {v(vWd)}, {v(t0)}, {s(sT0)}')
        A(f's_lshr_b32 {s(sT2)}, {s(sWave)}, 1')
        A(f's_lshl_b32 {s(sT1)}, {s(sOdd)}, 8')
        A(f's_mul_i32 {s(sT0)}, {s(sT2)}, {4 * HC}')
        A(f's_add_u32 {s(sT0)}, {s(sT0)}, {s(sT1)}')
        A(f's_add_u32 {s(sT0)}, {s(sT0)}, {HB}')
        A(f's_add_u32 {s(sT1)}, {s(sT1)}, {s(sKT)}')
        A(f's_add_u32 {s(sT1)}, {s(sT1)}, {KT_C0 + 4040 - 3584}')
        A(f'v_lshrrev_b32 {v(t0)}, 4, {v(LANE)}')
        A(f'v_bfe_u32 {v(t1)}, {v(LANE)}, 2, 2')
        A(f'v_add_u32 {v(t1)}, {v(t1)}, {v(t0)}')
        A(f'v_and_b32 {v(t2)}, 3, {v(LANE)}')
        A(f'v_mul_u32_u24 {v(e2)}, {HC}, {v(t2)}')
        A(f'v_lshl_add_u32 {v(aA)}, {v(t1)}, 4, {v(e2)}')
        A(f'v_add_u32 {v(aA)}, {s(sT0)}, {v(aA)}')
        A(f'v_lshl_add_u32 {v(aB)}, {v(t0)}, 4, {s(sT1)}')
        A(f'v_lshlrev_b32 {v(t1)}, 6, {v(tp)}')
        A(f'v_sub_u32 {v(aB)}, {v(aB)}, {v(t1)}')
        A(f'v_and_b32 {v(t1)}, 1, {v(q)}')
        A(f'v_mul_u32_u24 {v(t1)}, {KT_C0 + 8}, {v(t1)}')
        A(f'v_sub_u32 {v(aB)}, {v(aB)}, {v(t1)}')
        A(f'v_lshrrev_b32 {v(t0)}, 4, {v(TID)}')
        A(f'v_and_b32 {v(t1)}, 1, {v(q)}')
        A(f'v_lshl_add_u32 {v(t0)}, {v(t0)}, 2, {v(t1)}')
        A(f'v_mul_u32_u24 {v(t0)}, 28672, {v(t0)}')
        A(f'v_lshl_add_u32 {v(aO2)}, {v(tp)}, 4, {v(t0)}')
        A(f'v_lshrrev_b32 {v(t1)}, 1, {v(tp)}')
        A(f'v_lshl_add_u32 {v(t0)}, {v(t1)}, 4, {v(t0)}')
        A(f'v_and_b32 {v(t1)}, 1, {v(tp)}')
        A(f'v_lshl_add_u32 {v(aO)}, {v(t1)}, 6, {v(t0)}')
        A(f'v_xor_b32 {v(t1)}, {v(tp)}, {v(q)}')
        A(f'v_lshl_add_u32 {v(t1)}, {v(tp)}, 3, {v(t1)}')
        A(f's_lshl_b32 {s(sT0)}, {s(sWave)}, 12')
        A(f'v_lshl_add_u32 {v(aE)}, {v(t1)}, 4, {s(sT0)}')
        A(f'v_mul_u32_u24 {v(aZ)}, {HC}, {v(q)}')
        A(f'v_lshl_add_u32 {v(aZ)}, {v(tp)}, 3, {v(aZ)}')
        A(f'v_add_u32 {v(aZ)}, {HB}, {v(aZ)}')
        A(f'v_lshrrev_b32 {v(aX)}, 1, {v(vI)}')
        A(f'v_add_u32 {v(aX)}, {XR}, {v(aX)}')
        A(f's_lshl_b32 {s(sHm)}, {s(sWave)}, 9')
        A(f's_add_u32 {s(sHm)}, {s(sHm)}, {HB}')
        A(f's_add_u32 {s(sT1)}, {s(sHm)}, 512')
        A(f's_add_u32 {s(sT0)}, {s(sHm)}, 2')
        A(f'v_mov_b32 {v(aF)}, {s(sT1)}')
        A(f'v_writelane_b32 {v(aF)}, {s(sT0)}, 0')
        A(f'v_lshlrev_b32 {v(aXr)}, 4, {v(TID)}')
        A(f'v_xor_b32 {v(t0)}, {v(TID)}, {v(q)}')
        A(f'v_lshlrev_b32 {v(a0)}, 4, {v(t0)}')
        A(f's_lshl_b32 {s(sGo)}, {s(sMt)}, 8')
        A(f's_add_u32 {s(sGo)}, {s(sGo)}, {GO}')
        A(f'v_mov_b32 {v(VTAG)}, {s(sTag)}')
        A(f's_mul_i32 {s(sFl)}, {s(sWave)}, 224')
        A(f's_add_u32 {s(sFl)}, {s(sFl)}, {s(sJ)}')
        A(f's_lshl_b32 {s(sFl)}, {s(sFl)}, 7')
        A(f's_add_u32 {s(sFl)}, {s(sFl)}, {FL2}')

    def window_setup(t0, t1, t2, t3, t4):
        srd(rWd, pWd, 1605632)
        srd(rOut, pOut, 1835008)
        A(f'v_lshrrev_b32 {v(t1)}, 5, {v(LANE)}')
        A(f'v_bfe_u32 {v(t0)}, {v(LANE)}, 4, 1')
        A(f'v_and_b32 {v(t2)}, 3, {v(LANE)}')
        A(f'v_lshlrev_b32 {v(t2)}, 3, {v(t2)}')
        A(f'v_lshl_add_u32 {v(t2)}, {v(t0)}, 5, {v(t2)}')
        A(f'v_bfe_u32 {v(t0)}, {v(LANE)}, 2, 2')
        A(f'v_lshl_add_u32 {v(t3)}, {v(t1)}, 3, {v(t0)}')
        A(f'v_lshl_add_u32 {v(vXr[0])}, {v(t3)}, 6, {v(t2)}')
        A(f'v_and_b32 {v(t0)}, 8, {v(LANE)}')
        A(f'v_lshl_add_u32 {v(t2)}, {v(t0)}, 3, {v(t2)}')
        A(f'v_bfe_u32 {v(t4)}, {v(LANE)}, 2, 3')
        A(f'v_lshl_add_u32 {v(t1)}, {v(t1)}, 4, {v(t4)}')
        A(f'v_lshrrev_b32 {v(t4)}, 1, {v(t4)}')
        A(f'v_lshlrev_b32 {v(t4)}, 5, {v(t4)}')
        A(f'v_lshl_add_u32 {v(t4)}, {v(t1)}, 7, {v(t4)}')
        A(f'v_and_b32 {v(t1)}, 3, {v(LANE)}')
        A(f'v_lshl_add_u32 {v(t4)}, {v(t1)}, 3, {v(t4)}')
        A(f'v_add_u32 {v(vDr[0])}, {s(sW8k)}, {v(t4)}')
        A.ext(wd_addr(2, P))
        A(f's_lshr_b32 {s(sT0)}, {s(sWave)}, 1')
        A(f's_lshl_b32 {s(sT0)}, {s(sT0)}, 7')
        A(f's_add_u32 {s(sT0)}, {s(sT0)}, {s(sOdd)}')
        A(f's_lshl_b32 {s(sT0)}, {s(sT0)}, 6')
        A(f'v_lshl_add_u32 {v(vWr[0])}, {v(t3)}, 7, {v(t2)}')
        A(f'v_xor_b32 {v(vWr[0])}, {s(sT0)}, {v(vWr[0])}')
        for i in range(1, 3):
            A(f'v_add_u32 {v(vXr[i])}, 65536, {v(vXr[i - 1])}')
            A(f'v_add_u32 {v(vWr[i])}, 65536, {v(vWr[i - 1])}')
    P['window_setup'] = window_setup
    def mkpairs(cc, slot, vo_, rs, rowb, tg):
        o = []
        for i in range(4):
            u = [f's_add_u32 m0, {s(sW8k)}, {SL[slot] + 2048 * i}']
            u.append(f's_mul_i32 {s(sWo)}, {s(sC + cc)}, {rowb // 64}' if i == 0 else f's_add_u32 {s(sWo)}, {s(sWo)}, {8 * rowb + 1024}')
            u.append(f'buffer_load_dwordx4 {v(vo_)}, {s(rs, 4)}, {s(sWo)} offen {"nt" if OPT["nt"] & 8 else ""} lds ;#{tg}{cc}')
            u.append(f's_add_u32 {s(sWo)}, {s(sWo)}, {8 * rowb - 1024}')
            u.append(f'buffer_load_dwordx4 {v(vo_)}, {s(rs, 4)}, {s(sWo)} offen offset:1024 {"nt" if OPT["nt"] & 8 else ""} lds ;#{tg}{cc}')
            o.append('\n'.join(u))
        return o
    early = [u + f'\ns_mov_b32 m0, {s(sKG)}' for u in mkpairs(0, 3, vW, rW, 3584, 'w') + mkpairs(1, 4, vW, rW, 3584, 'w')]
    ls = capture(late_setup)
    A.ext(ls[:OPT['ls0']])
    A('@@SPLIT')
    mld = [f'buffer_load_dwordx4 {v(M, 4)}, {v(vM)}, {s(rWS, 4)}, 0 offen sc1 ;#m']
    h1 = []
    for k in range(4):
        if k % 2 == 0:
            h1.append(f's_mov_b32 {s(sSo)}, {ST1 + 4096 * k}')
        h1.append(f'buffer_load_dwordx4 {v(Sk[k], 4)}, {v(vI)}, {s(rWS, 4)}, {s(sSo)} offen offset:{1024 * (k % 2)} sc1 ;#h1')
    src = {'W': list(early), 'c': list(col), 'x': [xpf], 'S': [mld[0] + '\n' + '\n'.join(h1[:3]), '\n'.join(h1[3:])]}
    order = ORDERS[OPT['ord']]
    allv = [src[ch].pop(0) for ch in order]
    assert not any(src.values())
    need = max(order.rindex('S'), [i for i, ch in enumerate(order) if ch == 'c'][3], 0 if OPT['lw'] else [i for i, ch in enumerate(order) if ch == 'W'][3]) + 1
    K0 = OPT['k0']
    A.ext(allv[:K0])
    ts('1')
    A('s_waitcnt lgkmcnt(0)')
    A(f's_add_u32 {s(sTag)}, {s(sTag)}, 1')
    A(f's_lshl_b32 {s(sT0)}, {s(sLdt)}, 16')
    A(f's_and_b32 {s(sT1)}, {s(sLdt)}, 0xffff0000')
    A(f's_lshl_b32 {s(sT2)}, {s(sDs)}, 16')
    A(f's_and_b32 {s(sT3)}, {s(sDs)}, 0xffff0000')
    A(f's_cmp_lt_u32 {s(sWave)}, 2')
    A(f's_cselect_b32 {s(sLdt)}, {s(sT0)}, {s(sT1)}')
    A(f's_cselect_b32 {s(sDs)}, {s(sT2)}, {s(sT3)}')
    A(f'v_mov_b32 {v(t0)}, 0x3fb8aa3b')
    A(f'v_mul_f32 {v(dt)}, {s(sLdt)}, {v(t0)}')
    A(f'v_exp_f32 {v(dt)}, {v(dt)}')
    A(f'v_cvt_pk_bf16_f32 {v(dt)}, {v(dt)}, {v(dt)}')
    A(f'v_lshlrev_b32 {v(dt)}, 16, {v(dt)}')
    A('@vm par')
    ts('016')

    def setup(it):
        o = []
        un = (lambda d, x: f'v_lshlrev_b32 {v(d)}, 16, {v(x)}') if it == 0 else (lambda d, x: f'v_and_b32 {v(d)}, 0xffff0000, {v(x)}')
        o += [un(e2, par), un(rv, par + 1), un(B_, par + 2), un(B_ + 1, par + 3), un(C_, par + 4), un(C_ + 1, par + 5)]
        o += [f'v_mul_f32 {v(e2)}, {v(dt)}, {v(e2)}', f'v_mul_f32 {v(rv)}, {v(dt)}, {v(rv)}',
              f'v_mul_f32 {v(e2)}, 0x3fb8aa3b, {v(e2)}', f'v_mul_f32 {v(rv)}, 0.15915494, {v(rv)}',
              f'v_mul_f32 {v(B_)}, {v(dt)}, {v(B_)}', f'v_mul_f32 {v(B_ + 1)}, {v(dt)}, {v(B_ + 1)}']
        for z, p in ((z8, 0x41000000), (z1, None), (z256, 0x43800000)):
            if p is None:
                o += [f'v_exp_f32 {v(t0)}, {v(e2)}', f'v_fract_f32 {v(t1)}, {v(rv)}']
            else:
                o += [f'v_mul_f32 {v(t0)}, {hex(p)}, {v(e2)}', f'v_mul_f32 {v(t1)}, {hex(p)}, {v(rv)}',
                      f'v_exp_f32 {v(t0)}, {v(t0)}', f'v_fract_f32 {v(t1)}, {v(t1)}']
            o += [f'v_cos_f32 {v(z)}, {v(t1)}', f'v_sin_f32 {v(z + 1)}, {v(t1)}',
                  f'v_mul_f32 {v(z)}, {v(z)}, {v(t0)}', f'v_mul_f32 {v(z + 1)}, {v(z + 1)}, {v(t0)}']
        return o

    vals = []

    def put(pre, x, rows, neg):
        c = cv[len(vals) % 8]
        vals.append((pre + [f'v_cvt_pk_bf16_f32 {v(c)}, {v(x)}, {"-" if neg else ""}{v(x + 1)}'],
                     [f'ds_write_addtid_b32 {v(c)} offset:{272 * r}' for r in rows]))

    def putU(pre, x, e):
        put(pre, x, [32 + r for r in UEXP[e]], True)

    put(cmul(z2, z1, z1), z8, [1], False)
    putU(cmul(W_, C_, B_) + cmul(z4, z2, z2), W_, 0)
    cur = z8
    for j in range(2, 32):
        put(cmul(pp[j % 2], cur, z8), pp[j % 2], [j], False)
        cur = pp[j % 2]
    cur = W_
    for e in range(1, 8):
        putU(cmul(pp[e % 2], cur, z1), pp[e % 2], e)
        cur = pp[e % 2]
    qc = W_
    for k in range(1, 8):
        qn = pp[2 + k % 2]
        putU(cmul(qn, qc, z256), qn, 256 * k)
        qc = qn
        step, zz, n = (2, z2, 4) if k == 1 else ((4, z4, 2) if k < 4 else (8, z8, 1))
        cur = qn
        for i in range(1, n + 1):
            putU(cmul(pp[i % 2], cur, zz), pp[i % 2], 256 * k + step * i)
            cur = pp[i % 2]

    rb = [f'v_cvt_pk_bf16_f32 {v(M + 2)}, {v(M)}, {v(M + 1)}', f'v_lshlrev_b32 {v(M)}, 16, {v(M + 2)}', f'v_and_b32 {v(M + 1)}, 0xffff0000, {v(M + 2)}']
    mprep = [f'v_add_f32_dpp {v(M + ch)}, {v(M + ch)}, {v(M + ch)} quad_perm:[1,0,3,2] row_mask:0xf bank_mask:0xf' for ch in range(2)]
    mprep += rb + [f'v_add_f32 {v(M + ch)}, {v(M + ch)}, {v(one)}' for ch in range(2)] + rb

    rest = mkpairs(0, 3, vWd, rWd, 896, 'd') + mkpairs(2, 4, vW, rW, 3584, 'w')
    NB = OPT['kb']
    nbat = (len(vals) + NB - 1) // NB
    vdone = (32 + NB - 1) // NB

    def chains(dm, extra={}):
        dd = spread(nbat, dm, 0, nbat - 1)
        vr = spread(nbat, [f'ds_read_b128 {v(fV + 4 * ks, 4)}, {v(aV)} offset:{32 * ks}' for ks in range(8)], vdone, nbat - 1)
        for bi in range(nbat):
            grp = vals[NB * bi:NB * bi + NB]
            A('.p2align 3')
            for x in grp:
                A.ext(x[0])
            A.ext(extra.get(bi, []))
            A.ext(dd.get(bi, []))
            A.ext(vr.get(bi, []))
            for x in grp:
                A.ext(x[1])
        for ks in range(8):
            A(f'ds_read_b128 {v(fU + 4 * ks, 4)}, {v(aU)} offset:{32 * ks}')

    def kmm(first):
        return [f'v_mfma_f32_32x32x16_bf16 {v(T, 16)}, {v(fU + 4 * ks, 4)}, {v(fV + 4 * ks, 4)}, {"0" if first and ks == 0 else v(T, 16)}' for ks in range(8)]
    tail = {ks: [f's_waitcnt lgkmcnt({6 - ks})'] for ks in range(0, 7)}
    pub = ['@vm xa'] + capture(lambda: stats1_compute(st)) + capture(lambda: ts('1'))
    stream = allv[K0:]
    N0, N1, N2 = OPT['n0'], OPT['n0'] + OPT['n1'], OPT['n0'] + OPT['n1'] + OPT['n2']
    A.ext(setup(0))
    chains(stream[:N0], {OPT['tsb']: pub})
    su = setup(1)
    A.ext(su[:10])
    A('s_waitcnt lgkmcnt(7)')
    A.ext(sched(kmm(True), {}, tail, su[10:], 24)[0])
    ts('1')
    strip = lambda l: [u[:-len(m0r)] if u.endswith(m0r) else u for u in l]
    m0r = f'\ns_mov_b32 m0, {s(sKG)}'
    N3 = max(N2, need - K0)
    chains(stream[N0:N1])
    ts('1')
    R, K_ = B_, pp[0]
    HP = OPT['h1p']
    A(f'v_mov_b32 {v(cv[0])}, 0')
    A(f'v_mov_b32 {v(cv[1])}, 0')
    LS = ls[OPT['ls0']:] + capture(lambda: window_setup(t0, t1, t2, e2, rv))
    A.ext(LS[:18])
    A('s_waitcnt lgkmcnt(7)')
    A.ext(sched2(kmm(False), {}, tail, spread(8, flat(strip(stream[N1:N2])), 1, 7), [(0, 8, LS[18:66])], 24)[0])
    A(f's_cmp_lg_u32 {s(sOdd)}, 0')
    A('s_cbranch_scc1 L_expB')
    A(f'ds_write_b128 {v(ax)}, {v(T + 10, 4)}')
    A('s_mov_b64 exec, 1')
    A(f'v_add_f32 {v(T)}, {s(sDs)}, {v(T)}')
    A('s_mov_b64 exec, -1')
    A.ext(LS[66:82])
    A('s_waitcnt lgkmcnt(0)')
    A('s_barrier')
    for i in range(3):
        A(f'ds_read_b128 {v(R + 4 * i, 4)}, {v(ay)} offset:{TXB + 1024 * i}')
    mid = LS[82:]
    A.ext(mid)
    A('s_waitcnt lgkmcnt(0)')
    for i in range(0, 10, 2):
        A(f'v_pk_add_f32 {v(T + i, 2)}, {v(T + i, 2)}, {v(R + i, 2)}')
    for d, (x, y) in enumerate(((3, 2), (1, 0), (6, 5), (4, 4), (9, 9), (8, 8), (8, 7), (7, 7))):
        A(f'v_cvt_pk_bf16_f32 {v(K_ + d)}, {v(T + x)}, {v(T + y)}')
    for cp in (0, KT_C0):
        A(f'ds_write_b64 {v(aK)}, {v(K_, 2)} offset:{cp + 2 * 2044}')
        A(f'ds_write_b64 {v(aK)}, {v(K_ + 2, 2)} offset:{cp + 2 * 1788}')
        A(f'ds_write_b64 {v(aK2)}, {v(K_ + 4, 2)} offset:{cp + 2 * 1528}')
        A(f'ds_write_b64 {v(aK2)}, {v(K_ + 6, 2)} offset:{cp + 2 * 1528 + 8}')
    A('s_branch L_expD')
    A('L_expB:')
    for i in range(3):
        A(f'ds_write_b128 {v(ax)}, {v(T + 4 * i, 4)} offset:{TXB + 1024 * i}')
    A('s_mov_b32 vcc_lo, 0xaaaaaaaa')
    A('s_mov_b32 vcc_hi, 0xaaaaaaaa')
    A.ext(LS[66:82])
    A('s_waitcnt lgkmcnt(0)')
    A('s_barrier')
    A(f'ds_read_b128 {v(R, 4)}, {v(ay)}')
    A.ext(mid)
    A('s_waitcnt lgkmcnt(0)')
    for i in range(0, 4, 2):
        A(f'v_pk_add_f32 {v(T + 10 + i, 2)}, {v(T + 10 + i, 2)}, {v(R + i, 2)}')
    for wdw in range(2):
        v0_, v8_ = T + 10 + 2 * wdw, T + 11 + 2 * wdw
        A(f'v_cndmask_b32 {v(cv[2])}, {v(v0_)}, {v(v8_)}, vcc')
        A(f'v_cvt_pk_bf16_f32 {v(K_ + 4 * wdw)}, {v(v8_)}, {v(v8_)}')
        A(f'v_cvt_pk_bf16_f32 {v(K_ + 4 * wdw + 1)}, {v(v8_)}, {v(cv[2])}')
        A(f'v_cvt_pk_bf16_f32 {v(K_ + 4 * wdw + 2)}, {v(v0_)}, {v(v0_)}')
        A(f'v_cvt_pk_bf16_f32 {v(K_ + 4 * wdw + 3)}, {v(v0_)}, {v(v0_)}')
    for cp in (0, KT_C0):
        for wdw in range(2):
            base = cp + 2 * (2040 - 1024 - 256 * wdw)
            A(f'ds_write_b64 {v(aK2)}, {v(K_ + 4 * wdw, 2)} offset:{base}')
            A(f'ds_write_b64 {v(aK2)}, {v(K_ + 4 * wdw + 2, 2)} offset:{base + 8}')
    A('L_expD:')
    A(f's_mul_i32 {s(sT0)}, {s(sOdd)}, {KT_C0}')
    A(f's_add_u32 m0, {s(sT0)}, {s(sKT)}')
    A(f'ds_write_addtid_b32 {v(cv[0])} offset:4096')
    A(f'ds_write_addtid_b32 {v(cv[0])} offset:4304')
    ts('1')
    A.ext(strip(stream[N2:N3]))
    if not OPT['lw']:
        A('@vm w0')
    A(f's_cmp_eq_u32 {s(sWave)}, 0')
    A('s_barrier')
    A('s_cbranch_scc0 L_nozero')
    A(f'ds_write_b64 {v(aZ)}, {v(cv[0], 2)}')
    A('L_nozero:')
    colB = strip(stream[N3:])
    CB0 = OPT['cb0']
    A.ext(colB[:CB0])
    FW = OPT['fw']
    A.ext(w_frags(0, 3, P)[:FW])
    V.release(mk)
    HT = V.get(16)
    ts('1')
    A(tag_wait('L_m1', mld, [M + 3], 'm'))
    A.ext(mprep)
    A(f'v_and_b32 {v(HT)}, 2, {v(LANE)}')
    A(f'v_mul_u32_u24 {v(HT)}, 3584, {v(HT)}')
    for ch in range(2):
        A(f'v_mov_b32_dpp {v(sa + ch)}, {v(M + ch)} quad_perm:[0,0,0,0] row_mask:0xf bank_mask:0xf')
        A(f'v_mov_b32_dpp {v(c1 + ch)}, {v(M + ch)} quad_perm:[2,2,2,2] row_mask:0xf bank_mask:0xf')
    A(f'v_add_u32 {v(vM)}, {v(vM)}, {v(HT)}')
    A(f'v_add_u32 {v(vM)}, {2 * 7168}, {v(vM)}')

    def hbuild(hf, T_):
        E, F, xa, xb, nn, O = T_, T_ + 4, T_ + 8, T_ + 10, T_ + 12, T_ + 14
        for k in range(2):
            A(f'ds_write_b64 {v(aX)}, {v(Gk[2 * hf + k], 2)} offset:{4096 * hf + 512 * k}')
        A(f's_mov_b32 m0, {s(sHm)}')
        for k in range(2):
            g, sg, off = Gk[2 * hf + k], Sk[2 * hf + k], 2048 * hf + 256 * k
            A(f'v_lshlrev_b32 {v(xa)}, 16, {v(g)}')
            A(f'v_and_b32 {v(xa + 1)}, 0xffff0000, {v(g)}')
            A(f'v_lshlrev_b32 {v(xb)}, 16, {v(g + 1)}')
            A(f'v_and_b32 {v(xb + 1)}, 0xffff0000, {v(g + 1)}')
            A(f'v_lshlrev_b32 {v(nn)}, 16, {v(sg)}')
            A(f'v_and_b32 {v(nn + 1)}, 0xffff0000, {v(sg)}')
            A(f'v_pk_fma_f32 {v(xa, 2)}, {v(xa, 2)}, {v(sg, 2)}, {v(nn, 2)} op_sel:[0,1,0] op_sel_hi:[1,1,0]')
            A(f'v_pk_fma_f32 {v(xb, 2)}, {v(xb, 2)}, {v(sg + 2, 2)}, {v(nn, 2)} op_sel:[0,0,1] op_sel_hi:[1,0,1]')
            A(f'v_pk_fma_f32 {v(xa, 2)}, {v(xa, 2)}, {v(c1, 2)}, {v(sa, 2)}')
            A(f'v_pk_fma_f32 {v(xb, 2)}, {v(xb, 2)}, {v(c1, 2)}, {v(sa, 2)}')
            if k:
                for ch in range(2):
                    A(f'v_mov_b32_dpp {v(O + ch)}, {v(E + ch)} wave_ror:1 row_mask:0xf bank_mask:0xf')
            for ch in range(2):
                A(f'v_cvt_pk_bf16_f32 {v(E + 2 * k + ch)}, {v(xa + ch)}, {v(xb + ch)}')
            if k:
                A('s_mov_b64 exec, -2')
                for ch in range(2):
                    A(f'ds_write_addtid_b32 {v(F + ch)} offset:{(4 * ch + 0) * HC + off - 256 + 52}')
                    A(f'ds_write_addtid_b32 {v(F + ch)} offset:{(4 * ch + 2) * HC + off - 256 + 48}')
                A('s_mov_b64 exec, -1')
            for ch in range(2):
                A(f'ds_write_addtid_b32 {v(E + 2 * k + ch)} offset:{(4 * ch + 1) * HC + off + 52}')
                A(f'ds_write_addtid_b32 {v(E + 2 * k + ch)} offset:{(4 * ch + 3) * HC + off + 48}')
            for ch in range(2):
                A(f'v_mov_b32_dpp {v(O + ch)}, {v(E + 2 * k + ch)} wave_shr:1 row_mask:0xf bank_mask:0xf')
            for ch in range(2):
                A(f'v_alignbit_b32 {v(F + 2 * k + ch)}, {v(E + 2 * k + ch)}, {v(O + ch)}, 16')
        for ch in range(2):
            A(f'v_lshrrev_b32 {v(O + ch)}, 16, {v(E + 2 + ch)}')
        A('s_mov_b64 exec, 1')
        for ch in range(2):
            A(f'v_mov_b32 {v(O + ch)}, {v(E + ch)}')
        A('s_mov_b64 exec, -1')
        for ch in range(2):
            A(f'ds_write_addtid_b32 {v(F + 2 + ch)} offset:{(4 * ch + 0) * HC + 2048 * hf + 256 + 52}')
            A(f'ds_write_addtid_b32 {v(F + 2 + ch)} offset:{(4 * ch + 2) * HC + 2048 * hf + 256 + 48}')
        A('s_mov_b32 exec_lo, 1')
        A('s_mov_b32 exec_hi, 0x80000000')
        for ch in range(2):
            A(f'ds_write_b16 {v(aF)}, {v(O + ch)} offset:{(4 * ch + 0) * HC + 2048 * hf + 52}')
            A(f'ds_write_b16 {v(aF)}, {v(O + ch)} offset:{(4 * ch + 2) * HC + 2048 * hf + 48}')
        A('s_mov_b64 exec, -1')

    A(tag_wait('L_h1', h1, [Sk[k] + 3 for k in range(4)], 'h1 col0'))
    ts('017')
    A.ext(mld)
    hbuild(0, HT)
    CB1 = CB0 + OPT['cb1']
    A.ext(colB[CB0:CB1])
    A('s_waitcnt lgkmcnt(0)')
    A('s_barrier')
    ts('7')
    V.release(mb)
    RAW = V.get(4)
    X_ = V.get(8)
    Y = V.get(16)
    o1, o2, pk = V.get(4), V.get(4), V.get(4)
    t1 = V.get()
    acc = V.get(32, 4)
    fa = [V.get(32), V.get(32)]
    fb = [V.get(32), V.get(32)]

    def ra(ul, i, tag):
        return f'ds_read_b128 {v(fa[ul % 2] + 16 * (ul // 2) + 4 * (i % 4), 4)}, {v(aA)} offset:{512 * i + 64 * ul} ;#{tag}'

    def rb_(ul, i, pos, tag):
        return f'ds_read_b128 {v(fb[ul % 2] + 4 * pos, 4)}, {v(aB)} offset:{512 * (7 - i) + 64 * ul} ;#{tag}'

    def half(ul, tag):
        o = [ra(ul, 0, tag + 'x')] + [rb_(ul, i, i + 4 * (ul // 2), f'{tag}b{i}') for i in range(4)]
        return o + [ra(ul, i, tag) for i in range(1, 4)]

    def cmf(ul, uh, d, bsh, first):
        g = uh + d
        return (f'v_mfma_f32_16x16x32_bf16 {v(acc + 4 * g, 4)}, {v(fa[ul % 2] + 16 * (ul // 2) + 4 * (uh % 4), 4)}, '
                f'{v(fb[ul % 2] + 4 * (d + bsh), 4)}, {"0" if first else v(acc + 4 * g, 4)}')

    mm, wpos = [], {}
    for ul in (2, 3, 0):
        mm += [cmf(ul, uh, d, 4 * (ul // 2), ul == 2 and uh == 0) for uh in range(4) for d in range(4 - uh)]
    for g in range(3, -1, -1):
        mm += [cmf(1, uh, g - uh, 0, False) for uh in range(g + 1)]
        wpos[g] = len(mm) - 1
    for ul in range(4):
        mm += [cmf(ul, uh, d, 0, ul == 0 and uh == 0) for uh in range(4) for d in range(4 - uh, 8 - uh)]
    m2 = []
    for ul in (2, 3, 0):
        m2 += [cmf(ul, uh, d, 4 - 4 * (ul // 2), False) for uh in range(4, 8) for d in range(8 - uh)]
    for g in range(7, 3, -1):
        m2 += [cmf(1, uh, g - uh, 4, False) for uh in range(4, g + 1)]
        wpos[g] = len(m2) - 1
    assert len(mm) == 104 and len(m2) == 40
    tail = {0: ['@lg A2b1'], 1: ['@lg A2b2'], 2: ['@lg A2b3'], 3: ['@lg A2'], 9: ['@lg A3'], 19: ['@lg A0'], 29: ['@lg A1'], 39: ['@lg B0'],
            XB: ['s_waitcnt lgkmcnt(0)\ns_barrier'], 71: ['@lg B2'], 87: ['@lg B3']}
    LW = OPT['lw']
    if LW:
        assert FW == 0 and OPT['na'] == 0 and OPT['nb'] == 0
        tail[87] = ['@lg B3', '@vm w0\ns_barrier']
    head = merge(spread(104, half(0, 'A0'), 0, 9), spread(104, half(1, 'A1'), 10, 19),
                 spread(104, [rb_(0, i, i, 'B0') for i in range(4, 8)], 20, 27), spread(104, [rb_(1, i, i, 'B1') for i in range(4, 8)], 30, 38),
                 {28: [f'ds_read_b128 {v(RAW, 4)}, {v(aXr)} offset:{XR} ;#xr']},
                 spread(104, [rb_(2, i, i, 'B2') for i in range(8)], 56, 66), spread(104, [rb_(3, i, i, 'B3') for i in range(8)], 72, 83),
                 spread(104, [rb_(0, i, i + 4, 'C') for i in range(4)], 90, 98),
                 {XB + 1 + w: [f'ds_read_b128 {v(Y + 4 * w, 4)}, {v(a0)} offset:{4096 * w} ;#y'] for w in range(4)})
    wr = [f'ds_write_b128 {v(aE)}, {v(acc + 4 * g, 4)} offset:{16384 * (g // 4) + 1024 * (g % 4)}' for g in range(8)]
    for g in range(4):
        head = merge(head, {max(wpos[g] + 6, 40 + 2 * (3 - g)): [wr[g]]})

    def epil(st_, pkd):
        x = X_
        o = []
        for ch in range(2):
            y = Y + 8 * ch
            if pkd:
                sel = f'op_sel:[0,{ch},0] op_sel_hi:[1,{ch},1]'
                o.append(f's_waitcnt lgkmcnt({2 - 2 * ch})')
                for i in (0, 2):
                    o += [f'v_pk_add_f32 {v(y + i, 2)}, {v(y + i, 2)}, {v(y + 4 + i, 2)}',
                          f'v_pk_fma_f32 {v(x + 4 * ch + i, 2)}, {v(y + i, 2)}, {s(sGa, 2)}, {v(x + 4 * ch + i, 2)} {sel}',
                          f'v_pk_mul_f32 {v(y + i, 2)}, {v(x + 4 * ch + i, 2)}, {s(sCb, 2)} op_sel:[0,{ch}] op_sel_hi:[1,{ch}]']
            else:
                for i in range(4):
                    o += [f'v_add_f32 {v(y + i)}, {v(y + i)}, {v(y + 4 + i)}', f'v_fmac_f32 {v(x + 4 * ch + i)}, {s(sGa + ch)}, {v(y + i)}',
                          f'v_mul_f32 {v(y + i)}, {s(sCb + ch)}, {v(x + 4 * ch + i)}']
            o += [f'v_cvt_pk_bf16_f32 {v(pk + 2 * ch + i)}, {v(y + 2 * i)}, {v(y + 2 * i + 1)}' for i in range(2)]
        o += [f'v_cvt_pk_bf16_f32 {v(o2 + i)}, {v(x + i)}, {v(x + 4 + i)}' for i in range(4)]
        dp = 'quad_perm:[1,0,3,2] row_mask:0xf bank_mask:0xf'
        o += [f'v_cndmask_b32_dpp {v(o1 + i)}, {v(pk + 2 + i)}, {v(pk + i)}, vcc {dp}' for i in range(2)]
        o.append('s_not_b64 vcc, vcc')
        o += [f'v_cndmask_b32_dpp {v(o1 + 2 + i)}, {v(pk + i)}, {v(pk + 2 + i)}, vcc {dp}' for i in range(2)]
        o.append('s_not_b64 vcc, vcc')
        o.append(f'buffer_store_dwordx4 {v(o1, 4)}, {v(aO)}, {s(rWS, 4)}, {s(sT2)} offen sc1 ;#xo{st_}')
        o.append(f'buffer_store_dwordx4 {v(o2, 4)}, {v(aO2)}, {s(rWS, 4)}, {s(sT3)} offen sc1 ;#xo{st_}')
        return o

    unp = ['@lg xr']
    for i in range(4):
        unp += [f'v_lshlrev_b32 {v(X_ + i)}, 16, {v(RAW + i)}', f'v_and_b32 {v(X_ + 4 + i)}, 0xffff0000, {v(RAW + i)}']
    v1 = tag_units('L_m2', mld, [M + 3], 'm') + mprep
    v1 += [f'v_readlane_b32 {s(sGa + ch)}, {v(M + ch)}, 0' for ch in range(2)] + [f'v_readlane_b32 {s(sCb + ch)}, {v(M + ch)}, 2' for ch in range(2)]
    v1 += [f's_lshl_b32 {s(sT0)}, {s(sP)}, 7', f's_add_u32 {s(sT2)}, {s(sT0)}, {XS}', f's_add_u32 {s(sT3)}, {s(sT0)}, {X1P}',
           's_mov_b32 vcc_lo, 0x55555555', 's_mov_b32 vcc_hi, 0x55555555']
    v3 = ['@lg y'] + epil(0, False) + [f's_add_u32 {s(sT2)}, {s(sT2)}, {2 * 28672}', f's_add_u32 {s(sT3)}, {s(sT3)}, {2 * 28672}']
    fla = ['@vm xo0', flag_store(VTAG, sFl), f's_add_u32 {s(sFl)}, {s(sFl)}, {FL2S}']
    NA, NB_ = OPT['na'], OPT['na'] + OPT['nb']
    soft = merge(spread(104, flat(colB[CB1:]), OPT['cd0'], OPT['cda']),
                 {OPT['cda']: [f'buffer_load_dword {v(t1)}, off, {s(rWS, 4)}, {s(sGo)} sc1', f'buffer_load_dword {v(t1)}, off, {s(rWS, 4)}, {s(sGo)} offset:128 sc1']},
                 spread(104, flat(rest[:NA]), OPT['cdb'], 100), spread(104, tagged(w_frags(0, 3, P)[FW:], 'f0'), *((88, 101) if LW else (30, 46))))
    A.ext(half(2, 'A2') + half(3, 'A3'))
    A('@lg A2b0')
    code, info = sched2(mm, head, tail, soft, [(OPT['m2p'], 40, v1), (36, XB + 4, unp), (XB + 8, XB + 12, v3)], 8)
    print('conv', info)
    assert LW or max([0] + [i for i, u in enumerate(code) if u.endswith(';#f0')]) < code.index(tail[XB][0])
    assert max([0] + [i for i, u in enumerate(code) if u.endswith(';#w0')]) < code.index(tail[87][0])
    A.ext(code)
    A.ext([rb_(1, i, i + 4, 'C') for i in range(4)])
    ts('7')
    A('@vm col1 w1')
    ts('07')
    hbuild(1, Y)
    A.ext(rest[NA:NB_])
    A('s_waitcnt lgkmcnt(0)')
    A('s_barrier')
    ts('7')
    first = [ra(ul, i, f'D{ul}_{i}') for ul in (2, 3) for i in range(4, 8)]
    A.ext(first)
    A('@lg D2_4')
    tail = {3: ['@lg D2_5'], 6: ['@lg D2_7'], 9: ['@lg D3_7'], 19: ['@lg D0_7'], 29: ['@lg D1_7']}
    head = merge(spread(40, [ra(ul, i, f'D{ul}_{i}') for ul in (0, 1) for i in range(4, 8)], 0, 12),
                 {13: [f'ds_read_b128 {v(RAW, 4)}, {v(aXr)} offset:{XR + 4096} ;#xr']})
    assert OPT['nc'] <= 4
    soft = merge(spread(40, flat(rest[NB_:OPT['nc']]), 2, 34), {OPT['fa']: fla} if OPT['fa'] < 40 else {}, spread(40, w_frags(1, 4, P), 12, 36))
    code, info = sched2(m2, head, tail, soft, [(22, 38, unp)], 8)
    print('conv2', info)
    A.ext(code)
    A.ext([wr[g] for g in range(7, 3, -1)])
    ts('37')
    A('s_waitcnt lgkmcnt(0)')
    A('s_barrier')
    for w in range(4):
        A(f'ds_read_b128 {v(Y + 4 * w, 4)}, {v(a0)} offset:{16384 + 4096 * w}')
    if OPT['fa'] >= 40:
        A.ext(fla)
    A.ext(epil(1, True))
    ts('037')
    P['rest'] = rest[max(NB_, OPT['nc']):]
    V.release(mp)
    return P


def helper_flag_touch():
    A(f's_and_b32 {s(sT0)}, s2, 3')
    A(f's_lshl2_add_u32 {s(sT0)}, {s(sT0)}, {s(sWave)}')
    A(f's_mul_i32 {s(sT0)}, {s(sT0)}, 56')
    A(f'v_min_u32 v250, 55, {v(LANE)}')
    A(f'v_add_u32 v250, {s(sT0)}, v250')
    A('v_lshlrev_b32 v250, 7, v250')
    A(f'v_add_u32 v250, {FL2}, v250')
    A(f'buffer_load_dword v251, v250, {s(rWS, 4)}, 0 offen sc1')
    A(f's_mov_b32 {s(sT0)}, {FL2S}')
    A(f'buffer_load_dword v251, v250, {s(rWS, 4)}, {s(sT0)} offen sc1')


def helper_mod():
    st = V.get(8)
    wm = V.get(84)
    cc = V.get(7)
    ch = V.get(7)
    acc = V.get(8)
    t0, t1, t2, vo, aw, ar, vs, vw, vp = [V.get() for _ in range(9)]
    g = V.get(4)
    rd = V.get(8)
    pf = V.get(4)
    sHm, sHn = 38, 39
    stats1_addr()
    A('v_mov_b32 v250, 0')
    A(f'v_lshrrev_b32 {v(t0)}, 3, {v(LANE)}')
    A(f'v_lshlrev_b32 {v(t2)}, 1, {v(t0)}')
    A(f'v_and_b32 {v(t2)}, 4, {v(t2)}')
    A(f'v_and_b32 {v(t1)}, 7, {v(LANE)}')
    A(f'v_xor_b32 {v(t2)}, {v(t2)}, {v(t1)}')
    A(f'v_mul_u32_u24 {v(vw)}, 3584, {v(t0)}')
    A(f'v_lshl_add_u32 {v(vw)}, {v(t2)}, 4, {v(vw)}')
    A(f'v_lshlrev_b32 {v(vp)}, 4, {v(TID)}')
    A(f's_lshr_b32 {s(sT0)}, s2, 1')
    div7(sHm, sHn, sT0)
    A(f's_and_b32 {s(sT0)}, s2, 1')
    A(f's_mul_i32 {s(sT0)}, {s(sT0)}, 7')
    A(f's_add_u32 {s(sHn)}, {s(sHn)}, {s(sT0)}')
    A(f's_and_b32 {s(sT1)}, {s(sWave)}, 1')
    A(f's_lshr_b32 {s(sT2)}, {s(sWave)}, 1')
    A(f's_lshl1_add_u32 {s(sT0)}, {s(sHn)}, {s(sT1)}')
    A(f's_lshl_b32 {s(sT0)}, {s(sT0)}, 7')
    A(f's_mul_i32 {s(sT3)}, {s(sT2)}, {224 * 3584}')
    A(f's_add_u32 {s(sM2)}, {s(sT0)}, {s(sT3)}')
    A(f's_lshl1_add_u32 {s(sT3)}, {s(sT1)}, {s(sT2)}')
    A(f's_mul_i32 m0, {s(sT3)}, 28672')
    A('s_waitcnt lgkmcnt(0)')
    ts('1')
    A.ext(tagged(capture(lambda: stats1_loads(st)), 'hs'))
    A(f's_load_dword {s(sTag)}, {s(rWS, 2)}, {EP}')
    srd(rWd, pWd, 1605632)
    A('s_cmp_ge_u32 s2, 28')
    A('s_cbranch_scc1 L_hm_skip')
    A(f's_cmp_eq_u32 {s(sHm)}, 0')
    A(f's_cselect_b64 {s(rW, 2)}, {s(pWg, 2)}, {s(pWu, 2)}')
    A(f's_mov_b32 {s(rW + 2)}, 1605632')
    A(f's_mov_b32 {s(rW + 3)}, 0x00020000')
    wsl = [f'buffer_load_dwordx4 {v(vw)}, {s(rW, 4)}, {s(sM2)} offen lds\ns_add_u32 m0, m0, 1024\ns_add_u32 {s(sM2)}, {s(sM2)}, {8 * 3584}' for i in range(28)]
    srd(rWm, pWm, 2408448)
    A('s_cmp_ge_u32 s2, 14')
    A(f's_cselect_b32 {s(sMi)}, 1, 0')
    A(f's_mul_i32 {s(sT0)}, {s(sMi)}, 14')
    A(f's_sub_u32 {s(sNi)}, s2, {s(sT0)}')
    A(f's_lshl2_add_u32 {s(sT0)}, {s(sMi)}, {s(sWave)}')
    A(f's_mul_i32 {s(sT0)}, {s(sT0)}, 56')
    A(f'v_add_u32 {v(t0)}, {s(sT0)}, {v(t0)}')
    A(f'v_lshlrev_b32 {v(t2)}, 1, {v(t0)}')
    A(f'v_mul_u32_u24 {v(vo)}, 5376, {v(t0)}')
    A(f'v_lshl_add_u32 {v(vo)}, {v(t1)}, 4, {v(vo)}')

    def wload(task, i):
        u = f's_lshl_b32 {s(sWo)}, {s(sNi if task == 0 else sNt)}, 7\n' if i == 0 else f's_add_u32 {s(sWo)}, {s(sWo)}, {8 * 5376}\n'
        return u + f'buffer_load_dwordx4 {v(wm + 28 * task + 4 * i, 4)}, {v(vo)}, {s(rWm, 4)}, {s(sWo)} offen offset:{(0, 1792, 2688)[task]} {"nt" if OPT["nt"] & 2 else ""} ;#hw{task}_{i}'

    def pload(i):
        u = f's_mul_i32 {s(sWo)}, s2, {6 * 4096}\n' if i == 0 else f's_add_u32 {s(sWo)}, {s(sWo)}, 4096\n'
        return u + f'buffer_load_dwordx4 {v(pf, 4)}, {v(vp)}, {s(rWd, 4)}, {s(sWo)} offen'

    for i in range(7):
        A(f'global_load_ushort {v(cc + i)}, {v(t2)}, {s(pC, 2)} offset:{16 * i} ;#hc')
    for i in range(7):
        A(wload(0, i))
    A(f'v_lshrrev_b32 {v(t0)}, 4, {v(LANE)}')
    A(f'v_lshl_add_u32 {v(t0)}, {v(t1)}, 2, {v(t0)}')
    A(f's_lshl_b32 {s(sT0)}, {s(sWave)}, 8')
    A(f's_add_u32 {s(sT0)}, {s(sT0)}, {SL[4]}')
    A(f'v_lshl_add_u32 {v(aw)}, {v(t0)}, 3, {s(sT0)}')
    A(f'v_and_b32 {v(t0)}, 31, {v(LANE)}')
    A(f'v_lshlrev_b32 {v(ar)}, 3, {v(t0)}')
    A(f'v_add_u32 {v(ar)}, {SL[4]}, {v(ar)}')
    div7(sT2, sT3, sNi)
    A(f's_mul_i32 {s(sMt)}, {s(sT2)}, 7168')
    A(f's_mul_i32 {s(sNt)}, {s(sT2)}, 7')
    A(f's_add_u32 {s(sNt)}, {s(sNt)}, {s(sNi)}')
    A(f's_lshl1_add_u32 {s(sT2)}, {s(sT2)}, {s(sMi)}')
    A(f's_mul_i32 {s(sT2)}, {s(sT2)}, 7')
    A(f's_add_u32 {s(sT2)}, {s(sT2)}, {s(sT3)}')
    A(f's_lshl_b32 {s(sT2)}, {s(sT2)}, 9')
    A(f's_add_u32 {s(sT2)}, {s(sT2)}, {MOD}')
    A(f'v_lshl_add_u32 {v(vs)}, {v(t0)}, 4, {s(sT2)}')
    A('s_waitcnt lgkmcnt(0)')
    A(f's_add_u32 {s(sTag)}, {s(sTag)}, 1')
    ts('1')
    A('@vm hs')
    ts('1')
    stats1_compute(st)
    A('@vm hc')
    ts('1')
    for i in range(7):
        A(f'v_lshlrev_b32 {v(cc + i)}, 16, {v(cc + i)}')
        A(f'v_mul_f32 {v(ch + i)}, 0xbfb8aa3b, {v(cc + i)}')
        A(f'v_exp_f32 {v(ch + i)}, {v(ch + i)}')
    for i in range(7):
        A(f'v_add_f32 {v(ch + i)}, 1.0, {v(ch + i)}')
        A(f'v_rcp_f32 {v(ch + i)}, {v(ch + i)}')
    for i in range(7):
        A(f'v_mul_f32 {v(cc + i)}, {v(cc + i)}, {v(ch + i)}')
        A(f'v_cvt_pk_bf16_f32 {v(cc + i)}, {v(cc + i)}, 0')
        A(f'v_lshlrev_b32 {v(ch + i)}, 16, {v(cc + i)}')
    A(f'v_mov_b32 {v(g + 2)}, 0')
    A(f'v_mov_b32 {v(g + 3)}, {s(sTag)}')
    for task in range(3):
        for j in range(8):
            A(f'v_mov_b32 {v(acc + j)}, 0')
        for i in range(7):
            A(f'@vm hw{task}_{i}')
            if task < 2:
                A(wload(task + 1, i))
            else:
                A(wsl[i])
            for j in range(4):
                w = wm + 28 * task + 4 * i + j
                A(f'v_dot2c_f32_bf16 {v(acc + 2 * j)}, {v(w)}, {v(cc + i)}')
                A(f'v_dot2c_f32_bf16 {v(acc + 2 * j + 1)}, {v(w)}, {v(ch + i)}')
        ts('1')
        reduce8(acc)
        A(f'ds_write_b64 {v(aw)}, {v(acc, 2)} offset:{1024 * task}')
        A('s_waitcnt lgkmcnt(0)')
        A('s_barrier')
        A(f's_cmp_lg_u32 {s(sWave)}, {task}')
        A(f's_cbranch_scc1 L_hm_n{task}')
        for w in range(4):
            A(f'ds_read_b64 {v(rd + 2 * w, 2)}, {v(ar)} offset:{1024 * task + 256 * w}')
        A(f's_mov_b32 {s(sT0)}, 0' if task == 0 else f's_add_u32 {s(sT0)}, {s(sMt)}, {7168 * (task + 1)}')
        A('s_waitcnt lgkmcnt(0)')
        A(f'v_pk_add_f32 {v(rd, 2)}, {v(rd, 2)}, {v(rd + 2, 2)}')
        A(f'v_pk_add_f32 {v(rd + 4, 2)}, {v(rd + 4, 2)}, {v(rd + 6, 2)}')
        A(f'v_pk_add_f32 {v(g, 2)}, {v(rd, 2)}, {v(rd + 4, 2)}')
        A('s_mov_b32 exec_hi, 0')
        A(f'buffer_store_dwordx4 {v(g, 4)}, {v(vs)}, {s(rWS, 4)}, {s(sT0)} offen sc1 ;#cond')
        A('s_mov_b64 exec, -1')
        A(f'L_hm_n{task}:')
        if task == 0:
            ts()
    A.ext(wsl[7:])
    if OPT['hp']:
        A.ext([pload(i).replace(v(pf, 4), 'v[244:247]') for i in range(6)])
    A('s_branch L_hm_done')
    A('L_hm_skip:')
    A('s_waitcnt lgkmcnt(0)')
    A(f's_add_u32 {s(sTag)}, {s(sTag)}, 1')
    A('s_waitcnt vmcnt(0)')
    stats1_compute(st)
    helper_flag_touch()
    A(f's_sub_u32 {s(sWo)}, s2, 25')
    A(f's_mul_i32 {s(sWo)}, {s(sWo)}, {56 * 4096}')
    A(f's_mov_b32 {s(sT0)}, {OPT["npf"]}')
    A('L_hm_pf:')
    for i in range(4):
        A(f'buffer_load_dwordx4 {v(pf, 4)}, {v(vp)}, {s(rWd, 4)}, {s(sWo)} offen')
        A(f's_add_u32 {s(sWo)}, {s(sWo)}, 4096')
    A(f's_sub_u32 {s(sT0)}, {s(sT0)}, 1')
    A(f's_cmp_lg_u32 {s(sT0)}, 0')
    A('s_cbranch_scc1 L_hm_pf')
    A('s_waitcnt vmcnt(0)')
    A('L_hm_done:')
    ts()


def main_ffn(P):
    vW, vXr, vFp = P['vW'], P['vXr'], P['vFp']
    vXs, vL16, vTag, vSt = 2, 3, 4, 5
    gbp = V.get(4)
    x1r = V.get(8)
    Ag, Au = V.get(4), V.get(4)
    stt = V.get(16)
    xr = V.get(24)
    tmp = V.get(6)
    outp = V.get(8)
    acc = V.get(96)
    P['wdv'] = V.get(64)
    fp = P['vWr'][0]
    t0, t1, t2 = tmp, tmp + 1, tmp + 2
    XSLOT = [0, 1, 4, 2]
    FS = OPT['fs']
    sSt, sAo, sAi, sOo, sGb, sAu, sHf = 16, 17, 18, 19, 20, 21, 22
    sFl2 = 61

    def ffn_setup():
        A(f's_mov_b32 {s(sFl2)}, {s(sFl)}')
        A(f'v_lshlrev_b32 {v(vL16)}, 4, {v(LANE)}')
        A(f's_mul_i32 {s(sT0)}, {s(sMt)}, {4 * 28672}')
        A(f's_add_u32 {s(sT0)}, {s(sT0)}, {XS}')
        A(f'v_lshl_add_u32 {v(vXs)}, {v(TID)}, 4, {s(sT0)}')
        A(f'v_and_b32 {v(t0)}, 31, {v(LANE)}')
        A(f'v_lshlrev_b32 {v(vSt)}, 4, {v(t0)}')
        A(f'v_lshrrev_b32 {v(t1)}, 5, {v(LANE)}')
        A(f'v_mul_u32_u24 {v(t1)}, 28672, {v(t1)}')
        A(f'v_add_u32 {v(outp)}, {v(t1)}, {v(vSt)}')
        A(f's_lshl_b32 {s(sSt)}, {s(sMt)}, 11')
        A(f's_add_u32 {s(sSt)}, {s(sSt)}, {ST2}')
        A(f's_lshl2_add_u32 {s(sM2)}, {s(sNt)}, {s(sWave)}')
        A(f's_lshl_b32 {s(sAu)}, {s(sM2)}, 9')
        A(f's_add_u32 {s(sAu)}, {s(sAu)}, {AUG}')
        A(f's_mul_i32 {s(sT1)}, {s(sMt)}, 224')
        A(f's_add_u32 {s(sM2)}, {s(sM2)}, {s(sT1)}')
        A(f's_lshl_b32 {s(sAo)}, {s(sM2)}, 11')
        A(f's_add_u32 {s(sAo)}, {s(sAo)}, {ACT}')
        A(f's_lshl2_add_u32 {s(sT0)}, {s(sNt)}, {s(sWave)}')
        A(f's_mul_i32 {s(sT1)}, {s(sT0)}, 4682')
        A(f's_lshr_b32 {s(sT1)}, {s(sT1)}, 16')
        A(f's_lshl1_add_u32 {s(sT0)}, {s(sT1)}, {s(sT0)}')
        A(f's_lshl_b32 {s(sT1)}, {s(sMt)}, 8')
        A(f's_add_u32 {s(sT0)}, {s(sT0)}, {s(sT1)}')
        A(f's_mul_i32 {s(sFl)}, {s(sT0)}, {FS}')
        A(f's_add_u32 {s(sFl)}, {s(sFl)}, {FL3}')
        A(f's_and_b32 {s(sT0)}, {s(sJ)}, 7')
        A(f's_lshr_b32 {s(sT1)}, {s(sMi)}, 1')
        A(f's_lshl1_add_u32 {s(sT0)}, {s(sT0)}, {s(sT1)}')
        A(f's_lshl_b32 {s(sTb)}, {s(sT0)}, 2')
        A(f's_and_b32 {s(sHf)}, {s(sMi)}, 1')
        A(f's_lshl2_add_u32 {s(sRot)}, {s(sTb)}, {s(sWave)}')
        A(f's_mul_i32 {s(sRot)}, {s(sRot)}, 14')
        A(f's_lshl3_add_u32 {s(sAi)}, {s(sRot)}, {s(sHf)}')
        A(f's_lshl_b32 {s(sAi)}, {s(sAi)}, 8')
        A(f's_add_u32 {s(sAi)}, {s(sAi)}, {ACT}')
        A(f's_add_u32 {s(sOo)}, {s(sTb)}, {s(sHf)}')
        A(f's_mul_i32 {s(sOo)}, {s(sOo)}, {16 * 7}')
        A(f's_add_u32 {s(sOo)}, {s(sOo)}, {s(sNi)}')
        A(f's_lshl_b32 {s(sOo)}, {s(sOo)}, 7')
        A(f's_lshl_b32 {s(sGb)}, {s(sNi)}, 9')
        A(f's_add_u32 {s(sGb)}, {s(sGb)}, {MOD + 5 * 7168}')
        A(f'v_bfe_u32 {v(t2)}, {v(TID)}, 2, 5')
        A(f'v_and_b32 {v(t0)}, 3, {v(TID)}')
        A(f'v_lshl_add_u32 {v(t2)}, {v(t2)}, 3, {v(t0)}')
        A(f's_lshr_b32 {s(sT1)}, {s(sWave)}, 1')
        A(f's_add_u32 {s(sT0)}, {s(sTb)}, {s(sT1)}')
        A(f's_mul_i32 {s(sT0)}, {s(sT0)}, 7')
        A(f's_add_u32 {s(sT0)}, {s(sT0)}, {s(sNi)}')
        A(f's_lshl_b32 {s(sT0)}, {s(sT0)}, 6')
        A(f's_add_u32 {s(sT0)}, {s(sT0)}, {s(sHf)}')
        A(f's_lshl_b32 {s(sT0)}, {s(sT0)}, 6')
        A(f's_add_u32 {s(sT0)}, {s(sT0)}, {X1P}')
        A(f'v_lshl_add_u32 {v(outp + 2)}, {v(t2)}, 4, {s(sT0)}')
        A(f's_lshl2_add_u32 {s(sT1)}, {s(sTb)}, {s(sWave)}')
        A(f's_mul_i32 {s(sT1)}, {s(sT1)}, {16 * FS}')
        A(f's_add_u32 {s(sT1)}, {s(sT1)}, {FL3}')
        A(f'v_min_u32 {v(vFp)}, 13, {v(LANE)}')
        A(f'v_lshl_add_u32 {v(vFp)}, {v(vFp)}, {FS.bit_length() - 1}, {s(sT1)}')
        A(f'v_and_b32 {v(t0)}, 15, {v(LANE)}')
        A(f'v_lshrrev_b32 {v(t1)}, 4, {v(LANE)}')
        A(f'v_lshl_add_u32 {v(t0)}, {v(t1)}, 6, {v(t0)}')
        A(f'v_lshl_add_u32 {v(outp + 3)}, {v(t0)}, {FS.bit_length() - 1}, {s(sT1)}')
        A(f'v_and_b32 {v(t0)}, 7, {v(TID)}')
        A(f'v_lshlrev_b32 {v(outp + 1)}, 4, {v(t0)}')
        for i in range(4):
            A(f'v_mov_b32 {v(Au + i)}, 0')

    FP = OPT['fp']
    dm = P['rest'] + w_dma(3, 1, P) + w_dma(4, 2, P)
    pl = [f'buffer_load_dword {v(stt + 8)}, off, {s(rWS, 4)}, {s(sGo)} sc1 ;#go']
    A.ext(interleave(dm[:FP], capture(ffn_setup)))
    ts('3')
    A('@vm xo1')
    A(flag_store(vTag, sFl2))
    ts('3')
    A.ext(dm[FP:])
    A.ext(pl)
    A.ext(wd_frags(0, 3, P))
    A('@lg df0')
    A.ext(w_dma(5, 3, P)[:OPT['w5']])
    ts('3')
    A(tag_wait('L_f2', pl, [stt + 8], 'go'))
    A('s_barrier')
    ts('03')

    def xs_dma(b):
        o = []
        for cc in range(7):
            u = f's_add_u32 m0, {s(sW1k)}, {SL[XSLOT[b]] + 4096 * cc}\n'
            o += [u.strip(), f'buffer_load_dwordx4 {v(vXs)}, {s(rWS, 4)}, {s(sC + cc)} offen sc1 lds ;#x{b}']
        return o + [f'v_add_u32 {v(vXs)}, 28672, {v(vXs)}']

    A.ext(xs_dma(0))
    assert OPT['w5'] in (0, 4, 8)
    A.ext(interleave(w_frags(2, 4, P) + w_frags(3, 1, P) + w_frags(4, 2, P), w_dma(5, 3, P)[OPT['w5']:]))
    A('@vm x0')
    A('s_waitcnt lgkmcnt(0)')
    A('s_barrier')
    ts('0235')
    g = [f'buffer_load_dwordx4 {v(x1r, 4)}, {v(vSt)}, {s(rWS, 4)}, {s(sGb)} offen sc1 ;#g',
         f'buffer_load_dwordx4 {v(x1r + 4, 4)}, {v(vSt)}, {s(rWS, 4)}, {s(sGb)} offen offset:3584 sc1 ;#g',
         f'buffer_load_dwordx4 {v(Ag, 4)}, {v(outp)}, {s(rWS, 4)}, {s(sAu)} offen sc1 ;#g']
    gv = tag_units('L_g', g, [x1r + 3, x1r + 7, Ag + 3], 'g')
    gv += [f'v_add_f32 {v(x1r)}, {v(x1r)}, {v(x1r + 4)}', f'v_add_f32 {v(x1r + 1)}, {v(x1r + 1)}, {v(x1r + 5)}',
           f'v_cvt_pk_bf16_f32 {v(x1r)}, {v(x1r)}, {v(x1r + 1)}', f'v_mov_b32 {v(Ag + 3)}, 0']
    for i in range(3):
        gv.append(f's_mov_b32 exec_lo, 0\nv_mov_b32 {v(Au + i)}, {v(Ag + i)}\nv_mov_b32 {v(Ag + i)}, 0\ns_mov_b32 exec_lo, -1')
    gp = [f'ds_bpermute_b32 {v(gbp + i)}, {v(outp + 1)}, {v(x1r)} offset:{4 * i}' for i in range(4)]
    def poll3(st_):
        return [f's_mov_b32 {s(sT3)}, {64 * FS * st_}\nbuffer_load_dword {v(fp)}, {v(vFp)}, {s(rWS, 4)}, {s(sT3)} offen sc1 ;#pe{st_}']
    pre3 = [poll3(i)[0].replace(';#pe', ';#pre') for i in range(4)]

    def xread(n):
        b, ks = divmod(n, 28)
        sl = XSLOT[b]
        r = xr + 4 * (n % 6)
        return [f'ds_read_b64_tr_b16 {v(r + 2 * e, 2)}, {v(vXr[sl // 2])} offset:{32768 * (sl % 2) + 1024 * ks + 256 * e} ;#xf{n}' for e in range(2)]

    def accr(b):
        return acc + 32 * (b % 3)

    def aug(b):
        gg, uu, st = accr(b), accr(b) + 16, stt + 4 * b
        return [f'v_mov_b32 {v(st + 3)}, 0',
                f'v_lshlrev_b32 {v(tmp + 4)}, 16, {v(st + 2)}',
                f'v_and_b32 {v(tmp + 5)}, 0xffff0000, {v(st + 2)}',
                f'v_mfma_f32_32x32x16_bf16 {v(gg, 16)}, {v(Ag, 4)}, {v(st, 4)}, {v(gg, 16)}',
                f'v_add_f32 {v(tmp + 4)}, {v(tmp + 4)}, {v(tmp + 5)}',
                f'v_rcp_f32 {v(tmp + 5)}, {v(tmp + 4)}',
                f'v_mfma_f32_32x32x16_bf16 {v(uu, 16)}, {v(Au, 4)}, {v(st, 4)}, {v(uu, 16)}',
                f'v_mul_f32 {v(st)}, {v(tmp + 4)}, {v(tmp + 4)}',
                f'v_mul_f32 {v(st + 1)}, 0xbfb8aa3b, {v(tmp + 5)}']

    def epi(b, q):
        gg, uu, st = accr(b), accr(b) + 16, stt + 4 * b
        r4 = range(4 * q, 4 * q + 4)
        o = [f'v_mul_f32 {v(tmp + i % 4)}, {v(st + 1)}, {v(gg + i)}' for i in r4]
        for i in r4:
            o += [f'v_exp_f32 {v(tmp + i % 4)}, {v(tmp + i % 4)}', f'v_mul_f32 {v(gg + i)}, {v(gg + i)}, {v(uu + i)}']
        for i in r4:
            o += [f'v_fma_f32 {v(tmp + i % 4)}, {v(tmp + i % 4)}, {v(st)}, {v(st)}', f'v_rcp_f32 {v(tmp + i % 4)}, {v(tmp + i % 4)}']
        o += [f'v_mul_f32 {v(gg + i)}, {v(gg + i)}, {v(tmp + i % 4)}' for i in r4]
        o += [f'v_cvt_pk_bf16_f32 {v(outp + 2 * q + k)}, {v(gg + 4 * q + 2 * k)}, {v(gg + 4 * q + 2 * k + 1)}' for k in range(2)]
        if q % 2:
            o.append(f'buffer_store_dwordx4 {v(outp + 2 * q - 2, 4)}, {v(vL16)}, {s(rWS, 4)}, {s(sAo)} offen offset:{1024 * (q // 2)} sc1 ;#ao{b}')
        if q == 3:
            o.append(f's_add_u32 {s(sAo)}, {s(sAo)}, {112 * 1024}')
        return o

    def act_flag(b):
        return [f'@vm ao{b}', flag_store(vTag, sFl), f's_add_u32 {s(sFl)}, {s(sFl)}, {64 * FS}']

    def st_loads(b):
        return [f'buffer_load_dwordx4 {v(stt + 4 * b, 4)}, {v(vSt)}, {s(rWS, 4)}, {s(sSt)} offen offset:{512 * b} sc1 ;#s{b}']

    res = [f'buffer_load_dwordx4 {v(x1r, 4)}, {v(vW)}, {s(rWS, 4)}, 0 offen sc1 ;#res',
           f's_mov_b32 {s(sT2)}, {2 * 28672}\nbuffer_load_dwordx4 {v(x1r + 4, 4)}, {v(vW)}, {s(rWS, 4)}, {s(sT2)} offen sc1 ;#res']
    abuf = [('a', 128 + 4 * i) for i in range(24)]
    LA, G0 = OPT['la'], OPT['g0']
    vAl = P['vWr'][1]

    def aload(n):
        st_, kp = divmod(n, 14)
        return f'buffer_load_dwordx4 {rn(abuf[n % 24], 4)}, {v(vAl)}, {s(rWS, 4)}, {s(sD + kp // 2)} offen offset:{2048 * (kp % 2)} sc1 ;#a{n}'

    def astage(st_):
        u = tag_units(f'L_p{st_}', poll3(st_), [fp], f'pe{st_}', None if st_ else 34)
        return u + ([f'v_add_u32 {v(vAl)}, {112 * 1024}, {v(vAl)}'] if st_ else [])
    aadr = [f'v_lshrrev_b32 {v(vAl)}, 4, {v(LANE)}', f'v_lshlrev_b32 {v(vAl)}, 9, {v(vAl)}',
            f'v_and_b32 {v(P["vWr"][2])}, 0xf0, {v(vL16)}', f'v_add3_u32 {v(vAl)}, {v(vAl)}, {v(P["vWr"][2])}, {s(sAi)}']
    mm, head, tail = [], {}, {}
    for n in range(112):
        b, ks = divmod(n, 28)
        for mat in range(2):
            d = accr(b) + 16 * mat
            mm.append(f'v_mfma_f32_32x32x16_bf16 {v(d, 16)}, {a((mat * 28 + ks) * 4, 4)}, {v(xr + 4 * (n % 6), 4)}, {"0" if ks == 0 else v(d, 16)}')
        if n + 4 < 112:
            rd = xread(n + 4)
            head[2 * n] = [rd[0]]
            head[2 * n + 1] = [rd[1]]
        if n % 2 and n < 111:
            tail[2 * n + 1] = [f'@lg xf{n + 2}']
        if ks == 24 and b < 3:
            head[2 * n], head[2 * n + 1] = [], [f'@vm x{b + 1}\ns_waitcnt lgkmcnt(0)\ns_barrier'] + xread(n + 4)
    E0 = OPT['e0']
    GV = OPT['gv']
    assert GV + 10 <= E0 - 4
    Q = [OPT[f'q{i}'] for i in range(6)]
    R = [OPT[f'r{i}'] for i in range(5)]
    assert R[3] >= 185 and R[4] >= max(201, R[3] + 14)
    DG = OPT['dg']
    WB = OPT['wb']
    tail = merge(tail, {39: ['@lg wf5'], 47: ['@lg wf']})
    NF = OPT['nf']
    fr34 = [wd_frags(3, 1, P) + wd_addr(2, P), wd_frags(4, 3, P) + wd_addr(4, P), wd_frags(6, 4, P)]
    d56 = wd_dma(6, 4, P)
    gob = [f'buffer_load_dword {v(fp)}, off, {s(rWS, 4)}, {s(sGo)} offset:128 sc1 ;#gob']
    tag_units('L_gb', gob, [fp], 'gob', 34)
    gsl = [f's_add_u32 {s(sGo2)}, {s(sGo)}, 128', f's_load_dword {s(sGo2)}, {s(rWS, 2)}, {s(sGo2)} {"glc" if OPT["glc"] else ""}']
    gsc = [f's_cmp_lg_u32 {s(sGo2)}, {s(sTag)}\ns_cbranch_scc1 L_gb_re\nL_gb_ok:']
    assert OPT['gb'] <= 44 and Q[0] >= 52 and Q[2] >= 107 and Q[3] <= 150 and Q[5] >= 163
    soft = merge({},
                 spread(224, w_dma(6, 4, P) + [f'v_mov_b32 {v(vW)}, {v(outp + 2)}'] + xs_dma(1), 0, OPT['qd'] - 4),
                 {WB: ['@vm w6\ns_barrier']}, spread(224, tagged(w_frags(5, 3, P), 'wf5') + tagged(w_frags(6, 4, P), 'wf'), WB + 1, WB + 15),
                 spread(224, wd_dma(1, 2, P), OPT['qd'], Q[0]), {OPT['gb']: gsl}, {50: gsc},
                 spread(224, xs_dma(2), Q[0], Q[1]), spread(224, wd_dma(2, 3, P) + wd_dma(5, 0, P), Q[1], Q[2]),
                 spread(224, xs_dma(3), Q[2], Q[3]),
                 spread(224, wd_dma(3, 1, P) + wd_dma(4, 3, P), Q[3], Q[4]), spread(224, res, Q[4], Q[5]),
                 spread(224, d56[:DG], Q[5], OPT['a0'] - 4), {60: aadr},
                 spread(224, fr34[0] if NF > 0 else [], R[3], R[3] + 14), spread(224, fr34[1] if NF > 1 else [], R[4], R[4] + 14),
                 spread(224, wd_frags(1, 2, P), R[0], R[0] + 14), spread(224, wd_frags(2, 3, P) + wd_addr(0, P), R[1], R[1] + 16),
                 {E0 - OPT['sl']: st_loads(0), OPT['b1'] - OPT['sl1']: st_loads(1), OPT['b2'] - OPT['sl2']: st_loads(2), OPT['b2'] - OPT['sl2'] + 20: st_loads(3)},
                 spread(224, g + [f'buffer_load_dword {v(fp)}, {v(outp + 3)}, {s(rWS, 4)}, 0 offen sc1'], OPT['gl'], OPT['gl'] + 4),
                 {})
    chk0, chk1, chk2, chk3 = [tag_units(f'L_s{b}', st_loads(b), [stt + 4 * b + 3], f's{b}') for b in range(4)]
    gp3 = [';gap'] * 3
    parts = [epi(0, 0), epi(0, 1), epi(0, 2), epi(0, 3) + chk1, aug(1) + gp3 + epi(1, 0), epi(1, 1), epi(1, 2), epi(1, 3) + chk2,
             aug(2) + gp3 + epi(2, 0) + chk3, epi(2, 1), epi(2, 2), epi(2, 3)]
    PP, PC = OPT['pp'], OPT['pc']
    parts[9] = parts[9][:PP] + flat(poll3(0)) + parts[9][PP:]
    t23 = parts[10] + parts[11]
    t23 = t23[:PC] + astage(0) + interleave(t23[PC:-3], [aload(n) for n in range(G0)]) + t23[-3:]
    parts[10], parts[11] = t23, []
    F0, F1 = OPT['f0'], OPT['f1']
    parts[F0] = parts[F0] + act_flag(0)
    if F1 < 12:
        parts[F1] = parts[F1] + act_flag(1)
    for n in range(4):
        A.ext(xread(n))
    A('@lg xf1')
    B1, B2 = OPT['b1'], OPT['b2']
    segs = [(GV, E0 - 8, gv + gp), (E0 - 8, E0 - 3, chk0 + aug(0) + [';gap'] * 3), (E0, B1, sum(parts[:4], [])), (B1, B2, sum(parts[4:8], [])), (B2, 224, sum(parts[8:], []))]
    code, info = sched2(mm, head, tail, soft, segs, 24)
    print('gemm1', info)
    gapof, g_ = [], -1
    for u in code:
        g_ += u.startswith('v_mfma') and ', a[' in u
        gapof.append(g_)

    def span(key):
        ix = [gapof[i] for i, u in enumerate(code) if any(ln.endswith(key) for ln in u.split('\n'))]
        return (min(ix), max(ix)) if ix else (999, -1)
    seq = [OPT['qd']] + Q + [OPT['a0'] - 4]
    assert all(b_ - a_ >= 6 for a_, b_ in zip(seq, seq[1:])) and OPT['qd'] >= 14
    assert span(';#a0')[0] >= 180 + 2 * G0 and LA >= G0 and F0 < F1 and OPT['f2'] + 4 < OPT['f3'] and LA <= 13
    assert span(';#df1')[1] < 104 and span(';#df2')[1] + 8 < span(';#d4')[0] and span(';#d6')[0] > 161 and span(';#x3')[0] > 105
    assert span(';#x1')[1] < 48 and span(';#x2')[1] < 104 and span(';#x3')[1] < 160 and span(';#wf')[1] < 47 and span(';#wf5')[1] < 39
    assert min(span(';#x2')[0], span(';#d2')[0], span(';#d5')[0]) > span('L_gb_ok:')[0] > 49 and span(';#d3')[0] > 105
    assert span(';#d1')[1] < span(';#df1')[0] and span(';#d2')[1] < span(';#df2')[0] and span(';#w6')[1] < WB
    assert span(';#d3')[1] < span(';#df3')[0] and span(';#d4')[1] < span(';#df4')[0]
    assert span(';#g')[1] < GV and all(span(f';#s{b}')[1] + 3 < span(f'L_s{b}_ok:')[0] for b in range(4))
    nm_ = 0
    first_aug2 = None
    for u in code:
        if u.startswith('v_mfma') and f', {v(Ag, 4)}, {v(stt + 8, 4)}' in u:
            first_aug2 = nm_
        if u.startswith('v_mfma') and ', a[' in u:
            nm_ += 1
            if nm_ == 169:
                assert f'ao0' in ''.join(code[:code.index(u)]).split('offset:1024 sc1 ;#')[-1][:3] or True
        A(u)
        if u.startswith('v_mfma') and ', a[' in u and nm_ % 112 == 0:
            ts('2')
        if u.startswith('v_mfma') and ', a[' in u and nm_ % 28 == 0:
            ts('5')
    assert first_aug2 >= 168, first_aug2
    last0 = max(i for i, u in enumerate(code) if ';#ao0' in u and 'buffer_store' in u)
    assert sum(1 for u in code[:last0] if u.startswith('v_mfma') and ', a[' in u) <= 168
    ts('04')
    assert DG >= 8
    A.ext(aug(3))
    fr34 = fr34[NF:] + [[], [], [], []]
    A.ext(fr34[0])
    d56 = d56[DG:]
    late_ld = [aload(n) for n in range(G0, LA)]
    nq = (len(d56) + len(late_ld) + 3) // 4
    mem = d56 + late_ld
    A.ext(mem[:nq])
    for q_ in range(4):
        A.ext(epi(3, q_))
        if q_ == 1 and F1 >= 12:
            A.ext(act_flag(1))
        A.ext(mem[nq * (q_ + 1):nq * (q_ + 2)])
        A.ext(fr34[1 + q_ // 2] if q_ % 2 else [])
    if OPT['f2'] < 0:
        A.ext(act_flag(2))
    ts('2')
    wa = [stt, stt + 1]
    ra0, ra1, ao = stt + 4, stt + 5, stt + 6
    xu, gu = xr, xr + 16
    su = [f'v_and_b32 {v(t0)}, 15, {v(LANE)}',
          f'v_lshlrev_b32 {v(t0)}, 8, {v(t0)}',
          f'v_add_u32 {v(t0)}, {s(sW8k)}, {v(t0)}',
          f'v_lshrrev_b32 {v(t1)}, 4, {v(LANE)}',
          f'v_and_b32 {v(t2)}, 7, {v(LANE)}',
          f'v_xor_b32 {v(t1)}, {v(t1)}, {v(t2)}',
          f'v_lshl_add_u32 {v(wa[0])}, {v(t1)}, 4, {v(t0)}',
          f'v_add_u32 {v(wa[0])}, {SL[2]}, {v(wa[0])}',
          f'v_xor_b32 {v(wa[1])}, 64, {v(wa[0])}',
          f'v_lshrrev_b32 {v(t0)}, 3, {v(TID)}',
          f'v_and_b32 {v(t1)}, 7, {v(t0)}',
          f'v_lshlrev_b32 {v(ra0)}, 1, {v(t2)}',
          f'v_xor_b32 {v(ra0)}, {v(ra0)}, {v(t1)}',
          f'v_lshlrev_b32 {v(ra0)}, 4, {v(ra0)}',
          f'v_lshl_add_u32 {v(ra0)}, {v(t0)}, 8, {v(ra0)}',
          f'v_add_u32 {v(ra0)}, {SL[2]}, {v(ra0)}',
          f'v_xor_b32 {v(ra1)}, 16, {v(ra0)}',
          f'v_and_b32 {v(t1)}, 16, {v(t0)}',
          f'v_add_u32 {v(t0)}, {v(t0)}, {v(t1)}',
          f'v_mul_u32_u24 {v(ao)}, 896, {v(t0)}',
          f'v_lshl_add_u32 {v(ao)}, {v(t2)}, 4, {v(ao)}']
    for i in range(4):
        su += [f'v_lshlrev_b32 {v(gu + 2 * i)}, 16, {v(gbp + i)}', f'v_and_b32 {v(gu + 2 * i + 1)}, 0xffff0000, {v(gbp + i)}']
    xw, xrd = stt + 2, stt + 3
    su2 = [f'v_lshrrev_b32 {v(t0)}, 7, {v(TID)}', f'v_and_b32 {v(t1)}, 3, {v(TID)}', f'v_lshl_add_u32 {v(t0)}, {v(t0)}, 2, {v(t1)}',
           f'v_mul_u32_u24 {v(t0)}, 576, {v(t0)}', f'v_and_b32 {v(t1)}, 0x7c, {v(TID)}', f'v_add_u32 {v(t0)}, {v(t0)}, {v(t1)}',
           f'v_add_u32 {v(xw)}, {SL[4]}, {v(t0)}',
           f'v_lshrrev_b32 {v(t0)}, 3, {v(TID)}', f'v_mul_u32_u24 {v(t0)}, 144, {v(t0)}', f'v_lshl_add_u32 {v(t0)}, {v(t2)}, 4, {v(t0)}',
           f'v_add_u32 {v(xrd)}, {SL[4]}, {v(t0)}']
    su2 += [f'ds_write_b32 {v(xw)}, {v(x1r + i)} offset:{4608 * (i // 4) + 144 * (i % 4)}' for i in range(8)]
    xrr = [f'ds_read_b128 {v(x1r + 4 * b_, 4)}, {v(xrd)} offset:{4608 * b_}' for b_ in range(2)]
    xun = []
    for i in range(8):
        xun += [f'v_lshlrev_b32 {v(xu + 2 * i)}, 16, {v(x1r + i)}', f'v_and_b32 {v(xu + 2 * i + 1)}, 0xffff0000, {v(x1r + i)}']
    Y = acc

    def red_write(st_):
        d = acc + 32 + 16 * st_
        return [f'ds_write_b128 {v(wa[db % 2])}, {v(d + 4 * db, 4)} offset:{32768 * (st_ // 2) + 4096 * (st_ % 2) + 128 * (db // 2)}' for db in range(4)]

    def red_read(blk):
        o = []
        for w in range(4):
            o += [f'ds_read_b128 {v(Y + 8 * w, 4)}, {v(ra0)} offset:{32768 * blk + 8192 * w}',
                  f'ds_read_b128 {v(Y + 8 * w + 4, 4)}, {v(ra1)} offset:{32768 * blk + 8192 * w}']
        o[0] = 's_waitcnt lgkmcnt(0)\ns_barrier\n' + o[0]
        return o

    def red_final(blk, pk):
        o = ['s_waitcnt lgkmcnt(0)']
        x = xu + 8 * blk
        if pk:
            for i in range(0, 8, 2):
                o += [f'v_pk_add_f32 {v(Y + i, 2)}, {v(Y + i, 2)}, {v(Y + 8 + i, 2)}', f'v_pk_add_f32 {v(Y + 16 + i, 2)}, {v(Y + 16 + i, 2)}, {v(Y + 24 + i, 2)}',
                      f'v_pk_add_f32 {v(Y + i, 2)}, {v(Y + i, 2)}, {v(Y + 16 + i, 2)}', f'v_pk_fma_f32 {v(x + i, 2)}, {v(Y + i, 2)}, {v(gu + i, 2)}, {v(x + i, 2)}']
        else:
            for i in range(8):
                o += [f'v_add_f32 {v(Y + i)}, {v(Y + i)}, {v(Y + 8 + i)}', f'v_add_f32 {v(Y + 16 + i)}, {v(Y + 16 + i)}, {v(Y + 24 + i)}',
                      f'v_add_f32 {v(Y + i)}, {v(Y + i)}, {v(Y + 16 + i)}', f'v_fmac_f32 {v(x + i)}, {v(Y + i)}, {v(gu + i)}']
        o += [f'v_cvt_pk_bf16_f32 {v(outp + 4 * blk + i)}, {v(x + 2 * i)}, {v(x + 2 * i + 1)}' for i in range(4)]
        o.append(f'buffer_store_dwordx4 {v(outp + 4 * blk, 4)}, {v(ao)}, {s(rOut, 4)}, {s(sOo)} offen {("", "sc1", "sc1 nt", "nt")[OPT["osc"]]}')
        o.append(f's_add_u32 {s(sOo)}, {s(sOo)}, {1024 * 896}')
        return o

    mm, head, tail, soft = [], {}, {}, {}
    for n in range(56):
        st_, kp = divmod(n, 14)
        for db in range(4):
            d = acc + 32 + 16 * st_ + 4 * db
            mm.append(f'v_mfma_f32_16x16x32_bf16 {v(d, 4)}, {rn(wdreg(kp // 2, kp % 2, db, P), 4)}, {rn(abuf[n % 24], 4)}, {"0" if kp == 0 else v(d, 4)}')
        if n + LA < 56:
            m_ = n + LA
            if m_ % 14 == 0:
                as_ = astage(m_ // 14)
                soft = merge(soft, {max(0, 4 * n - 5): as_[:-1]}, {max(0, 4 * n - 2): as_[-1:]})
            soft = merge(soft, {4 * n: [aload(m_)]})
        if n < 55:
            tail[4 * n + 3] = [f'@vm a{n + 1}']
    for st_ in range(1, 4):
        soft = merge({max(0, 4 * (14 * st_ - LA) - OPT['pl'] - 5): flat(poll3(st_))}, soft, spread(224, red_write(st_ - 1), 56 * st_ + 9, 56 * st_ + 25))
    soft = merge(soft, ({OPT['f2']: act_flag(2)} if OPT['f2'] >= 0 else {}), {OPT['f3']: act_flag(3)}, spread(224, red_read(0) + xrr, 141, 151),
                 spread(224, wd_addr(0, P) + flat(wd_frags(5, 0, P)), OPT['g5'], 30))
    tail = merge(tail, {6: ['@lg df4 df6'], 38: ['@lg df5'], 54: ['s_barrier']})
    A('@vm a0')
    ts('2')
    rf0 = red_final(0, False)
    c1_, info = sched2(mm, head, tail, soft, [(36, 60, su[:9]), (60, 130, su[9:] + su2), (158, 210, rf0[:1] + xun[:8] + rf0[1:] + xun[8:])], 8)
    print('gemm2', info)
    pos = {u: i for i, u in enumerate(c1_)}
    assert max(i for i, u in enumerate(c1_) if ';#df5' in u) < pos[mm[38]]
    assert pos[su[8]] < pos[red_write(0)[0]] and pos[xrr[1]] < pos[rf0[0]] and pos[su2[-1]] < pos[red_read(0)[0]]
    for n in range(LA, 56):
        assert pos[aload(n)] < pos[mm[4 * (n - 3)]]
    c2_ = []
    for u in c1_ + c2_:
        A(u)
        if u is mm[55] or u is mm[167]:
            ts('2')
        if u is mm[111]:
            ts('02')
    A.ext(red_write(3) + red_read(1) + red_final(1, True))
    ts('0246')


def helper_rest():
    V.release(2)
    g = V.get(16)
    acc = V.get(16, 4)
    fw = V.get(112)
    fv = V.get(16)
    xx = V.get(56)
    t0, t1, t2, vo, vr, va, one, aw, ar, vl = [V.get() for _ in range(10)]
    rd = V.get(8)
    def fold_vectors():
        A('s_cmp_ge_u32 s2, 28')
        A('s_cbranch_scc1 L_hr_skip')
        A(f's_mov_b32 {s(sMi)}, s38')
        A(f's_mov_b32 {s(sNi)}, s39')
        A(f's_and_b32 {s(sT1)}, {s(sWave)}, 1')
        A(f's_lshr_b32 {s(sT2)}, {s(sWave)}, 1')
        tr_lane(vr, t0, t1, 8, 128)
        A(f'v_bfe_u32 {v(t1)}, {v(LANE)}, 3, 1')
        A(f'v_xor_b32 {v(t1)}, {s(sT1)}, {v(t1)}')
        A(f'v_lshl_add_u32 {v(vr)}, {v(t1)}, 6, {v(vr)}')
        A(f's_mul_i32 {s(sT3)}, {s(sT2)}, 57344')
        A(f'v_add_u32 {v(vr)}, {s(sT3)}, {v(vr)}')
        A(f'v_and_b32 {v(t0)}, 1, {v(LANE)}')
        A(f'v_lshlrev_b32 {v(va)}, 10, {v(t0)}')
        A(f'v_lshrrev_b32 {v(t0)}, 5, {v(LANE)}')
        A(f'v_lshl_add_u32 {v(va)}, {v(t0)}, 4, {v(va)}')
        A(f'v_add_u32 {v(va)}, {SL[4] + 4096}, {v(va)}')
        A(f'v_min_u32 {v(t2)}, 223, {v(TID)}')
        A(f'v_lshlrev_b32 {v(t0)}, 4, {v(t2)}')
        ld = []
        for i, sec in enumerate((4, 3)):
            ld += [f's_mov_b32 {s(sT3)}, {MOD + sec * 7168}',
                   f'buffer_load_dwordx4 {v(g + 8 * i, 4)}, {v(t0)}, {s(rWS, 4)}, {s(sT3)} offen sc1',
                   f'buffer_load_dwordx4 {v(g + 8 * i + 4, 4)}, {v(t0)}, {s(rWS, 4)}, {s(sT3)} offen offset:3584 sc1']
        A.ext(ld)
        A(tag_wait('L_hg', ld, [g + 3, g + 7, g + 11, g + 15]))
        bf16_pair_from_partials(rd, g, g + 4, True)
        bf16_pair_from_partials(rd + 2, g + 8, g + 12, False)
        A(f'v_lshlrev_b32 {v(t2)}, 2, {v(t2)}')
        A(f'v_add_u32 {v(t2)}, {SL[4] + 4096}, {v(t2)}')
        A(f'ds_write_b32 {v(t2)}, {v(g)}')
        A(f'ds_write_b32 {v(t2)}, {v(g + 8)} offset:1024')
        A('s_waitcnt lgkmcnt(0)')
        A('s_barrier')
        def hrd(ks):
            return [f'ds_read_b128 {v(xx + 4 * (ks % 8), 4)}, {v(va)} offset:{32 * ks}'] + [
                f'ds_read_b64_tr_b16 {v(fw + 4 * ks + 2 * e, 2)}, {v(vr)} offset:{(16 * ks + 4 * e) * 128} ;#hr{ks}' for e in range(2)]
        for ks in range(4):
            A.ext(hrd(ks))
        for ks in range(28):
            A(f'@lg hr{ks}')
            A(f'v_mfma_f32_32x32x16_bf16 {v(acc, 16)}, {v(xx + 4 * (ks % 8), 4)}, {v(fw + 4 * ks, 4)}, {"0" if ks == 0 else v(acc, 16)}')
            if ks + 4 < 28:
                A.ext(hrd(ks + 4))
        A(f's_mul_i32 {s(sT0)}, {s(sMi)}, 28672')
        A(f's_lshl_b32 {s(sT1)}, {s(sNi)}, 2')
        A(f's_add_u32 {s(sT1)}, {s(sT1)}, {s(sWave)}')
        A(f's_lshl_b32 {s(sT1)}, {s(sT1)}, 9')
        A(f's_add_u32 {s(sT0)}, {s(sT0)}, {s(sT1)}')
        A(f's_add_u32 {s(sT0)}, {s(sT0)}, {AUG}')
        A(f'v_lshlrev_b32 {v(t2)}, 4, {v(LANE)}')
        A(f'v_cvt_pk_bf16_f32 {v(g + 1)}, {v(acc)}, {v(acc + 1)}')
        A(f'v_lshlrev_b32 {v(t0)}, 16, {v(g + 1)}')
        A(f'v_and_b32 {v(t1)}, 0xffff0000, {v(g + 1)}')
        A(f'v_sub_f32 {v(acc + 2)}, {v(acc)}, {v(t0)}')
        A(f'v_sub_f32 {v(acc + 3)}, {v(acc + 1)}, {v(t1)}')
        A(f'v_cvt_pk_bf16_f32 {v(g)}, {v(t0)}, {v(acc + 2)}')
        A(f'v_cvt_pk_bf16_f32 {v(g + 2)}, {v(acc + 3)}, {v(t1)}')
        A(f'v_mov_b32 {v(g + 3)}, {s(sTag)}')
        A('s_mov_b32 exec_hi, 0')
        A(f'buffer_store_dwordx4 {v(g, 4)}, {v(t2)}, {s(rWS, 4)}, {s(sT0)} offen sc1')
        A('s_mov_b64 exec, -1')
        A('L_hr_skip:')
        ts('03')

    A(f's_and_b32 {s(sT1)}, s2, 7')
    A(f's_bfe_u32 {s(sT2)}, s2, 0x10003')
    A(f's_lshl1_add_u32 {s(sMt)}, {s(sT1)}, {s(sT2)}')
    A(f's_lshr_b32 {s(sT2)}, s2, 4')
    A(f's_lshl2_add_u32 {s(sTb)}, {s(sMt)}, {s(sT2)}')
    A(f's_mul_i32 {s(sT1)}, {s(sTb)}, 28672')
    A(f's_add_u32 {s(sT1)}, {s(sT1)}, {X1P}')
    A(f'v_lshl_add_u32 {v(vo)}, {v(TID)}, 4, {s(sT1)}')
    A(f'v_mov_b32 {v(one)}, 0x3f803f80')
    A(f'v_and_b32 {v(t1)}, 7, {v(LANE)}')
    A(f'v_lshrrev_b32 {v(t2)}, 4, {v(LANE)}')
    A(f'v_lshl_add_u32 {v(t2)}, {v(t1)}, 2, {v(t2)}')
    A(f's_lshl_b32 {s(sT0)}, {s(sWave)}, 8')
    A(f's_add_u32 {s(sT0)}, {s(sT0)}, {SL[4] + 8192}')
    A(f'v_lshl_add_u32 {v(aw)}, {v(t2)}, 3, {s(sT0)}')
    A(f'v_and_b32 {v(t1)}, 31, {v(LANE)}')
    A(f'v_lshlrev_b32 {v(ar)}, 3, {v(t1)}')
    A(f'v_add_u32 {v(ar)}, {SL[4] + 8192}, {v(ar)}')
    A(f'v_lshlrev_b32 {v(vl)}, 4, {v(LANE)}')
    A(f's_lshl_b32 {s(sM2)}, {s(sTb)}, 9')
    A(f's_add_u32 {s(sM2)}, {s(sM2)}, {ST2}')
    A(f's_bfe_u32 {s(sT0)}, s2, 0x20001')
    A(f's_lshr_b32 {s(sT1)}, s2, 3')
    A(f's_lshl2_add_u32 {s(sT0)}, {s(sT0)}, {s(sT1)}')
    A(f's_mul_i32 {s(sT0)}, {s(sT0)}, {4 * 28672}')
    A(f's_add_u32 {s(sT0)}, {s(sT0)}, {XS}')
    A(f'v_min_u32 v249, 223, {v(TID)}')
    A(f'v_lshl_add_u32 v249, v249, 7, {s(sT0)}')
    for blk in range(2):
        A('s_cmp_lt_u32 s2, 28')
        A(f's_cbranch_scc1 L_nogo{blk}')
        A(f's_mov_b32 {s(sSpin)}, {SPIN}')
        A(f's_mov_b32 {s(sT3)}, {FL2S * blk}')
        A(f'L_hf{blk}:')
        A(f'buffer_load_dword v251, v250, {s(rWS, 4)}, {s(sT3)} offen sc1')
        A(f's_sub_u32 {s(sSpin)}, {s(sSpin)}, 1')
        A(f's_cbranch_scc1 L_hf{blk}_ok')
        A('s_waitcnt vmcnt(0)')
        A(f'v_cmpx_ne_u32 vcc, {s(sTag)}, v251')
        A('s_nop 0')
        A(f's_cbranch_execnz L_hf{blk}')
        A(f'L_hf{blk}_ok:')
        A('s_mov_b64 exec, -1')
        A('s_barrier')
        A(f's_and_b32 {s(sT0)}, s2, 3')
        A(f's_lshl2_add_u32 {s(sT0)}, {s(sT0)}, {s(sWave)}')
        A(f's_lshl_b32 {s(sT0)}, {s(sT0)}, 8')
        A(f's_add_u32 {s(sT0)}, {s(sT0)}, {GO + 128 * blk}')
        A(f'v_mov_b32 v252, {s(sTag)}')
        A(flag_store(252, sT0).replace(';#fl', ';#cond'))
        A(f'L_nogo{blk}:')
    for blk in range(2):
        if blk == OPT['hf']:
            fold_vectors()
        A(f's_lshl_b32 {s(sT3)}, {s(sMt)}, 8')
        A(f's_add_u32 {s(sT3)}, {s(sT3)}, {GO + 128 * blk}')
        gl = [f'buffer_load_dword v251, off, {s(rWS, 4)}, {s(sT3)} sc1']
        A.ext(gl)
        A(tag_wait(f'L_hg{blk}', gl, [251]))
        if OPT['hx'] and blk == 0:
            A(f'buffer_load_dword v251, v249, {s(rWS, 4)}, 0 offen sc1')
        ts('03')
        for i in range(7):
            A(f's_mov_b32 {s(sT0)}, {2 * 28672 * blk + 4096 * i}')
            A(f'buffer_load_dwordx4 {v(xx + 28 * blk + 4 * i, 4)}, {v(vo)}, {s(rWS, 4)}, {s(sT0)} offen sc1 ;#hx{blk}_{i}')
        for j in range(8):
            A(f'v_mov_b32 {v(acc + j)}, 0')
        for i in range(7):
            A(f'@vm hx{blk}_{i}')
            for j in range(4):
                w = xx + 28 * blk + 4 * i + j
                A(f'v_dot2c_f32_bf16 {v(acc + 2 * j)}, {v(w)}, {v(one)}')
                A(f'v_dot2c_f32_bf16 {v(acc + 2 * j + 1)}, {v(w)}, {v(w)}')
        reduce8(acc)
        A(f'ds_write_b64 {v(aw)}, {v(acc, 2)} offset:{1024 * blk}')
        A('s_waitcnt lgkmcnt(0)')
        A('s_barrier')
        A(f's_cmp_lg_u32 {s(sWave)}, {blk}')
        A(f's_cbranch_scc1 L_hs_n{blk}')
        for w in range(4):
            A(f'ds_read_b64 {v(rd + 2 * w, 2)}, {v(ar)} offset:{1024 * blk + 256 * w}')
        A(f'v_mov_b32 {v(t2)}, 0x3b124925')
        A('s_waitcnt lgkmcnt(0)')
        A(f'v_pk_add_f32 {v(rd, 2)}, {v(rd, 2)}, {v(rd + 2, 2)}')
        A(f'v_pk_add_f32 {v(rd + 4, 2)}, {v(rd + 4, 2)}, {v(rd + 6, 2)}')
        A(f'v_pk_add_f32 {v(rd, 2)}, {v(rd, 2)}, {v(rd + 4, 2)}')
        A(f'v_mul_f32 {v(rd)}, 0xbb124925, {v(rd)}')
        A(f'v_mul_f32 {v(t0)}, {v(rd)}, {v(rd)}')
        A(f'v_fma_f32 {v(rd + 1)}, {v(rd + 1)}, {v(t2)}, -{v(t0)}')
        A(f'v_max_f32 {v(rd + 1)}, 0, {v(rd + 1)}')
        A(f'v_add_f32 {v(rd + 1)}, 0x3727c5ac, {v(rd + 1)}')
        A(f'v_sqrt_f32 {v(rd + 1)}, {v(rd + 1)}')
        A(f'v_cvt_pk_bf16_f32 {v(g)}, {v(rd)}, {v(rd)}')
        A(f'v_cvt_pk_bf16_f32 {v(t1)}, {v(rd + 1)}, {v(rd + 1)}')
        A(f'v_and_b32 {v(t0)}, 0xffff0000, {v(g)}')
        A(f'v_and_b32 {v(t1)}, 0xffff0000, {v(t1)}')
        A(f'v_sub_f32 {v(rd + 2)}, {v(rd)}, {v(t0)}')
        A(f'v_sub_f32 {v(rd + 3)}, {v(rd + 1)}, {v(t1)}')
        A(f'v_cvt_pk_bf16_f32 {v(g + 1)}, {v(rd + 2)}, {v(t1)}')
        A(f'v_cvt_pk_bf16_f32 {v(g + 2)}, {v(t1)}, {v(rd + 3)}')
        A(f'v_mov_b32 {v(g + 3)}, {s(sTag)}')
        A('s_mov_b32 exec_hi, 0')
        A(f'buffer_store_dwordx4 {v(g, 4)}, {v(vl)}, {s(rWS, 4)}, {s(sM2)} offen offset:{1024 * blk} sc1 ;#cond')
        A('s_mov_b64 exec, -1')
        A(f'L_hs_n{blk}:')
    ts()
    if OPT['ha']:
        FS = OPT['fs']
        A(f's_lshr_b32 {s(sT0)}, s2, 4')
        A(f's_lshl2_add_u32 {s(sT0)}, {s(sT0)}, {s(sWave)}')
        A(f's_lshr_b32 {s(sT1)}, {s(sT0)}, 1')
        A(f's_lshl4_add_u32 {s(sT1)}, {s(sMt)}, {s(sT1)}')
        A(f's_mul_i32 {s(sT1)}, {s(sT1)}, {16 * FS}')
        A(f's_add_u32 {s(sT1)}, {s(sT1)}, {FL3}')
        A(f'v_min_u32 v250, 13, {v(LANE)}')
        A(f'v_lshl_add_u32 v250, v250, {FS.bit_length() - 1}, {s(sT1)}')
        A(f's_lshl_b32 {s(sT1)}, {s(sMt)}, 5')
        A(f's_add_u32 {s(sT0)}, {s(sT0)}, {s(sT1)}')
        A(f's_mul_i32 {s(sT0)}, {s(sT0)}, 14336')
        A(f's_add_u32 {s(sT0)}, {s(sT0)}, {ACT}')
        A(f'v_min_u32 v249, 55, {v(LANE)}')
        A(f'v_lshl_add_u32 v249, v249, 8, {s(sT0)}')
        A(f's_mov_b32 {s(sT2)}, {OPT["ha"]}')
        A(f's_mov_b32 {s(sSpin)}, {SPIN}')
        A('L_ha:')
        A(f's_sleep {OPT["hn"]}')
        A(f'buffer_load_dword v251, v250, {s(rWS, 4)}, 0 offen sc1')
        A(f's_sub_u32 {s(sSpin)}, {s(sSpin)}, 1')
        A('s_cbranch_scc1 L_ha_end')
        A('s_waitcnt vmcnt(0)')
        A(f'v_cmp_ne_u32 vcc, {s(sTag)}, v251')
        A('s_cbranch_vccnz L_ha')
        A(f'buffer_load_dword v252, v249, {s(rWS, 4)}, 0 offen sc1')
        A(f'buffer_load_dword v253, v249, {s(rWS, 4)}, 0 offen offset:128 sc1')
        A(f'v_add_u32 v250, {64 * FS}, v250')
        A(f'v_add_u32 v249, {112 * 1024}, v249')
        A(f's_sub_u32 {s(sT2)}, {s(sT2)}, 1')
        A(f's_cmp_lg_u32 {s(sT2)}, 0')
        A('s_cbranch_scc1 L_ha')
        A('L_ha_end:')


def epoch_update():
    A('s_cmp_lg_u32 s2, 32')
    A('s_cbranch_scc1 L_noep')
    A(f'v_mov_b32 v2, {s(sTag)}')
    A(f'v_mov_b32 v3, {EP}')
    A(f'buffer_store_dword v2, v3, {s(rWS, 4)}, 0 offen sc1')
    A('L_noep:')


def build():
    prologue()
    n0 = nts[0]
    m = V.mark()
    keep = dict(OPT)
    for var in range(2 if OPT['dual'] else 1):
        if var:
            OPT.update({k[2:]: val for k, val in keep.items() if k.startswith('B_')})
        nts[0] = n0
        c0 = len(COLD)
        body = capture(lambda: (main_ffn(main_ssm()), epoch_update(), ts_flush('m'), A('s_endpgm')))
        cut = body.index('@@SPLIT')
        if var == 0:
            A.ext(body[:cut])
            if OPT['dual']:
                A(f's_bitcmp1_b32 {s(sMi)}, 0')
                A('s_cbranch_scc1 L_varB')
            A.ext(body[cut + 1:])
        else:
            ren = lambda x: re.sub(r'\b(L_\w+)', r'\1_B', x)
            A('L_varB:')
            A.ext([x for x in body[:cut] if x.startswith(('buffer_', 'global_'))] and ['@@REPLAY ' + x for x in body[:cut] if x.startswith(('buffer_', 'global_'))])
            A.ext([ren(x) for x in body[cut + 1:]])
            COLD[c0:] = [ren(x) for x in COLD[c0:]]
    OPT.update(keep)
    A('L_helper:')
    nts[0] = n0
    V.release(m)
    helper_mod()
    helper_rest()
    ts_flush('h')
    A('L_end:')
    A('s_endpgm')
    A.ext(COLD)
    A('L_code_end:')
    if OPT['nodma']:
        keys = [s(rW, 4)] * (OPT['nodma'] & 1) + [s(rWd, 4)] * (OPT['nodma'] >> 1)
        A.lines = ['    s_nop 0' if ('buffer_load' in ln and any(k in ln for k in keys)) else ln for ln in A.lines]
    if OPT['skip']:
        tg = [f';#w{i}' for i in range(7) if OPT['skip'] >> i & 1] + [f';#d{i}' for i in range(7) if OPT['skip'] >> (8 + i) & 1]
        A.lines = ['    s_nop 0' if ('buffer_load' in ln and any(ln.endswith(k) for k in tg)) else ln for ln in A.lines]
    X = OPT['exp']
    def drop(ln):
        if X & 1 and 'buffer_load_dword ' in ln and s(rX, 4) in ln and s(sM2) in ln:
            return True
        if X & 2 and ln.endswith(';#res'):
            return True
        if X & 4 and ';#xo' in ln and s(sT3) in ln:
            return True
        if X & 8 and ';#ao' in ln:
            return True
        if X & 16 and ';#a' in ln and 'buffer_load' in ln and int(ln.split(';#a')[1]) % 2:
            return True
        if X & 32 and ';#x' in ln and ' lds' in ln and not ln.endswith('x0'):
            return True
        return False
    A.lines = ['    s_nop 0' if drop(ln) else ln for ln in A.lines]
    body = pad_hazards(resolve_waits(A.lines))
    hdr = open('adaLN_cond__ssm_conv_s4__swiglu_ffn__prompt.s.ref').read().split('; Override launch')[0]
    text = hdr + '; @launch grid=(256,1,1) block=(256,1,1) lds=163840\n'
    text += f'.amdgcn_target "amdgcn-amd-amdhsa--gfx950"\n.text\n.globl {NAME}\n.p2align 8\n.type {NAME},@function\n{NAME}:\n'
    text += '\n'.join(body) + '\n'
    text += f'''.section .rodata,"a"
.p2align 6
.amdhsa_kernel {NAME}
  .amdhsa_next_free_vgpr 512
  .amdhsa_next_free_sgpr 102
  .amdhsa_accum_offset 256
  .amdhsa_group_segment_fixed_size 0
  .amdhsa_kernarg_size 144
  .amdhsa_user_sgpr_count 2
  .amdhsa_user_sgpr_kernarg_segment_ptr 1
  .amdhsa_system_sgpr_workgroup_id_x 1
  .amdhsa_float_denorm_mode_32 3
.end_amdhsa_kernel
'''
    open(sys.argv[1], 'w').write(text)
    print('vgpr high water', V.hi, 'lines', len(body))


build()
```
